```python
import torch

def _softmax(x, axis=-1):
    return torch.softmax(x, dim=axis)

def _gelu(x):
    return torch.nn.functional.gelu(x, approximate='tanh')

def _silu(x):
    return torch.nn.functional.silu(x)

def _sigmoid(x):
    return torch.sigmoid(x)

def _layernorm(x, axis=-1, eps=1e-05):
    m = x.mean(dim=axis, keepdim=True)
    v = x.var(dim=axis, keepdim=True, unbiased=False)
    return (x - m) / torch.sqrt(v + eps)

def _scatter_add(tgt, idx, src, axis=0):
    return tgt.clone().index_add_(axis, idx, src)

def _segment_sum(src, seg, n):
    out = torch.zeros((n,) + src.shape[1:], dtype=src.dtype)
    return out.index_add_(0, seg, src)

def _pad(x, pw):
    flat = tuple((v for pair in reversed(pw) for v in pair))
    return torch.nn.functional.pad(x, flat)
kernel_name = 'interleave_layers__memory_aug_recurrent_mem_tr__mixer_token_mlp__prompt'

def setup_inputs():

    _w = lambda a: (lambda t: t.to(torch.bfloat16) if t.is_floating_point() else t)(torch.as_tensor(a))

    def _A_setup():
        B, S, Dm = (1, 2048, 640)
        H, Dh = (32, 128)
        M, seg = (8, 32)
        seg = min(seg, S)
        S = S // seg * seg
        return {'x': _w((lambda *s: torch.randn(*s, dtype=torch.bfloat16) * 0.05)(B, S, Dm)), 'mem0': _w((lambda *s: torch.randn(*s, dtype=torch.bfloat16) * 0.2)(B, M, Dm)), 'Wq': _w((lambda *s: torch.randn(*s, dtype=torch.bfloat16) * 0.8)(Dm, H, Dh) * Dm ** (-0.5)), 'Wk': _w((lambda *s: torch.randn(*s, dtype=torch.bfloat16) * 0.8)(Dm, H, Dh) * Dm ** (-0.5)), 'Wv': _w((lambda *s: torch.randn(*s, dtype=torch.bfloat16) * 0.2)(Dm, H, Dh) * Dm ** (-0.5)), 'Wo': _w((lambda *s: torch.randn(*s, dtype=torch.bfloat16) * 0.2)(H, Dh, Dm) * (H * Dh) ** (-0.5)), 'seg_len': seg}
    _A_in = _A_setup()

    def _B_setup():
        B, S, D, F = (1, 2048, 640, 1728)
        return {'x': _w((lambda *s: torch.randn(*s, dtype=torch.bfloat16) * 0.05)(B, S, D)), 'w1': _w((lambda *s: torch.randn(*s, dtype=torch.bfloat16) * 0.2)(S, F) * S ** (-0.5)), 'b1': _w((lambda *s: torch.randn(*s, dtype=torch.bfloat16) * 3.2)(F) * 0.02), 'w2': _w((lambda *s: torch.randn(*s, dtype=torch.bfloat16) * 0.1)(F, S) * F ** (-0.5)), 'b2': _w((lambda *s: torch.randn(*s, dtype=torch.bfloat16) * 0.2)(S) * 0.02)}
    _B_in = _B_setup()
    return {'A_x': _A_in['x'], 'A_mem0': _A_in['mem0'], 'A_Wq': _A_in['Wq'], 'A_Wk': _A_in['Wk'], 'A_Wv': _A_in['Wv'], 'A_Wo': _A_in['Wo'], 'A_seg_len': _A_in['seg_len'], 'B_x': _B_in['x'], 'B_w1': _B_in['w1'], 'B_b1': _B_in['b1'], 'B_w2': _B_in['w2'], 'B_b2': _B_in['b2']}

def reference(A_x, A_mem0, A_Wq, A_Wk, A_Wv, A_Wo, A_seg_len, B_x, B_w1, B_b1, B_w2, B_b2):

    def _A_ref(x, mem0, Wq, Wk, Wv, Wo, seg_len):
        B, S, Dm = x.shape
        H, Dh = (Wq.shape[1], Wq.shape[2])
        M = mem0.shape[1]
        scale = Dh ** (-0.5)
        n_seg = S // seg_len
        L = M + seg_len
        idx = torch.arange(L)
        mask = (idx[:, None] < M) | (idx[:, None] >= idx[None, :])
        mem = mem0
        outs = []
        for s in range(n_seg):
            xs = x[:, s * seg_len:(s + 1) * seg_len, :].clone()
            h = torch.concatenate([mem, xs], axis=1)
            q = torch.einsum('btd,dhe->bhte', h, Wq)
            k = torch.einsum('btd,dhe->bhte', h, Wk)
            v = torch.einsum('btd,dhe->bhte', h, Wv)
            scores = torch.einsum('bhqe,bhke->bhqk', q, k) * scale
            scores = torch.where(mask[None, None], scores, -1000000000.0)
            p = _softmax(scores, axis=-1)
            o = torch.einsum('bhqk,bhke->bhqe', p, v)
            o = torch.einsum('bhte,hed->btd', o, Wo)
            mem = o[:, :M, :].clone()
            outs.append(o[:, M:, :])
        return torch.concatenate(outs, axis=1)

    def _B_ref(x, w1, b1, w2, b2):
        B, S, D = x.shape
        h = _layernorm(x, axis=-1)
        u = torch.einsum('bsd,sf->bdf', h, w1) + b1
        u = _gelu(u)
        y = torch.einsum('bdf,fs->bds', u, w2) + b2
        return (lambda x, *d: x.permute(*d))(y, 0, 2, 1)
    x = A_x
    x = x + _A_ref(_layernorm(x, axis=-1), A_mem0, A_Wq, A_Wk, A_Wv, A_Wo, A_seg_len)
    x = x + _B_ref(_layernorm(x, axis=-1), B_w1, B_b1, B_w2, B_b2)
    x = x + _A_ref(_layernorm(x, axis=-1), A_mem0, A_Wq, A_Wk, A_Wv, A_Wo, A_seg_len)
    x = x + _B_ref(_layernorm(x, axis=-1), B_w1, B_b1, B_w2, B_b2)
    return x
```

```python
import re

_REG = re.compile(r'^(-|abs\()?\s*([vas])(?:(\d+)|\[(\d+):(\d+)\])\)?$')


def regs_of(tok):
    tok = tok.strip()
    m = _REG.match(tok)
    if m:
        f = m.group(2)
        if m.group(3) is not None:
            return {(f, int(m.group(3)))}
        return {(f, i) for i in range(int(m.group(4)), int(m.group(5)) + 1)}
    if tok in ('vcc', 'vcc_lo', 'vcc_hi'):
        return {('x', 'vcc')}
    if tok in ('exec', 'exec_lo', 'exec_hi'):
        return {('x', 'exec')}
    if tok == 'm0':
        return {('x', 'm0')}
    return set()


TRANS = ('v_exp_f32', 'v_log_f32', 'v_rcp_f32', 'v_rsq_f32', 'v_sqrt_f32', 'v_sin_f32', 'v_cos_f32',
         'v_rcp_iflag_f32')


class Ins:
    __slots__ = ('text', 'op', 'ops', 'mods', 'kind', 'wr', 'rd', 'srcc', 'passes', 'dpp', 'label', 'target',
                 'vmdst', 'stdata', 'wide', 'auto')

    def __init__(self, text):
        self.text = text
        self.label = None
        self.target = None
        self.auto = False
        t = text.split(';')[0].strip()
        if t.endswith(':'):
            self.kind = 'label'
            self.label = t[:-1]
            self.op = ''
            self.wr = set(); self.rd = set(); self.srcc = set(); self.passes = 0; self.dpp = False
            self.vmdst = set(); self.stdata = set(); self.wide = False
            self.ops = []
            return
        sp = t.split(None, 1)
        op = sp[0]
        rest = sp[1] if len(sp) > 1 else ''
        parts = [p.strip() for p in rest.split(',')] if rest else []
        mods = ''
        if parts:
            last = parts[-1].split()
            if len(last) > 1 and not parts[-1].startswith('hwreg') and op != 's_waitcnt':
                parts[-1] = last[0]
                mods = ' '.join(last[1:])
        self.op = op
        self.ops = parts
        self.mods = mods
        self.wr = set(); self.rd = set(); self.srcc = set(); self.passes = 0
        self.dpp = ('_dpp' in op) or ('row_' in mods) or ('quad_perm' in mods) or ('quad_perm' in rest)
        self.vmdst = set(); self.stdata = set(); self.wide = False
        R = [regs_of(p) for p in parts]
        base = op.replace('_e32', '').replace('_e64', '').replace('_dpp', '').replace('_sdwa', '')
        if op.startswith('v_mfma') or op.startswith('v_smfmac'):
            self.kind = 'mfma'
            self.wr = set(R[0])
            self.rd = R[1] | R[2]
            if op.startswith('v_smfmac'):
                self.srcc = set(R[0])
                self.rd |= R[3]
            else:
                self.srcc = set(R[3])
            self.passes = 8 if '32x32' in op else 4
        elif op.startswith('v_'):
            self.kind = 'trans' if base in TRANS else 'valu'
            if base.startswith('v_cmpx'):
                self.wr = R[0] | {('x', 'exec')}
                self.rd = set().union(*R[1:])
            elif base.startswith('v_permlane') and 'swap' in base:
                self.kind = 'perm'
                self.wr = R[0] | R[1]
                self.rd = R[0] | R[1]
            elif base in ('v_add_co_u32', 'v_sub_co_u32', 'v_addc_co_u32', 'v_subb_co_u32', 'v_subrev_co_u32',
                          'v_mad_u64_u32', 'v_div_scale_f32'):
                self.wr = R[0] | R[1]
                self.rd = set().union(*R[2:])
            elif base == 'v_nop':
                pass
            else:
                self.wr = set(R[0])
                self.rd = set().union(*R[1:]) if len(R) > 1 else set()
                if base in ('v_fmac_f32', 'v_dot2c_f32_bf16', 'v_pk_fmac_f16', 'v_writelane_b32') or self.dpp:
                    self.rd |= R[0]
                if base == 'v_cndmask_b32' and len(parts) == 3:
                    self.rd |= {('x', 'vcc')}
        elif op.startswith('ds_'):
            self.kind = 'ds'
            if op.startswith('ds_read') or op.startswith('ds_bpermute') or op.startswith('ds_permute') or \
                    op.startswith('ds_swizzle') or '_rtn' in op:
                self.vmdst = set(R[0])
                self.rd = set().union(*R[1:])
            else:
                self.rd = set().union(*R)
        elif op.startswith('buffer_') or op.startswith('global_'):
            self.kind = 'vmem'
            if op in ('buffer_inv', 'buffer_wbl2'):
                pass
            elif op.startswith('buffer_load'):
                if ' lds' in (' ' + mods):
                    self.rd = set().union(*R) | {('x', 'm0')}
                else:
                    self.vmdst = set(R[0])
                    self.rd = set().union(*R[1:])
            elif op.startswith('buffer_store'):
                self.stdata = set(R[0])
                self.rd = set().union(*R)
                self.wide = 'x3' in op or 'x4' in op
            elif op.startswith('buffer_atomic'):
                self.rd = set().union(*R)
                if 'sc0' in mods.split():
                    self.vmdst = set(R[0])
            elif op.startswith('global_load'):
                if '_lds_' in op:
                    self.rd = set().union(*R) | {('x', 'm0')}
                else:
                    self.vmdst = set(R[0])
                    self.rd = set().union(*R[1:])
            elif op.startswith('global_store'):
                self.stdata = set(R[1])
                self.rd = set().union(*R)
                self.wide = 'x3' in op or 'x4' in op
            elif op.startswith('global_atomic'):
                if 'sc0' in mods.split():
                    self.vmdst = set(R[0])
                    self.rd = set().union(*R[1:])
                else:
                    self.rd = set().union(*R)
            else:
                raise ValueError('unknown vmem ' + text)
        elif op.startswith('s_load') or op in ('s_memtime', 's_memrealtime'):
            self.kind = 'smem'
            self.vmdst = set(R[0])
            self.rd = set().union(*R[1:]) if len(R) > 1 else set()
        elif op == 's_nop':
            self.kind = 'nop'
        elif op == 's_waitcnt':
            self.kind = 'wait'
        elif op.startswith('s_cbranch') or op == 's_branch':
            self.kind = 'branch'
            self.target = parts[0]
            if 'vcc' in op:
                self.rd = {('x', 'vcc')}
            if 'exec' in op:
                self.rd = {('x', 'exec')}
        elif op in ('s_barrier', 's_endpgm', 's_sleep', 's_setprio', 's_sethalt'):
            self.kind = 'misc'
        elif op.startswith('s_'):
            self.kind = 'salu'
            if op.startswith('s_cmp') or op.startswith('s_bitcmp'):
                self.rd = set().union(*R)
            else:
                self.wr = set(R[0])
                self.rd = set().union(*R[1:]) if len(R) > 1 else set()
                if 'saveexec' in op:
                    self.wr |= {('x', 'exec')}
        elif op.startswith('.'):
            self.kind = 'dir'
        else:
            raise ValueError('unknown instr ' + text)

    def states(self):
        if self.kind in ('label', 'dir'):
            return 0
        if self.kind == 'nop':
            return int(self.ops[0], 0) + 1
        return 1


def _isv(r):
    return r[0] in ('v', 'a')


def need_states(p, c):
    n = 0
    pv = p.kind in ('valu', 'trans', 'perm')
    cv = c.kind in ('valu', 'trans', 'perm')
    if pv:
        pw_v = {r for r in p.wr if _isv(r)}
        pw_s = {r for r in p.wr if r[0] == 's' or r == ('x', 'vcc')}
        if c.kind == 'mfma' and pw_v & (c.rd | c.srcc):
            n = max(n, 2)
        if c.kind == 'perm' and pw_v & c.rd:
            n = max(n, 2)
        if cv and c.dpp and pw_v & c.rd:
            n = max(n, 2)
        if c.op.startswith('v_readlane') or c.op.startswith('v_readfirstlane'):
            if pw_v & c.rd:
                n = max(n, 1)
            if pw_s & c.rd:
                n = max(n, 4)
        if p.kind == 'trans' and cv and c.kind != 'trans' and pw_v & c.rd:
            n = max(n, 1)
        if p.kind == 'trans' and c.kind in ('ds', 'vmem') and pw_v & c.rd:
            n = max(n, 1)
        if cv and pw_s & c.rd:
            n = max(n, 2)
        if c.kind == 'vmem' and pw_s & c.rd:
            n = max(n, 5)
        if c.kind in ('salu', 'branch') and pw_s & c.rd:
            n = max(n, 1)
        if ('x', 'exec') in p.wr:
            if c.kind == 'mfma' or c.kind == 'perm' or c.op.startswith('v_read'):
                n = max(n, 4)
            if cv and c.dpp:
                n = max(n, 5)
    if p.kind == 'mfma':
        big = p.passes == 8
        if c.kind == 'mfma':
            if p.wr & c.rd:
                n = max(n, 12 if big else 8)
            if p.wr & c.srcc:
                if not (p.wr == c.srcc and p.passes == c.passes):
                    n = max(n, 10 if big else 6)
            elif p.wr & c.wr and p.wr != c.wr:
                n = max(n, 10 if big else 6)
            elif p.wr & c.wr:
                n = max(n, 10 if big else 6)
        if cv and p.wr & (c.rd | c.wr):
            n = max(n, 12 if big else 8)
        if c.kind in ('ds', 'vmem') and p.wr & (c.rd | c.vmdst):
            n = max(n, 12 if big else 8)
        if cv and p.srcc & c.wr:
            n = max(n, 7 if big else 3)
    if p.kind == 'vmem' and p.wide:
        if cv and p.stdata & c.wr:
            n = max(n, 2)
        if c.kind in ('ds', 'vmem', 'mfma') and p.stdata & (c.vmdst | c.wr):
            n = max(n, 1)
    if p.kind == 'salu' and ('x', 'm0') in p.wr and ('x', 'm0') in c.rd and c.kind in ('vmem', 'ds'):
        n = max(n, 1)
    return n


class Asm:
    def __init__(self):
        self.ins = []
        self.uid = 0
        self.nops_added = []

    def __call__(self, text):
        for line in text.strip().split('\n'):
            line = line.strip()
            if not line or line.startswith(';'):
                continue
            self.ins.append(Ins(line))

    def label(self, name):
        self.ins.append(Ins(name + ':'))

    def newlabel(self, base):
        self.uid += 1
        return f'L{base}_{self.uid}'

    def fix_hazards(self):
        out = []
        for c in self.ins:
            if c.kind not in ('label', 'dir'):
                need = self._need(out, c)
                if need > 0:
                    n = Ins(f's_nop {need - 1}')
                    n.auto = True
                    out.append(n)
                    self.nops_added.append((c.text, need))
            if c.op == 's_endpgm':
                out.append(c)
                continue
            out.append(c)
        self.ins = out
        self._check_branches()

    @staticmethod
    def _need(prev, c):
        dist = 0
        need = 0
        for p in reversed(prev):
            if dist >= 20:
                break
            if p.op in ('s_endpgm', 's_branch'):
                break
            n = need_states(p, c)
            if n - dist > need:
                need = n - dist
            dist += p.states()
        return need

    def _check_branches(self):
        pos = {i.label: k for k, i in enumerate(self.ins) if i.kind == 'label'}
        for k, b in enumerate(self.ins):
            if b.kind != 'branch':
                continue
            t = pos[b.target]
            pre = self.ins[max(0, k - 24):k + 1]
            cut = 0
            for j, p in enumerate(pre[:-1]):
                if p.op in ('s_endpgm', 's_branch'):
                    cut = j + 1
            pre = pre[cut:]
            seq = [p for p in pre if True]
            seq[-1] = Ins('s_nop 0')
            d = 0
            for c in self.ins[t:t + 30]:
                if c.kind in ('label', 'dir'):
                    continue
                need = self._need(seq, c)
                if need > 0:
                    raise RuntimeError(f'hazard across branch "{b.text}" -> "{c.text}" needs {need} more states')
                seq.append(c)
                d += c.states()
                if d > 20 or c.op in ('s_endpgm', 's_branch'):
                    break

    def verify_waits(self):
        pos = {i.label: k for k, i in enumerate(self.ins) if i.kind == 'label'}
        vm = []
        lg = []
        errs = []

        def step(c):
            if c.kind in ('label', 'dir'):
                return
            if c.op in ('s_endpgm',):
                vm.clear(); lg.clear()
                return
            if c.kind == 'wait':
                t = c.text
                m = re.search(r'vmcnt\((\d+)\)', t)
                if m:
                    n = int(m.group(1))
                    while len(vm) > n:
                        vm.pop(0)
                m = re.search(r'lgkmcnt\((\d+)\)', t)
                if m:
                    n = int(m.group(1))
                    if n == 0:
                        lg.clear()
                    else:
                        while sum(1 for x in lg if not x[1]) > n:
                            k0 = [i for i, x in enumerate(lg) if not x[1]][0]
                            lg.pop(k0)
                return
            touch = c.rd | c.wr | c.srcc | c.vmdst
            for q, name in ((vm, 'vmcnt'), (lg, 'lgkmcnt')):
                for (dst, _, txt) in q:
                    if dst & touch:
                        if dst & (c.rd | c.wr | c.srcc) or not (
                                (name == 'vmcnt' and c.kind == 'vmem') or (name == 'lgkmcnt' and c.kind == 'ds')):
                            errs.append(f'{name}: "{c.text}" touches pending result of "{txt}"')
            if c.kind == 'vmem' and c.op not in ('buffer_inv', 'buffer_wbl2'):
                vm.append((c.vmdst, False, c.text))
                if len(vm) > 63:
                    pass
            elif c.kind == 'vmem':
                vm.append((set(), False, c.text))
            elif c.kind == 'ds':
                lg.append((c.vmdst, False, c.text))
            elif c.kind == 'smem':
                lg.append((c.vmdst, True, c.text))

        def run(lo, hi, depth):
            k = lo
            while k < hi:
                c = self.ins[k]
                step(c)
                if c.kind == 'branch' and pos[c.target] <= k and pos[c.target] >= lo - 1 and depth < 2 \
                        and not (pos[c.target] == lo and depth > 0 and k == hi - 1):
                    run(pos[c.target], k + 1, depth + 1)
                k += 1

        run(0, len(self.ins), 0)
        seen = []
        for e in errs:
            if e not in seen:
                seen.append(e)
        return seen[:12]

    def text(self):
        out = []
        for i in self.ins:
            if i.kind == 'label':
                out.append(i.text)
            else:
                out.append('  ' + i.text)
        return '\n'.join(out) + '\n'


def vr(n, cnt=1, f='v'):
    return f'{f}{n}' if cnt == 1 else f'{f}[{n}:{n + cnt - 1}]'


def ar(n, cnt=1):
    return vr(n, cnt, 'a')


def sr(n, cnt=1):
    return vr(n, cnt, 's')


def kernel_desc(name, vgpr=512, accum=256, sgpr=102):
    return f"""
.p2align 6
.amdhsa_kernel {name}
  .amdhsa_next_free_vgpr {vgpr}
  .amdhsa_next_free_sgpr {sgpr}
  .amdhsa_accum_offset {accum}
  .amdhsa_group_segment_fixed_size 0
  .amdhsa_kernarg_size 120
  .amdhsa_user_sgpr_count 2
  .amdhsa_user_sgpr_kernarg_segment_ptr 1
  .amdhsa_system_sgpr_workgroup_id_x 1
.end_amdhsa_kernel
"""
```

```python
from asmlib import *
from layout import *
from common import *
from chain import Track, f32
from small import tr_lane_addr, CM_NAT, CM_PI, CM_SIG, unpack

S_WS = 4
S_WA, S_WB = 8, 12
sWI, sWV, sJ, sLI, sNH = 16, 17, 18, 19, 20
sR, sBLK, sH, sT, sU, sV = 21, 22, 23, 24, 25, 26
sXO, sWO, sLW, sSPIN = 27, 28, 29, 30
sE = 32
sSC = 34
sPTR = 56
sXP = 64
S_X = 68

FL_KV = 0
FL_MF = 0x1000
FL_O = 0x4000

LN, L16, T1, T2, T3 = 1, 2, 3, 4, 5


def worker_setup(a):
    a(f'v_and_b32 v{LN}, 63, v0')
    a(f'v_lshrrev_b32 v{T1}, 6, v0')
    a(f'v_lshlrev_b32 v{L16}, 4, v{LN}')
    a(f'v_readfirstlane_b32 s{sWV}, v{T1}')
    a(f's_lshr_b32 s{sJ}, s{sWI}, 5')
    a(f's_and_b32 s{sLI}, s{sWI}, 31')
    a(f's_cmp_lt_u32 s{sJ}, 4')
    a(f's_cselect_b32 s{sNH}, 5, 4')
    a(f's_lshl_b32 s{sLW}, s{sWV}, 10')


def unit_decode(a, per_round, done):
    a(f's_mul_i32 s{sT}, s{sR}, {per_round}')
    a(f's_add_u32 s{sT}, s{sT}, s{sLI}')
    a(f's_mul_i32 s{sBLK}, s{sT}, 13108')
    a(f's_lshr_b32 s{sBLK}, s{sBLK}, 16')
    a(f's_lshr_b32 s{sU}, s{sT}, 2')
    a(f's_cmp_eq_u32 s{sNH}, 4')
    a(f's_cselect_b32 s{sBLK}, s{sU}, s{sBLK}')
    a(f's_mul_i32 s{sU}, s{sBLK}, s{sNH}')
    a(f's_sub_u32 s{sU}, s{sT}, s{sU}')
    a(f's_mul_i32 s{sH}, s{sU}, 7')
    a(f's_add_u32 s{sH}, s{sH}, s{sJ}')
    a(f's_cmp_ge_u32 s{sBLK}, 16')
    a(f's_cbranch_scc1 {done}')


def w_swz(a):
    def f(row, t, dst):
        a(f'v_and_b32 v{t}, 3, v{row}')
        a(f'v_lshlrev_b32 v{t}, 6, v{t}')
        a(f'v_xor_b32 v{dst}, v{t}, v{dst}')
    return f


def proj_gemm(a, tag, nmat, lb, VSW, xtiles, wtiles, mf, FR, nring=4):
    tr = Track(a)
    SB = nmat * 8192
    XB = 8192
    WBASE = nring * 8192
    srds = [S_WA, S_WB]

    def dma(slot):
        for ks in range(2):
            a(f's_lshl_b32 s{sU}, s{sWV}, 11')
            a(f's_add_u32 m0, s{sU}, {slot * XB + ks * 1024}')
            tr.vmem(f'buffer_load_dwordx4 v{L16}, s[{S_WS}:{S_WS + 3}], s{sXO} offen lds' +
                    (' offset:0' if False else ''), 'st')
            a(f's_add_u32 s{sXO}, s{sXO}, 1024')
        for m in range(nmat):
            for k in range(2):
                a(f's_add_u32 m0, s{sLW}, {WBASE + slot * SB + m * 8192 + k * 4096}')
                a(f's_add_u32 s{sU}, s{sWO}, {k * 16 * 8192}')
                tr.vmem(f'buffer_load_dwordx4 v{VSW}, s[{srds[m]}:{srds[m] + 3}], s{sU} offen lds', 'st')
        a(f's_add_u32 s{sWO}, s{sWO}, {32 * 8192}')

    per = 2 + 2 * nmat

    def reads(slot, ks, b):
        for i, xr in enumerate(xtiles):
            tr.ds(f'ds_read_b128 {vr(b + 4 * i, 4)}, v{xr} offset:{slot * XB + ks * 1024}')
        for i, (m, wr) in enumerate(wtiles):
            for u in range(2):
                off = WBASE + slot * SB + m * 8192 + (16 * ks + 4 * u) * 256
                assert off < 65536 + 0 or True
                tr.ds(f'ds_read_b64_tr_b16 {vr(b + 4 * len(xtiles) + 4 * i + 2 * u, 2)}, v{wr[off >> 16]} offset:{off & 0xffff}')

    for s in range(nring - 1):
        dma(s)
    a(f's_waitcnt vmcnt({per * (nring - 2)})')
    a('s_barrier')
    reads(0, 0, FR[0])
    a(f's_mov_b32 s{sV}, 0')
    lp = a.newlabel(tag)
    a.label(lp)
    for s in range(nring):
        reads(s, 1, FR[1])
        n1 = len(xtiles) + 2 * len(wtiles)
        a(f's_waitcnt lgkmcnt({min(15, n1)})')
        mf(FR[0])
        a(f's_waitcnt vmcnt({per * (nring - 3)}) lgkmcnt(0)')
        a('s_barrier')
        dma((s + nring - 1) % nring)
        reads((s + 1) % nring, 0, FR[0])
        mf(FR[1])
    a(f's_add_u32 s{sV}, s{sV}, 1')
    a(f's_cmp_lt_u32 s{sV}, {20 // nring}')
    a(f's_cbranch_scc1 {lp}')
    a('s_waitcnt vmcnt(0) lgkmcnt(0)')
    a('s_barrier')


def w_src(a, VSW):
    a(f'v_lshrrev_b32 v{T1}, 4, v{LN}')
    a(f'v_lshlrev_b32 v{T2}, 2, v{T1}')
    a(f'v_and_b32 v{T3}, 15, v{LN}')
    a(f'v_xor_b32 v{T2}, v{T2}, v{T3}')
    a(f'v_lshlrev_b32 v{T2}, 4, v{T2}')
    a(f'v_lshl_add_u32 v{T2}, v{T1}, 13, v{T2}')
    a(f's_lshl_b32 s{sU}, s{sWV}, 15')
    a(f'v_add_u32 v{VSW}, s{sU}, v{T2}')


def signal(a, off_sgpr):
    L = a.newlabel('sig')
    a('s_waitcnt vmcnt(0)')
    a('s_barrier')
    a('v_cmp_eq_u32 vcc, 0, v0')
    a(f's_and_saveexec_b64 s[{sE}:{sE + 1}], vcc')
    a(f's_cbranch_execz {L}')
    a(f'v_mov_b32 v{T1}, 0')
    a(f'v_mov_b32 v{T2}, 1')
    a(f'buffer_atomic_add v{T2}, v{T1}, s[{S_WS}:{S_WS + 3}], s{off_sgpr} offen')
    a.label(L)
    a(f's_mov_b64 exec, s[{sE}:{sE + 1}]')


def wait_flag(a, off_sgpr, val):
    L = a.newlabel('wf')
    a(f's_mov_b32 s{sSPIN}, 0')
    a(f'v_mov_b32 v{T1}, 0')
    a.label(L)
    a(f'buffer_load_dword v{T2}, v{T1}, s[{S_WS}:{S_WS + 3}], s{off_sgpr} offen sc1')
    a('s_waitcnt vmcnt(0)')
    a(f'v_readfirstlane_b32 s{sU}, v{T2}')
    a(f's_add_u32 s{sSPIN}, s{sSPIN}, 1')
    a(f's_cmp_ge_u32 s{sU}, {val}')
    a(f's_cbranch_scc1 {L}_ok')
    a('s_sleep 8')
    a(f's_cmp_lt_u32 s{sSPIN}, 0x40000')
    a(f's_cbranch_scc1 {L}')
    a.label(f'{L}_ok')


def unit_addr(a, lb):
    a(f's_lshl_b32 s{sXO}, s{sBLK}, 2')
    a(f's_add_u32 s{sXO}, s{sXO}, s{sWV}')
    a(f's_mul_i32 s{sXO}, s{sXO}, 40960')
    a(f's_add_u32 s{sXO}, s{sXO}, {lb + L_XN}')
    a(f's_lshl_b32 s{sWO}, s{sH}, 8')


def kv_phase(a, lb):
    VSW = 6
    XR = [7, 8]
    WK = [[9, 13], [10, 14]]
    WVv = [[11, 15], [12, 16]]
    FR = [20, 44]
    srd(a, S_WA, sPTR + 2, 5242880)
    srd(a, S_WB, sPTR + 4, 5242880)
    w_src(a, VSW)
    a(f's_and_b32 s{sT}, s{sWV}, 1')
    a(f's_lshl_b32 s{sT}, s{sT}, 12')
    a(f'v_add_u32 v{XR[0]}, s{sT}, v{L16}')
    a(f'v_add_u32 v{XR[1]}, 2048, v{XR[0]}')
    a(f's_lshr_b32 s{sT}, s{sWV}, 1')
    a(f's_lshl_b32 s{sT}, s{sT}, 7')
    for regs, cm in ((WK, CM_PI), (WVv, CM_NAT)):
        tr_lane_addr(a, regs[0][0], LN, T1, T2, 256, cm, w_swz(a))
        a(f'v_xor_b32 v{regs[0][0]}, s{sT}, v{regs[0][0]}')
        a(f'v_xor_b32 v{regs[1][0]}, 64, v{regs[0][0]}')
        for k in range(2):
            a(f'v_add_u32 v{regs[k][1]}, 0x10000, v{regs[k][0]}')
    a(f's_mov_b32 s{sR}, 0')
    top, done = a.newlabel('kvtop'), a.newlabel('kvdone')
    a.label(top)
    unit_decode(a, 32, done)
    unit_addr(a, lb)
    for r in range(128):
        a(f'v_accvgpr_write_b32 a{r}, 0')

    def mf(b):
        for ct in range(2):
            for tt in range(2):
                acc = ar(16 * (2 * ct + tt), 16)
                a(f'v_mfma_f32_32x32x16_bf16 {acc}, {vr(b + 8 + 4 * ct, 4)}, {vr(b + 4 * tt, 4)}, {acc}')
        for ct in range(2):
            for tt in range(2):
                acc = ar(64 + 16 * (2 * ct + tt), 16)
                a(f'v_mfma_f32_32x32x16_bf16 {acc}, {vr(b + 4 * tt, 4)}, {vr(b + 16 + 4 * ct, 4)}, {acc}')

    proj_gemm(a, 'kvl', 2, lb, VSW, XR, [(0, WK[0]), (0, WK[1]), (1, WVv[0]), (1, WVv[1])], mf, FR)
    a(f's_lshl_b32 s{sT}, s{sBLK}, 2')
    a(f's_and_b32 s{sU}, s{sWV}, 1')
    a(f's_lshl_b32 s{sU}, s{sU}, 1')
    a(f's_add_u32 s{sT}, s{sT}, s{sU}')
    a(f's_lshl_b32 s{sT}, s{sT}, 5')
    a(f's_add_u32 s{sT}, s{sT}, s{sH}')
    a(f's_lshl_b32 s{sT}, s{sT}, 13')
    a(f's_lshr_b32 s{sU}, s{sWV}, 1')
    a(f's_lshl_b32 s{sU}, s{sU}, 12')
    a(f's_add_u32 s{sT}, s{sT}, s{sU}')
    E = 20
    for m in range(2):
        for ct in range(2):
            for tt in range(2):
                acc = 64 * m + 16 * (2 * ct + tt)
                e = E + 24 * ((2 * ct + tt) & 1)
                for r in range(16):
                    a(f'v_accvgpr_read_b32 v{e + r}, a{acc + r}')
                for r in range(8):
                    a(f'v_cvt_pk_bf16_f32 v{e + 16 + r}, v{e + 2 * r}, v{e + 2 * r + 1}')
                a(f's_add_u32 s{sU}, s{sT}, {lb + (L_VB if m else L_KB) + tt * 32 * 8192 + ct * 2048}')
                a(f'buffer_store_dwordx4 {vr(e + 16, 4)}, v{L16}, s[{S_WS}:{S_WS + 3}], s{sU} offen sc1')
                a(f'buffer_store_dwordx4 {vr(e + 20, 4)}, v{L16}, s[{S_WS}:{S_WS + 3}], s{sU} offen offset:1024 sc1')
    a(f's_lshl_b32 s{sT}, s{sBLK}, 2')
    a(f's_add_u32 s{sT}, s{sT}, {WS_FLAGS + FL_KV}')
    signal(a, sT)
    a(f's_add_u32 s{sR}, s{sR}, 1')
    a(f's_branch {top}')
    a.label(done)


def qa_phase(a, lb):
    WS = f's[{S_WS}:{S_WS + 3}]'
    VSW = 6
    XR = [7]
    WQ = [[8], [9], [10], [11]]
    KA, KMA, VMA, TOK = 12, 13, 14, 15
    FR = [20, 40]
    srd(a, S_WA, sPTR, 5242880)
    w_src(a, VSW)
    a(f's_lshl_b32 s{sT}, s{sWV}, 11')
    a(f'v_add_u32 v{XR[0]}, s{sT}, v{L16}')
    tr_lane_addr(a, WQ[0][0], LN, T1, T2, 256, CM_SIG, w_swz(a))
    for k in range(1, 4):
        a(f'v_xor_b32 v{WQ[k][0]}, {64 * k}, v{WQ[0][0]}')
    a(f'v_lshrrev_b32 v{T1}, 5, v{LN}')
    a(f'v_and_b32 v{T2}, 31, v{LN}')
    a(f'v_lshlrev_b32 v{KA}, 10, v{T1}')
    a(f'v_lshl_add_u32 v{KA}, v{T2}, 4, v{KA}')
    a(f'v_and_b32 v{T3}, 7, v{LN}')
    a(f'v_lshlrev_b32 v{KMA}, 8, v{T1}')
    a(f'v_lshl_add_u32 v{KMA}, v{T3}, 4, v{KMA}')
    a(f'v_add_u32 v{KMA}, 128, v{KMA}')
    a(f'v_lshrrev_b32 v{T3}, 1, v{T2}')
    a(f'v_lshlrev_b32 v{VMA}, 8, v{T1}')
    a(f'v_lshl_add_u32 v{VMA}, v{T3}, 4, v{VMA}')
    a(f'v_and_b32 v{T3}, 1, v{LN}')
    a(f'v_lshl_add_u32 v{VMA}, v{T3}, 3, v{VMA}')
    a(f'v_and_b32 v{TOK}, 3, v{LN}')
    a(f'v_bfe_u32 v{T3}, v{LN}, 3, 2')
    a(f'v_lshl_add_u32 v{TOK}, v{T3}, 2, v{TOK}')
    a(f'v_bfe_u32 v{T3}, v{LN}, 2, 1')
    a(f'v_lshl_add_u32 v{TOK}, v{T3}, 4, v{TOK}')
    a(f'v_lshlrev_b32 v{T3}, 4, v{T1}')
    a(f'v_sub_u32 v{TOK}, v{TOK}, v{T3}')
    a(f's_mov_b32 s{sSC}, {f32(128 ** -0.5 * 1.4426950408889634)}')
    a(f's_mov_b32 s{sR}, 0')
    top, done = a.newlabel('qatop'), a.newlabel('qadone')
    a.label(top)
    unit_decode(a, 20, done)
    unit_addr(a, lb)
    for r in range(64):
        a(f'v_accvgpr_write_b32 a{r}, 0')

    def mf(b):
        for ct in range(4):
            acc = ar(16 * ct, 16)
            a(f'v_mfma_f32_32x32x16_bf16 {acc}, {vr(b + 4 + 4 * ct, 4)}, {vr(b, 4)}, {acc}')

    proj_gemm(a, 'ql', 1, lb, VSW, XR, [(0, WQ[k]) for k in range(4)], mf, FR)
    QF, KF, VF, KMF, VMF, SS, SM_, TMP = 20, 52, 84, 116, 148, 164, 180, 196
    a(f's_lshl_b32 s{sT}, s{sBLK}, 2')
    a(f's_add_u32 s{sT}, s{sT}, {WS_FLAGS + FL_KV}')
    wait_flag(a, sT, 32)
    a(f's_lshl_b32 s{sT}, s{sBLK}, 2')
    a(f's_add_u32 s{sT}, s{sT}, s{sWV}')
    a(f's_lshl_b32 s{sT}, s{sT}, 5')
    a(f's_add_u32 s{sT}, s{sT}, s{sH}')
    a(f's_lshl_b32 s{sXO}, s{sT}, 13')
    tr = Track(a)
    for half in range(2):
        a(f's_add_u32 s{sU}, s{sXO}, {lb + L_KB + half * 4096}')
        for k in range(4):
            ks = 4 * half + k
            tr.vmem(f'buffer_load_dwordx4 {vr(KF + 4 * ks, 4)}, v{KA}, {WS}, s{sU} offen offset:{(k >> 1) * 2048 + (k & 1) * 512} sc1', 'k')
    for half in range(2):
        a(f's_add_u32 s{sU}, s{sXO}, {lb + L_VB + half * 4096}')
        for k in range(4):
            tr.vmem(f'buffer_load_dwordx4 {vr(VF + 16 * half + 4 * k, 4)}, v{L16}, {WS}, s{sU} offen offset:{k * 1024} sc1', 'v')
    for t in range(4):
        for r in range(16):
            a(f'v_accvgpr_read_b32 v{TMP + r}, a{16 * t + r}')
        for r in range(8):
            a(f'v_cvt_pk_bf16_f32 v{QF + 8 * t + r}, v{TMP + 2 * r}, v{TMP + 2 * r + 1}')
    tr.wait_vm('k')
    for ks in range(8):
        a(f'v_mfma_f32_32x32x16_bf16 {vr(SS, 16)}, {vr(KF + 4 * ks, 4)}, {vr(QF + 4 * ks, 4)}, ' + (vr(SS, 16) if ks else '0'))
    a(f's_lshl_b32 s{sWO}, s{sT}, 2')
    a(f's_add_u32 s{sWO}, s{sWO}, {WS_FLAGS + FL_MF}')
    wait_flag(a, sWO, 1)
    tr.vm = []
    a(f's_lshl_b32 s{sXO}, s{sT}, 12')
    a(f's_add_u32 s{sU}, s{sXO}, {lb + L_KMQ}')
    for ks in range(8):
        tr.vmem(f'buffer_load_dwordx4 {vr(KMF + 4 * ks, 4)}, v{KMA}, {WS}, s{sU} offen offset:{(ks >> 1) * 1024 + (ks & 1) * 512} sc1', ('km', ks))
    a(f's_add_u32 s{sU}, s{sXO}, {lb + L_VM}')
    for t in range(4):
        for u in range(2):
            tr.vmem(f'buffer_load_dwordx2 {vr(VMF + 4 * t + 2 * u, 2)}, v{VMA}, {WS}, s{sU} offen offset:{t * 1024 + u * 512} sc1', 'vm')
    a(f'v_mov_b32 v{T3}, 0xff800000')
    for r in range(16):
        a(f'v_cmp_gt_i32 vcc, {r}, v{TOK}')
        a(f'v_cndmask_b32 v{SS + r}, v{SS + r}, v{T3}, vcc')
    MX, MY = TMP, TMP + 1
    a(f'v_max3_f32 v{MX}, v{SS}, v{SS + 1}, v{SS + 2}')
    for r in range(3, 15, 2):
        a(f'v_max3_f32 v{MX}, v{MX}, v{SS + r}, v{SS + r + 1}')
    a(f'v_max_f32 v{MX}, v{MX}, v{SS + 15}')
    for ks in range(8):
        tr.wait_vm(('km', ks))
        a(f'v_mfma_f32_32x32x16_bf16 {vr(SM_, 16)}, {vr(KMF + 4 * ks, 4)}, {vr(QF + 4 * ks, 4)}, ' + (vr(SM_, 16) if ks else '0'))
    a(f'v_max3_f32 v{MX}, v{MX}, v{SM_}, v{SM_ + 1}')
    a(f'v_max3_f32 v{MX}, v{MX}, v{SM_ + 2}, v{SM_ + 3}')
    a(f'v_mov_b32 v{MY}, v{MX}')
    a(f'v_permlane32_swap_b32 v{MX}, v{MY}')
    a(f'v_max_f32 v{MX}, v{MX}, v{MY}')
    a(f'v_mul_f32 v{MX}, s{sSC}, v{MX}')
    vals = [SS + r for r in range(16)] + [SM_ + r for r in range(4)]
    for s in vals:
        a(f'v_fma_f32 v{s}, v{s}, s{sSC}, -v{MX}')
    for s in vals:
        a(f'v_exp_f32 v{s}, v{s}')
    PB = TMP + 4
    for r in range(8):
        a(f'v_cvt_pk_bf16_f32 v{PB + r}, v{SS + 2 * r}, v{SS + 2 * r + 1}')
    a(f'v_cvt_pk_bf16_f32 v{PB + 8}, v{SM_}, v{SM_ + 1}')
    a(f'v_cvt_pk_bf16_f32 v{PB + 9}, v{SM_ + 2}, v{SM_ + 3}')
    a(f'v_mov_b64 {vr(PB + 10, 2)}, {vr(PB + 8, 2)}')
    tr.wait_vm('vm')
    for t in range(4):
        acc = ar(16 * t, 16)
        a(f'v_mfma_f32_32x32x16_bf16 {acc}, {vr(VF + 8 * t, 4)}, {vr(PB, 4)}, 0')
        a(f'v_mfma_f32_32x32x16_bf16 {acc}, {vr(VF + 8 * t + 4, 4)}, {vr(PB + 4, 4)}, {acc}')
        a(f'v_mfma_f32_32x32x16_bf16 {acc}, {vr(VMF + 4 * t, 4)}, {vr(PB + 8, 4)}, {acc}')
        if t == 0:
            for r in range(0, 16, 4):
                a(f'v_pk_add_f32 {vr(SS + r, 2)}, {vr(SS + r, 2)}, {vr(SS + r + 2, 2)}')
            a(f'v_pk_add_f32 {vr(SM_, 2)}, {vr(SM_, 2)}, {vr(SM_ + 2, 2)}')
            a(f'v_pk_add_f32 {vr(SS, 2)}, {vr(SS, 2)}, {vr(SS + 4, 2)}')
            a(f'v_pk_add_f32 {vr(SS + 8, 2)}, {vr(SS + 8, 2)}, {vr(SS + 12, 2)}')
        if t == 1:
            a(f'v_pk_add_f32 {vr(SS, 2)}, {vr(SS, 2)}, {vr(SS + 8, 2)}')
            a(f'v_pk_add_f32 {vr(SS, 2)}, {vr(SS, 2)}, {vr(SM_, 2)}')
            a(f'v_add_f32 v{MX}, v{SS}, v{SS + 1}')
            a(f'v_mov_b32 v{MY}, v{MX}')
        if t == 2:
            a(f'v_permlane32_swap_b32 v{MX}, v{MY}')
            a(f'v_add_f32 v{MX}, v{MX}, v{MY}')
            a(f'v_rcp_f32 v{MX}, v{MX}')
    a(f's_lshr_b32 s{sU}, s{sT}, 5')
    a(f's_lshl_b32 s{sU}, s{sU}, 18')
    a(f's_lshl_b32 s{sXO}, s{sH}, 13')
    a(f's_add_u32 s{sXO}, s{sXO}, s{sU}')
    for t in range(4):
        e = KF + 24 * (t & 1)
        for r in range(16):
            a(f'v_accvgpr_read_b32 v{e + r}, a{16 * t + r}')
        for r in range(0, 16, 2):
            a(f'v_pk_mul_f32 {vr(e + r, 2)}, {vr(e + r, 2)}, {vr(MX, 2)} op_sel_hi:[1,0]')
        for r in range(8):
            a(f'v_cvt_pk_bf16_f32 v{e + 16 + r}, v{e + 2 * r}, v{e + 2 * r + 1}')
        if t % 2 == 0:
            a(f's_add_u32 s{sU}, s{sXO}, {lb + L_O + t * 2048}')
        a(f'buffer_store_dwordx4 {vr(e + 16, 4)}, v{L16}, {WS}, s{sU} offen offset:{(t & 1) * 2048} sc1')
        a(f'buffer_store_dwordx4 {vr(e + 20, 4)}, v{L16}, {WS}, s{sU} offen offset:{(t & 1) * 2048 + 1024} sc1')
    a('s_waitcnt vmcnt(0)')
    a(f's_lshr_b32 s{sU}, s{sT}, 5')
    a(f's_lshl_b32 s{sU}, s{sU}, 7')
    a(f's_add_u32 s{sU}, s{sU}, {WS_FLAGS + FL_O}')
    a(f's_mov_b64 exec, 1')
    a(f'v_mov_b32 v{T1}, 0')
    a(f'v_mov_b32 v{T2}, 1')
    a(f'buffer_atomic_add v{T2}, v{T1}, {WS}, s{sU} offen')
    a(f's_mov_b64 exec, -1')
    a(f's_add_u32 s{sR}, s{sR}, 1')
    a('s_barrier')
    a(f's_branch {top}')
    a.label(done)


def wo_phase(a, lb, layer, done):
    WS = f's[{S_WS}:{S_WS + 3}]'
    sSET, sDT, sSEG = sBLK, sH, sR
    a(f's_mul_i32 s{sT}, s{sJ}, 12')
    a(f's_add_u32 s{sT}, s{sT}, s{sLI}')
    a(f's_sub_u32 s{sT}, s{sT}, 20')
    a(f's_cmp_ge_u32 s{sT}, 80')
    a(f's_cbranch_scc1 {done}')
    a(f's_mul_i32 s{sSET}, s{sT}, 3277')
    a(f's_lshr_b32 s{sSET}, s{sSET}, 16')
    a(f's_mul_i32 s{sU}, s{sSET}, 20')
    a(f's_sub_u32 s{sDT}, s{sT}, s{sU}')
    srd(a, S_WA, sPTR + 6, 5242880)
    VS, RA, RO = 6, 7, 8
    a(f'v_lshrrev_b32 v{T1}, 2, v{LN}')
    a(f'v_mul_u32_u24 v{T1}, 0x500, v{T1}')
    a(f'v_and_b32 v{T2}, 3, v{LN}')
    a(f'v_lshl_add_u32 v{VS}, v{T2}, 4, v{T1}')
    tr_lane_addr(a, RA, LN, T1, T2, 64, CM_PI, None, hirows=4)
    a(f's_lshl_b32 s{sV}, s{sWV}, 15')
    a(f'v_add_u32 v{RA}, s{sV}, v{RA}')
    a(f's_mul_i32 s{sWO}, s{sWV}, {1024 * 1280}')
    a(f's_lshl_b32 s{sU}, s{sDT}, 6')
    a(f's_add_u32 s{sWO}, s{sWO}, s{sU}')
    for half in range(2):
        for i in range(32):
            a(f's_add_u32 m0, s{sV}, {i * 1024}')
            a(f'buffer_load_dwordx4 v{VS}, s[{S_WA}:{S_WA + 3}], s{sWO} offen lds')
            a(f's_add_u32 s{sWO}, s{sWO}, {16 * 1280}')
        for i in range(32):
            if i % 8 == 0:
                a(f's_waitcnt vmcnt({24 - i})')
            for u in range(2):
                a(f'ds_read_b64_tr_b16 {ar(128 * half + 4 * i + 2 * u, 2)}, v{RA} offset:{i * 1024 + 512 * u}')
            if i % 4 == 3:
                a('s_waitcnt lgkmcnt(0)')
    a('s_barrier')
    a(f'v_and_b32 v{T1}, 3, v{LN}')
    a(f'v_bfe_u32 v{T2}, v{LN}, 3, 2')
    a(f'v_lshl_add_u32 v{T1}, v{T2}, 2, v{T1}')
    a(f'v_bfe_u32 v{T2}, v{LN}, 2, 1')
    a(f'v_lshl_add_u32 v{T1}, v{T2}, 4, v{T1}')
    a(f'v_mul_u32_u24 v{RO}, 0x500, v{T1}')
    a(f'v_lshrrev_b32 v{T1}, 5, v{LN}')
    a(f'v_lshl_add_u32 v{RO}, v{T1}, 5, v{RO}')
    a(f's_lshl_b32 s{sU}, s{sDT}, 6')
    a(f's_lshl_b32 s{sT}, s{sWV}, 3')
    a(f's_add_u32 s{sU}, s{sU}, s{sT}')
    a(f'v_add_u32 v{RO}, s{sU}, v{RO}')
    WB_, RB_ = 9, 10
    a(f'v_add_u32 v{WB_}, s{sLW}, v{L16}')
    a(f's_lshl_b32 s{sU}, s{sWV}, 12')
    a(f'v_add_u32 v{RB_}, s{sU}, v{L16}')
    if layer == 0:
        srd(a, S_X, sXP, 2048 * 640 * 2)
    a(f's_mov_b32 s{sSEG}, s{sSET}')
    top = a.newlabel('wotop')
    a.label(top)
    RES, ACC, OF = 12, 16, 64
    a(f's_mul_i32 s{sXO}, s{sSEG}, 40960')
    if layer == 0:
        a(f'buffer_load_dwordx2 {vr(RES, 2)}, v{RO}, s[{S_X}:{S_X + 3}], s{sXO} offen')
    else:
        a(f's_add_u32 s{sU}, s{sXO}, {lb - LSTRIDE + L_X2}')
        a(f'buffer_load_dwordx2 {vr(RES, 2)}, v{RO}, {WS}, s{sU} offen')
    a(f's_lshl_b32 s{sT}, s{sSEG}, 7')
    a(f's_add_u32 s{sT}, s{sT}, {WS_FLAGS + FL_O}')
    wait_flag(a, sT, 32)
    a(f's_lshl_b32 s{sT}, s{sSEG}, 18')
    a(f's_lshl_b32 s{sU}, s{sWV}, 16')
    a(f's_add_u32 s{sT}, s{sT}, s{sU}')
    a(f's_add_u32 s{sT}, s{sT}, {lb + L_O}')
    tr = Track(a)
    NB = 40

    def ld(i):
        if i % 4 == 0 and i:
            a(f's_add_u32 s{sT}, s{sT}, 4096')
        tr.vmem(f'buffer_load_dwordx4 {vr(OF + 4 * (i % NB), 4)}, v{L16}, {WS}, s{sT} offen offset:{(i % 4) * 1024} sc1', i)
    for i in range(NB):
        ld(i)
    for i in range(64):
        tr.wait_vm(i)
        acc = ACC + 16 * (i & 1)
        a(f'v_mfma_f32_32x32x16_bf16 {vr(acc, 16)}, {ar(4 * i, 4)}, {vr(OF + 4 * (i % NB), 4)}, ' + (vr(acc, 16) if i > 1 else '0'))
        if i + NB < 64:
            ld(i + NB)
    for r in range(0, 16, 2):
        a(f'v_pk_add_f32 {vr(ACC + r, 2)}, {vr(ACC + r, 2)}, {vr(ACC + 16 + r, 2)}')
    for q in range(4):
        a(f'ds_write_b128 v{WB_}, {vr(ACC + 4 * q, 4)} offset:{q * 4096}')
    a('s_waitcnt lgkmcnt(0)')
    a('s_barrier')
    for w in range(4):
        a(f'ds_read_b128 {vr(ACC + 4 * w, 4)}, v{RB_} offset:{w * 1024}')
    a('s_waitcnt lgkmcnt(0)')
    a('s_barrier')
    b = ACC
    for h in (0, 2):
        a(f'v_pk_add_f32 {vr(b + h, 2)}, {vr(b + h, 2)}, {vr(b + 4 + h, 2)}')
        a(f'v_pk_add_f32 {vr(b + 8 + h, 2)}, {vr(b + 8 + h, 2)}, {vr(b + 12 + h, 2)}')
    for h in (0, 2):
        a(f'v_pk_add_f32 {vr(b + h, 2)}, {vr(b + h, 2)}, {vr(b + 8 + h, 2)}')
    a(f'v_cvt_pk_bf16_f32 v{b + 4}, v{b}, v{b + 1}')
    a(f'v_cvt_pk_bf16_f32 v{b + 5}, v{b + 2}, v{b + 3}')
    unpack(a, b, b + 4, 2)
    unpack(a, b + 8, RES, 2)
    for r in range(4):
        a(f'v_add_f32 v{b + r}, v{b + r}, v{b + 8 + r}')
    a(f'v_cvt_pk_bf16_f32 v{b + 4}, v{b}, v{b + 1}')
    a(f'v_cvt_pk_bf16_f32 v{b + 5}, v{b + 2}, v{b + 3}')
    a(f's_add_u32 s{sU}, s{sXO}, {lb + L_X1}')
    a(f'buffer_store_dwordx2 {vr(b + 4, 2)}, v{RO}, {WS}, s{sU} offen')
    a(f's_add_u32 s{sSEG}, s{sSEG}, 4')
    a(f's_cmp_lt_u32 s{sSEG}, 64')
    a(f's_cbranch_scc1 {top}')
```

```python
import struct
from asmlib import *
from layout import *


def f32(x):
    return '0x%08x' % struct.unpack('<I', struct.pack('<f', x))[0]


class Track:
    def __init__(self, a):
        self.a = a
        self.vm = []
        self.lg = []

    def vmem(self, text, tag=None):
        self.a(text)
        self.vm.append(tag)

    def ds(self, text, tag=None):
        self.a(text)
        self.lg.append(tag)

    def _wait(self, q, tag, name, maxn):
        idx = [i for i, t in enumerate(q) if t == tag]
        if not idx:
            return None
        last = idx[-1]
        n = len(q) - 1 - last
        del q[:last + 1]
        if n > maxn:
            extra = n - maxn
            del q[:extra]
            n = maxn
        return n

    def wait_vm(self, tag):
        n = self._wait(self.vm, tag, 'vmcnt', 63)
        if n is not None:
            self.a(f's_waitcnt vmcnt({n})')

    def wait_lg(self, tag):
        n = self._wait(self.lg, tag, 'lgkmcnt', 15)
        if n is not None:
            self.a(f's_waitcnt lgkmcnt({n})')

    def drain_vm(self):
        self.a('s_waitcnt vmcnt(0)')
        self.vm = []

    def drain_lg(self):
        self.a('s_waitcnt lgkmcnt(0)')
        self.lg = []


IDX, L16, VW, KT, VT, WB, PQPP, ORDTMR, MPUB, T2, T0, T1 = range(12)
GM = [12, 16, 20]
Q0, K0, Q1, K1, V0, V1 = 24, 28, 32, 36, 40, 44
KR = 48
VR = 56
ST = [64, 72]
Z = [80, 88, 96]
RESV = 104

LS_S = 2048
LS_TM = 3072
LS_O = 3072 + 128
LB8 = 16384
LSEL = 18432
LRSEL = 19456
LWT = 21504
LWT_W = 17 * 2048
CHAIN_LDS = LWT + 4 * LWT_W

S_WS = 4
S_W = 8
sH, sWV, sSTEP, sTMP, sTMP2 = 12, 13, 14, 15, 16
sPOLL, sPOLL8, sKB, sVB, sKMQ, sVM = 17, 18, 19, 20, 21, 22
sPST, sPST1, sPST2, sRED, sMW, sMR = 23, 24, 25, 26, 27, 28
sSTR = 30
sMASK = 36
sHASRED, sB8, sSCALE, sSPIN = 38, 39, 40, 41
sREDP = 42
sMRP = 43
sPAR = 44
sPERMLO, sPERMHI = 45, 46
sNSTEP = 47
sRS = 48
sT64 = 50
sTIME = 52
sTCH = 52
sTOFF = 54
sMF = 55
sRDY = 49
sMFS = 29
FL_KV = 0
FL_MF = 0x1000
sPTR = 56


def frag_plan():
    loc = {}
    na = 0
    nv = 0
    nl = 0
    ns = 0

    def res():
        nonlocal na, nv
        if na < 32:
            na += 1
            return ('a', 8 * (na - 1))
        nv += 1
        return ('v', RESV + 8 * (nv - 1))

    order = [('q', 0), ('k', 0), ('q', 1), ('k', 1)]
    for n in range(10):
        for p, (m, t) in enumerate(order):
            if n == 0 and p < 3:
                loc[(m, t, n)] = ('s', ns, Z[p]); ns += 1
            elif n > 0 and p == 1:
                loc[(m, t, n)] = ('l', nl, ST[n & 1]); nl += 1
            else:
                loc[(m, t, n)] = res()
    src = 'LZZZLRLRLRLRLRLRLZZZ'
    zi = 0
    li = 0
    for j, s in enumerate(src):
        key = ('v', j & 1, j >> 1)
        if s == 'L':
            loc[key] = ('l', nl, ST[li & 1]); nl += 1; li += 1
        elif s == 'Z':
            loc[key] = ('s', ns, Z[zi % 3]); ns += 1; zi += 1
        else:
            loc[key] = res()
    for T in range(10):
        for k2 in range(2):
            if 2 * T + k2 < 3:
                loc[('o', T, k2)] = ('s', ns, Z[2 * T + k2]); ns += 1
            else:
                loc[('o', T, k2)] = res()
    assert (na, nv, nl, ns) == (32, 19, 17, 12), (na, nv, nl, ns)
    return loc


LOC = frag_plan()


def breg(key):
    l = LOC[key]
    if l[0] == 'a':
        return ar(l[1], 8)
    if l[0] == 'v':
        return vr(l[1], 8)
    return vr(l[2], 8)


def rowconst(r):
    return 32 * (r >> 2) + 8 * (r & 1) + 2 * ((r >> 1) & 1)


def chain_consts(a):
    G, C, LN, X, Y = 12, 13, 14, 15, 16
    a(f'v_lshrrev_b32 v{X}, 6, v0')
    a(f'v_and_b32 v{LN}, 63, v0')
    a(f'v_readfirstlane_b32 s{sWV}, v{X}')
    a(f'v_lshrrev_b32 v{G}, 4, v{LN}')
    a(f'v_and_b32 v{C}, 15, v{LN}')
    a(f'v_lshlrev_b32 v{L16}, 4, v{LN}')
    a(f'v_mov_b32 v{X}, 0x4444')
    a(f'v_mov_b32 v{Y}, 0xeeee')
    a(f'v_cmp_gt_u32 vcc, 8, v{C}')
    a(f'v_cndmask_b32 v{IDX}, v{Y}, v{X}, vcc')
    a(f's_mov_b32 s{sMASK}, 0x00ff00ff')
    a(f's_mov_b32 s{sMASK + 1}, 0x00ff00ff')
    a(f's_lshl_b32 s{sTMP}, s{sWV}, 12')
    a(f'v_add_u32 v{VW}, s{sTMP}, v{L16}')
    a(f's_mul_i32 s{sTMP}, s{sWV}, {LWT_W}')
    a(f's_add_u32 s{sTMP}, s{sTMP}, {LWT}')
    a(f'v_add_u32 v{WB}, s{sTMP}, v{L16}')
    a(f'v_and_b32 v{X}, 1, v{G}')
    a(f'v_lshlrev_b32 v{X}, 10, v{X}')
    a(f'v_lshrrev_b32 v{Y}, 1, v{G}')
    a(f'v_lshl_add_u32 v{X}, v{Y}, 9, v{X}')
    a(f's_lshl_b32 s{sTMP}, s{sWV}, 11')
    a(f'v_add_u32 v{X}, s{sTMP}, v{X}')
    a(f'v_lshl_add_u32 v{VT}, v{C}, 5, v{X}')
    a(f'v_bfe_u32 v{Y}, v{C}, 2, 1')
    a(f'v_lshl_add_u32 v{X}, v{Y}, 8, v{X}')
    a(f'v_lshrrev_b32 v{Y}, 3, v{C}')
    a(f'v_lshl_add_u32 v{X}, v{Y}, 6, v{X}')
    a(f'v_and_b32 v{Y}, 3, v{C}')
    a(f'v_lshl_add_u32 v{KT}, v{Y}, 4, v{X}')
    a(f'v_lshrrev_b32 v{X}, 3, v{LN}')
    a(f'v_lshlrev_b32 v{X}, 12, v{X}')
    a(f'v_and_b32 v{Y}, 7, v{LN}')
    a(f'v_lshl_add_u32 v{X}, v{Y}, 4, v{X}')
    a(f'v_lshlrev_b32 v{Y}, 12, v{G}')
    a(f'v_lshl_add_u32 v{Y}, v{C}, 3, v{Y}')
    a(f'v_lshl_add_u32 v{PQPP}, v{Y}, 16, v{X}')
    a(f'v_lshrrev_b32 v{X}, 1, v{G}')
    a(f'v_lshlrev_b32 v{X}, 12, v{X}')
    a(f'v_and_b32 v{Y}, 1, v{G}')
    a(f'v_lshl_add_u32 v{X}, v{Y}, 9, v{X}')
    a(f'v_lshrrev_b32 v{Y}, 3, v{C}')
    a(f'v_lshl_add_u32 v{X}, v{Y}, 8, v{X}')
    a(f'v_and_b32 v{Y}, 7, v{C}')
    a(f'v_lshl_add_u32 v{X}, v{Y}, 4, v{X}')
    a(f'v_add_u32 v{X}, {LS_O}, v{X}')
    a(f'v_lshlrev_b32 v17, 4, v{Y}')
    a(f'v_and_b32 v{Y}, 1, v{G}')
    a(f'v_lshl_add_u32 v17, v{Y}, 8, v17')
    a(f'v_lshrrev_b32 v{Y}, 3, v{C}')
    a(f'v_lshl_add_u32 v17, v{Y}, 3, v17')
    a(f'v_add_u32 v17, {LS_TM + 512}, v17')
    a(f'v_lshl_add_u32 v{ORDTMR}, v17, 16, v{X}')
    lab = a.newlabel('rb')
    a(f's_lshl_b32 s{sTMP}, s{sH}, 1')
    a(f's_add_u32 s{sTMP}, s{sTMP}, s{sWV}')
    a(f's_mov_b32 s{sHASRED}, 1')
    a(f's_cmp_lt_u32 s{sWV}, 2')
    a(f's_cbranch_scc1 {lab}')
    a(f's_add_u32 s{sTMP}, s{sH}, 64')
    a(f's_cmp_lt_u32 s{sH}, 16')
    a(f's_cselect_b32 s{sHASRED}, 1, 0')
    a(f's_cmp_eq_u32 s{sWV}, 2')
    a(f's_cselect_b32 s{sHASRED}, s{sHASRED}, 0')
    a(f's_cmp_eq_u32 s{sHASRED}, 1')
    a(f's_cselect_b32 s{sTMP}, s{sTMP}, 0')
    a.label(lab)
    a(f's_lshl_b32 s{sRED}, s{sTMP}, 12')
    a(f's_add_u32 s{sRED}, s{sRED}, {WS_PRING}')
    a(f's_mul_i32 s{sTMP2}, s{sTMP}, 3277')
    a(f's_lshr_b32 s{sTMP2}, s{sTMP2}, 16')
    a(f's_mul_i32 s{sT64}, s{sTMP2}, 20')
    a(f's_sub_u32 s{sTMP}, s{sTMP}, s{sT64}')
    a(f's_mul_i32 s{sTMP2}, s{sTMP2}, 160')
    a(f's_lshr_b32 s{sT64}, s{sTMP}, 3')
    a(f's_lshl_b32 s{sT64}, s{sT64}, 6')
    a(f's_add_u32 s{sTMP2}, s{sTMP2}, s{sT64}')
    a(f's_and_b32 s{sT64}, s{sTMP}, 1')
    a(f's_lshl_b32 s{sT64}, s{sT64}, 5')
    a(f's_lshr_b32 s{sT64 + 1}, s{sTMP}, 1')
    a(f's_and_b32 s{sT64 + 1}, s{sT64 + 1}, 3')
    a(f's_cmp_ge_u32 s{sTMP}, 16')
    a(f's_cselect_b32 s{sRS}, 1, 0')
    a(f's_cselect_b32 s{sT64}, 0, s{sT64}')
    a(f's_add_u32 s{sTMP2}, s{sTMP2}, s{sT64}')
    a(f's_and_b32 s{sT64}, s{sTMP}, 3')
    a(f's_cmp_ge_u32 s{sTMP}, 16')
    a(f's_cselect_b32 s{sT64 + 1}, s{sT64}, s{sT64 + 1}')
    a(f's_and_b32 s{sT64}, s{sT64 + 1}, 1')
    a(f's_lshl_b32 s{sT64}, s{sT64}, 2')
    a(f's_and_b32 s{sT64 + 1}, s{sT64 + 1}, 2')
    a(f's_add_u32 s{sT64}, s{sT64}, s{sT64 + 1}')
    a(f'v_lshlrev_b32 v{X}, 2, v{C}')
    a(f'v_add_u32 v{X}, s{sTMP2}, v{X}')
    a(f'v_lshrrev_b32 v{Y}, 3, v{X}')
    a(f'v_lshlrev_b32 v{Y}, 7, v{Y}')
    a(f'v_and_b32 v{X}, 4, v{X}')
    a(f'v_lshl_add_u32 v{Y}, v{X}, 1, v{Y}')
    a(f'v_lshl_add_u32 v{Y}, v{G}, 4, v{Y}')
    a(f's_lshl_b32 s{sT64}, s{sT64}, 4')
    a(f'v_add_u32 v{Y}, s{sT64}, v{Y}')
    a(f'v_and_b32 v{X}, 0x28, v{LN}')
    a(f'v_cmp_eq_u32 vcc, 0, v{X}')
    a(f'v_mov_b32 v{X}, 0x80000000')
    a(f'v_cndmask_b32 v{MPUB}, v{X}, v{Y}, vcc')
    a(f's_and_b32 s{sB8}, s{sWV}, 1')
    a(f's_lshl_b32 s{sB8}, s{sB8}, 10')
    a(f's_add_u32 s{sB8}, s{sB8}, {LB8}')
    a(f's_mov_b32 s{sSCALE}, {f32(128 ** -0.5 * 1.4426950408889634)}')
    a(f's_mov_b32 s{sPERMLO}, 0x05040100')
    a(f's_mov_b32 s{sPERMHI}, 0x07060302')
    a(f's_lshl_b32 s{sTMP}, s{sH}, 2')
    a(f's_add_u32 s{sTMP}, s{sTMP}, s{sWV}')
    a(f's_mul_i32 s{sTMP}, s{sTMP}, {NSTR * 2048}')
    a(f's_add_u32 s{sTMP}, s{sTMP}, {WS_STREAM}')
    for i in range(6):
        a(f's_add_u32 s{sSTR + i}, s{sTMP}, {i * 4096}')
    a(f's_mul_i32 s{sPST}, s{sWV}, {20 * 4096}')
    a(f's_lshl_b32 s{sTMP}, s{sH}, 7')
    a(f's_add_u32 s{sPST}, s{sPST}, s{sTMP}')
    a(f's_add_u32 s{sPST}, s{sPST}, {WS_PRING}')
    a(f's_add_u32 s{sPST1}, s{sPST}, {8 * 4096}')
    a(f's_add_u32 s{sPST2}, s{sPST}, {16 * 4096}')
    a(f's_mov_b32 s{sPAR}, {PSLOT}')
    a(f's_and_b32 s{sTOFF}, s{sWV}, 1')
    a(f's_lshl_b32 s{sTOFF}, s{sTOFF}, 12')
    a(f's_cmp_ge_u32 s{sWV}, 2')
    a(f's_cselect_b32 s{sTMP}, {L_VB - L_KB}, 0')
    a(f's_add_u32 s{sTOFF}, s{sTOFF}, s{sTMP}')


def slot_kk_salu(a, n, dst):
    if n < 2:
        a(f's_lshl_b32 s{dst}, s{sWV}, 1')
        if n:
            a(f's_add_u32 s{dst}, s{dst}, 1')
    elif n == 2:
        a(f's_and_b32 s{dst}, s{sWV}, 1')
        a(f's_add_u32 s{dst}, s{dst}, 8')
    elif n == 3:
        a(f's_and_b32 s{dst}, s{sWV}, 1')
        a(f's_sub_u32 s{dst}, 9, s{dst}')
    else:
        q = (n - 2) >> 1
        a(f's_xor_b32 s{dst}, s{sWV}, {q}')
        a(f's_lshl_b32 s{dst}, s{dst}, 1')
        if n & 1:
            a(f's_add_u32 s{dst}, s{dst}, 1')


def chain_load_weights(a):
    tr = Track(a)
    LN, G, C = 14, 12, 13
    VSRC = 17
    VO = [18, 19, 20, 21, 22]
    RA, RB, RC = 23, 24, 25
    X, Y = 26, 27
    RD = 32
    PT = 64
    sSCR = sPOLL
    sHO, sKK, sSO, sSP = sPOLL8, sKB, sVB, sKMQ
    a(f's_mul_i32 s{sSCR}, s{sWV}, 40960')
    a(f's_lshl_b32 s{sSP}, s{sH}, 2')
    a(f's_add_u32 s{sSP}, s{sSP}, s{sWV}')
    a(f's_mul_i32 s{sSP}, s{sSP}, {17 * 2048}')
    a(f's_add_u32 s{sSP}, s{sSP}, {WS_SPILL}')
    a(f'v_lshrrev_b32 v{X}, 2, v{LN}')
    a(f'v_lshlrev_b32 v{X}, 13, v{X}')
    a(f'v_and_b32 v{Y}, 3, v{LN}')
    a(f'v_lshl_add_u32 v{X}, v{Y}, 4, v{X}')
    a(f's_lshl_b32 s{sTMP}, s{sWV}, 6')
    a(f'v_add_u32 v{VSRC}, s{sTMP}, v{X}')
    a(f's_mul_i32 s{sTMP}, s{sWV}, 320')
    a(f's_mov_b32 s{sTMP2}, 3277')
    a(f's_movk_i32 s{sT64}, 1280')
    for i in range(5):
        a(f'v_add_u32 v{X}, {64 * i}, v{LN}')
        a(f'v_mul_lo_u32 v{Y}, v{X}, s{sTMP2}')
        a(f'v_lshrrev_b32 v{Y}, 16, v{Y}')
        a(f'v_mul_u32_u24 v{VO[i]}, 20, v{Y}')
        a(f'v_sub_u32 v{X}, v{X}, v{VO[i]}')
        a(f'v_mul_lo_u32 v{Y}, v{Y}, s{sT64}')
        a(f'v_lshl_add_u32 v{Y}, v{X}, 4, v{Y}')
        a(f'v_add_u32 v{VO[i]}, s{sTMP}, v{Y}')
    LP = 28
    a(f'v_lshrrev_b32 v{X}, 1, v{G}')
    a(f'v_lshlrev_b32 v{X}, 4, v{X}')
    a(f'v_and_b32 v{Y}, 1, v{G}')
    a(f'v_lshl_add_u32 v{LP}, v{Y}, 2, v{X}')

    def set_srd(mi):
        a(f's_mov_b32 s{S_W}, s{sPTR + 2 * mi}')
        a(f's_and_b32 s{S_W + 1}, s{sPTR + 2 * mi + 1}, 0xffff')
        a(f's_mov_b32 s{S_W + 2}, 5242880')
        a(f's_mov_b32 s{S_W + 3}, 0x00020000')

    def dma_block(mi, n):
        if mi < 3:
            slot_kk_salu(a, n, sKK)
            a(f's_lshl_b32 s{sKK}, s{sKK}, 19')
            a(f's_lshl_b32 s{sSO}, s{sH}, 8')
            a(f's_add_u32 s{sKK}, s{sKK}, s{sSO}')
            for i in range(4):
                a(f's_add_u32 s{sSO}, s{sKK}, {i * 16 * 8192}')
                a(f's_add_u32 m0, s{sSCR}, {n * 4096 + i * 1024}')
                tr.vmem(f'buffer_load_dwordx4 v{VSRC}, s[{S_W}:{S_W + 3}], s{sSO} offen lds', ('dma', mi, n))
        else:
            a(f's_mul_i32 s{sKK}, s{sH}, 163840')
            for i in range(4):
                ii = 4 * n + i
                a(f's_add_u32 s{sSO}, s{sKK}, {(ii // 5) * 16 * 1280}')
                a(f's_add_u32 m0, s{sSCR}, {ii * 1024}')
                tr.vmem(f'buffer_load_dwordx4 v{VO[ii % 5]}, s[{S_W}:{S_W + 3}], s{sSO} offen lds', ('dma', mi, n))

    def dest(key, k):
        l = LOC[key]
        if l[0] == 'v':
            return l[1]
        return PT + 8 * k

    def finish(key, k):
        l = LOC[key]
        base = PT + 8 * k
        if l[0] == 'a':
            for r in range(8):
                a(f'v_accvgpr_write_b32 a{l[1] + r}, v{base + r}')
        elif l[0] in 'ls':
            a(f's_add_u32 s{sSO}, s{sSTR if l[0] == "s" else sSP}, {l[1] * 2048}')
            tr.vmem(f'buffer_store_dwordx4 {vr(base, 4)}, v{L16}, s[{S_WS}:{S_WS + 3}], s{sSO} offen', 'spill')
            tr.vmem(f'buffer_store_dwordx4 {vr(base + 4, 4)}, v{L16}, s[{S_WS}:{S_WS + 3}], s{sSO} offen offset:1024',
                    'spill')

    set_srd(0)
    for n in range(10):
        dma_block(0, n)
    a(f'v_lshlrev_b32 v{X}, 6, v{LP}')
    a(f'v_lshl_add_u32 v{X}, v{C}, 2, v{X}')
    a(f'v_add_u32 v{RC}, s{sSCR}, v{X}')
    for mi, m in enumerate('qkv'):
        set_srd(mi + 1)
        for n in range(10):
            tr.wait_vm(('dma', mi, n))
            a(f'v_add_u32 v{RA}, {n * 4096}, v{RC}')
            a(f'v_add_u32 v{RB}, {n * 4096 + 2048}, v{RC}')
            for r in range(8):
                rc = rowconst(r) & 31
                tr.ds(f'ds_read2_b32 {vr(RD + 2 * r, 2)}, v{RA if r < 4 else RB} offset0:{rc * 16} offset1:{rc * 16 + 16}')
            tr.drain_lg()
            dma_block(mi + 1, n)
            for t in range(2):
                key = (m, t, n)
                d = dest(key, t)
                for r in range(8):
                    a(f'v_perm_b32 v{d + r}, v{RD + 2 * r + 1}, v{RD + 2 * r}, s{sPERMHI if t else sPERMLO}')
                finish(key, t)
    a(f's_movk_i32 s{sT64}, 320')
    a(f'v_mul_lo_u32 v{X}, v{LP}, s{sT64}')
    a(f'v_add_u32 v{X}, s{sSCR}, v{X}')
    a(f'v_lshl_add_u32 v{RC}, v{C}, 3, v{X}')
    a(f'v_lshl_add_u32 v{Y}, v{C}, 2, v{X}')
    a(f'v_add_u32 v{Y}, 256, v{Y}')
    for k2 in range(2):
        tr.wait_vm(('dma', 3, 4 if k2 == 0 else 9))
        for grp in range(3):
            nt = 4 if grp < 2 else 2
            tiles = [4 * grp + i for i in range(nt)]
            for half in range(2):
                for rr in range(4):
                    r = 4 * half + rr
                    off = (64 * k2 + rowconst(r)) * 320
                    if grp < 2:
                        a(f'v_add_u32 v{RA}, {off}, v{RC}')
                        tr.ds(f'ds_read2_b64 {vr(RD + 4 * rr, 4)}, v{RA} offset0:{grp * 16} offset1:{grp * 16 + 40}')
                    else:
                        a(f'v_add_u32 v{RA}, {off}, v{Y}')
                        tr.ds(f'ds_read2_b32 {vr(RD + 4 * rr, 2)}, v{RA} offset0:0 offset1:80')
                tr.drain_lg()
                for rr in range(4):
                    r = 4 * half + rr
                    for i, T in enumerate(tiles):
                        d = dest(('o', T, k2), i)
                        if grp < 2:
                            lo = RD + 4 * rr + (i >> 1)
                            hi = lo + 2
                        else:
                            lo = RD + 4 * rr
                            hi = lo + 1
                        a(f'v_perm_b32 v{d + r}, v{hi}, v{lo}, s{sPERMHI if i & 1 else sPERMLO}')
            for i, T in enumerate(tiles):
                finish(('o', T, k2), i)
    tr.drain_vm()
    a('s_barrier')
    a(f's_mul_i32 s{sSCR}, s{sWV}, {LWT_W}')
    a(f's_add_u32 s{sSCR}, s{sSCR}, {LWT}')
    for i in range(34):
        a(f's_add_u32 s{sSO}, s{sSP}, {i * 1024}')
        a(f's_add_u32 m0, s{sSCR}, {i * 1024}')
        tr.vmem(f'buffer_load_dwordx4 v{L16}, s[{S_WS}:{S_WS + 3}], s{sSO} offen lds')
    a(f'v_and_b32 v{X}, 1, v{G}')
    a(f'v_lshlrev_b32 v{X}, 2, v{X}')
    a(f'v_sub_u32 v{X}, v{C}, v{X}')
    a(f'v_mov_b32 v{RA}, 0x3f80')
    a(f'v_mov_b32 v{RB}, 0x3f800000')
    for p, k in enumerate((0, 2, 8, 10)):
        reg = RD + p
        a(f'v_mov_b32 v{reg}, 0')
        a(f'v_cmp_eq_u32 vcc, {k}, v{X}')
        a(f'v_cndmask_b32 v{reg}, v{reg}, v{RA}, vcc')
        a(f'v_cmp_eq_u32 vcc, {k + 1}, v{X}')
        a(f'v_cndmask_b32 v{reg}, v{reg}, v{RB}, vcc')
    tr.ds(f'ds_write_b128 v{L16}, {vr(RD, 4)} offset:{LSEL}')
    for var in range(2):
        if var == 0:
            a(f'v_mov_b32 v{X}, v{C}')
        else:
            a(f'v_and_b32 v{X}, 9, v{C}')
            a(f'v_bfe_u32 v{Y}, v{C}, 1, 1')
            a(f'v_lshl_add_u32 v{X}, v{Y}, 2, v{X}')
            a(f'v_bfe_u32 v{Y}, v{C}, 2, 1')
            a(f'v_lshl_add_u32 v{X}, v{Y}, 1, v{X}')
        for p in range(4):
            reg = RD + 4 + p
            a(f'v_mov_b32 v{reg}, 0')
            a(f'v_cmp_eq_u32 vcc, {2 * p}, v{X}')
            a(f'v_cndmask_b32 v{reg}, v{reg}, v{RA}, vcc')
            a(f'v_cmp_eq_u32 vcc, {2 * p + 1}, v{X}')
            a(f'v_cndmask_b32 v{reg}, v{reg}, v{RB}, vcc')
        tr.ds(f'ds_write_b128 v{L16}, {vr(RD + 4, 4)} offset:{LRSEL + var * 1024}')
    tr.drain_vm()
    tr.drain_lg()
    a('s_barrier')


assert CHAIN_LDS <= 163840


OPT = {}
OOB = 0x7ffff000


def fill_ops(keys, tag):
    ops = []
    if OPT.get('nofill'):
        return ops
    for key in keys:
        l = LOC[key]
        assert l[0] == 's'
        idx = l[1]
        for hf in range(2):
            off = (idx & 1) * 2048 + hf * 1024
            ops.append((f'buffer_load_dwordx4 {vr(l[2] + 4 * hf, 4)}, v{L16}, s[{S_WS}:{S_WS + 3}], s{sSTR + (idx >> 1)} offen'
                        + (f' offset:{off}' if off else '') + OPT.get('fillmod', ''), tag))
    return ops


def lds_stage(tr, key):
    l = LOC[key]
    assert l[0] == 'l'
    for hf in range(2):
        tr.ds(f'ds_read_b128 {vr(l[2] + 4 * hf, 4)}, v{WB} offset:{l[1] * 2048 + hf * 1024}', ('B',) + key)


def m_addr(a, n, state):
    if n < 2:
        return
    if n == 2:
        a(f'v_add_u32 v{T2}, s{sB8}, v{L16}')
        state['t2'] = 'b8'
    elif n == 3:
        assert state['t2'] == 'b8'
        a(f'v_xor_b32 v{T2}, 0x400, v{T2}')
        state['t2'] = 'b9'
    elif (n & 1) == 0:
        q = (n - 2) >> 1
        a(f'v_xor_b32 v{T2}, {q * 4096}, v{VW}')
        state['t2'] = ('p', q)


def m_read(tr, n, buf, state):
    tag = ('A', n)
    if n < 2:
        tr.ds(f'ds_read_b128 {vr(buf, 4)}, v{VW} offset:{n * 1024}', tag)
    elif n < 4:
        assert state['t2'] == ('b8' if n == 2 else 'b9')
        tr.ds(f'ds_read_b128 {vr(buf, 4)}, v{T2}', tag)
    else:
        assert state['t2'] == ('p', (n - 2) >> 1)
        tr.ds(f'ds_read_b128 {vr(buf, 4)}, v{T2} offset:{(n & 1) * 1024}', tag)


def smf(a, acc, abuf, key):
    a(f'v_smfmac_f32_16x16x64_bf16 {vr(acc, 4)}, {vr(abuf, 4)}, {breg(key)}, v{IDX}')


def zero(a, base, n):
    for i in range(0, n, 2):
        a(f'v_mov_b64 {vr(base + i, 2)}, 0')


F1K = [('q', 0, 0), ('k', 0, 0), ('q', 1, 0)]


def kv_ready(a, name, seg_sgpr_plus):
    if OPT.get('noflags'):
        return
    WS = f's[{S_WS}:{S_WS + 3}]'
    a(f's_add_u32 s{sTMP}, s{sSTEP}, {seg_sgpr_plus}')
    a(f's_lshr_b32 s{sTMP}, s{sTMP}, 2')
    a(f's_min_u32 s{sTMP}, s{sTMP}, 15')
    a(f's_cmp_lt_u32 s{sTMP}, s{sRDY}')
    a(f's_cbranch_scc1 {name}_ok')
    a(f's_mov_b32 s{sSPIN}, 0')
    a.label(f'{name}_sp')
    a(f'v_lshrrev_b32 v{T1}, 2, v{L16}')
    a(f'buffer_load_dword v{T1}, v{T1}, {WS}, 0 offen offset:{WS_FLAGS + FL_KV} sc1')
    a('s_waitcnt vmcnt(0)')
    a(f'v_cmp_le_u32 vcc, 32, v{T1}')
    a(f's_add_u32 s{sSPIN}, s{sSPIN}, 1')
    a(f's_and_b32 s{sRDY}, vcc_lo, 0xffff')
    a(f's_ff0_i32_b32 s{sRDY}, s{sRDY}')
    a(f's_cmp_lt_u32 s{sTMP}, s{sRDY}')
    a(f's_cbranch_scc1 {name}_ok')
    a(f's_cmp_lt_u32 s{sSPIN}, 0x40000')
    a(f's_cbranch_scc1 {name}_sp')
    a.label(f'{name}_ok')


def chain_epilogue(a):
    WS = f's[{S_WS}:{S_WS + 3}]'
    a('s_waitcnt vmcnt(0)')
    a('s_barrier')
    a(f'buffer_store_dword v{IDX}, off, {WS}, s{sMF} sc1')


def chain_prologue_state(a, lbase_kb):
    tr = Track(a)
    WS = f's[{S_WS}:{S_WS + 3}]'
    a(f's_lshl_b32 s{sTMP}, s{sH}, 13')
    a(f's_add_u32 s{sKB}, s{sTMP}, {lbase_kb + L_KB}')
    a(f's_add_u32 s{sVB}, s{sTMP}, {lbase_kb + L_VB}')
    a(f's_lshl_b32 s{sTMP}, s{sH}, 12')
    a(f's_lshl_b32 s{sTMP2}, s{sWV}, 10')
    a(f's_add_u32 s{sTMP}, s{sTMP}, s{sTMP2}')
    a(f's_add_u32 s{sKMQ}, s{sTMP}, {lbase_kb + L_KMQ}')
    a(f's_add_u32 s{sVM}, s{sTMP}, {lbase_kb + L_VM}')
    a(f's_lshl_b32 s{sTMP}, s{sWV}, 11')
    a(f's_add_u32 s{sPOLL}, s{sTMP}, {WS_M0}')
    a(f's_add_u32 s{sPOLL8}, s{sB8}, {WS_M0 + 8192 - LB8}')
    a(f's_mov_b32 s{sMW}, {WS_MRING + MSLOT}')
    a(f's_mov_b32 s{sMR}, {WS_MRING}')
    a(f's_mov_b32 s{sREDP}, {OOB}')
    a(f's_mov_b32 s{sMRP}, {OOB}')
    a(f's_mov_b32 s{sSTEP}, 0')
    if OPT.get('samefill'):
        a(f's_and_b32 s{sTMP}, s{sH}, {OPT.get("samefill") - 1}')
        a(f's_lshl_b32 s{sTMP}, s{sTMP}, 2')
        a(f's_add_u32 s{sTMP}, s{sTMP}, s{sWV}')
        a(f's_mul_i32 s{sTMP}, s{sTMP}, {NSTR * 2048}')
        a(f's_add_u32 s{sTMP}, s{sTMP}, {WS_STREAM}')
        for i in range(6):
            a(f's_add_u32 s{sSTR + i}, s{sTMP}, {i * 4096}')
    for t, tag in fill_ops(F1K, 'f1'):
        a(t)
    a(f's_lshl_b32 s{sTMP}, s{sH}, 2')
    a(f's_add_u32 s{sTMP}, s{sTMP}, {WS_FLAGS + FL_MF}')
    a(f's_mov_b32 s{sMFS}, {OOB}')
    a(f's_cmp_eq_u32 s{sWV}, 3')
    a(f's_cselect_b32 s{sMFS}, s{sTMP}, s{sMFS}')
    a(f's_mov_b32 s{sMF}, {OOB}')
    a(f's_mov_b32 s{sRDY}, 0')
    kv_ready(a, a.newlabel('kvr0'), 0)
    for i in range(2):
        a(f'buffer_load_dwordx4 {vr(KR + 4 * i, 4)}, v{KT}, {WS}, s{sKB} offen offset:{128 * i} sc1')
        a(f'buffer_load_dwordx4 {vr(VR + 4 * i, 4)}, v{VT}, {WS}, s{sVB} offen offset:{16 * i} sc1')
    a(f's_add_u32 s{sKB}, s{sKB}, {32 * 8192}')
    a(f's_add_u32 s{sVB}, s{sVB}, {32 * 8192}')
    lds_stage(tr, ('k', 0, 1))
    lds_stage(tr, ('k', 0, 2))
    zero(a, Q0, 16)


def chain_step(a, sc, name, timing=False):
    tr = Track(a)
    WS = f's[{S_WS}:{S_WS + 3}]'
    st = {}
    top = f'{name}_top'
    a.label(top)
    mq = []
    KVM = OPT.get('kvmod', ' sc1')

    def M(cnt=1):
        for _ in range(cnt):
            if mq:
                t, tag = mq.pop(0)
                tr.vmem(t, tag)

    used = []

    def stamp(i):
        if timing and (str(i) in OPT['stamps'] or i in (0, 7)):
            k = len(used)
            used.append(i)
            a(f's_memtime s[{64 + 2 * k}:{65 + 2 * k}]')
    stamp(0)
    tr.lg = [('B', 'k', 0, 1), ('B', 'k', 0, 1), ('B', 'k', 0, 2), ('B', 'k', 0, 2)]
    m_addr(a, 2, st)
    for r in range(4):
        a(f'v_mov_b32 v{V0 + r}, -1')
    a(f's_mov_b32 s{sSPIN}, 0')
    a(f's_add_u32 s{sTCH}, s{sKB}, s{sTOFF}')
    pl = f'{name}_mpoll'
    go = f'{name}_go'
    a.label(pl)
    a(f'buffer_load_dwordx4 {vr(GM[0], 4)}, v{L16}, {WS}, s{sPOLL} offen sc1')
    a(f'buffer_load_dwordx4 {vr(GM[1], 4)}, v{L16}, {WS}, s{sPOLL} offen offset:1024 sc1')
    a(f'buffer_load_dwordx4 {vr(GM[2], 4)}, v{L16}, {WS}, s{sPOLL8} offen sc1')
    a(f's_add_u32 s{sSPIN}, s{sSPIN}, 1')
    a(f's_waitcnt vmcnt(2)')
    g = GM[0]
    a(f'v_max3_u32 v{T0}, v{g}, v{g + 1}, v{g + 2}')
    a(f's_waitcnt vmcnt(1)')
    a(f'v_max3_u32 v{T0}, v{T0}, v{g + 3}, v{g + 4}')
    a(f'v_max3_u32 v{T0}, v{T0}, v{g + 5}, v{g + 6}')
    a(f's_waitcnt vmcnt(0)')
    a(f'v_max3_u32 v{T0}, v{T0}, v{g + 7}, v{g + 8}')
    a(f'v_max3_u32 v{T1}, v{g + 9}, v{g + 10}, v{g + 11}')
    a(f'v_max_u32 v{T0}, v{T0}, v{T1}')
    a(f'v_cmp_eq_u32 vcc, -1, v{T0}')
    a(f's_cbranch_vccz {go}')
    a(f's_cmp_lt_u32 s{sSPIN}, 0x40000')
    a(f's_cbranch_scc1 {pl}')
    a.label(go)
    stamp(1)
    f2 = fill_ops([('v', 1, 0), ('v', 0, 1), ('v', 1, 1)], 'f2')
    ra = [(f'buffer_store_dwordx4 {vr(V0, 4)}, v{L16}, {WS}, s{sREDP} offen' + (f' offset:{1024 * j}' if j else '') + sc, 'ra')
          for j in range(4)]
    ra.append((f'buffer_store_dwordx2 {vr(V0, 2)}, v{MPUB}, {WS}, s{sMRP} offen{sc}', 'ra'))
    mq += ra + f2
    if not OPT.get('notouch'):
        mq.append((f'buffer_load_dword v{T1}, v{T1}, {WS}, s{sTCH} offen' + OPT.get('tmod', ' sc1'), 'tc'))
    order = [('q', 0, Q0), ('k', 0, K0), ('q', 1, Q1), ('k', 1, K1)]
    mw = [f'ds_write_b128 v{VW}, {vr(GM[0], 4)}', f'ds_write_b128 v{VW}, {vr(GM[1], 4)} offset:1024',
          f'ds_write_b128 v{T2}, {vr(GM[2], 4)}']
    SELR = GM[2]
    for n in range(10):
        buf = GM[n % 3]
        for p, (m, t, acc) in enumerate(order):
            key = (m, t, n)
            smf(a, acc, buf, key)
            if n == 0:
                if p < 3:
                    tr.ds(mw[p], 'mw')
                if p == 3:
                    M()
                    m_addr(a, 3, st)
                continue
            if p == 0:
                M()
                tr.wait_lg(('B', 'k', 0, n))
            elif p == 1:
                if n + 2 <= 9:
                    lds_stage(tr, (m, t, n + 2))
                elif n == 8:
                    lds_stage(tr, ('v', 0, 0))
                else:
                    lds_stage(tr, ('v', 0, 2))
            elif p == 2:
                if 1 <= n <= 5:
                    M()
                if n == 1:
                    a(f'v_lshlrev_b32 v{T1}, 2, v{L16}')
                if 2 <= n <= 6:
                    m_addr(a, n + 3, st)
                if n == 7:
                    zero(a, V0, 2)
                if n == 8:
                    zero(a, V0 + 2, 2)
                if n == 9:
                    zero(a, V0 + 6, 2)
            else:
                if n == 1:
                    stamp('b1a')
                    tr.wait_lg('mw')
                    a('s_barrier')
                    stamp('b1b')
                    m_read(tr, 3, GM[0], st)
                    m_addr(a, 4, st)
                    m_read(tr, 4, GM[1], st)
                elif n + 3 <= 9:
                    m_read(tr, n + 3, buf, st)
                elif n == 7:
                    m_read(tr, 0, GM[1], st)
                elif n == 8:
                    tr.ds(f'ds_read_b128 {vr(SELR, 4)}, v{L16} offset:{LSEL}', 'sel')
                    zero(a, V0 + 4, 2)
                elif n == 9:
                    m_read(tr, 1, GM[0], st)
                if 2 <= n < 9:
                    tr.wait_lg(('A', n + 1))
                stamp(f'n{n}')
    assert not mq
    vbuf = lambda n: GM[1] if (n & 1) == 0 else GM[0]
    lkeys = [('v', j & 1, j >> 1) for j in range(20) if LOC[('v', j & 1, j >> 1)][0] == 'l']
    fstate = {'j': 0}

    def F(cnt=1):
        for _ in range(cnt):
            j = fstate['j']
            if j >= 20:
                return
            fstate['j'] += 1
            n, t = j >> 1, j & 1
            key = ('v', t, n)
            if t == 0:
                tr.wait_lg(('A', n))
            if LOC[key][0] == 'l':
                tr.wait_lg(('B',) + key)
            if j == 1:
                tr.wait_vm('f2')
            if j == 17:
                while any(tag == 'f3' for _, tag in mq):
                    M()
                tr.wait_vm('f3')
            smf(a, V1 if t else V0, vbuf(n), key)
            if LOC[key][0] == 'l':
                i = lkeys.index(key)
                if i + 2 < len(lkeys):
                    lds_stage(tr, lkeys[i + 2])
            if t == 1 and n + 2 <= 9:
                m_read(tr, n + 2, vbuf(n), st)
            if t == 0 and n + 2 <= 9:
                m_addr(a, n + 2, st)
            if j == 3:
                mq.extend(fill_ops([('v', 1, 8), ('v', 0, 9), ('v', 1, 9)], 'f3'))
            if j == 19:
                mq.extend(fill_ops([('o', 0, 0), ('o', 0, 1), ('o', 1, 0)], 'f4'))

    cvt = lambda d, x, y: a(f'v_cvt_pk_bf16_f32 v{d}, v{x}, v{y}')
    stamp(2)
    cvt(Q0, Q0, Q0 + 1)
    cvt(Q0 + 1, Q0 + 2, Q0 + 3)
    cvt(Q0 + 2, K0, K0 + 1)
    cvt(Q0 + 3, K0 + 2, K0 + 3)
    cvt(Q1, Q1, Q1 + 1)
    tr.wait_lg('sel')
    a(f'v_mfma_f32_16x16x32_bf16 {vr(K0, 4)}, {vr(Q0, 4)}, {vr(SELR, 4)}, 0')
    cvt(Q1 + 1, Q1 + 2, Q1 + 3)
    cvt(Q1 + 2, K1, K1 + 1)
    cvt(Q1 + 3, K1 + 2, K1 + 3)
    a(f'v_lshrrev_b32 v{T0}, 16, v{ORDTMR}')
    a(f'v_mfma_f32_16x16x32_bf16 {vr(K1, 4)}, {vr(Q1, 4)}, {vr(SELR, 4)}, 0')
    F(2)
    for r in range(4):
        cvt(Q0 + r, K0 + r, K1 + r)
    a(f'v_mfma_f32_16x16x32_bf16 {vr(K0, 4)}, {vr(KR, 4)}, {vr(Q0, 4)}, 0')
    a(f'v_mfma_f32_16x16x32_bf16 {vr(K1, 4)}, {vr(KR + 4, 4)}, {vr(Q0, 4)}, 0')
    a(f'v_mfma_f32_16x16x32_bf16 {vr(Q1, 4)}, {vr(Q0, 4)}, {vr(Q0, 4)}, 0')
    stamp('smf')
    a(f's_mov_b64 exec, s[{sMASK}:{sMASK + 1}]')
    tr.ds(f'ds_write_b128 v{VW}, {vr(K0, 4)} offset:{LS_S}', 'sw')
    tr.ds(f'ds_write_b128 v{VW}, {vr(K1, 4)} offset:{LS_S + 128}', 'sw')
    tr.ds(f'ds_write_b128 v{VW}, {vr(Q1, 4)} offset:{LS_TM}', 'sw')
    a('s_mov_b64 exec, -1')
    F(2)
    M()
    F(1)
    M()
    stamp('b2a')
    tr.wait_lg('sw')
    a('s_barrier')
    stamp(3)
    SR = [K0, K1, Q1, GM[2]]
    for w in range(4):
        tr.ds(f'ds_read_b128 {vr(SR[w], 4)}, v{L16} offset:{w * 4096 + LS_S}', ('sr', w))
    TM = KR
    tr.ds(f'ds_read2st64_b64 {vr(TM, 4)}, v{T0} offset0:0 offset1:8', 'tm')
    tr.ds(f'ds_read2st64_b64 {vr(TM + 4, 4)}, v{T0} offset0:16 offset1:24', 'tm')
    F(1)
    M()
    F(1)
    M()
    F(1)
    M()
    pka = lambda d, x, y: a(f'v_pk_add_f32 {vr(d, 2)}, {vr(x, 2)}, {vr(y, 2)}')
    stamp('sr')
    tr.wait_lg(('sr', 1))
    pka(K0, K0, K1)
    pka(K0 + 2, K0 + 2, K1 + 2)
    tr.wait_lg(('sr', 3))
    pka(Q1, Q1, GM[2])
    pka(Q1 + 2, Q1 + 2, GM[2] + 2)
    tr.wait_lg('tm')
    pka(TM, TM, TM + 2)
    pka(TM + 4, TM + 4, TM + 6)
    pka(K0, K0, Q1)
    pka(K0 + 2, K0 + 2, Q1 + 2)
    SMM = Q1
    pka(SMM, TM, TM + 4)
    MX, MY = K1, K1 + 1
    a(f'v_max3_f32 v{MX}, v{K0}, v{K0 + 1}, v{K0 + 2}')
    a(f'v_max3_f32 v{MY}, v{K0 + 3}, v{SMM}, v{SMM + 1}')
    a(f'v_max_f32 v{MX}, v{MX}, v{MY}')
    M()
    F(1)
    a(f'v_max_f32_dpp v{MX}, v{MX}, v{MX} row_ror:8 row_mask:0xf bank_mask:0xf')
    a(f'v_mov_b32 v{MY}, v{MX}')
    M()
    F(1)
    a(f'v_permlane16_swap_b32 v{MX}, v{MY}')
    a(f'v_max_f32 v{MX}, v{MX}, v{MY}')
    a(f'v_mov_b32 v{MY}, v{MX}')
    M()
    F(1)
    a(f'v_permlane32_swap_b32 v{MX}, v{MY}')
    a(f'v_max_f32 v{MX}, v{MX}, v{MY}')
    a(f'v_mul_f32 v{MX}, s{sSCALE}, v{MX}')
    stamp('mx')
    S = [K0, K0 + 1, K0 + 2, K0 + 3, SMM, SMM + 1]
    for i, s in enumerate(S):
        a(f'v_fma_f32 v{s}, v{s}, s{sSCALE}, -v{MX}')
        if i == 2:
            F(1)
    M()
    F(1)
    for i, s in enumerate(S):
        a(f'v_exp_f32 v{s}, v{s}')
        if i in (1, 3):
            F(1)
    F(1)
    PB = GM[2]
    BM = Q1 + 2
    cvt(PB, K0, K0 + 1)
    cvt(PB + 1, K0 + 2, K0 + 3)
    cvt(BM, SMM, SMM + 1)
    F(1)
    a(f'v_mov_b32_dpp v{PB + 2}, v{PB} row_ror:8 row_mask:0xf bank_mask:0xf')
    a(f'v_mov_b32_dpp v{PB + 3}, v{PB + 1} row_ror:8 row_mask:0xf bank_mask:0xf')
    a(f'v_mov_b32_dpp v{BM + 1}, v{BM} row_ror:8 row_mask:0xf bank_mask:0xf')
    F(20)
    stamp(4)
    O0, O1 = GM[0], GM[1]
    SM, SY = K1 + 2, K1 + 3
    a(f'v_mfma_f32_16x16x32_bf16 {vr(O0, 4)}, {vr(VR, 4)}, {vr(PB, 4)}, 0')
    M()
    pka(K0, K0, K0 + 2)
    a(f'v_add_f32 v{SY}, v{SMM}, v{SMM + 1}')
    a(f'v_mfma_f32_16x16x32_bf16 {vr(O1, 4)}, {vr(VR + 4, 4)}, {vr(PB, 4)}, 0')
    M()
    a(f'v_add_f32 v{SM}, v{K0}, v{K0 + 1}')
    a(f'v_fma_f32 v{SM}, v{SY}, 0.5, v{SM}')
    cvt(V0, V0, V0 + 1)
    cvt(V0 + 1, V0 + 2, V0 + 3)
    a(f'v_add_f32_dpp v{SM}, v{SM}, v{SM} row_ror:8 row_mask:0xf bank_mask:0xf')
    cvt(V0 + 2, V1, V1 + 1)
    cvt(V0 + 3, V1 + 2, V1 + 3)
    a(f'v_mov_b32 v{SY}, v{SM}')
    a(f'v_mfma_f32_16x16x16_bf16 {vr(O0, 4)}, {vr(V0, 2)}, {vr(BM, 2)}, {vr(O0, 4)}')
    M()
    a(f'v_mfma_f32_16x16x16_bf16 {vr(O1, 4)}, {vr(V0 + 2, 2)}, {vr(BM, 2)}, {vr(O1, 4)}')
    M()
    a(f'v_permlane16_swap_b32 v{SM}, v{SY}')
    a(f'v_add_f32 v{SM}, v{SM}, v{SY}')
    a(f'v_mov_b32 v{SY}, v{SM}')
    M()
    a(f'v_and_b32 v{T0}, 0xffff, v{ORDTMR}')
    a(f'v_permlane32_swap_b32 v{SM}, v{SY}')
    a(f'v_add_f32 v{SM}, v{SM}, v{SY}')
    a(f'v_rcp_f32 v{SM}, v{SM}')
    M()
    assert not mq
    kv_ready(a, f'{name}_kvr', 1)
    if not OPT.get('nokv'):
        mq.append((f'buffer_load_dwordx4 {vr(KR, 4)}, v{KT}, {WS}, s{sKB} offen{KVM}', 'kt'))
        mq.append((f'buffer_load_dwordx4 {vr(KR + 4, 4)}, v{KT}, {WS}, s{sKB} offen offset:128{KVM}', 'kt'))
        mq.append((f'buffer_load_dwordx4 {vr(VR, 4)}, v{VT}, {WS}, s{sVB} offen{KVM}', 'vt'))
        mq.append((f'buffer_load_dwordx4 {vr(VR + 4, 4)}, v{VT}, {WS}, s{sVB} offen offset:16{KVM}', 'vt'))
    if not OPT.get('nopub'):
        mq.append((f'buffer_store_dwordx4 {vr(V0, 4)}, v{L16}, {WS}, s{sVM} offen sc1', 'vm'))
        mq.append((f'buffer_store_dwordx4 {vr(Q0, 4)}, v{L16}, {WS}, s{sKMQ} offen sc1', 'km'))
    for r in range(0, 8, 2):
        a(f'v_pk_mul_f32 {vr(O0 + r, 2)}, {vr(O0 + r, 2)}, {vr(SM, 2)} op_sel_hi:[1,0]')
    OP = K0
    for r in range(4):
        cvt(OP + r, O0 + r, O1 + r)
    a(f's_mov_b64 exec, s[{sMASK}:{sMASK + 1}]')
    tr.ds(f'ds_write_b128 v{VW}, {vr(OP, 4)} offset:{LS_O}', 'ow')
    a('s_mov_b64 exec, -1')
    for i in range(4):
        if i < 2 and not OPT.get('nopub'):
            tr.vmem(*mq.pop(-2 + i))
        else:
            M()
        zero(a, ST[0] + 4 * i, 4)
    stamp('b3a')
    tr.wait_lg('ow')
    a('s_barrier')
    stamp(5)
    OA = [GM[0], GM[1]]
    tr.ds(f'ds_read_b128 {vr(OA[0], 4)}, v{T0}', 'oa0')
    tr.ds(f'ds_read_b128 {vr(OA[1], 4)}, v{T0} offset:8192', 'oa1')
    zero(a, Q0, 8)
    M()
    zero(a, Q0 + 8, 8)
    M()
    zero(a, Q0 + 16, 8)
    tr.vmem(f'buffer_store_dword v{IDX}, off, {WS}, s{sMF} sc1', 'mf')
    assert not mq
    PQr, PPr = GM[2], GM[2] + 1
    a(f'v_and_b32 v{PQr}, 0xffff, v{PQPP}')
    a(f'v_lshrrev_b32 v{PPr}, 16, v{PQPP}')
    tr.wait_vm('f4')
    acc_of = lambda T: (ST[0] + 4 * T) if T < 4 else (Q0 + 4 * (T - 4))
    sw = lambda x, y: a(f'v_permlane32_swap_b32 v{x}, v{y}')

    def pack_quad(q):
        b = acc_of(4 * q)
        cvt(b + 2, b + 1, b + 5)
        cvt(b, b, b + 4)
        cvt(b + 1, b + 8, b + 12)
        cvt(b + 3, b + 9, b + 13)
        tr.vmem(f'buffer_store_dwordx4 {vr(b, 4)}, v{PQr}, {WS}, s{sPST1 if q else sPST} offen{sc}', 'ps')

    for T in range(10):
        pb = acc_of(T - 2) if T >= 2 else None
        if T == 0:
            tr.wait_lg('oa0')
        smf(a, acc_of(T), OA[0], ('o', T, 0))
        if T == 1:
            mq.extend(fill_ops(F1K, 'f1'))
        if T >= 2:
            M()
            sw(pb, pb + 2)
        if T == 0:
            tr.wait_lg('oa1')
        smf(a, acc_of(T), OA[1], ('o', T, 1))
        if T >= 2:
            sw(pb + 1, pb + 3)
            pka(pb, pb, pb + 2)
        if T == 5:
            pack_quad(0)
        if T == 9:
            pack_quad(1)
        stamp(f'T{T}')
    assert not mq
    RS, RDD = GM[0], GM[1]
    a(f's_lshl_b32 s{sTMP}, s{sRS}, 10')
    a(f'v_add_u32 v{T2}, s{sTMP}, v{L16}')
    for pb in (V0, V1):
        sw(pb, pb + 2)
        sw(pb + 1, pb + 3)
        pka(pb, pb, pb + 2)
    cvt(V0, V0, V1)
    cvt(V0 + 1, V0 + 1, V1 + 1)
    tr.vmem(f'buffer_store_dwordx2 {vr(V0, 2)}, v{PPr}, {WS}, s{sPST2} offen{sc}', 'ps')
    stamp(6)
    skip = f'{name}_nored'
    a(f's_cmp_eq_u32 s{sHASRED}, 0')
    a(f's_cbranch_scc1 {skip}')
    a(f'ds_read_b128 {vr(RS, 4)}, v{T2} offset:{LRSEL}')
    a(f's_mov_b32 s{sSPIN}, 0')
    rl = f'{name}_rpoll'
    rg = f'{name}_rgo'
    a.label(rl)
    for j in range(4):
        a(f'buffer_load_dwordx4 {vr(Q0 + 4 * j, 4)}, v{L16}, {WS}, s{sRED} offen' + (f' offset:{1024 * j}' if j else '') + ' sc1')
    a(f's_add_u32 s{sSPIN}, s{sSPIN}, 1')
    a('s_waitcnt vmcnt(3) lgkmcnt(0)')
    a(f'v_mfma_f32_16x16x32_bf16 {vr(RDD, 4)}, {vr(RS, 4)}, {vr(Q0, 4)}, 0')
    a(f'v_max3_u32 v{T0}, v{Q0}, v{Q0 + 1}, v{Q0 + 2}')
    for j in range(1, 4):
        a(f's_waitcnt vmcnt({3 - j})')
        a(f'v_mfma_f32_16x16x32_bf16 {vr(RDD, 4)}, {vr(RS, 4)}, {vr(Q0 + 4 * j, 4)}, {vr(RDD, 4)}')
        a(f'v_max3_u32 v{T0}, v{T0}, v{Q0 + 4 * j - 1}, v{Q0 + 4 * j}')
        a(f'v_max3_u32 v{T0}, v{T0}, v{Q0 + 4 * j + 1}, v{Q0 + 4 * j + 2}')
    a(f'v_max_u32 v{T0}, v{T0}, v{Q0 + 15}')
    a(f'v_cmp_eq_u32 vcc, -1, v{T0}')
    a(f's_cbranch_vccz {rg}')
    a(f's_cmp_lt_u32 s{sSPIN}, 0x40000')
    a(f's_cbranch_scc1 {rl}')
    a.label(rg)
    a('s_nop 2')
    for r in range(4):
        a(f'v_add_f32_dpp v{RDD + r}, v{RDD + r}, v{RDD + r} row_ror:8 row_mask:0xf bank_mask:0xf')
    cvt(RDD, RDD, RDD + 1)
    cvt(RDD + 1, RDD + 2, RDD + 3)
    a(f'buffer_store_dwordx2 {vr(RDD, 2)}, v{MPUB}, {WS}, s{sMW} offen{sc}')
    a(f's_mov_b32 s{sREDP}, s{sRED}')
    a(f's_mov_b32 s{sMRP}, s{sMR}')
    a.label(skip)
    if timing:
        stamp(7)
        a('s_waitcnt lgkmcnt(0)')
        assert len(used) <= 13
        OPT['used'] = used
        for i in range(len(used) - 1):
            a(f's_sub_u32 s{sTMP}, s{66 + 2 * i}, s{64 + 2 * i}')
            a(f's_add_u32 s{90 + i}, s{90 + i}, s{sTMP}')
    lds_stage(tr, ('k', 0, 1))
    lds_stage(tr, ('k', 0, 2))
    zero(a, Q0, 16)
    a(f's_lshl_b32 s{sTMP}, s{sWV}, 11')
    a(f's_add_u32 s{sPOLL}, s{sMW}, s{sTMP}')
    a(f's_add_u32 s{sPOLL8}, s{sMW}, s{sB8}')
    a(f's_add_u32 s{sPOLL8}, s{sPOLL8}, {8192 - LB8}')
    a(f's_mov_b32 s{sMR}, s{sMW}')
    a(f's_add_u32 s{sMW}, s{sMW}, {MSLOT}')
    a(f's_cmp_ge_u32 s{sMW}, {WS_MRING + 3 * MSLOT}')
    a(f's_cselect_b32 s{sMW}, {WS_MRING}, s{sMW}')
    for s in (sPST, sPST1, sPST2, sRED):
        a(f's_add_u32 s{s}, s{s}, s{sPAR}')
    a(f's_sub_u32 s{sPAR}, 0, s{sPAR}')
    for s in (sKB, sVB):
        a(f's_add_u32 s{s}, s{s}, {32 * 8192}')
    a(f's_add_u32 s{sVM}, s{sVM}, {32 * 4096}')
    a(f's_add_u32 s{sKMQ}, s{sKMQ}, {32 * 4096}')
    a(f's_mov_b32 s{sMF}, s{sMFS}')
    a(f's_add_u32 s{sMFS}, s{sMFS}, 128')
    a(f's_add_u32 s{sSTEP}, s{sSTEP}, 1')
    a(f's_cmp_lt_u32 s{sSTEP}, s{sNSTEP}')
    a(f's_cbranch_scc1 {top}')
```

```python
from asmlib import *
from layout import *

NWG = 256

def kernel_head(a, name):
    a.ins.append(Ins('.globl ' + name))
    a.ins.append(Ins('.p2align 8'))
    a.ins.append(Ins(f'.type {name},@function'))
    a.label(name)


def srd(a, d, ptr, size):
    a(f's_mov_b32 s{d}, s{ptr}')
    a(f's_and_b32 s{d + 1}, s{ptr + 1}, 0xffff')
    a(f's_mov_b32 s{d + 2}, {size}')
    a(f's_mov_b32 s{d + 3}, 0x00020000')


def team_select(a, sDBG, sX, sTK, sC, sROLE, sIDX, sA, sB, force_slow=False):
    L = a.newlabel('ts')
    a(f's_getreg_b32 s{sX}, hwreg(HW_REG_XCC_ID)')
    a(f's_and_b32 s{sX}, s{sX}, 7')
    a(f'v_cmp_eq_u32 vcc, 0, v0')
    a(f's_and_saveexec_b64 s[{sA}:{sA + 1}], vcc')
    a(f's_cbranch_execz {L}_na')
    a(f's_lshl_b32 s{sB}, s{sX}, 2')
    a(f'v_mov_b32 v1, s{sB}')
    a(f'v_mov_b32 v2, 1')
    a(f'buffer_atomic_add v2, v1, s[{sDBG}:{sDBG + 3}], 0 offen sc0')
    a(f'v_mov_b32 v3, 0')
    a('s_waitcnt vmcnt(0)')
    a('ds_write_b32 v3, v2')
    a('s_waitcnt lgkmcnt(0)')
    a.label(f'{L}_na')
    a(f's_mov_b64 exec, s[{sA}:{sA + 1}]')
    a('s_barrier')
    a('v_mov_b32 v3, 0')
    a('ds_read_b32 v2, v3')
    a('v_and_b32 v1, 63, v0')
    a('v_lshlrev_b32 v1, 2, v1')
    a('s_waitcnt lgkmcnt(0)')
    a(f'v_readfirstlane_b32 s{sTK}, v2')
    a(f's_mov_b32 s{sB}, 0')
    a.label(f'{L}_poll')
    a(f'buffer_load_dword v2, v1, s[{sDBG}:{sDBG + 3}], 0 offen sc1')
    a('s_waitcnt vmcnt(0)')
    for i in range(8):
        a(f'v_readlane_b32 s{sC + i}, v2, {i}')
    a(f's_add_u32 s{sA}, s{sC}, s{sC + 1}')
    for i in range(2, 8):
        a(f's_add_u32 s{sA}, s{sA}, s{sC + i}')
    a(f's_add_u32 s{sB}, s{sB}, 1')
    a(f's_cmp_gt_u32 s{sB}, 0x100000')
    a(f's_cbranch_scc1 {L}_go')
    a(f's_cmp_lt_u32 s{sA}, {NWG}')
    a(f's_cbranch_scc1 {L}_poll')
    a.label(f'{L}_go')
    a('s_barrier')
    a(f's_mov_b32 s{sA}, 8')
    if not force_slow:
        for i in range(7, -1, -1):
            a(f's_cmp_ge_u32 s{sC + i}, 32')
            a(f's_cselect_b32 s{sA}, {i}, s{sA}')
    a(f's_mov_b32 s{sIDX}, s{sTK}')
    for i in range(7):
        a(f's_cmp_gt_u32 s{sX}, {i}')
        a(f's_cselect_b32 s{sB}, s{sC + i}, 0')
        a(f's_add_u32 s{sIDX}, s{sIDX}, s{sB}')
    if force_slow:
        a(f's_mov_b32 s{sIDX}, s2')
    a(f's_cmp_eq_u32 s{sA}, 8')
    a(f's_cbranch_scc1 {L}_slow')
    a(f's_mov_b32 s{sROLE}, 0')
    a(f's_cmp_ge_u32 s{sX}, s{sA}')
    a(f's_cselect_b32 s{sB}, 32, 0')
    a(f's_sub_u32 s{sIDX}, s{sIDX}, s{sB}')
    a(f's_cmp_lg_u32 s{sX}, s{sA}')
    a(f's_cbranch_scc1 {L}_done')
    a(f's_cmp_ge_u32 s{sTK}, 32')
    a(f's_cbranch_scc1 {L}_done')
    a(f's_mov_b32 s{sROLE}, 1')
    a(f's_mov_b32 s{sIDX}, s{sTK}')
    a(f's_branch {L}_done')
    a.label(f'{L}_slow')
    a(f's_mov_b32 s{sROLE}, 2')
    a(f's_cmp_lt_u32 s{sIDX}, 32')
    a(f's_cbranch_scc1 {L}_done')
    a(f's_mov_b32 s{sROLE}, 0')
    a(f's_sub_u32 s{sIDX}, s{sIDX}, 32')
    a.label(f'{L}_done')
```

```python
KA_X, KA_MEM0, KA_WQ, KA_WK, KA_WV, KA_WO, KA_SEG, KA_BX, KA_W1, KA_B1, KA_W2, KA_B2, KA_OUT, KA_DBG, KA_WS = \
    [8 * i for i in range(15)]

WS_SIZE = 268435456
WS_FLAGS = 0
WS_M0 = 0x10000
WS_MRING = 0x14000
MSLOT = 0x2800
WS_PRING = 0x20000
PSLOT = 327680
WS_SPILL = 0x400000
NSTR = 12
WS_STREAM = 0xC0000
LAYER0 = 0x1000000
LSTRIDE = 0x6000000
L_XN = 0
L_KB = 0x0300000
L_VB = 0x1300000
L_Q = 0x2300000
L_MC = 0x3300000
L_O = 0x3B00000
L_X1 = 0x4B00000
L_HT = 0x4E00000
L_U = 0x5100000
L_X2 = 0x5400000
```

```python
import struct
from asmlib import *
from layout import *
from common import *
from chain import Track, f32


def allreduce32(a, x, t):
    for r in (8, 4, 2, 1):
        a(f'v_add_f32_dpp v{x}, v{x}, v{x} row_ror:{r} row_mask:0xf bank_mask:0xf')
    a(f'v_mov_b32 v{t}, v{x}')
    a(f'v_permlane16_swap_b32 v{x}, v{t}')
    a(f'v_add_f32 v{x}, v{x}, v{t}')


def rbf(a, x):
    a(f'v_cvt_pk_bf16_f32 v{x}, v{x}, v{x}')
    a(f'v_and_b32 v{x}, 0xffff0000, v{x}')


def ln_pass(a, X, P, S, T, U):
    a(f'v_add_f32 v{S}, v{X}, v{X + 1}')
    a(f'v_add_f32 v{T}, v{X + 2}, v{X + 3}')
    for i in range(4, 20, 2):
        a(f'v_add_f32 v{S}, v{S}, v{X + i}')
        a(f'v_add_f32 v{T}, v{T}, v{X + i + 1}')
    a(f'v_add_f32 v{S}, v{S}, v{T}')
    allreduce32(a, S, T)
    a(f'v_mul_f32 v{S}, {f32(1.0 / 640)}, v{S}')
    a(f'v_sub_f32 v{T}, v{X}, v{S}')
    a(f'v_mul_f32 v{U}, v{T}, v{T}')
    for i in range(1, 20):
        a(f'v_sub_f32 v{T}, v{X + i}, v{S}')
        a(f'v_fmac_f32 v{U}, v{T}, v{T}')
    allreduce32(a, U, T)
    a(f'v_mul_f32 v{U}, {f32(1.0 / 640)}, v{U}')
    rbf(a, S)
    rbf(a, U)
    a(f'v_add_f32 v{U}, {f32(1e-5)}, v{U}')
    rbf(a, U)
    a(f'v_sqrt_f32 v{U}, v{U}')
    rbf(a, U)
    a(f'v_rcp_f32 v{U}, v{U}')
    for i in range(10):
        a(f'v_sub_f32 v{X + 2 * i}, v{X + 2 * i}, v{S}')
        a(f'v_sub_f32 v{X + 2 * i + 1}, v{X + 2 * i + 1}, v{S}')
        a(f'v_cvt_pk_bf16_f32 v{P + i}, v{X + 2 * i}, v{X + 2 * i + 1}')
    for i in range(10):
        a(f'v_lshlrev_b32 v{X + 2 * i}, 16, v{P + i}')
        a(f'v_and_b32 v{X + 2 * i + 1}, 0xffff0000, v{P + i}')
        a(f'v_mul_f32 v{X + 2 * i}, v{X + 2 * i}, v{U}')
        a(f'v_mul_f32 v{X + 2 * i + 1}, v{X + 2 * i + 1}, v{U}')
        a(f'v_cvt_pk_bf16_f32 v{P + i}, v{X + 2 * i}, v{X + 2 * i + 1}')


def unpack(a, X, P, n):
    for i in range(n):
        a(f'v_lshlrev_b32 v{X + 2 * i}, 16, v{P + i}')
        a(f'v_and_b32 v{X + 2 * i + 1}, 0xffff0000, v{P + i}')


def ln_kernel(a, name, src_ws_off, dst_off, double, frag, init=None):
    kernel_head(a, name)
    a(f's_cmp_ge_u32 s2, 256')
    a(f's_cbranch_scc1 {name}_end')
    a(f's_load_dwordx2 s[16:17], s[0:1], {KA_WS}')
    a(f's_load_dwordx4 s[20:23], s[0:1], {KA_X}')
    a('s_waitcnt lgkmcnt(0)')
    srd(a, 4, 16, WS_SIZE)
    srd(a, 8, 20, 2048 * 640 * 2)
    a('v_lshrrev_b32 v1, 5, v0')
    a('s_lshl_b32 s3, s2, 3')
    a('v_add_u32 v1, s3, v1')
    a('v_and_b32 v2, 31, v0')
    a('s_movk_i32 s12, 1280')
    a('v_mul_lo_u32 v3, v1, s12')
    a('v_lshl_add_u32 v3, v2, 3, v3')
    P, X, S, T, U = 10, 20, 6, 7, 8
    if src_ws_off is not None:
        a(f's_mov_b32 s13, {src_ws_off}')
    for j in range(5):
        if src_ws_off is None:
            a(f'buffer_load_dwordx2 {vr(P + 2 * j, 2)}, v3, s[8:11], 0 offen offset:{256 * j}')
        else:
            a(f'buffer_load_dwordx2 {vr(P + 2 * j, 2)}, v3, s[4:7], s13 offen offset:{256 * j}')
    if frag:
        a('v_lshrrev_b32 v4, 5, v1')
        a('v_mul_u32_u24 v4, 40, v4')
        a('v_lshrrev_b32 v5, 2, v2')
        a('v_add_u32 v4, v4, v5')
        a('v_lshlrev_b32 v4, 10, v4')
        a('v_bfe_u32 v5, v2, 1, 1')
        a('v_lshl_add_u32 v4, v5, 9, v4')
        a('v_and_b32 v5, 1, v2')
        a('v_lshl_add_u32 v4, v5, 3, v4')
        a('v_and_b32 v5, 3, v1')
        a('v_lshl_add_u32 v4, v5, 4, v4')
        a('v_bfe_u32 v5, v1, 2, 2')
        a('v_lshl_add_u32 v4, v5, 7, v4')
        a('v_bfe_u32 v5, v1, 4, 1')
        a('v_lshl_add_u32 v4, v5, 6, v4')
    if init:
        init(a)
    a('s_waitcnt vmcnt(0)' if not init else f's_waitcnt vmcnt({init.nstores})')
    unpack(a, X, P, 10)
    ln_pass(a, X, P, S, T, U)
    if double:
        unpack(a, X, P, 10)
        ln_pass(a, X, P, S, T, U)
    for j in range(5):
        if frag:
            a(f's_mov_b32 s13, {dst_off + 8192 * j}')
            a(f'buffer_store_dwordx2 {vr(P + 2 * j, 2)}, v4, s[4:7], s13 offen')
        else:
            a(f's_mov_b32 s13, {dst_off}')
            a(f'buffer_store_dwordx2 {vr(P + 2 * j, 2)}, v3, s[4:7], s13 offen offset:{256 * j}')
    a.label(f'{name}_end')
    a('s_endpgm')


class InitChain:
    def __init__(self, first):
        self.first = first
        self.nstores = 4

    def __call__(self, a):
        a('s_lshl_b32 s24, s2, 12')
        a('v_lshlrev_b32 v40, 4, v0')
        a('v_add_u32 v40, s24, v40')
        for r in range(4):
            a(f'v_mov_b32 v{44 + r}, -1')
            a(f'v_mov_b32 v{48 + r}, 0')
        a(f'v_mov_b32 v41, 0x80000000')
        a(f'v_cmp_gt_u32 vcc, 0x{WS_STREAM - WS_MRING:x}, v40')
        a('v_cndmask_b32 v42, v41, v40, vcc')
        a(f's_mov_b32 s25, {WS_MRING}')
        a('buffer_store_dwordx4 v[44:47], v42, s[4:7], s25 offen')
        a(f'v_cmp_gt_u32 vcc, 0x{WS_M0 - WS_FLAGS:x}, v40')
        a('v_cndmask_b32 v42, v41, v40, vcc')
        a('buffer_store_dwordx4 v[48:51], v42, s[4:7], 0 offen')
        srd(a, 28, 22, 10240)
        a('v_lshrrev_b32 v43, 4, v40')
        a('v_and_b32 v52, 7, v43')
        a('v_mul_u32_u24 v52, 0x500, v52')
        a('v_lshrrev_b32 v53, 3, v43')
        a('v_lshl_add_u32 v52, v53, 4, v52')
        a('v_cmp_gt_u32 vcc, 640, v43')
        a('v_cndmask_b32 v52, v41, v52, vcc')
        a('v_cndmask_b32 v53, v41, v40, vcc')
        a('buffer_load_dwordx4 v[56:59], v52, s[28:31], 0 offen')
        a(f's_mov_b32 s25, {WS_M0}')
        a('s_waitcnt vmcnt(0)')
        a('buffer_store_dwordx4 v[56:59], v53, s[4:7], s25 offen')
        self.nstores = 1


NRING = 7
GST = 20480


def tr_lane_addr(a, dst, lane, t1, t2, pitch, cmap, swz=None, hirows=8):
    a(f'v_lshrrev_b32 v{t1}, 5, v{lane}')
    a(f'v_mul_u32_u24 v{t1}, {hirows}, v{t1}')
    a(f'v_bfe_u32 v{t2}, v{lane}, 2, 2')
    a(f'v_add_u32 v{t1}, v{t1}, v{t2}')
    a(f'v_mul_u32_u24 v{dst}, {pitch}, v{t1}')
    src = {'g0': 0, 'g1': 1, 'g2': 4}
    for k, nm in enumerate(cmap):
        a(f'v_bfe_u32 v{t2}, v{lane}, {src[nm]}, 1')
        a(f'v_lshl_add_u32 v{dst}, v{t2}, {3 + k}, v{dst}')
    if swz is not None:
        swz(t1, t2, dst)


CM_NAT = ('g0', 'g1', 'g2')
CM_PI = ('g1', 'g2', 'g0')
CM_SIG = ('g1', 'g0', 'g2')


def g_kernel(a, name, which, lb, final):
    nx = 18 if which == 1 else 22
    nst = 32 if which == 1 else 27
    xpitch = 3456 if which == 1 else 4096
    kernel_head(a, name)
    a(f's_cmp_ge_u32 s2, {nx * 10}')
    a(f's_cbranch_scc1 {name}_end')
    a(f's_load_dwordx4 s[16:19], s[0:1], {KA_W1 if which == 1 else KA_W2}')
    a(f's_load_dwordx2 s[20:21], s[0:1], {KA_WS}')
    a(f's_load_dwordx2 s[22:23], s[0:1], {KA_OUT}')
    a('s_mul_i32 s24, s2, 6554')
    a('s_lshr_b32 s24, s24, 16')
    a('s_mul_i32 s25, s24, 10')
    a('s_sub_u32 s25, s2, s25')
    LN, W, T1, T2 = 1, 2, 3, 4
    VX = [5, 6, 7]
    VY = [8, 9]
    RX, RY = 10, 11
    a(f'v_and_b32 v{LN}, 63, v0')
    a(f'v_lshrrev_b32 v{W}, 6, v0')
    a(f'v_readfirstlane_b32 s26, v{W}')
    a('s_waitcnt lgkmcnt(0)')
    srd(a, 4, 20, WS_SIZE)
    srd(a, 8, 16, 2048 * 1728 * 2)
    srd(a, 12, 18, (1728 if which == 1 else 2048) * 2)
    a(f's_mov_b32 s27, 5462')
    a(f's_mov_b32 s28, {xpitch}')
    a('s_mul_i32 s29, s24, 192')
    for k in range(3):
        a(f'v_add_u32 v{T1}, {256 * k}, v0')
        a(f'v_mul_lo_u32 v{T2}, v{T1}, s27')
        a(f'v_lshrrev_b32 v{T2}, 16, v{T2}')
        a(f'v_mul_u32_u24 v{VX[k]}, 12, v{T2}')
        a(f'v_sub_u32 v{T1}, v{T1}, v{VX[k]}')
        a(f'v_mul_lo_u32 v{T2}, v{T2}, s28')
        a(f'v_lshl_add_u32 v{T2}, v{T1}, 4, v{T2}')
        a(f'v_add_u32 v{VX[k]}, s29, v{T2}')
    a('s_lshl_b32 s29, s25, 7')
    a('s_movk_i32 s28, 1280')
    for k in range(2):
        a(f'v_add_u32 v{T1}, {256 * k}, v0')
        a(f'v_lshrrev_b32 v{T2}, 3, v{T1}')
        a(f'v_and_b32 v{T1}, 7, v{T1}')
        a(f'v_bfe_u32 v{VY[k]}, v{T2}, 1, 1')
        a(f'v_lshlrev_b32 v{VY[k]}, 2, v{VY[k]}')
        a(f'v_xor_b32 v{T1}, v{T1}, v{VY[k]}')
        a(f'v_mul_lo_u32 v{T2}, v{T2}, s28')
        a(f'v_lshl_add_u32 v{T2}, v{T1}, 4, v{T2}')
        a(f'v_add_u32 v{VY[k]}, s29, v{T2}')
    tr_lane_addr(a, RX, LN, T1, T2, 192, CM_NAT)
    a('s_mul_i32 s28, s26, 3072')
    a(f'v_add_u32 v{RX}, s28, v{RX}')

    def swzY(row, t, dst):
        a(f'v_bfe_u32 v{t}, v{row}, 1, 1')
        a(f'v_lshlrev_b32 v{t}, 6, v{t}')
        a(f'v_xor_b32 v{dst}, v{t}, v{dst}')
    tr_lane_addr(a, RY, LN, T1, T2, 128, CM_PI, swzY)
    a('s_lshl_b32 s28, s26, 11')
    a('s_add_u32 s28, s28, 12288')
    a(f'v_add_u32 v{RY}, s28, v{RY}')
    RY2 = 12
    a(f'v_xor_b32 v{RY2}, 64, v{RY}')
    RXb = [RX, 13, 14]
    RYb = [RY, 15, 16]
    RY2b = [RY2, 17, 18]
    for k in (1, 2):
        a(f'v_add_u32 v{RXb[k]}, {3 * GST * k}, v{RX}')
        a(f'v_add_u32 v{RYb[k]}, {3 * GST * k}, v{RY}')
        a(f'v_add_u32 v{RY2b[k]}, {3 * GST * k}, v{RY2}')
    a('s_lshl_b32 s30, s26, 10')
    ybase = lb + (L_HT if which == 1 else L_U)
    tr = Track(a)

    def dma(i):
        slot = i % NRING
        a(f's_mov_b32 s31, {i * 64 * xpitch}')
        a(f's_mov_b32 s32, {ybase + i * 64 * 1280}')
        for k in range(3):
            a(f's_add_u32 m0, s30, {slot * GST + 4096 * k}')
            tr.vmem(f'buffer_load_dwordx4 v{VX[k]}, s[8:11], s31 offen lds', ('st', i))
        for k in range(2):
            a(f's_add_u32 m0, s30, {slot * GST + 12288 + 4096 * k}')
            tr.vmem(f'buffer_load_dwordx4 v{VY[k]}, s[4:7], s32 offen lds', ('st', i))

    FR = [20, 40]

    def reads(i):
        slot = i % NRING
        b = FR[i & 1]
        k, off = slot // 3, (slot % 3) * GST
        for y, rb in ((0, RYb), (1, RY2b)):
            for u in range(2):
                tr.ds(f'ds_read_b64_tr_b16 {vr(b + 12 + 4 * y + 2 * u, 2)}, v{rb[k]} offset:{off + 512 * u}', ('fr', i))
        for x in range(3):
            for u in range(2):
                tr.ds(f'ds_read_b64_tr_b16 {vr(b + 4 * x + 2 * u, 2)}, v{RXb[k]} offset:{off + 64 * x + 768 * u}', ('fr', i))

    for i in range(NRING - 1):
        dma(i)
    CO, DO = 60, 61
    a(f'v_and_b32 v{CO}, 31, v{LN}')
    a('s_mul_i32 s28, s24, 96')
    a(f'v_add_u32 v{CO}, s28, v{CO}')
    a(f'v_lshlrev_b32 v{T1}, 1, v{CO}')
    BI = 62
    for x in range(3):
        tr.vmem(f'buffer_load_ushort v{BI + x}, v{T1}, s[12:15], 0 offen offset:{64 * x}', 'bias')
    a(f'v_lshrrev_b32 v{DO}, 5, v{LN}')
    a(f'v_lshlrev_b32 v{DO}, 5, v{DO}')
    a('s_lshl_b32 s28, s25, 7')
    a('s_lshl_b32 s29, s26, 3')
    a('s_add_u32 s28, s28, s29')
    a(f'v_add_u32 v{DO}, s28, v{DO}')
    a('s_movk_i32 s28, 1280')
    a(f'v_mul_lo_u32 v{T1}, v{CO}, s28')
    a(f'v_add_u32 v{DO}, v{DO}, v{T1}')
    RES = 66
    if which == 2:
        for x in range(3):
            a(f's_mov_b32 s28, {lb + L_X1 + x * 32 * 1280}')
            for y in range(2):
                tr.vmem(f'buffer_load_dwordx2 {vr(RES + 4 * x + 2 * y, 2)}, v{DO}, s[4:7], s28 offen offset:{64 * y}', 'res')
    for r in range(96):
        a(f'v_accvgpr_write_b32 a{r}, 0')
    tr.wait_vm(('st', 0))
    a('s_barrier')
    reads(0)
    for i in range(nst):
        if i + 1 < nst:
            tr.wait_vm(('st', i + 1))
        tr.drain_lg()
        a('s_barrier')
        if i + 1 < nst:
            reads(i + 1)
        if i + NRING - 1 < nst:
            dma(i + NRING - 1)
        b = FR[i & 1]
        for x in range(3):
            for y in range(2):
                acc = ar(16 * (2 * x + y), 16)
                a(f'v_mfma_f32_32x32x16_bf16 {acc}, {vr(b + 12 + 4 * y, 4)}, {vr(b + 4 * x, 4)}, {acc}')
    a('s_barrier')
    a(f'v_lshlrev_b32 v{T1}, 4, v{LN}')
    a(f'v_add_u32 v{T2}, s30, v{T1}')
    a('s_lshl_b32 s28, s26, 12')
    a(f'v_add_u32 v{T1}, s28, v{T1}')
    a(f'v_add_u32 v19, {3 * 16384}, v{T2}')
    a(f'v_add_u32 v59, {3 * 16384}, v{T1}')
    a('s_nop 7')
    for t in range(6):
        for q in range(4):
            tr.ds(f'ds_write_b128 v{T2 if t < 3 else 19}, {ar(16 * t + 4 * q, 4)} offset:{(t % 3) * 16384 + q * 4096}')
    tr.drain_lg()
    a('s_barrier')
    RB = 80
    for t in range(6):
        for w in range(4):
            tr.ds(f'ds_read_b128 {vr(RB + 16 * t + 4 * w, 4)}, v{T1 if t < 3 else 59} offset:{(t % 3) * 16384 + w * 1024}', ('rr', t))
    tr.drain_vm()
    for x in range(3):
        a(f'v_lshlrev_b32 v{BI + x}, 16, v{BI + x}')
    if which == 1:
        a(f's_mov_b32 s31, {f32(-2.0 * 1.4426950408889634 * 0.7978845608028654)}')
        a(f's_mov_b32 s32, {f32(-2.0 * 1.4426950408889634 * 0.7978845608028654 * 0.044715)}')
    if which == 2 and final:
        srd(a, 8, 22, 2048 * 640 * 2)
    for t in range(6):
        x, y = t >> 1, t & 1
        b = RB + 16 * t
        tr.wait_lg(('rr', t))
        for h in (0, 2):
            a(f'v_pk_add_f32 {vr(b + h, 2)}, {vr(b + h, 2)}, {vr(b + 4 + h, 2)}')
            a(f'v_pk_add_f32 {vr(b + 8 + h, 2)}, {vr(b + 8 + h, 2)}, {vr(b + 12 + h, 2)}')
        for h in (0, 2):
            a(f'v_pk_add_f32 {vr(b + h, 2)}, {vr(b + h, 2)}, {vr(b + 8 + h, 2)}')
        a(f'v_cvt_pk_bf16_f32 v{b + 4}, v{b}, v{b + 1}')
        a(f'v_cvt_pk_bf16_f32 v{b + 5}, v{b + 2}, v{b + 3}')
        unpack(a, b, b + 4, 2)
        for r in range(4):
            a(f'v_add_f32 v{b + r}, v{b + r}, v{BI + x}')
        a(f'v_cvt_pk_bf16_f32 v{b + 4}, v{b}, v{b + 1}')
        a(f'v_cvt_pk_bf16_f32 v{b + 5}, v{b + 2}, v{b + 3}')
        unpack(a, b, b + 4, 2)
        if which == 1:
            for r in range(4):
                a(f'v_mul_f32 v{b + 8 + r}, v{b + r}, v{b + r}')
            for r in range(4):
                a(f'v_mov_b32 v{b + 12 + r}, s31')
                a(f'v_fmac_f32 v{b + 12 + r}, s32, v{b + 8 + r}')
            for r in range(4):
                a(f'v_mul_f32 v{b + 8 + r}, v{b + 12 + r}, v{b + r}')
            for r in range(4):
                a(f'v_exp_f32 v{b + 8 + r}, v{b + 8 + r}')
            for r in range(4):
                a(f'v_add_f32 v{b + 8 + r}, 1.0, v{b + 8 + r}')
            for r in range(4):
                a(f'v_rcp_f32 v{b + 8 + r}, v{b + 8 + r}')
            for r in range(4):
                a(f'v_mul_f32 v{b + r}, v{b + r}, v{b + 8 + r}')
        else:
            unpack(a, b + 8, RES + 4 * x + 2 * y, 2)
            for r in range(4):
                a(f'v_add_f32 v{b + r}, v{b + r}, v{b + 8 + r}')
        a(f'v_cvt_pk_bf16_f32 v{b + 4}, v{b}, v{b + 1}')
        a(f'v_cvt_pk_bf16_f32 v{b + 5}, v{b + 2}, v{b + 3}')
        if which == 2 and final:
            a(f's_mov_b32 s28, {x * 32 * 1280}')
            a(f'buffer_store_dwordx2 {vr(b + 4, 2)}, v{DO}, s[8:11], s28 offen offset:{64 * y}')
        else:
            a(f's_mov_b32 s28, {lb + (L_U if which == 1 else L_X2) + x * 32 * 1280}')
            a(f'buffer_store_dwordx2 {vr(b + 4, 2)}, v{DO}, s[4:7], s28 offen offset:{64 * y}')
    a.label(f'{name}_end')
    a('s_endpgm')


G_LDS = NRING * GST
```

```python
import sys
from asmlib import *
from layout import *
from common import *
import chain as C
import bulk as B
import small as S

NAME = 'interleave_layers__memory_aug_recurrent_mem_tr__mixer_token_mlp__prompt'

def a_kernel(a, name, layer, force_slow=False):
    lb = LAYER0 + layer * LSTRIDE
    kernel_head(a, name)
    a(f's_cmp_ge_u32 s2, {NWG}')
    a(f's_cbranch_scc1 {name}_end')
    a(f's_load_dwordx8 s[{C.sPTR}:{C.sPTR + 7}], s[0:1], {KA_WQ}')
    a(f's_load_dwordx2 s[{B.sXP}:{B.sXP + 1}], s[0:1], {KA_X}')
    a(f's_load_dwordx4 s[72:75], s[0:1], {KA_DBG}')
    a('s_waitcnt lgkmcnt(0)')
    srd(a, C.S_WS, 74, WS_SIZE)
    srd(a, 76, 72, 32)
    team_select(a, 76, 80, 81, 84, 82, 83, 92, 94, force_slow)
    a('s_cmp_eq_u32 s82, 0')
    a(f's_cbranch_scc1 {name}_worker')
    a(f's_mov_b32 s{C.sH}, s83')
    C.chain_consts(a)
    C.chain_load_weights(a)
    C.chain_prologue_state(a, lb)
    a(f's_mov_b32 s{C.sNSTEP}, 64')
    a('s_cmp_eq_u32 s82, 2')
    a(f's_cbranch_scc1 {name}_slow')
    C.chain_step(a, '', name + 'cf')
    a(f's_branch {name}_fin')
    a.label(f'{name}_slow')
    C.chain_step(a, ' sc1', name + 'cs')
    a.label(f'{name}_fin')
    C.chain_epilogue(a)
    a('s_endpgm')
    a.label(f'{name}_worker')
    a(f's_mov_b32 s{B.sWI}, s83')
    B.worker_setup(a)
    B.kv_phase(a, lb)
    a(f's_cmp_ge_u32 s{B.sLI}, 20')
    a(f's_cbranch_scc1 {name}_wo')
    B.qa_phase(a, lb)
    a('s_endpgm')
    a.label(f'{name}_wo')
    B.wo_phase(a, lb, layer, f'{name}_end')
    a.label(f'{name}_end')
    a('s_endpgm')


def build(force_slow=False):
    a = Asm()
    launches = []
    descs = ''
    for layer in range(2):
        lb = LAYER0 + layer * LSTRIDE
        n = f'ln1_{layer}_kernel'
        S.ln_kernel(a, n, None if layer == 0 else LAYER0 + L_X2, lb + L_XN, False, True, S.InitChain(layer == 0))
        launches.append((n, 256, 256, 0)); descs += kernel_desc(n, 64, 64, 40)
        n = f'a_{layer}_kernel'
        a_kernel(a, n, layer, force_slow)
        launches.append((n, 256, 256, 163840)); descs += kernel_desc(n)
        n = f'ln2_{layer}_kernel'
        S.ln_kernel(a, n, lb + L_X1, lb + L_HT, True, False)
        launches.append((n, 256, 256, 0)); descs += kernel_desc(n, 64, 64, 40)
        n = f'g1_{layer}_kernel'
        S.g_kernel(a, n, 1, lb, False)
        launches.append((n, 180, 256, S.G_LDS)); descs += kernel_desc(n, 272, 176, 48)
        n = f'g2_{layer}_kernel'
        S.g_kernel(a, n, 2, lb, layer == 1)
        launches.append((n, 220, 256, S.G_LDS)); descs += kernel_desc(n, 272, 176, 48)
    a.fix_hazards()
    for e in a.verify_waits():
        print('WAITERR', e)
    hdr = ''.join(f'; @launch kernel={n} grid=({g},1,1) block=({b},1,1) lds={l}\n' for n, g, b, l in launches)
    hdr += '.amdgcn_target "amdgcn-amd-amdhsa--gfx950"\n.text\n'
    return hdr + a.text() + '.section .rodata,"a"\n' + descs, a


if __name__ == '__main__':
    C.OPT['stamps'] = []
    C.OPT['notouch'] = True
    for o in sys.argv[2:]:
        if '=' in o:
            k, v = o.split('=')
            C.OPT[k] = ' ' + v.replace('+', ' ')
        else:
            C.OPT[o] = True
    s, a = build('slow' in sys.argv[2:])
    open(sys.argv[1], 'w').write(s)
    print(len(a.ins), 'instrs', len(s), 'bytes')
```

```python
import re

_REG = re.compile(r'^(-|abs\()?\s*([vas])(?:(\d+)|\[(\d+):(\d+)\])\)?$')


def regs_of(tok):
    tok = tok.strip()
    m = _REG.match(tok)
    if m:
        f = m.group(2)
        if m.group(3) is not None:
            return {(f, int(m.group(3)))}
        return {(f, i) for i in range(int(m.group(4)), int(m.group(5)) + 1)}
    if tok in ('vcc', 'vcc_lo', 'vcc_hi'):
        return {('x', 'vcc')}
    if tok in ('exec', 'exec_lo', 'exec_hi'):
        return {('x', 'exec')}
    if tok == 'm0':
        return {('x', 'm0')}
    return set()


TRANS = ('v_exp_f32', 'v_log_f32', 'v_rcp_f32', 'v_rsq_f32', 'v_sqrt_f32', 'v_sin_f32', 'v_cos_f32',
         'v_rcp_iflag_f32')


class Ins:
    __slots__ = ('text', 'op', 'ops', 'mods', 'kind', 'wr', 'rd', 'srcc', 'passes', 'dpp', 'label', 'target',
                 'vmdst', 'stdata', 'wide', 'auto')

    def __init__(self, text):
        self.text = text
        self.label = None
        self.target = None
        self.auto = False
        t = text.split(';')[0].strip()
        if t.endswith(':'):
            self.kind = 'label'
            self.label = t[:-1]
            self.op = ''
            self.wr = set(); self.rd = set(); self.srcc = set(); self.passes = 0; self.dpp = False
            self.vmdst = set(); self.stdata = set(); self.wide = False
            self.ops = []
            return
        sp = t.split(None, 1)
        op = sp[0]
        rest = sp[1] if len(sp) > 1 else ''
        parts = [p.strip() for p in re.split(r',(?![^\[(]*[\])])', rest)] if rest else []
        mods = ''
        if parts:
            last = parts[-1].split()
            if len(last) > 1 and not parts[-1].startswith('hwreg') and op != 's_waitcnt':
                parts[-1] = last[0]
                mods = ' '.join(last[1:])
        self.op = op
        self.ops = parts
        self.mods = mods
        self.wr = set(); self.rd = set(); self.srcc = set(); self.passes = 0
        self.dpp = ('_dpp' in op) or ('row_' in mods) or ('quad_perm' in mods) or ('quad_perm' in rest)
        self.vmdst = set(); self.stdata = set(); self.wide = False
        R = [regs_of(p) for p in parts]
        base = op.replace('_e32', '').replace('_e64', '').replace('_dpp', '').replace('_sdwa', '')
        if op.startswith('v_mfma') or op.startswith('v_smfmac'):
            self.kind = 'mfma'
            self.wr = set(R[0])
            self.rd = R[1] | R[2]
            if op.startswith('v_smfmac'):
                self.srcc = set(R[0])
                self.rd |= R[3]
            else:
                self.srcc = set(R[3])
            self.passes = 8 if '32x32' in op else 4
        elif op.startswith('v_'):
            self.kind = 'trans' if base in TRANS else 'valu'
            if base.startswith('v_cmpx'):
                self.wr = R[0] | {('x', 'exec')}
                self.rd = set().union(*R[1:])
            elif base.startswith('v_permlane') and 'swap' in base:
                self.kind = 'perm'
                self.wr = R[0] | R[1]
                self.rd = R[0] | R[1]
            elif base in ('v_add_co_u32', 'v_sub_co_u32', 'v_addc_co_u32', 'v_subb_co_u32', 'v_subrev_co_u32',
                          'v_mad_u64_u32', 'v_div_scale_f32'):
                self.wr = R[0] | R[1]
                self.rd = set().union(*R[2:])
            elif base == 'v_nop':
                pass
            else:
                self.wr = set(R[0])
                self.rd = set().union(*R[1:]) if len(R) > 1 else set()
                if base in ('v_fmac_f32', 'v_dot2c_f32_bf16', 'v_pk_fmac_f16', 'v_writelane_b32') or self.dpp:
                    self.rd |= R[0]
                if base == 'v_cndmask_b32' and len(parts) == 3:
                    self.rd |= {('x', 'vcc')}
        elif op.startswith('ds_'):
            self.kind = 'ds'
            if op.startswith('ds_read') or op.startswith('ds_bpermute') or op.startswith('ds_permute') or \
                    op.startswith('ds_swizzle') or '_rtn' in op:
                self.vmdst = set(R[0])
                self.rd = set().union(*R[1:])
            else:
                self.rd = set().union(*R)
        elif op.startswith('buffer_') or op.startswith('global_'):
            self.kind = 'vmem'
            if op in ('buffer_inv', 'buffer_wbl2'):
                pass
            elif op.startswith('buffer_load'):
                if ' lds' in (' ' + mods):
                    self.rd = set().union(*R) | {('x', 'm0')}
                else:
                    self.vmdst = set(R[0])
                    self.rd = set().union(*R[1:])
            elif op.startswith('buffer_store'):
                self.stdata = set(R[0])
                self.rd = set().union(*R)
                self.wide = 'x3' in op or 'x4' in op
            elif op.startswith('buffer_atomic'):
                self.rd = set().union(*R)
                if 'sc0' in mods.split():
                    self.vmdst = set(R[0])
            elif op.startswith('global_load'):
                if '_lds_' in op:
                    self.rd = set().union(*R) | {('x', 'm0')}
                else:
                    self.vmdst = set(R[0])
                    self.rd = set().union(*R[1:])
            elif op.startswith('global_store'):
                self.stdata = set(R[1])
                self.rd = set().union(*R)
                self.wide = 'x3' in op or 'x4' in op
            elif op.startswith('global_atomic'):
                if 'sc0' in mods.split():
                    self.vmdst = set(R[0])
                    self.rd = set().union(*R[1:])
                else:
                    self.rd = set().union(*R)
            else:
                raise ValueError('unknown vmem ' + text)
        elif op.startswith('s_load') or op in ('s_memtime', 's_memrealtime'):
            self.kind = 'smem'
            self.vmdst = set(R[0])
            self.rd = set().union(*R[1:]) if len(R) > 1 else set()
        elif op == 's_nop':
            self.kind = 'nop'
        elif op == 's_waitcnt':
            self.kind = 'wait'
        elif op.startswith('s_cbranch') or op == 's_branch':
            self.kind = 'branch'
            self.target = parts[0]
            if 'vcc' in op:
                self.rd = {('x', 'vcc')}
            if 'exec' in op:
                self.rd = {('x', 'exec')}
        elif op in ('s_barrier', 's_endpgm', 's_sleep', 's_setprio', 's_sethalt'):
            self.kind = 'misc'
        elif op.startswith('s_'):
            self.kind = 'salu'
            if op.startswith('s_cmp') or op.startswith('s_bitcmp'):
                self.rd = set().union(*R)
            else:
                self.wr = set(R[0])
                self.rd = set().union(*R[1:]) if len(R) > 1 else set()
                if 'saveexec' in op:
                    self.wr |= {('x', 'exec')}
        elif op.startswith('.'):
            self.kind = 'dir'
        else:
            raise ValueError('unknown instr ' + text)

    def states(self):
        if self.kind in ('label', 'dir'):
            return 0
        if self.kind == 'nop':
            return int(self.ops[0], 0) + 1
        return 1


def _isv(r):
    return r[0] in ('v', 'a')


def need_states(p, c):
    n = 0
    pv = p.kind in ('valu', 'trans', 'perm')
    cv = c.kind in ('valu', 'trans', 'perm')
    if pv:
        pw_v = {r for r in p.wr if _isv(r)}
        pw_s = {r for r in p.wr if r[0] == 's' or r == ('x', 'vcc')}
        if c.kind == 'mfma' and pw_v & (c.rd | c.srcc):
            n = max(n, 2)
        if c.kind == 'perm' and pw_v & c.rd:
            n = max(n, 2)
        if cv and c.dpp and pw_v & c.rd:
            n = max(n, 2)
        if c.op.startswith('v_readlane') or c.op.startswith('v_readfirstlane'):
            if pw_v & c.rd:
                n = max(n, 1)
            if pw_s & c.rd:
                n = max(n, 4)
        if p.kind == 'trans' and cv and c.kind != 'trans' and pw_v & c.rd:
            n = max(n, 1)
        if p.kind == 'trans' and c.kind in ('ds', 'vmem') and pw_v & c.rd:
            n = max(n, 1)
        if cv and pw_s & c.rd:
            n = max(n, 2)
        if c.kind == 'vmem' and pw_s & c.rd:
            n = max(n, 5)
        if c.kind == 'salu' and pw_s & c.rd:
            n = max(n, 1)
        if ('x', 'exec') in p.wr:
            if c.kind == 'mfma' or c.kind == 'perm' or c.op.startswith('v_read'):
                n = max(n, 4)
            if cv and c.dpp:
                n = max(n, 5)
    if p.kind == 'mfma':
        big = p.passes == 8
        if c.kind == 'mfma':
            if p.wr & c.rd:
                n = max(n, 12 if big else 8)
            if p.wr & c.srcc:
                if not (p.wr == c.srcc and p.passes == c.passes):
                    n = max(n, 10 if big else 6)
            elif p.wr & c.wr and p.wr != c.wr:
                n = max(n, 10 if big else 6)
            elif p.wr & c.wr:
                n = max(n, 10 if big else 6)
        if cv and p.wr & (c.rd | c.wr):
            n = max(n, 12 if big else 8)
        if c.kind in ('ds', 'vmem') and p.wr & (c.rd | c.vmdst):
            n = max(n, 12 if big else 8)
        if cv and p.srcc & c.wr:
            n = max(n, 7 if big else 3)
    if p.kind == 'vmem' and p.wide:
        if cv and p.stdata & c.wr:
            n = max(n, 2)
        if c.kind in ('ds', 'vmem', 'mfma') and p.stdata & (c.vmdst | c.wr):
            n = max(n, 1)
    if p.kind == 'salu' and ('x', 'm0') in p.wr and ('x', 'm0') in c.rd and c.kind in ('vmem', 'ds'):
        n = max(n, 1)
    return n


PACE = True


class Asm:
    def __init__(self):
        self.ins = []
        self.uid = 0
        self.nops_added = []

    def __call__(self, text):
        for line in text.strip().split('\n'):
            line = line.strip()
            if not line or line.startswith(';'):
                continue
            self.ins.append(Ins(line))

    def label(self, name):
        self.ins.append(Ins(name + ':'))

    def newlabel(self, base):
        self.uid += 1
        return f'L{base}_{self.uid}'

    def fix_hazards(self):
        out = []
        for c in self.ins:
            if c.kind not in ('label', 'dir'):
                need = self._need(out, c)
                if need > 0:
                    n = Ins(f's_nop {need - 1}')
                    n.auto = True
                    out.append(n)
                    self.nops_added.append((c.text, need))
            if c.op == 's_endpgm':
                out.append(c)
                continue
            out.append(c)
        self.ins = out
        self._check_branches()

    @staticmethod
    def _need(prev, c):
        win = []
        dist = 0
        for p in reversed(prev):
            if dist >= 20 or p.op in ('s_endpgm', 's_branch'):
                break
            win.append(p)
            dist += p.states()
        win.reverse()
        need = 0
        for i, p in enumerate(win):
            n = need_states(p, c)
            if n <= 0:
                continue
            t = 0
            last = (0, p.passes) if (p.kind == 'mfma' and PACE) else None
            for q in win[i + 1:]:
                if q.states() == 0:
                    continue
                if q.kind == 'mfma' and last is not None:
                    t = max(t + 1, last[0] + last[1])
                    last = (t, q.passes)
                else:
                    t += q.states()
            if n - t > need:
                need = n - t
        return need

    def _check_branches(self):
        pos = {i.label: k for k, i in enumerate(self.ins) if i.kind == 'label'}
        for k, b in enumerate(self.ins):
            if b.kind != 'branch':
                continue
            t = pos[b.target]
            pre = self.ins[max(0, k - 24):k + 1]
            cut = 0
            for j, p in enumerate(pre[:-1]):
                if p.op in ('s_endpgm', 's_branch'):
                    cut = j + 1
            pre = pre[cut:]
            seq = [p for p in pre if True]
            seq[-1] = Ins('s_nop 0')
            d = 0
            for c in self.ins[t:t + 30]:
                if c.kind in ('label', 'dir'):
                    continue
                need = self._need(seq, c)
                if need > 0:
                    raise RuntimeError(f'hazard across branch "{b.text}" -> "{c.text}" needs {need} more states')
                seq.append(c)
                d += c.states()
                if d > 20 or c.op in ('s_endpgm', 's_branch'):
                    break

    def verify_waits(self):
        pos = {i.label: k for k, i in enumerate(self.ins) if i.kind == 'label'}
        vm = []
        lg = []
        errs = []

        def step(c):
            if c.kind in ('label', 'dir'):
                return
            if c.op in ('s_endpgm',):
                vm.clear(); lg.clear()
                return
            if c.kind == 'wait':
                t = c.text
                m = re.search(r'vmcnt\((\d+)\)', t)
                if m:
                    n = int(m.group(1))
                    while len(vm) > n:
                        vm.pop(0)
                m = re.search(r'lgkmcnt\((\d+)\)', t)
                if m:
                    n = int(m.group(1))
                    if n == 0:
                        lg.clear()
                    else:
                        while sum(1 for x in lg if not x[1]) > n:
                            k0 = [i for i, x in enumerate(lg) if not x[1]][0]
                            lg.pop(k0)
                return
            touch = c.rd | c.wr | c.srcc | c.vmdst
            for q, name in ((vm, 'vmcnt'), (lg, 'lgkmcnt')):
                for (dst, _, txt) in q:
                    if dst & touch:
                        if dst & (c.rd | c.wr | c.srcc) or not (
                                (name == 'vmcnt' and c.kind == 'vmem') or (name == 'lgkmcnt' and c.kind == 'ds')):
                            errs.append(f'{name}: "{c.text}" touches pending result of "{txt}"')
            if c.kind == 'vmem' and c.op not in ('buffer_inv', 'buffer_wbl2'):
                vm.append((c.vmdst, False, c.text))
                if len(vm) > 63:
                    pass
            elif c.kind == 'vmem':
                vm.append((set(), False, c.text))
            elif c.kind == 'ds':
                lg.append((c.vmdst, False, c.text))
            elif c.kind == 'smem':
                lg.append((c.vmdst, True, c.text))

        def run(lo, hi, depth):
            k = lo
            while k < hi:
                c = self.ins[k]
                step(c)
                if c.kind == 'branch' and '_mok' not in c.target and pos[c.target] <= k and pos[c.target] >= lo - 1 and depth < 2 \
                        and not (pos[c.target] == lo and depth > 0 and k == hi - 1):
                    run(pos[c.target], k + 1, depth + 1)
                k += 1

        run(0, len(self.ins), 0)
        seen = []
        for e in errs:
            if e not in seen:
                seen.append(e)
        return seen[:12]

    def text(self):
        out = []
        for i in self.ins:
            if i.kind == 'label':
                out.append(i.text)
            else:
                out.append('  ' + i.text)
        return '\n'.join(out) + '\n'


def vr(n, cnt=1, f='v'):
    return f'{f}{n}' if cnt == 1 else f'{f}[{n}:{n + cnt - 1}]'


def ar(n, cnt=1):
    return vr(n, cnt, 'a')


def sr(n, cnt=1):
    return vr(n, cnt, 's')


def kernel_desc(name, vgpr=512, accum=256, sgpr=102):
    return f"""
.p2align 6
.amdhsa_kernel {name}
  .amdhsa_next_free_vgpr {vgpr}
  .amdhsa_next_free_sgpr {sgpr}
  .amdhsa_accum_offset {accum}
  .amdhsa_group_segment_fixed_size 0
  .amdhsa_kernarg_size 120
  .amdhsa_user_sgpr_count 2
  .amdhsa_user_sgpr_kernarg_segment_ptr 1
  .amdhsa_system_sgpr_workgroup_id_x 1
.end_amdhsa_kernel
"""
```

```python
from asmlib import *
from layout import *
from common import *
from chain import Track, f32
import chain as C
from small import tr_lane_addr, CM_NAT, CM_PI, CM_SIG, unpack

S_WS = 4
S_WA, S_WB = 8, 12
sWI, sWV, sJ, sLI, sNH = 16, 17, 18, 19, 20
sR, sBLK, sH, sT, sU, sV = 21, 22, 23, 24, 25, 26
sXO, sWO, sLW, sSPIN = 27, 28, 29, 30
sE = 32
sSC = 34
sPTR = 56
sXP = 64
S_X = 68
S_WC = 36

FL_KV = 0
FL_MF = 0x1000
FL_O = 0x4000

LN, L16, T1, T2, T3 = 1, 2, 3, 4, 5


def wstamp(a, i):
    if C.OPT.get('timing'):
        a(f's_memrealtime s[{84 + 2 * i}:{85 + 2 * i}]')


def wdump(a, layer):
    if not C.OPT.get('timing'):
        return
    a('s_waitcnt lgkmcnt(0)')
    for i in range(8):
        a(f'v_mov_b32 v{20 + i}, s{84 + 2 * i}')
    a(f's_lshl_b32 s88, s83, 5')
    a(f's_add_u32 s88, s88, {0xF10000 + layer * 0x4000}')
    a(f'buffer_store_dwordx4 v[20:23], off, s[4:7], s88')
    a(f'buffer_store_dwordx4 v[24:27], off, s[4:7], s88 offset:16')


def worker_setup(a):
    a(f'v_and_b32 v{LN}, 63, v0')
    a(f'v_lshrrev_b32 v{T1}, 6, v0')
    a(f'v_lshlrev_b32 v{L16}, 4, v{LN}')
    a(f'v_readfirstlane_b32 s{sWV}, v{T1}')
    a(f's_lshr_b32 s{sJ}, s{sWI}, 5')
    a(f's_and_b32 s{sLI}, s{sWI}, 31')
    a(f's_cmp_lt_u32 s{sJ}, 4')
    a(f's_cselect_b32 s{sNH}, 5, 4')
    a(f's_lshl_b32 s{sLW}, s{sWV}, 10')


def unit_decode(a, done):
    a(f's_lshl_b32 s{sT}, s{sNH}, 1')
    a(f's_sub_u32 s{sT}, 32, s{sT}')
    a(f's_mul_i32 s{sT}, s{sR}, s{sT}')
    a(f's_add_u32 s{sT}, s{sT}, s{sLI}')
    a(f's_mul_i32 s{sBLK}, s{sT}, 13108')
    a(f's_lshr_b32 s{sBLK}, s{sBLK}, 16')
    a(f's_lshr_b32 s{sU}, s{sT}, 2')
    a(f's_cmp_eq_u32 s{sNH}, 4')
    a(f's_cselect_b32 s{sBLK}, s{sU}, s{sBLK}')
    a(f's_mul_i32 s{sU}, s{sBLK}, s{sNH}')
    a(f's_sub_u32 s{sU}, s{sT}, s{sU}')
    a(f's_mul_i32 s{sH}, s{sU}, 7')
    a(f's_add_u32 s{sH}, s{sH}, s{sJ}')
    a(f's_cmp_ge_u32 s{sBLK}, 16')
    a(f's_cbranch_scc1 {done}')


def w_swz(a):
    def f(row, t, dst):
        a(f'v_and_b32 v{t}, 3, v{row}')
        a(f'v_lshlrev_b32 v{t}, 6, v{t}')
        a(f'v_xor_b32 v{dst}, v{t}, v{dst}')
    return f


def proj_gemm(a, tag, nmat, lb, VSW, xtiles, wtiles, mf, FR, nring=4):
    tr = Track(a)
    SB = nmat * 8192
    XB = 8192
    WBASE = nring * 8192
    srds = [S_WA, S_WB, S_WC]

    def dma(slot):
        for ks in range(2):
            a(f's_lshl_b32 s{sU}, s{sWV}, 11')
            a(f's_add_u32 m0, s{sU}, {slot * XB + ks * 1024}')
            tr.vmem(f'buffer_load_dwordx4 v{L16}, s[{S_WS}:{S_WS + 3}], s{sXO} offen lds' +
                    (' offset:0' if False else ''), 'st')
            a(f's_add_u32 s{sXO}, s{sXO}, 1024')
        for m in range(nmat):
            for k in range(2):
                a(f's_add_u32 m0, s{sLW}, {WBASE + slot * SB + m * 8192 + k * 4096}')
                a(f's_add_u32 s{sU}, s{sWO}, {k * 16 * 8192}')
                tr.vmem(f'buffer_load_dwordx4 v{VSW}, s[{srds[m]}:{srds[m] + 3}], s{sU} offen lds', 'st')
        a(f's_add_u32 s{sWO}, s{sWO}, {32 * 8192}')

    per = 2 + 2 * nmat

    def reads(slot, ks, b):
        for i, xr in enumerate(xtiles):
            tr.ds(f'ds_read_b128 {vr(b + 4 * i, 4)}, v{xr} offset:{slot * XB + ks * 1024}')
        for i, (m, wr) in enumerate(wtiles):
            for u in range(2):
                off = WBASE + slot * SB + m * 8192 + (16 * ks + 4 * u) * 256
                assert off < 65536 + 0 or True
                tr.ds(f'ds_read_b64_tr_b16 {vr(b + 4 * len(xtiles) + 4 * i + 2 * u, 2)}, v{wr[off >> 16]} offset:{off & 0xffff}')

    for s in range(nring - 1):
        dma(s)
    a(f's_waitcnt vmcnt({per * (nring - 2)})')
    a('s_barrier')
    reads(0, 0, FR[0])
    a(f's_mov_b32 s{sV}, 0')
    lp = a.newlabel(tag)
    a.label(lp)
    for s in range(nring):
        reads(s, 1, FR[1])
        n1 = len(xtiles) + 2 * len(wtiles)
        a(f's_waitcnt lgkmcnt({min(15, n1)})')
        mf(FR[0])
        a(f's_waitcnt vmcnt({per * (nring - 3)}) lgkmcnt(0)')
        a('s_barrier')
        dma((s + nring - 1) % nring)
        reads((s + 1) % nring, 0, FR[0])
        mf(FR[1])
    a(f's_add_u32 s{sV}, s{sV}, 1')
    a(f's_cmp_lt_u32 s{sV}, {20 // nring}')
    a(f's_cbranch_scc1 {lp}')
    a('s_waitcnt vmcnt(0) lgkmcnt(0)')
    a('s_barrier')


def w_src(a, VSW):
    a(f'v_lshrrev_b32 v{T1}, 4, v{LN}')
    a(f'v_lshlrev_b32 v{T2}, 2, v{T1}')
    a(f'v_and_b32 v{T3}, 15, v{LN}')
    a(f'v_xor_b32 v{T2}, v{T2}, v{T3}')
    a(f'v_lshlrev_b32 v{T2}, 4, v{T2}')
    a(f'v_lshl_add_u32 v{T2}, v{T1}, 13, v{T2}')
    a(f's_lshl_b32 s{sU}, s{sWV}, 15')
    a(f'v_add_u32 v{VSW}, s{sU}, v{T2}')


def signal(a, off_sgpr):
    L = a.newlabel('sig')
    a('s_waitcnt vmcnt(0)')
    a('s_barrier')
    a('v_cmp_eq_u32 vcc, 0, v0')
    a(f's_and_saveexec_b64 s[{sE}:{sE + 1}], vcc')
    a(f's_cbranch_execz {L}')
    a(f'v_mov_b32 v{T1}, 0')
    a(f'v_mov_b32 v{T2}, 1')
    a(f'buffer_atomic_add v{T2}, v{T1}, s[{S_WS}:{S_WS + 3}], s{off_sgpr} offen')
    a.label(L)
    a(f's_mov_b64 exec, s[{sE}:{sE + 1}]')


def wait_flag(a, off_sgpr, val):
    L = a.newlabel('wf')
    a(f's_mov_b32 s{sSPIN}, 0')
    a(f'v_mov_b32 v{T1}, 0')
    a.label(L)
    a(f'buffer_load_dword v{T2}, v{T1}, s[{S_WS}:{S_WS + 3}], s{off_sgpr} offen sc1')
    a('s_waitcnt vmcnt(0)')
    a(f'v_readfirstlane_b32 s{sU}, v{T2}')
    a(f's_add_u32 s{sSPIN}, s{sSPIN}, 1')
    a(f's_cmp_ge_u32 s{sU}, {val}')
    a(f's_cbranch_scc1 {L}_ok')
    a('s_sleep 8')
    a(f's_cmp_lt_u32 s{sSPIN}, 0x40000')
    a(f's_cbranch_scc1 {L}')
    a.label(f'{L}_ok')


def unit_addr(a, lb):
    a(f's_lshl_b32 s{sXO}, s{sBLK}, 2')
    a(f's_add_u32 s{sXO}, s{sXO}, s{sWV}')
    a(f's_mul_i32 s{sXO}, s{sXO}, 40960')
    a(f's_add_u32 s{sXO}, s{sXO}, {lb + L_XN}')
    a(f's_lshl_b32 s{sWO}, s{sH}, 8')


def vperm_addr(a, d):
    a(f'v_lshrrev_b32 v{T1}, 5, v{LN}')
    a(f'v_lshlrev_b32 v{d}, 9, v{T1}')
    a(f'v_bfe_u32 v{T1}, v{LN}, 1, 4')
    a(f'v_lshl_add_u32 v{d}, v{T1}, 4, v{d}')
    a(f'v_and_b32 v{T1}, 1, v{LN}')
    a(f'v_lshl_add_u32 v{d}, v{T1}, 8, v{d}')


def qkv_phase(a, lb):
    VSW = 6
    XR = [7, 8]
    WK = [[9, 13], [10, 14]]
    WVv = [[11, 15], [12, 16]]
    WQ = [[18, 20], [19, 21]]
    FR = [24, 56]
    srd(a, S_WA, sPTR + 2, 5242880)
    srd(a, S_WB, sPTR + 4, 5242880)
    srd(a, S_WC, sPTR, 5242880)
    w_src(a, VSW)
    a(f's_and_b32 s{sT}, s{sWV}, 1')
    a(f's_lshl_b32 s{sT}, s{sT}, 12')
    a(f'v_add_u32 v{XR[0]}, s{sT}, v{L16}')
    a(f'v_add_u32 v{XR[1]}, 2048, v{XR[0]}')
    a(f's_lshr_b32 s{sT}, s{sWV}, 1')
    a(f's_lshl_b32 s{sT}, s{sT}, 7')
    for regs, cm in ((WK, CM_PI), (WVv, CM_NAT), (WQ, CM_SIG)):
        tr_lane_addr(a, regs[0][0], LN, T1, T2, 256, cm, w_swz(a))
        a(f'v_xor_b32 v{regs[0][0]}, s{sT}, v{regs[0][0]}')
        a(f'v_xor_b32 v{regs[1][0]}, 64, v{regs[0][0]}')
        for k in range(2):
            a(f'v_add_u32 v{regs[k][1]}, 0x10000, v{regs[k][0]}')
    vperm_addr(a, 17)
    a(f's_mov_b32 s{sR}, 0')
    top, done = a.newlabel('kvtop'), a.newlabel('kvdone')
    a.label(top)
    unit_decode(a, done)
    unit_addr(a, lb)
    for r in range(192):
        a(f'v_accvgpr_write_b32 a{r}, 0')

    def mf(b):
        for m in range(3):
            for ct in range(2):
                for tt in range(2):
                    acc = ar(64 * m + 16 * (2 * ct + tt), 16)
                    wf, xf = vr(b + 8 + 8 * m + 4 * ct, 4), vr(b + 4 * tt, 4)
                    if m == 1:
                        a(f'v_mfma_f32_32x32x16_bf16 {acc}, {xf}, {wf}, {acc}')
                    else:
                        a(f'v_mfma_f32_32x32x16_bf16 {acc}, {wf}, {xf}, {acc}')

    proj_gemm(a, 'kvl', 3, lb, VSW, XR,
              [(0, WK[0]), (0, WK[1]), (1, WVv[0]), (1, WVv[1]), (2, WQ[0]), (2, WQ[1])], mf, FR)
    a(f's_lshl_b32 s{sT}, s{sBLK}, 2')
    a(f's_and_b32 s{sU}, s{sWV}, 1')
    a(f's_lshl_b32 s{sU}, s{sU}, 1')
    a(f's_add_u32 s{sT}, s{sT}, s{sU}')
    a(f's_lshl_b32 s{sT}, s{sT}, 5')
    a(f's_add_u32 s{sT}, s{sT}, s{sH}')
    a(f's_lshl_b32 s{sT}, s{sT}, 13')
    a(f's_lshr_b32 s{sU}, s{sWV}, 1')
    a(f's_lshl_b32 s{sU}, s{sU}, 12')
    a(f's_add_u32 s{sT}, s{sT}, s{sU}')
    E = 24
    for m in range(3):
        for ct in range(2):
            for tt in range(2):
                acc = 64 * m + 16 * (2 * ct + tt)
                e = E + 24 * ((2 * ct + tt) & 1)
                for r in range(16):
                    a(f'v_accvgpr_read_b32 v{e + r}, a{acc + r}')
                for r in range(8):
                    a(f'v_cvt_pk_bf16_f32 v{e + 16 + r}, v{e + 2 * r}, v{e + 2 * r + 1}')
                a(f's_add_u32 s{sU}, s{sT}, {lb + (L_KB, L_VB, L_Q)[m] + tt * 32 * 8192 + ct * 2048}')
                ad = 17 if m == 1 else L16
                a(f'buffer_store_dwordx4 {vr(e + 16, 4)}, v{ad}, s[{S_WS}:{S_WS + 3}], s{sU} offen sc1')
                a(f'buffer_store_dwordx4 {vr(e + 20, 4)}, v{ad}, s[{S_WS}:{S_WS + 3}], s{sU} offen offset:1024 sc1')
    a(f's_lshl_b32 s{sT}, s{sBLK}, 2')
    a(f's_add_u32 s{sT}, s{sT}, {WS_FLAGS + FL_KV}')
    signal(a, sT)
    a(f's_add_u32 s{sR}, s{sR}, 1')
    a(f's_branch {top}')
    a.label(done)


def att_loc():
    loc = {}
    i = 0
    for n in range(10):
        for m, t in (('k', 0), ('v', 0), ('k', 1), ('v', 1)):
            loc[(m, t, n)] = ('a', 8 * i) if i < 32 else ('v', 192 + 8 * (i - 32))
            i += 1
    return loc


def att_phase(a, lb):
    WS = f's[{C.S_WS}:{C.S_WS + 3}]'
    loc = att_loc()
    C.chain_consts(a)
    C.chain_load_weights(a, loc, (1, 2))
    L16, VW, GM = C.L16, C.VW, C.GM
    X, LNn = 40, 41
    KA, KMA, VMA, TOK, VA = 3, 4, 5, 6, 7
    a(f'v_lshrrev_b32 v{LNn}, 4, v{L16}')
    a(f'v_lshrrev_b32 v{X}, 5, v{LNn}')
    a(f'v_and_b32 v42, 31, v{LNn}')
    a(f'v_lshlrev_b32 v{KA}, 10, v{X}')
    a(f'v_lshl_add_u32 v{KA}, v42, 4, v{KA}')
    a(f'v_and_b32 v43, 7, v{LNn}')
    a(f'v_lshlrev_b32 v{KMA}, 8, v{X}')
    a(f'v_lshl_add_u32 v{KMA}, v43, 4, v{KMA}')
    a(f'v_lshrrev_b32 v43, 1, v42')
    a(f'v_lshlrev_b32 v{VMA}, 8, v{X}')
    a(f'v_lshl_add_u32 v{VMA}, v43, 4, v{VMA}')
    a(f'v_and_b32 v44, 1, v{LNn}')
    a(f'v_lshl_add_u32 v{VMA}, v44, 3, v{VMA}')
    a(f's_lshl_b32 s{C.sTMP}, s{C.sWV}, 12')
    a(f'v_add_u32 v{VMA}, s{C.sTMP}, v{VMA}')
    a(f'v_lshlrev_b32 v{VA}, 9, v{X}')
    a(f'v_lshl_add_u32 v{VA}, v43, 4, v{VA}')
    a(f'v_lshl_add_u32 v{VA}, v44, 8, v{VA}')
    a(f's_lshl_b32 s{C.sTMP}, s{C.sWV}, 11')
    a(f'v_add_u32 v{VA}, s{C.sTMP}, v{VA}')
    a(f'v_and_b32 v{TOK}, 3, v{LNn}')
    a(f'v_bfe_u32 v43, v{LNn}, 3, 2')
    a(f'v_lshl_add_u32 v{TOK}, v43, 2, v{TOK}')
    a(f'v_bfe_u32 v43, v{LNn}, 2, 1')
    a(f'v_lshl_add_u32 v{TOK}, v43, 4, v{TOK}')
    a(f'v_lshlrev_b32 v43, 4, v{X}')
    a(f'v_sub_u32 v{TOK}, v{TOK}, v43')
    SEL = 8
    SEL = 44
    a(f'ds_read_b64 {vr(SEL, 2)}, v{L16} offset:{C.LSEL}')
    sKB, sOO, sFO, sA, sB = C.sKB, C.sVB, C.sKMQ, C.sPST, C.sPST1
    a(f's_lshl_b32 s{sKB}, s{C.sH}, 13')
    a(f's_lshl_b32 s{sOO}, s{C.sH}, 13')
    a(f's_lshl_b32 s{C.sTMP}, s{C.sWV}, 11')
    a(f's_add_u32 s{sOO}, s{sOO}, s{C.sTMP}')
    a(f's_add_u32 s{sOO}, s{sOO}, {lb + L_O}')
    a(f's_mov_b32 s{sFO}, {WS_FLAGS + FL_O}')
    a(f's_add_u32 s{C.sPOLL}, s{C.sTMP}, {lb + L_MC}')
    a(f's_add_u32 s{C.sPOLL8}, s{C.sB8}, {lb + L_MC + 8192 - C.LB8}')
    a(f's_mov_b32 s{C.sSTEP}, s100')
    a(f's_mul_i32 s{C.sTMP}, s100, {32 * 8192}')
    a(f's_add_u32 s{sKB}, s{sKB}, s{C.sTMP}')
    a(f's_add_u32 s{sOO}, s{sOO}, s{C.sTMP}')
    a(f's_lshl_b32 s{C.sTMP}, s100, 7')
    a(f's_add_u32 s{sFO}, s{sFO}, s{C.sTMP}')
    a(f's_mul_i32 s{C.sTMP}, s100, {MSLOT}')
    a(f's_add_u32 s{C.sPOLL}, s{C.sPOLL}, s{C.sTMP}')
    a(f's_add_u32 s{C.sPOLL8}, s{C.sPOLL8}, s{C.sTMP}')
    a(f's_mov_b32 s{C.sRDY}, 0')
    K0, V0, K1, V1 = 24, 28, 32, 36
    QF, KF, VF, SS, SM_, OA, TMP, VMF = 48, 80, 112, 120, 136, 152, 168, 184
    T0, T1, T2 = C.T0, C.T1, C.T2
    MX, MY, NI = TMP, TMP + 1, TMP + 2
    cvt = lambda d, x, y: a(f'v_cvt_pk_bf16_f32 v{d}, v{x}, v{y}')
    pka = lambda d, x, y: a(f'v_pk_add_f32 {vr(d, 2)}, {vr(x, 2)}, {vr(y, 2)}')

    def ld_kq(tr):
        for half in range(2):
            a(f's_add_u32 s{sA}, s{sKB}, {lb + L_KB + half * 4096}')
            a(f's_add_u32 s{sB}, s{sKB}, {lb + L_Q + half * 4096}')
            for k in range(4):
                ks = 4 * half + k
                tr.vmem(f'buffer_load_dwordx4 {vr(KF + 4 * ks, 4)}, v{KA}, {WS}, s{sA} offen offset:{(k >> 1) * 2048 + (k & 1) * 512} sc1', ('k', ks))
                tr.vmem(f'buffer_load_dwordx4 {vr(QF + 4 * ks, 4)}, v{L16}, {WS}, s{sB} offen offset:{k * 1024} sc1', ('k', ks))

    def ld_v(tr):
        a(f's_add_u32 s{sA}, s{sKB}, {lb + L_VB}')
        for m in range(2):
            tr.vmem(f'buffer_load_dwordx4 {vr(VF + 4 * m, 4)}, v{VA}, {WS}, s{sA} offen offset:{m * 1024} sc1', 'v')

    tr = Track(a)
    wstamp(a, 1)
    C.kv_ready(a, a.newlabel('akv'), 0)
    wstamp(a, 2)
    a('s_mov_b32 s92, 0')
    ld_kq(tr)
    ld_v(tr)
    a(f's_mov_b32 s{C.sMW}, {C.OOB}')
    for _ in range(2):
        tr.vmem(f'buffer_store_dword v{T0}, off, {WS}, s{C.sMW}', 'o')
    q0 = list(tr.vm)
    top = a.newlabel('att')
    a.label(top)
    st = {}
    C.zero(a, K0, 16)
    C.m_addr(a, 2, st)
    for ks in range(8):
        tr.wait_vm(('k', ks))
        a(f'v_mfma_f32_32x32x16_bf16 {vr(SS, 16)}, {vr(KF + 4 * ks, 4)}, {vr(QF + 4 * ks, 4)}, ' + (vr(SS, 16) if ks else '0'))
    a(f'v_mov_b32 v{NI}, 0xff800000')
    for r in range(0, 16, 2):
        a(f'v_cmp_gt_i32 vcc, {r}, v{TOK}')
        a(f'v_cmp_gt_i32 s[{C.sT64}:{C.sT64 + 1}], {r + 1}, v{TOK}')
        a(f'v_cndmask_b32 v{SS + r}, v{SS + r}, v{NI}, vcc')
        a(f'v_cndmask_b32 v{SS + r + 1}, v{SS + r + 1}, v{NI}, s[{C.sT64}:{C.sT64 + 1}]')
    a(f'v_max3_f32 v{MX}, v{SS}, v{SS + 1}, v{SS + 2}')
    for r in range(3, 15, 2):
        a(f'v_max3_f32 v{MX}, v{MX}, v{SS + r}, v{SS + r + 1}')
    a(f'v_max_f32 v{MX}, v{MX}, v{SS + 15}')
    a('s_waitcnt vmcnt(0)')
    a('s_mov_b64 exec, 1')
    a(f'v_mov_b32 v{T0}, 1')
    a(f'buffer_atomic_add v{T0}, off, {WS}, s{C.sMW}')
    a('s_mov_b64 exec, -1')
    if C.OPT.get('timing'):
        wstamp(a, 3)
        a('s_waitcnt lgkmcnt(0)')
        a('s_sub_u32 s96, s90, s94')
        a(f's_cmp_lt_u32 s{C.sSTEP}, 2')
        a('s_cselect_b32 s96, 0, s96')
        a('s_add_u32 s92, s92, s96')
    a(f's_cmp_ge_u32 s{C.sSTEP}, 64')
    a(f's_cbranch_scc1 {top}_done')
    pl, go = a.newlabel('apoll'), a.newlabel('ago')
    a(f's_mov_b32 s{C.sSPIN}, 0')
    a.label(pl)
    a(f'buffer_load_dwordx4 {vr(GM[0], 4)}, v{L16}, {WS}, s{C.sPOLL} offen sc1')
    a(f'buffer_load_dwordx4 {vr(GM[1], 4)}, v{L16}, {WS}, s{C.sPOLL} offen offset:1024 sc1')
    a(f'buffer_load_dwordx4 {vr(GM[2], 4)}, v{L16}, {WS}, s{C.sPOLL8} offen sc1')
    a(f's_add_u32 s{C.sSPIN}, s{C.sSPIN}, 1')
    g = GM[0]
    a('s_waitcnt vmcnt(0)')
    a(f'v_max3_u32 v{T0}, v{g}, v{g + 1}, v{g + 2}')
    for r in range(3, 11, 2):
        a(f'v_max3_u32 v{T0}, v{T0}, v{g + r}, v{g + r + 1}')
    a(f'v_max_u32 v{T0}, v{T0}, v{g + 11}')
    a(f'v_cmp_eq_u32 vcc, -1, v{T0}')
    a(f's_cbranch_vccz {go}')
    a('s_sleep 2')
    a(f's_cmp_lt_u32 s{C.sSPIN}, {C.SPINMAX}')
    a(f's_cbranch_scc1 {pl}')
    a.label(go)
    wstamp(a, 5)
    tr.vm = []
    tr.ds(f'ds_write_b128 v{VW}, {vr(GM[0], 4)}', 'mw')
    tr.ds(f'ds_write_b128 v{VW}, {vr(GM[1], 4)} offset:1024', 'mw')
    tr.ds(f'ds_write_b128 v{T2}, {vr(GM[2], 4)}', 'mw')
    order = [('k', 0, K0), ('k', 1, K1), ('v', 0, V0), ('v', 1, V1)]
    for n in range(10):
        buf = GM[n % 3]
        if n >= 3:
            tr.wait_lg(('A', n))
        for p, (m, t, acc) in enumerate(order):
            C.smf(a, acc, buf, (m, t, n), loc)
            if p == 1 and n == 1:
                tr.wait_lg('mw')
                a('s_barrier')
                C.m_read(tr, 3, GM[0], st)
            if p == 2 and n + 3 <= 9:
                C.m_addr(a, n + 3, st)
        if 1 <= n <= 6:
            C.m_read(tr, n + 3, buf, st)
    cvt(K0, K0, K0 + 1)
    cvt(K0 + 1, K0 + 2, K0 + 3)
    cvt(K1, K1, K1 + 1)
    cvt(K1 + 1, K1 + 2, K1 + 3)
    a(f'v_mfma_f32_16x16x16_bf16 {vr(GM[0], 4)}, {vr(K0, 2)}, {vr(SEL, 2)}, 0')
    a(f'v_mfma_f32_16x16x16_bf16 {vr(GM[1], 4)}, {vr(K1, 2)}, {vr(SEL, 2)}, 0')
    cvt(V0, V0, V0 + 1)
    cvt(V0 + 1, V0 + 2, V0 + 3)
    cvt(V0 + 2, V1, V1 + 1)
    cvt(V0 + 3, V1 + 2, V1 + 3)
    tr.ds(f'ds_write_b128 v{VW}, {vr(V0, 4)} offset:3072', 'xw')
    for r in range(4):
        cvt(K0 + r, GM[0] + r, GM[1] + r)
    tr.ds(f'ds_write_b128 v{VW}, {vr(K0, 4)} offset:2048', 'xw')
    a(f's_mov_b32 s{C.sMW}, s{sFO}')
    a(f's_add_u32 s{sKB}, s{sKB}, {64 * 8192}')
    a(f's_add_u32 s{sFO}, s{sFO}, 256')
    a(f's_add_u32 s{C.sPOLL}, s{C.sPOLL}, {2 * MSLOT}')
    a(f's_add_u32 s{C.sPOLL8}, s{C.sPOLL8}, {2 * MSLOT}')
    a(f's_add_u32 s{C.sSTEP}, s{C.sSTEP}, 2')
    tr.drain_lg()
    a('s_barrier')
    for ks in range(8):
        tr.ds(f'ds_read_b128 {vr(KF + 4 * ks, 4)}, v{KMA} offset:{(ks >> 1) * 4096 + 2048 + (ks & 1) * 512}', ('km', ks))
    for u in range(2):
        tr.ds(f'ds_read_b64 {vr(VMF + 2 * u, 2)}, v{VMA} offset:{3072 + u * 512}', 'vm')
    C.kv_ready(a, a.newlabel('akv'), 0)
    for ks in range(8):
        tr.wait_lg(('km', ks))
        a(f'v_mfma_f32_32x32x16_bf16 {vr(SM_, 16)}, {vr(KF + 4 * ks, 4)}, {vr(QF + 4 * ks, 4)}, ' + (vr(SM_, 16) if ks else '0'))
    ld_kq(tr)
    a(f'v_max3_f32 v{MX}, v{MX}, v{SM_}, v{SM_ + 1}')
    a(f'v_max3_f32 v{MX}, v{MX}, v{SM_ + 2}, v{SM_ + 3}')
    a(f'v_mov_b32 v{MY}, v{MX}')
    a(f'v_permlane32_swap_b32 v{MX}, v{MY}')
    a(f'v_max_f32 v{MX}, v{MX}, v{MY}')
    a(f'v_mul_f32 v{MX}, s{C.sSCALE}, v{MX}')
    vals = [SS + r for r in range(16)] + [SM_ + r for r in range(4)]
    for s in vals:
        a(f'v_fma_f32 v{s}, v{s}, s{C.sSCALE}, -v{MX}')
    for s in vals:
        a(f'v_exp_f32 v{s}, v{s}')
    PB = TMP + 4
    for r in range(8):
        cvt(PB + r, SS + 2 * r, SS + 2 * r + 1)
    cvt(PB + 8, SM_, SM_ + 1)
    cvt(PB + 9, SM_ + 2, SM_ + 3)
    a(f'v_mov_b64 {vr(PB + 10, 2)}, {vr(PB + 8, 2)}')
    tr.wait_lg('vm')
    a(f'v_mfma_f32_32x32x16_bf16 {vr(OA, 16)}, {vr(VF, 4)}, {vr(PB, 4)}, 0')
    a(f'v_mfma_f32_32x32x16_bf16 {vr(OA, 16)}, {vr(VF + 4, 4)}, {vr(PB + 4, 4)}, {vr(OA, 16)}')
    a(f'v_mfma_f32_32x32x16_bf16 {vr(OA, 16)}, {vr(VMF, 4)}, {vr(PB + 8, 4)}, {vr(OA, 16)}')
    ld_v(tr)
    for r in range(0, 16, 4):
        pka(SS + r, SS + r, SS + r + 2)
    pka(SM_, SM_, SM_ + 2)
    pka(SS, SS, SS + 4)
    pka(SS + 8, SS + 8, SS + 12)
    pka(SS, SS, SS + 8)
    pka(SS, SS, SM_)
    a(f'v_add_f32 v{MX}, v{SS}, v{SS + 1}')
    a(f'v_mov_b32 v{MY}, v{MX}')
    a(f'v_permlane32_swap_b32 v{MX}, v{MY}')
    a(f'v_add_f32 v{MX}, v{MX}, v{MY}')
    a(f'v_rcp_f32 v{MX}, v{MX}')
    for r in range(0, 16, 2):
        a(f'v_pk_mul_f32 {vr(OA + r, 2)}, {vr(OA + r, 2)}, {vr(MX, 2)} op_sel_hi:[1,0]')
    for r in range(8):
        cvt(SM_ + r, OA + 2 * r, OA + 2 * r + 1)
    tr.vmem(f'buffer_store_dwordx4 {vr(SM_, 4)}, v{L16}, {WS}, s{sOO} offen sc1', 'o')
    tr.vmem(f'buffer_store_dwordx4 {vr(SM_ + 4, 4)}, v{L16}, {WS}, s{sOO} offen offset:1024 sc1', 'o')
    assert tr.vm == q0
    a(f's_add_u32 s{sOO}, s{sOO}, {512 * 1024}')
    a(f's_branch {top}')
    a.label(f'{top}_done')


def wo_phase(a, lb, layer, done):
    WS = f's[{S_WS}:{S_WS + 3}]'
    sSET, sDT, sSEG = sBLK, sH, sR
    a(f's_mul_i32 s{sT}, s{sJ}, 12')
    a(f's_add_u32 s{sT}, s{sT}, s{sLI}')
    a(f's_cmp_ge_u32 s{sLI}, 12')
    a(f's_cbranch_scc1 {done}')
    a(f's_cmp_ge_u32 s{sT}, 80')
    a(f's_cbranch_scc1 {done}')
    a(f's_mul_i32 s{sSET}, s{sT}, 3277')
    a(f's_lshr_b32 s{sSET}, s{sSET}, 16')
    a(f's_mul_i32 s{sU}, s{sSET}, 20')
    a(f's_sub_u32 s{sDT}, s{sT}, s{sU}')
    srd(a, S_WA, sPTR + 6, 5242880)
    VS, RA, RO = 6, 7, 8
    a(f'v_lshrrev_b32 v{T1}, 2, v{LN}')
    a(f'v_mul_u32_u24 v{T1}, 0x500, v{T1}')
    a(f'v_and_b32 v{T2}, 3, v{LN}')
    a(f'v_lshl_add_u32 v{VS}, v{T2}, 4, v{T1}')
    tr_lane_addr(a, RA, LN, T1, T2, 64, CM_PI, None, hirows=4)
    a(f's_lshl_b32 s{sV}, s{sWV}, 15')
    a(f'v_add_u32 v{RA}, s{sV}, v{RA}')
    a(f's_mul_i32 s{sWO}, s{sWV}, {1024 * 1280}')
    a(f's_lshl_b32 s{sU}, s{sDT}, 6')
    a(f's_add_u32 s{sWO}, s{sWO}, s{sU}')
    for half in range(2):
        for i in range(32):
            a(f's_add_u32 m0, s{sV}, {i * 1024}')
            a(f'buffer_load_dwordx4 v{VS}, s[{S_WA}:{S_WA + 3}], s{sWO} offen lds')
            a(f's_add_u32 s{sWO}, s{sWO}, {16 * 1280}')
        for i in range(32):
            if i % 8 == 0:
                a(f's_waitcnt vmcnt({24 - i})')
            for u in range(2):
                a(f'ds_read_b64_tr_b16 {ar(128 * half + 4 * i + 2 * u, 2)}, v{RA} offset:{i * 1024 + 512 * u}')
            if i % 4 == 3:
                a('s_waitcnt lgkmcnt(0)')
    a('s_barrier')
    a(f'v_and_b32 v{T1}, 3, v{LN}')
    a(f'v_bfe_u32 v{T2}, v{LN}, 3, 2')
    a(f'v_lshl_add_u32 v{T1}, v{T2}, 2, v{T1}')
    a(f'v_bfe_u32 v{T2}, v{LN}, 2, 1')
    a(f'v_lshl_add_u32 v{T1}, v{T2}, 4, v{T1}')
    a(f'v_mul_u32_u24 v{RO}, 0x500, v{T1}')
    a(f'v_lshrrev_b32 v{T1}, 5, v{LN}')
    a(f'v_lshl_add_u32 v{RO}, v{T1}, 5, v{RO}')
    a(f's_lshl_b32 s{sU}, s{sDT}, 6')
    a(f's_lshl_b32 s{sT}, s{sWV}, 3')
    a(f's_add_u32 s{sU}, s{sU}, s{sT}')
    a(f'v_add_u32 v{RO}, s{sU}, v{RO}')
    WB_, RB_ = 9, 10
    a(f'v_add_u32 v{WB_}, s{sLW}, v{L16}')
    a(f's_lshl_b32 s{sU}, s{sWV}, 12')
    a(f'v_add_u32 v{RB_}, s{sU}, v{L16}')
    if layer == 0:
        srd(a, S_X, sXP, 2048 * 640 * 2)
    a(f's_mov_b32 s{sSEG}, s{sSET}')
    wstamp(a, 2)
    a('s_mov_b32 s92, 0')
    top = a.newlabel('wotop')
    a.label(top)
    RES, ACC, OF = 12, 16, 64
    a(f's_mul_i32 s{sXO}, s{sSEG}, 40960')
    if layer == 0:
        a(f'buffer_load_dwordx2 {vr(RES, 2)}, v{RO}, s[{S_X}:{S_X + 3}], s{sXO} offen')
    else:
        a(f's_add_u32 s{sU}, s{sXO}, {lb - LSTRIDE + L_X2}')
        a(f'buffer_load_dwordx2 {vr(RES, 2)}, v{RO}, {WS}, s{sU} offen')
    a(f's_lshl_b32 s{sT}, s{sSEG}, 7')
    a(f's_add_u32 s{sT}, s{sT}, {WS_FLAGS + FL_O}')
    wait_flag(a, sT, 128)
    wstamp(a, 5)
    a(f's_lshl_b32 s{sT}, s{sSEG}, 18')
    a(f's_lshl_b32 s{sU}, s{sWV}, 16')
    a(f's_add_u32 s{sT}, s{sT}, s{sU}')
    a(f's_add_u32 s{sT}, s{sT}, {lb + L_O}')
    tr = Track(a)
    NB = 40

    def ld(i):
        if i % 4 == 0 and i:
            a(f's_add_u32 s{sT}, s{sT}, 4096')
        tr.vmem(f'buffer_load_dwordx4 {vr(OF + 4 * (i % NB), 4)}, v{L16}, {WS}, s{sT} offen offset:{(i % 4) * 1024} sc1', i)
    for i in range(NB):
        ld(i)
    for i in range(64):
        tr.wait_vm(i)
        acc = ACC + 16 * (i & 1)
        a(f'v_mfma_f32_32x32x16_bf16 {vr(acc, 16)}, {ar(4 * i, 4)}, {vr(OF + 4 * (i % NB), 4)}, ' + (vr(acc, 16) if i > 1 else '0'))
        if i + NB < 64:
            ld(i + NB)
    for r in range(0, 16, 2):
        a(f'v_pk_add_f32 {vr(ACC + r, 2)}, {vr(ACC + r, 2)}, {vr(ACC + 16 + r, 2)}')
    for q in range(4):
        a(f'ds_write_b128 v{WB_}, {vr(ACC + 4 * q, 4)} offset:{q * 4096}')
    a('s_waitcnt lgkmcnt(0)')
    a('s_barrier')
    for w in range(4):
        a(f'ds_read_b128 {vr(ACC + 4 * w, 4)}, v{RB_} offset:{w * 1024}')
    a('s_waitcnt lgkmcnt(0)')
    a('s_barrier')
    b = ACC
    for h in (0, 2):
        a(f'v_pk_add_f32 {vr(b + h, 2)}, {vr(b + h, 2)}, {vr(b + 4 + h, 2)}')
        a(f'v_pk_add_f32 {vr(b + 8 + h, 2)}, {vr(b + 8 + h, 2)}, {vr(b + 12 + h, 2)}')
    for h in (0, 2):
        a(f'v_pk_add_f32 {vr(b + h, 2)}, {vr(b + h, 2)}, {vr(b + 8 + h, 2)}')
    a(f'v_cvt_pk_bf16_f32 v{b + 4}, v{b}, v{b + 1}')
    a(f'v_cvt_pk_bf16_f32 v{b + 5}, v{b + 2}, v{b + 3}')
    unpack(a, b, b + 4, 2)
    unpack(a, b + 8, RES, 2)
    for r in range(4):
        a(f'v_add_f32 v{b + r}, v{b + r}, v{b + 8 + r}')
    a(f'v_cvt_pk_bf16_f32 v{b + 4}, v{b}, v{b + 1}')
    a(f'v_cvt_pk_bf16_f32 v{b + 5}, v{b + 2}, v{b + 3}')
    a(f's_add_u32 s{sU}, s{sXO}, {lb + L_X1}')
    a(f'buffer_store_dwordx2 {vr(b + 4, 2)}, v{RO}, {WS}, s{sU} offen')
    if C.OPT.get('timing'):
        wstamp(a, 3)
        a('s_waitcnt lgkmcnt(0)')
        a('s_sub_u32 s96, s90, s94')
        a('s_add_u32 s92, s92, s96')
    a(f's_add_u32 s{sSEG}, s{sSEG}, 4')
    a(f's_cmp_lt_u32 s{sSEG}, 64')
    a(f's_cbranch_scc1 {top}')
```

```python
import struct
from asmlib import *
from layout import *


def f32(x):
    return '0x%08x' % struct.unpack('<I', struct.pack('<f', x))[0]


class Track:
    def __init__(self, a):
        self.a = a
        self.vm = []
        self.lg = []

    def vmem(self, text, tag=None):
        self.a(text)
        self.vm.append(tag)

    def ds(self, text, tag=None):
        self.a(text)
        self.lg.append(tag)

    def _wait(self, q, tag, name, maxn):
        idx = [i for i, t in enumerate(q) if t == tag]
        if not idx:
            return None
        last = idx[-1]
        n = len(q) - 1 - last
        del q[:last + 1]
        if n > maxn:
            extra = n - maxn
            del q[:extra]
            n = maxn
        return n

    def wait_vm(self, tag):
        n = self._wait(self.vm, tag, 'vmcnt', 63)
        if n is not None:
            self.a(f's_waitcnt vmcnt({n})')

    def wait_lg(self, tag):
        n = self._wait(self.lg, tag, 'lgkmcnt', 15)
        if n is not None:
            self.a(f's_waitcnt lgkmcnt({n})')

    def drain_vm(self):
        self.a('s_waitcnt vmcnt(0)')
        self.vm = []

    def drain_lg(self):
        self.a('s_waitcnt lgkmcnt(0)')
        self.lg = []


IDX, L16, VW, KT, VT, WB, PQPP, ORDTMR, T3, T2, T0, T1 = range(12)
TB = 8
GM = [12, 16, 20]
Q0, K0, Q1, K1, V0, V1 = 24, 28, 32, 36, 40, 44
KR = 48
VR = 56
P = [64, 72, 80, 88, 96]
RESV = 104

LS_S = 2048
LS_TM = 3072
LS_O = 3072 + 128
LB8 = 16384
LSEL = 18432
LRSEL = 19456
LWT = 21504
LWT_W = 17 * 2048
CHAIN_LDS = LWT + 4 * LWT_W

S_WS = 4
S_W = 8
sH, sWV, sSTEP, sTMP, sTMP2 = 12, 13, 14, 15, 16
sPOLL, sPOLL8, sKB, sVB, sKMQ, sVM = 17, 18, 19, 20, 21, 22
sPST, sPST1, sPST2, sRED, sMW, sMR = 23, 24, 25, 26, 27, 28
sSTR = 30
sMASK = 36
sHASRED, sB8, sSCALE, sSPIN = 38, 39, 40, 41
sREDP = 42
sMRP = 43
sPAR = 44
sPERMLO, sPERMHI = 45, 46
sNSTEP = 47
sRS = 48
sT64 = 50
sTIME = 52
sMC = 52
sTOFF = 29
sMCB = 55
sMCO = 60
sMCP = 63
sCNT = 22
sPOLLN, sPOLL8N = 21, 59
sRDY = 49
FL_KV = 0
FL_MF = 0x1000
sPTR = 56


VSRC = 'R R R L3 R L3 R L4 R L4 R L4 L4 L3 s1 L4 s2 L3 s0 s1'.split()
SQK = {4: 0, 6: 1, 7: 2, 9: 0}
NVQ = 12
VORD = [0, 1, 2, 4, 5, 6, 9, 7, 8, 3]


LQ = {1: 4, 3: 4, 4: 3, 5: 3, 6: 3, 7: 3, 8: 4, 9: 3}


def vk(j):
    return ('v', j & 1, VORD[j >> 1])


def frag_plan():
    loc = {}
    na = 0
    nv = 0
    nl = 0
    ns = 0

    def res():
        nonlocal na, nv
        if na < 32:
            na += 1
            return ('a', 8 * (na - 1))
        nv += 1
        return ('v', RESV + 8 * (nv - 1))

    order = [('q', 0), ('k', 0), ('q', 1), ('k', 1)]
    lq = {1: 4, 3: 3, 4: 4, 5: 4, 6: 3, 7: 4, 8: 3, 9: 4}
    lq = LQ
    for n in range(10):
        for p, (m, t) in enumerate(order):
            if n == 0:
                loc[(m, t, n)] = ('s', ns, P[p]); ns += 1
            elif p == 1 and n in lq:
                loc[(m, t, n)] = ('l', nl, P[lq[n]]); nl += 1
            elif p == 3 and n in SQK:
                loc[(m, t, n)] = ('s', ns, P[SQK[n]]); ns += 1
            else:
                loc[(m, t, n)] = res()
    for j, s in enumerate(VSRC):
        key = vk(j)
        if s[0] == 'L':
            loc[key] = ('l', nl, P[int(s[1])]); nl += 1
        elif s[0] == 's':
            loc[key] = ('s', ns, P[int(s[1])]); ns += 1
        else:
            loc[key] = res()
    for n in range(4):
        for U in range(5):
            loc[('o', U, n)] = res()
    assert (na, nv, nl, ns) == (32, 19, 17, 12), (na, nv, nl, ns)
    return loc


LOC = frag_plan()


def breg(key, loc=None):
    l = (loc or LOC)[key]
    if l[0] == 'a':
        return ar(l[1], 8)
    if l[0] == 'v':
        return vr(l[1], 8)
    return vr(l[2], 8)


def rowconst(r):
    return 32 * (r >> 2) + 8 * (r & 1) + 2 * ((r >> 1) & 1)


def chain_consts(a):
    G, C, LN, X, Y = 12, 13, 14, 15, 16
    a(f'v_lshrrev_b32 v{X}, 6, v0')
    a(f'v_and_b32 v{LN}, 63, v0')
    a(f'v_readfirstlane_b32 s{sWV}, v{X}')
    a(f'v_lshrrev_b32 v{G}, 4, v{LN}')
    a(f'v_and_b32 v{C}, 15, v{LN}')
    a(f'v_lshlrev_b32 v{L16}, 4, v{LN}')
    a(f'v_mov_b32 v{X}, 0x4444')
    a(f'v_mov_b32 v{Y}, 0xeeee')
    a(f'v_cmp_gt_u32 vcc, 8, v{C}')
    a(f'v_cndmask_b32 v{IDX}, v{Y}, v{X}, vcc')
    a(f's_mov_b32 s{sMASK}, 0x00ff00ff')
    a(f's_mov_b32 s{sMASK + 1}, 0x00ff00ff')
    a(f's_lshl_b32 s{sTMP}, s{sWV}, 12')
    a(f'v_add_u32 v{VW}, s{sTMP}, v{L16}')
    a(f's_mul_i32 s{sTMP}, s{sWV}, {LWT_W}')
    a(f's_add_u32 s{sTMP}, s{sTMP}, {LWT}')
    a(f'v_add_u32 v{WB}, s{sTMP}, v{L16}')
    a(f'v_and_b32 v{X}, 1, v{G}')
    a(f'v_lshlrev_b32 v{X}, 10, v{X}')
    a(f'v_lshrrev_b32 v{Y}, 1, v{G}')
    a(f'v_lshl_add_u32 v{X}, v{Y}, 9, v{X}')
    a(f's_lshl_b32 s{sTMP}, s{sWV}, 11')
    a(f'v_add_u32 v{X}, s{sTMP}, v{X}')
    a(f'v_lshl_add_u32 v{VT}, v{C}, 4, v{X}')
    a(f'v_bfe_u32 v{Y}, v{C}, 2, 1')
    a(f'v_lshl_add_u32 v{X}, v{Y}, 8, v{X}')
    a(f'v_lshrrev_b32 v{Y}, 3, v{C}')
    a(f'v_lshl_add_u32 v{X}, v{Y}, 6, v{X}')
    a(f'v_and_b32 v{Y}, 3, v{C}')
    a(f'v_lshl_add_u32 v{KT}, v{Y}, 4, v{X}')
    a(f'v_lshrrev_b32 v{X}, 3, v{LN}')
    a(f'v_lshlrev_b32 v{X}, 12, v{X}')
    a(f'v_and_b32 v{Y}, 7, v{LN}')
    a(f'v_lshl_add_u32 v{X}, v{Y}, 4, v{X}')
    a(f'v_lshlrev_b32 v{Y}, 12, v{G}')
    a(f'v_lshl_add_u32 v{Y}, v{C}, 3, v{Y}')
    a(f'v_lshl_add_u32 v{PQPP}, v{Y}, 16, v{X}')
    a(f'v_lshlrev_b32 v{X}, 8, v{G}')
    a(f'v_and_b32 v{Y}, 7, v{C}')
    a(f'v_lshl_add_u32 v{X}, v{Y}, 4, v{X}')
    a(f's_lshl_b32 s{sTMP}, s{sWV}, 12')
    a(f's_add_u32 s{sTMP}, s{sTMP}, {LS_O}')
    a(f'v_add_u32 v{X}, s{sTMP}, v{X}')
    a(f'v_lshlrev_b32 v17, 4, v{Y}')
    a(f'v_and_b32 v{Y}, 1, v{G}')
    a(f'v_lshl_add_u32 v17, v{Y}, 8, v17')
    a(f'v_lshrrev_b32 v{Y}, 3, v{C}')
    a(f'v_lshl_add_u32 v17, v{Y}, 3, v17')
    a(f'v_add_u32 v17, {LS_TM + 512}, v17')
    a(f'v_lshl_add_u32 v{ORDTMR}, v17, 16, v{X}')
    lab = a.newlabel('rb')
    a(f's_lshl_b32 s{sTMP}, s{sH}, 1')
    a(f's_add_u32 s{sTMP}, s{sTMP}, s{sWV}')
    a(f's_mov_b32 s{sHASRED}, 1')
    a(f's_cmp_lt_u32 s{sWV}, 2')
    a(f's_cbranch_scc1 {lab}')
    a(f's_add_u32 s{sTMP}, s{sH}, 64')
    a(f's_cmp_lt_u32 s{sH}, 16')
    a(f's_cselect_b32 s{sHASRED}, 1, 0')
    a(f's_cmp_eq_u32 s{sWV}, 2')
    a(f's_cselect_b32 s{sHASRED}, s{sHASRED}, 0')
    a(f's_cmp_eq_u32 s{sHASRED}, 1')
    a(f's_cselect_b32 s{sTMP}, s{sTMP}, 0')
    a.label(lab)
    a(f's_lshl_b32 s{sRED}, s{sTMP}, 12')
    a(f's_add_u32 s{sRED}, s{sRED}, {WS_PRING}')
    a(f's_mul_i32 s{sTMP2}, s{sTMP}, 3277')
    a(f's_lshr_b32 s{sTMP2}, s{sTMP2}, 16')
    a(f's_mul_i32 s{sT64}, s{sTMP2}, 20')
    a(f's_sub_u32 s{sTMP}, s{sTMP}, s{sT64}')
    a(f's_mul_i32 s{sTMP2}, s{sTMP2}, 160')
    a(f's_lshr_b32 s{sT64}, s{sTMP}, 3')
    a(f's_lshl_b32 s{sT64}, s{sT64}, 6')
    a(f's_add_u32 s{sTMP2}, s{sTMP2}, s{sT64}')
    a(f's_lshr_b32 s{sT64 + 1}, s{sTMP}, 1')
    a(f's_and_b32 s{sT64 + 1}, s{sT64 + 1}, 3')
    a(f's_and_b32 s{sT64}, s{sTMP}, 3')
    a(f's_cmp_ge_u32 s{sTMP}, 16')
    a(f's_cselect_b32 s{sRS}, 1, 0')
    a(f's_cselect_b32 s{sT64 + 1}, s{sT64}, s{sT64 + 1}')
    a(f's_and_b32 s{sT64}, s{sT64 + 1}, 2')
    a(f's_lshl_b32 s{sSPIN}, s{sT64}, 4')
    a(f's_and_b32 s{sTMP}, s{sTMP}, 1')
    a(f's_lshl_b32 s{sTMP}, s{sTMP}, 4')
    a(f's_add_u32 s{sSPIN}, s{sSPIN}, s{sTMP}')
    a(f's_lshl_b32 s{sT64}, s{sT64}, 3')
    a(f's_cmp_eq_u32 s{sRS}, 1')
    a(f's_cselect_b32 s{sT64}, s{sT64}, s{sSPIN}')
    a(f's_add_u32 s{sTMP2}, s{sTMP2}, s{sT64}')
    a(f's_and_b32 s{sT64}, s{sT64 + 1}, 1')
    a(f's_lshl_b32 s{sT64}, s{sT64}, 6')
    a(f'v_lshlrev_b32 v{X}, 1, v{C}')
    a(f'v_add_u32 v{X}, s{sTMP2}, v{X}')
    a(f'v_lshrrev_b32 v{Y}, 3, v{X}')
    a(f'v_lshlrev_b32 v{Y}, 7, v{Y}')
    a(f'v_and_b32 v{X}, 7, v{X}')
    a(f'v_lshl_add_u32 v{Y}, v{X}, 1, v{Y}')
    a(f'v_lshl_add_u32 v{Y}, v{G}, 5, v{Y}')
    a(f'v_add_u32 v{Y}, s{sT64}, v{Y}')
    a(f'v_and_b32 v{X}, 0x28, v{LN}')
    a(f'v_cmp_eq_u32 vcc, 0, v{X}')
    a(f'v_mov_b32 v{X}, 0x8000')
    a(f'v_cndmask_b32 v{Y}, v{X}, v{Y}, vcc')
    a(f'v_lshl_or_b32 v{IDX}, v{Y}, 16, v{IDX}')
    a(f's_and_b32 s{sB8}, s{sWV}, 1')
    a(f's_lshl_b32 s{sB8}, s{sB8}, 10')
    a(f's_add_u32 s{sB8}, s{sB8}, {LB8}')
    a(f's_mov_b32 s{sSCALE}, {f32(128 ** -0.5 * 1.4426950408889634)}')
    a(f's_mov_b32 s{sPERMLO}, 0x05040100')
    a(f's_mov_b32 s{sPERMHI}, 0x07060302')
    a(f's_lshl_b32 s{sTMP}, s{sH}, 2')
    a(f's_add_u32 s{sTMP}, s{sTMP}, s{sWV}')
    a(f's_mul_i32 s{sTMP}, s{sTMP}, {NSTR * 2048}')
    a(f's_add_u32 s{sTMP}, s{sTMP}, {WS_STREAM}')
    for i in range(6):
        a(f's_add_u32 s{sSTR + i}, s{sTMP}, {i * 4096}')
    a(f's_mul_i32 s{sPST}, s{sWV}, {20 * 4096}')
    a(f's_lshl_b32 s{sTMP}, s{sH}, 7')
    a(f's_add_u32 s{sPST}, s{sPST}, s{sTMP}')
    a(f's_add_u32 s{sPST}, s{sPST}, {WS_PRING}')
    a(f's_add_u32 s{sPST1}, s{sPST}, {8 * 4096}')
    a(f's_add_u32 s{sPST2}, s{sPST}, {16 * 4096}')
    a(f's_mov_b32 s{sPAR}, {PSLOT}')


def slot_kk_salu(a, n, dst):
    if n < 2:
        a(f's_lshl_b32 s{dst}, s{sWV}, 1')
        if n:
            a(f's_add_u32 s{dst}, s{dst}, 1')
    elif n == 2:
        a(f's_and_b32 s{dst}, s{sWV}, 1')
        a(f's_add_u32 s{dst}, s{dst}, 8')
    elif n == 3:
        a(f's_and_b32 s{dst}, s{sWV}, 1')
        a(f's_sub_u32 s{dst}, 9, s{dst}')
    else:
        q = (n - 2) >> 1
        a(f's_xor_b32 s{dst}, s{sWV}, {q}')
        a(f's_lshl_b32 s{dst}, s{dst}, 1')
        if n & 1:
            a(f's_add_u32 s{dst}, s{dst}, 1')


def chain_load_weights(a, LOC=None, mats=(0, 1, 2, 3)):
    LOC = LOC or globals()['LOC']
    tr = Track(a)
    LN, G, C = 14, 12, 13
    VSRC = 17
    VO = [18, 19, 20, 21, 22]
    RA, RB, RC = 23, 24, 25
    X, Y = 26, 27
    RD = 32
    PT = 64
    sSCR = sPOLL
    sHO, sKK, sSO, sSP = sPOLL8, sKB, sVB, sKMQ
    a(f's_mul_i32 s{sSCR}, s{sWV}, 40960')
    a(f's_lshl_b32 s{sSP}, s{sH}, 2')
    a(f's_add_u32 s{sSP}, s{sSP}, s{sWV}')
    a(f's_mul_i32 s{sSP}, s{sSP}, {17 * 2048}')
    a(f's_add_u32 s{sSP}, s{sSP}, {WS_SPILL}')
    a(f'v_lshrrev_b32 v{X}, 2, v{LN}')
    a(f'v_lshlrev_b32 v{X}, 13, v{X}')
    a(f'v_and_b32 v{Y}, 3, v{LN}')
    a(f'v_lshl_add_u32 v{X}, v{Y}, 4, v{X}')
    a(f's_lshl_b32 s{sTMP}, s{sWV}, 6')
    a(f'v_add_u32 v{VSRC}, s{sTMP}, v{X}')
    a(f's_mul_i32 s{sTMP}, s{sWV}, 320')
    a(f's_mov_b32 s{sTMP2}, 3277')
    a(f's_movk_i32 s{sT64}, 1280')
    for i in range(5):
        a(f'v_add_u32 v{X}, {64 * i}, v{LN}')
        a(f'v_mul_lo_u32 v{Y}, v{X}, s{sTMP2}')
        a(f'v_lshrrev_b32 v{Y}, 16, v{Y}')
        a(f'v_mul_u32_u24 v{VO[i]}, 20, v{Y}')
        a(f'v_sub_u32 v{X}, v{X}, v{VO[i]}')
        a(f'v_mul_lo_u32 v{Y}, v{Y}, s{sT64}')
        a(f'v_lshl_add_u32 v{Y}, v{X}, 4, v{Y}')
        a(f'v_add_u32 v{VO[i]}, s{sTMP}, v{Y}')
    LP = 28
    a(f'v_lshrrev_b32 v{X}, 1, v{G}')
    a(f'v_lshlrev_b32 v{X}, 4, v{X}')
    a(f'v_and_b32 v{Y}, 1, v{G}')
    a(f'v_lshl_add_u32 v{LP}, v{Y}, 2, v{X}')

    def set_srd(mi):
        a(f's_mov_b32 s{S_W}, s{sPTR + 2 * mi}')
        a(f's_and_b32 s{S_W + 1}, s{sPTR + 2 * mi + 1}, 0xffff')
        a(f's_mov_b32 s{S_W + 2}, 5242880')
        a(f's_mov_b32 s{S_W + 3}, 0x00020000')

    def dma_block(mi, n):
        if mi < 3:
            slot_kk_salu(a, n, sKK)
            a(f's_lshl_b32 s{sKK}, s{sKK}, 19')
            a(f's_lshl_b32 s{sSO}, s{sH}, 8')
            a(f's_add_u32 s{sKK}, s{sKK}, s{sSO}')
            for i in range(4):
                a(f's_add_u32 s{sSO}, s{sKK}, {i * 16 * 8192}')
                a(f's_add_u32 m0, s{sSCR}, {n * 4096 + i * 1024}')
                tr.vmem(f'buffer_load_dwordx4 v{VSRC}, s[{S_W}:{S_W + 3}], s{sSO} offen lds', ('dma', mi, n))
        else:
            a(f's_mul_i32 s{sKK}, s{sH}, 163840')
            for i in range(4):
                ii = 4 * n + i
                a(f's_add_u32 s{sSO}, s{sKK}, {(ii // 5) * 16 * 1280}')
                a(f's_add_u32 m0, s{sSCR}, {ii * 1024}')
                tr.vmem(f'buffer_load_dwordx4 v{VO[ii % 5]}, s[{S_W}:{S_W + 3}], s{sSO} offen lds', ('dma', mi, n))

    def dest(key, k):
        l = LOC[key]
        if l[0] == 'v':
            return l[1]
        return PT + 8 * k

    def finish(key, k):
        l = LOC[key]
        base = PT + 8 * k
        if l[0] == 'a':
            for r in range(8):
                a(f'v_accvgpr_write_b32 a{l[1] + r}, v{base + r}')
        elif l[0] in 'ls':
            a(f's_add_u32 s{sSO}, s{sSTR if l[0] == "s" else sSP}, {l[1] * 2048}')
            tr.vmem(f'buffer_store_dwordx4 {vr(base, 4)}, v{L16}, s[{S_WS}:{S_WS + 3}], s{sSO} offen', 'spill')
            tr.vmem(f'buffer_store_dwordx4 {vr(base + 4, 4)}, v{L16}, s[{S_WS}:{S_WS + 3}], s{sSO} offen offset:1024',
                    'spill')

    set_srd(mats[0])
    for n in range(10):
        dma_block(mats[0], n)
    a(f'v_lshlrev_b32 v{X}, 6, v{LP}')
    a(f'v_lshl_add_u32 v{X}, v{C}, 2, v{X}')
    a(f'v_add_u32 v{RC}, s{sSCR}, v{X}')
    for ix, mi in enumerate(mats):
        if mi == 3:
            break
        m = 'qkv'[mi]
        nxt = mats[ix + 1] if ix + 1 < len(mats) else None
        if nxt is not None:
            set_srd(nxt)
        for n in range(10):
            tr.wait_vm(('dma', mi, n))
            a(f'v_add_u32 v{RA}, {n * 4096}, v{RC}')
            a(f'v_add_u32 v{RB}, {n * 4096 + 2048}, v{RC}')
            for r in range(8):
                rc = rowconst(r) & 31
                tr.ds(f'ds_read2_b32 {vr(RD + 2 * r, 2)}, v{RA if r < 4 else RB} offset0:{rc * 16} offset1:{rc * 16 + 16}')
            tr.drain_lg()
            if nxt is not None:
                dma_block(nxt, n)
            for t in range(2):
                key = (m, t, n)
                d = dest(key, t)
                for r in range(8):
                    a(f'v_perm_b32 v{d + r}, v{RD + 2 * r + 1}, v{RD + 2 * r}, s{sPERMHI if t else sPERMLO}')
                finish(key, t)
    if 3 in mats:
        a(f's_movk_i32 s{sT64}, {4 * 320}')
        a(f'v_mul_lo_u32 v{X}, v{G}, s{sT64}')
        a(f'v_add_u32 v{X}, s{sSCR}, v{X}')
        a(f'v_lshl_add_u32 v{RC}, v{C}, 2, v{X}')
        a(f'v_lshrrev_b32 v{Y}, 1, v{C}')
        a(f'v_lshl_add_u32 v{Y}, v{Y}, 2, v{X}')
        a(f'v_add_u32 v{Y}, 256, v{Y}')
        SELV = 29
        a(f'v_and_b32 v{X}, 1, v{C}')
        a(f'v_mov_b32 v{SELV}, s{sPERMLO}')
        a(f'v_mov_b32 v30, s{sPERMHI}')
        a(f'v_cmp_eq_u32 vcc, 1, v{X}')
        a(f'v_cndmask_b32 v{SELV}, v{SELV}, v30, vcc')
        tr.wait_vm(('dma', 3, 9))
        for n in range(4):
            a(f's_xor_b32 s{sKK}, s{sWV}, {n}')
            a(f's_mul_i32 s{sKK}, s{sKK}, {32 * 320}')
            for grp in range(3):
                for r in range(8):
                    off = (16 * (r >> 2) + 2 * ((r >> 1) & 1)) * 320
                    if grp < 2:
                        off += 128 * grp + 64 * (r & 1)
                    else:
                        off += 32 * (r & 1)
                    a(f's_add_u32 s{sSO}, s{sKK}, {off}')
                    a(f'v_add_u32 v{RA}, s{sSO}, v{RC if grp < 2 else Y}')
                    tr.ds(f'ds_read2_b32 {vr(RD + 2 * r, 2)}, v{RA} offset0:0 offset1:80')
                tr.drain_lg()
                for t in range(2 if grp < 2 else 1):
                    key = ('o', 2 * grp + t, n)
                    d = dest(key, t)
                    for r in range(8):
                        sel = f'v{SELV}' if grp == 2 else f's{sPERMHI if t else sPERMLO}'
                        a(f'v_perm_b32 v{d + r}, v{RD + 2 * r + 1}, v{RD + 2 * r}, {sel}')
                    finish(key, t)
    tr.drain_vm()
    a('s_barrier')
    a(f's_mul_i32 s{sSCR}, s{sWV}, {LWT_W}')
    a(f's_add_u32 s{sSCR}, s{sSCR}, {LWT}')
    for i in range(34 if 3 in mats else 0):
        a(f's_add_u32 s{sSO}, s{sSP}, {i * 1024}')
        a(f's_add_u32 m0, s{sSCR}, {i * 1024}')
        tr.vmem(f'buffer_load_dwordx4 v{L16}, s[{S_WS}:{S_WS + 3}], s{sSO} offen lds')
    a(f'v_and_b32 v{X}, 1, v{G}')
    a(f'v_lshlrev_b32 v{X}, 2, v{X}')
    a(f'v_sub_u32 v{X}, v{C}, v{X}')
    a(f'v_mov_b32 v{RA}, 0x3f80')
    a(f'v_mov_b32 v{RB}, 0x3f800000')
    for p, k in enumerate((0, 2, 8, 10)):
        reg = RD + p
        a(f'v_mov_b32 v{reg}, 0')
        a(f'v_cmp_eq_u32 vcc, {k}, v{X}')
        a(f'v_cndmask_b32 v{reg}, v{reg}, v{RA}, vcc')
        a(f'v_cmp_eq_u32 vcc, {k + 1}, v{X}')
        a(f'v_cndmask_b32 v{reg}, v{reg}, v{RB}, vcc')
    tr.ds(f'ds_write_b128 v{L16}, {vr(RD, 4)} offset:{LSEL}')
    for var in range(2):
        if var == 0:
            a(f'v_mov_b32 v{X}, v{C}')
        else:
            a(f'v_and_b32 v{X}, 8, v{C}')
            a(f'v_bfe_u32 v{Y}, v{C}, 1, 2')
            a(f'v_add_u32 v{X}, v{X}, v{Y}')
            a(f'v_and_b32 v{Y}, 1, v{C}')
            a(f'v_lshl_add_u32 v{X}, v{Y}, 2, v{X}')
        for p in range(4):
            reg = RD + 4 + p
            a(f'v_mov_b32 v{reg}, 0')
            a(f'v_cmp_eq_u32 vcc, {2 * p}, v{X}')
            a(f'v_cndmask_b32 v{reg}, v{reg}, v{RA}, vcc')
            a(f'v_cmp_eq_u32 vcc, {2 * p + 1}, v{X}')
            a(f'v_cndmask_b32 v{reg}, v{reg}, v{RB}, vcc')
        tr.ds(f'ds_write_b128 v{L16}, {vr(RD + 4, 4)} offset:{LRSEL + var * 1024}')
    tr.drain_vm()
    tr.drain_lg()
    a('s_barrier')


assert CHAIN_LDS <= 163840


OPT = {}
OOB = 0x7ffff000


def fill_ops(keys, tag):
    ops = []
    if OPT.get('nofill'):
        return ops
    for key in keys:
        l = LOC[key]
        assert l[0] == 's'
        idx = l[1]
        for hf in range(2):
            off = (idx & 1) * 2048 + hf * 1024
            ops.append((f'buffer_load_dwordx4 {vr(l[2] + 4 * hf, 4)}, v{L16}, s[{S_WS}:{S_WS + 3}], s{sSTR + (idx >> 1)} offen'
                        + (f' offset:{off}' if off else '') + ('' if str(idx) in OPT.get('l1', ' 7,8,9').strip().split(',') else ' sc1'), tag))
    return ops


def lds_stage(tr, key):
    l = LOC[key]
    assert l[0] == 'l'
    for hf in range(2):
        tr.ds(f'ds_read_b128 {vr(l[2] + 4 * hf, 4)}, v{WB} offset:{l[1] * 2048 + hf * 1024}', ('B',) + key)


def m_addr(a, n, state):
    if n < 2:
        return
    if n == 2:
        a(f'v_add_u32 v{T2}, s{sB8}, v{L16}')
        state['t2'] = 'b8'
    elif n == 3:
        assert state['t2'] == 'b8'
        a(f'v_xor_b32 v{T2}, 0x400, v{T2}')
        state['t2'] = 'b9'
    elif (n & 1) == 0:
        q = (n - 2) >> 1
        a(f'v_xor_b32 v{T2}, {q * 4096}, v{VW}')
        state['t2'] = ('p', q)


def m_read(tr, n, buf, state):
    tag = ('A', n)
    if n < 2:
        tr.ds(f'ds_read_b128 {vr(buf, 4)}, v{VW} offset:{n * 1024}', tag)
    elif n < 4:
        assert state['t2'] == ('b8' if n == 2 else 'b9')
        tr.ds(f'ds_read_b128 {vr(buf, 4)}, v{T2}', tag)
    else:
        assert state['t2'] == ('p', (n - 2) >> 1)
        tr.ds(f'ds_read_b128 {vr(buf, 4)}, v{T2} offset:{(n & 1) * 1024}', tag)


def smf(a, acc, abuf, key, loc=None):
    a(f'v_smfmac_f32_16x16x64_bf16 {vr(acc, 4)}, {vr(abuf, 4)}, {breg(key, loc)}, v{IDX}')


def zero(a, base, n):
    for i in range(0, n, 2):
        a(f'v_mov_b64 {vr(base + i, 2)}, 0')


H01 = [('q', 0, 0), ('k', 0, 0)]
H23 = [('q', 1, 0), ('k', 1, 0)]
SPINMAX = 0x40000


def kv_ready(a, name, seg_sgpr_plus):
    if OPT.get('noflags'):
        return
    WS = f's[{S_WS}:{S_WS + 3}]'
    a(f's_add_u32 s{sTMP}, s{sSTEP}, {seg_sgpr_plus}')
    a(f's_lshr_b32 s{sTMP}, s{sTMP}, 2')
    a(f's_min_u32 s{sTMP}, s{sTMP}, 15')
    a(f's_cmp_lt_u32 s{sTMP}, s{sRDY}')
    a(f's_cbranch_scc1 {name}_ok')
    a(f's_mov_b32 s{sSPIN}, 0')
    a.label(f'{name}_sp')
    a(f'v_lshrrev_b32 v{T1}, 2, v{L16}')
    a(f'buffer_load_dword v{T1}, v{T1}, {WS}, 0 offen offset:{WS_FLAGS + FL_KV} sc1')
    a('s_waitcnt vmcnt(0)')
    a(f'v_cmp_le_u32 vcc, 32, v{T1}')
    a(f's_add_u32 s{sSPIN}, s{sSPIN}, 1')
    a(f's_and_b32 s{sRDY}, vcc_lo, 0xffff')
    a(f's_ff0_i32_b32 s{sRDY}, s{sRDY}')
    a(f's_cmp_lt_u32 s{sTMP}, s{sRDY}')
    a(f's_cbranch_scc1 {name}_ok')
    a(f's_cmp_lt_u32 s{sSPIN}, {SPINMAX}')
    a(f's_cbranch_scc1 {name}_sp')
    a.label(f'{name}_ok')


def mc_init(a):
    for k, n in enumerate((7, 8, 3)):
        slot_kk_salu(a, n, sMCO + k)
        a(f's_lshl_b32 s{sMCO + k}, s{sMCO + k}, 10')
    a(f's_lshl_b32 s{sTOFF}, s{sWV}, 3')
    a(f's_add_u32 s{sTOFF}, s{sTOFF}, s{sH}')


def chain_epilogue(a):
    pass


def chain_prologue_state(a, lbase_kb):
    tr = Track(a)
    WS = f's[{S_WS}:{S_WS + 3}]'
    a(f's_lshl_b32 s{sTMP}, s{sH}, 13')
    a(f's_add_u32 s{sKB}, s{sTMP}, {lbase_kb + L_KB}')
    a(f's_add_u32 s{sVB}, s{sTMP}, {lbase_kb + L_VB}')
    a(f's_mov_b32 s{sMCB}, {lbase_kb + L_MC}')
    a(f's_lshl_b32 s{sTMP}, s{sWV}, 11')
    a(f's_add_u32 s{sPOLL}, s{sTMP}, {WS_M0}')
    a(f's_add_u32 s{sPOLL8}, s{sB8}, {WS_M0 + 8192 - LB8}')
    a(f's_mov_b32 s{sMW}, {WS_MRING + MSLOT}')
    a(f's_mov_b32 s{sMR}, {WS_MRING}')
    a(f's_mov_b32 s{sREDP}, {OOB}')
    a(f's_mov_b32 s{sSTEP}, 0')
    for t, tag in fill_ops(H01 + H23, 'h'):
        a(t)
    mc_init(a)
    a(f's_mov_b32 s{sRDY}, 0')
    kv_ready(a, a.newlabel('kvr0'), 0)
    for i in range(2):
        a(f'buffer_load_dwordx4 {vr(KR + 4 * i, 4)}, v{KT}, {WS}, s{sKB} offen offset:{128 * i} sc1')
        a(f'buffer_load_dwordx4 {vr(VR + 4 * i, 4)}, v{VT}, {WS}, s{sVB} offen offset:{256 * i} sc1')
    lds_stage(tr, ('k', 0, 1))
    zero(a, Q0, 24)
    for r in (sPST, sPST1, sPST2, sRED):
        a(f's_add_u32 s{r}, s{r}, s{sPAR}')
    a(f's_sub_u32 s{sPAR}, 0, s{sPAR}')
    a(f's_sub_u32 s{sMCB}, s{sMCB}, {MSLOT}')
    a(f's_mov_b32 s{sSTEP}, -1')
    a(f's_mov_b32 s{sMW}, {WS_MRING}')
    a(f's_mov_b32 s{sMR}, {WS_MRING + 3 * MSLOT}')


class Rec:
    def __init__(self):
        self.l = []

    def __call__(self, t):
        self.l.append(t)


def chain_step(a, sc, name, timing=False):
    tr = Track(a)
    WS = f's[{S_WS}:{S_WS + 3}]'
    st = {}
    top = f'{name}_top'
    a.label(top)
    mq = []
    KVM = OPT.get('kvmod', ' sc1 nt')

    def M(cnt=1):
        for _ in range(cnt):
            if mq:
                t, tag = mq.pop(0)
                if tag == 'ra':
                    lab = a.newlabel('ras')
                    a(f's_cbranch_scc1 {lab}')
                    a(t)
                    a.label(lab)
                else:
                    tr.vmem(t, tag)

    used = []

    def stamp(i):
        if timing and (str(i) in OPT['stamps'] or i in (0, 7)):
            k = len(used)
            used.append(i)
            a(f's_memtime s[{64 + 2 * k}:{65 + 2 * k}]')
    stamp(0)
    tr.lg = [('B', 'k', 0, 1), ('B', 'k', 0, 1)]
    m_addr(a, 2, st)
    a(f's_mov_b32 s{sSPIN}, 0')
    pl = f'{name}_mpoll'
    ld = [f'buffer_load_dwordx4 {vr(GM[0], 4)}, v{L16}, {WS}, s{sPOLL} offen sc1',
          f'buffer_load_dwordx4 {vr(GM[1], 4)}, v{L16}, {WS}, s{sPOLL} offen offset:1024 sc1',
          f'buffer_load_dwordx4 {vr(GM[2], 4)}, v{L16}, {WS}, s{sPOLL8} offen sc1']
    wr = [f'ds_write_b128 v{VW}, {vr(GM[0], 4)}', f'ds_write_b128 v{VW}, {vr(GM[1], 4)} offset:1024',
          f'ds_write_b128 v{T2}, {vr(GM[2], 4)}']
    a.label(pl)
    for t in ld:
        a(t)
    a(f's_add_u32 s{sSPIN}, s{sSPIN}, 1')
    a(f's_cmp_lt_u32 s{sSPIN}, {SPINMAX}')
    a(f's_cselect_b64 s[{sT64}:{sT64 + 1}], -1, 0')
    a(f's_waitcnt vmcnt(2)')
    g = GM[0]
    a(f'v_max3_u32 v{T0}, v{g}, v{g + 1}, v{g + 2}')
    a(wr[0])
    a(f'v_max_u32 v{T0}, v{T0}, v{g + 3}')
    a(f'v_cmp_eq_u32 vcc, -1, v{T0}')
    a(f's_and_b64 vcc, vcc, s[{sT64}:{sT64 + 1}]')
    a(f's_cbranch_vccnz {pl}')
    tr.lg += ['mw']
    tr.vm = ['m1', 'm2']
    side = []

    def mcheck(k):
        g = GM[k]
        ok, rt = f'{name}_mok{k}', f'{name}_mrt{k}'
        tr.wait_vm(f'm{k}')
        a(f'v_max3_u32 v{T0}, v{g}, v{g + 1}, v{g + 2}')
        a(f'v_max_u32 v{T0}, v{T0}, v{g + 3}')
        a(f'v_cmp_eq_u32 vcc, -1, v{T0}')
        a(f's_cbranch_vccnz {rt}')
        a.label(ok)
        tr.ds(wr[k], 'mw')
        side.append((k, ok, rt))

    sq = Rec()
    for r in (sPST, sPST1, sPST2, sRED):
        sq(f's_add_u32 s{r}, s{r}, s{sPAR}')
    sq(f's_sub_u32 s{sPAR}, 0, s{sPAR}')
    for r in (sKB, sVB):
        sq(f's_add_u32 s{r}, s{r}, {32 * 8192}')
    sq(f's_add_u32 s{sMCB}, s{sMCB}, {MSLOT}')
    sq(f's_add_u32 s{sSTEP}, s{sSTEP}, 1')
    sq(f's_mov_b32 s{sMRP}, s{sMR}')
    sq(f's_mov_b32 s{sMR}, s{sMW}')
    sq(f's_add_u32 s{sMW}, s{sMW}, {MSLOT}')
    sq(f's_cmp_ge_u32 s{sMW}, {WS_MRING + 4 * MSLOT}')
    sq(f's_cselect_b32 s{sMW}, {WS_MRING}, s{sMW}')
    sq(f's_lshl_b32 s{sTMP}, s{sWV}, 11')
    sq(f's_add_u32 s{sPOLL}, s{sMW}, s{sTMP}')
    sq(f's_add_u32 s{sPOLL8}, s{sMW}, s{sB8}')
    sq(f's_add_u32 s{sPOLL8}, s{sPOLL8}, {8192 - LB8}')
    sq(f's_add_u32 s{sMCP}, s{sSTEP}, s{sTOFF}')
    sq(f's_and_b32 s{sMCP}, s{sMCP}, 31')

    def SQ(n=1):
        for _ in range(n):
            if sq.l:
                a(sq.l.pop(0))

    stamp(1)
    for n in (4, 6, 7):
        mq += fill_ops([('k', 1, n)], ('s', n))
    order = [('q', 0, Q0), ('k', 0, K0), ('q', 1, Q1), ('k', 1, K1)]
    SELR = TB
    merged = {VORD[q]: q for q in range(NVQ // 2)}
    seq = []
    for n in range(10):
        if n in LQ:
            seq.append(('k', 0, n))
        if n in merged:
            seq += [vk(j) for j in (2 * merged[n], 2 * merged[n] + 1) if VSRC[j][0] == 'L']
    seq += [vk(j) for j in range(NVQ, 20) if VSRC[j][0] == 'L']

    def restage(key):
        for k2 in seq[seq.index(key) + 1:]:
            if LOC[k2][2] == LOC[key][2]:
                lds_stage(tr, k2)
                return

    for n in range(10):
        buf = GM[n % 3]
        ops = [((m, t, n), acc) for m, t, acc in order]
        if n in merged:
            ops += [(vk(2 * merged[n]), V0), (vk(2 * merged[n] + 1), V1)]
        for p, (key, acc) in enumerate(ops):
            last = p == len(ops) - 1
            if p == 3 and n in SQK:
                assert not any(tag == ('s', n) for _, tag in mq)
                tr.wait_vm(('s', n))
            smf(a, acc, buf, key)
            nins = len(a.ins)
            if LOC[key][0] == 'l':
                restage(key)
            if p == 0 and n >= 1:
                M()
            if p == 0 and n == 0:
                mcheck(1)
            if p == 2 and n == 0:
                mcheck(2)
            if p == 4 and n == 0:
                M()
                m_addr(a, 3, st)
            if p == 3 and n == 1:
                tr.wait_lg('mw')
                a('s_barrier')
                m_read(tr, 3, GM[0], st)
            if p == (4 if n == 1 else 2) and 1 <= n <= 6:
                m_addr(a, n + 3, st)
            if p == 4 and n in (1, 2, 4, 5, 6):
                M()
            if p == 2 and n in (8, 9):
                M()
            if p == 3 and n == 0:
                lds_stage(tr, vk(3))
            if p == 3 and n == 4:
                mq += fill_ops([('k', 1, 9)], ('s', 9))
            if p == 3 and n == 6:
                mq += fill_ops([vk(14)], 's14')
            if p == 3 and n == 7:
                mq += fill_ops([vk(16)], 's16')
            if p == 3 and n == 9:
                mq += fill_ops([vk(18)], 's18')
            if p == 3 and n == 8:
                tr.ds(f'ds_read_b128 {vr(SELR, 4)}, v{L16} offset:{LSEL}', 'sel')
                st['t2'] = None
            if last:
                if 1 <= n <= 6:
                    m_read(tr, n + 3, buf, st)
                if n == 9:
                    M()
                if 2 <= n < 9:
                    tr.wait_lg(('A', n + 1))
            elif LOC[ops[p + 1][0]][0] == 'l':
                tr.wait_lg(('B',) + ops[p + 1][0])
            if n >= 1:
                SQ(max(0, 2 - (len(a.ins) - nins)))
            if last:
                stamp(f'n{n}')
    assert len(mq) <= 1 and not sq.l, mq
    vbuf = {9: GM[0], 7: GM[1], 8: GM[2], 3: GM[0]}
    fstate = {'j': NVQ}
    stag = {14: 's14', 16: 's16', 18: 's18', 19: 's19'}

    def F(cnt=1):
        for _ in range(cnt):
            j = fstate['j']
            assert j < 20
            fstate['j'] += 1
            q, t = j >> 1, j & 1
            n = VORD[q]
            key = vk(j)
            if j == 18:
                tr.wait_lg(('A', 3))
            if LOC[key][0] == 'l':
                tr.wait_lg(('B',) + key)
            if j in stag:
                assert not any(tag == stag[j] for _, tag in mq)
                tr.wait_vm(stag[j])
            smf(a, V1 if t else V0, vbuf[n], key)
            if LOC[key][0] == 'l':
                restage(key)
            if j == 13:
                m_read(tr, 3, GM[0], st)
            if j == 14:
                mq.extend(fill_ops([vk(19)], 's19'))
            if j in (16, 17, 18, 19):
                mq.extend(fill_ops([(H01 + H23)[{16: 2, 17: 3, 18: 0, 19: 1}[j]]], 'h'))

    cvt = lambda d, x, y: a(f'v_cvt_pk_bf16_f32 v{d}, v{x}, v{y}')
    dpp = lambda d, x, bm: a(f'v_mov_b32_dpp v{d}, v{x} row_ror:8 row_mask:0xf bank_mask:{bm}')
    pka = lambda d, x, y: a(f'v_pk_add_f32 {vr(d, 2)}, {vr(x, 2)}, {vr(y, 2)}')
    stamp(2)
    cvt(Q0, Q0, Q0 + 1)
    cvt(Q0 + 1, Q0 + 2, Q0 + 3)
    cvt(Q0 + 2, K0, K0 + 1)
    cvt(Q0 + 3, K0 + 2, K0 + 3)
    cvt(Q1, Q1, Q1 + 1)
    tr.wait_lg('sel')
    a(f'v_mfma_f32_16x16x32_bf16 {vr(K0, 4)}, {vr(Q0, 4)}, {vr(SELR, 4)}, 0')
    cvt(Q1 + 1, Q1 + 2, Q1 + 3)
    cvt(Q1 + 2, K1, K1 + 1)
    cvt(Q1 + 3, K1 + 2, K1 + 3)
    a(f'v_mfma_f32_16x16x32_bf16 {vr(K1, 4)}, {vr(Q1, 4)}, {vr(SELR, 4)}, 0')
    F(1)
    M()
    m_addr(a, 2, st)
    m_addr(a, 3, st)
    for r in range(4):
        cvt(Q0 + r, K0 + r, K1 + r)
    a(f'v_lshrrev_b32 v{T0}, 16, v{ORDTMR}')
    a(f'v_mfma_f32_16x16x32_bf16 {vr(K0, 4)}, {vr(KR, 4)}, {vr(Q0, 4)}, 0')
    a(f'v_mfma_f32_16x16x32_bf16 {vr(K1, 4)}, {vr(KR + 4, 4)}, {vr(Q0, 4)}, 0')
    a(f'v_mfma_f32_16x16x32_bf16 {vr(Q1, 4)}, {vr(Q0, 4)}, {vr(Q0, 4)}, 0')
    stamp('smf')
    M()
    for r in range(4):
        dpp(K0 + r, K1 + r, '0xc')
    F(1)
    tr.ds(f'ds_write_b128 v{VW}, {vr(K0, 4)} offset:{LS_S}', 'sw')
    F(1)
    a(f's_mov_b64 exec, s[{sMASK}:{sMASK + 1}]')
    tr.ds(f'ds_write_b128 v{VW}, {vr(Q1, 4)} offset:{LS_TM}', 'sw')
    a('s_mov_b64 exec, -1')
    M()
    F(2)
    M()
    kv_ready(a, f'{name}_kvr', 1)
    stamp('b2a')
    tr.wait_lg('sw')
    a('s_barrier')
    stamp(3)
    SR = [K0, K1, Q1, Q0]
    for w in range(4):
        tr.ds(f'ds_read_b128 {vr(SR[w], 4)}, v{L16} offset:{w * 4096 + LS_S}', ('sr', w))
    TM = KR
    tr.ds(f'ds_read2st64_b64 {vr(TM, 4)}, v{T0} offset0:0 offset1:8', 'tm')
    tr.ds(f'ds_read2st64_b64 {vr(TM + 4, 4)}, v{T0} offset0:16 offset1:24', 'tm')
    M()
    F(1)
    M()
    F(1)
    M()
    if OPT.get('vearly'):
        tr.vmem(f'buffer_load_dwordx4 {vr(VR, 4)}, v{VT}, {WS}, s{sVB} offen{KVM}', 'vt')
        tr.vmem(f'buffer_load_dwordx4 {vr(VR + 4, 4)}, v{VT}, {WS}, s{sVB} offen offset:256{KVM}', 'vt')
        tr.vm = [None if x == 'vt' else x for x in tr.vm]
    stamp('sr')
    tr.wait_lg(('sr', 1))
    pka(K0, K0, K1)
    pka(K0 + 2, K0 + 2, K1 + 2)
    tr.wait_lg(('sr', 3))
    pka(Q1, Q1, Q0)
    pka(Q1 + 2, Q1 + 2, Q0 + 2)
    M()
    tr.wait_lg('tm')
    pka(TM, TM, TM + 2)
    pka(TM + 4, TM + 4, TM + 6)
    pka(K0, K0, Q1)
    pka(K0 + 2, K0 + 2, Q1 + 2)
    SMM = Q1
    pka(SMM, TM, TM + 4)
    MX, MY = K1, K1 + 1
    a(f'v_max3_f32 v{MX}, v{K0}, v{K0 + 1}, v{K0 + 2}')
    a(f'v_max3_f32 v{MY}, v{K0 + 3}, v{SMM}, v{SMM + 1}')
    a(f'v_max_f32 v{MX}, v{MX}, v{MY}')
    F(1)
    M()
    cvt(V0, V0, V0 + 1)
    a(f'v_max_f32_dpp v{MX}, v{MX}, v{MX} row_ror:8 row_mask:0xf bank_mask:0xf')
    a(f'v_mov_b32 v{MY}, v{MX}')
    cvt(V0 + 1, V0 + 2, V0 + 3)
    M()
    a(f'v_permlane16_swap_b32 v{MX}, v{MY}')
    a(f'v_max_f32 v{MX}, v{MX}, v{MY}')
    a(f'v_mov_b32 v{MY}, v{MX}')
    cvt(V0 + 2, V1, V1 + 1)
    cvt(V0 + 3, V1 + 2, V1 + 3)
    a(f'v_permlane32_swap_b32 v{MX}, v{MY}')
    a(f'v_max_f32 v{MX}, v{MX}, v{MY}')
    a(f'v_mul_f32 v{MX}, s{sSCALE}, v{MX}')
    stamp('mx')
    S = [K0, K0 + 1, K0 + 2, K0 + 3, SMM, SMM + 1]
    for i, s in enumerate(S):
        a(f'v_fma_f32 v{s}, v{s}, s{sSCALE}, -v{MX}')
        if i in (0, 3):
            M()
    hq = list(mq)
    del mq[:]
    mq += [(f'buffer_store_dwordx4 {vr(V1, 4)}, v{L16}, {WS}, s{sREDP} offen' + (f' offset:{1024 * j}' if j else '') + sc, 'ra')
           for j in range(4)]
    kvq = []
    if not OPT.get('nokv'):
        kvq = [(f'buffer_load_dwordx4 {vr(KR, 4)}, v{KT}, {WS}, s{sKB} offen{KVM}', 'kt'),
               (f'buffer_load_dwordx4 {vr(KR + 4, 4)}, v{KT}, {WS}, s{sKB} offen offset:128{KVM}', 'kt'),
               (f'buffer_load_dwordx4 {vr(VR, 4)}, v{VT}, {WS}, s{sVB} offen{KVM}', 'vt'),
               (f'buffer_load_dwordx4 {vr(VR + 4, 4)}, v{VT}, {WS}, s{sVB} offen offset:256{KVM}', 'vt')]

    kvq = hq + kvq

    def KVq(v=False):
        if kvq and (v or kvq[0][1] != 'vt'):
            tr.vmem(*kvq.pop(0))

    a(f'v_mov_b64 {vr(V1, 2)}, -1')
    a(f'v_mov_b64 {vr(V1 + 2, 2)}, -1')
    if not OPT.get('nopub'):
        a(f's_cmp_lt_u32 s{sMCP}, 6')
        a(f's_cbranch_scc1 {name}_pub')
        a.label(f'{name}_mokpub')
    a(f's_cmp_eq_u32 s{sHASRED}, 0')
    for i, s in enumerate(S):
        a(f'v_exp_f32 v{s}, v{s}')
        if i == 1:
            KVq()
        if i == 5:
            KVq()
            if OPT.get('klat'):
                stamp('k0')
                a('s_waitcnt vmcnt(0)')
                stamp('k1')
    PB = GM[2]
    BM = Q1 + 2
    cvt(PB, K0, K0 + 1)
    cvt(PB + 1, K0 + 2, K0 + 3)
    cvt(PB + 2, K0, K0 + 1)
    cvt(PB + 3, K0 + 2, K0 + 3)
    cvt(BM, SMM, SMM + 1)
    KVq()
    dpp(PB + 2, PB, '0x3')
    dpp(PB + 3, PB + 1, '0x3')
    dpp(PB, PB, '0xc')
    dpp(PB + 1, PB + 1, '0xc')
    cvt(BM + 1, SMM, SMM + 1)
    stamp(4)
    O0, O1 = TB, P[4] + 4
    SM, SY = K1 + 2, K1 + 3
    pka(K0, K0, K0 + 2)
    a(f'v_mfma_f32_16x16x32_bf16 {vr(O0, 4)}, {vr(VR, 4)}, {vr(PB, 4)}, 0')
    M()
    dpp(BM + 1, BM, '0x3')
    dpp(BM, BM, '0xc')
    a(f'v_mfma_f32_16x16x32_bf16 {vr(O1, 4)}, {vr(VR + 4, 4)}, {vr(PB, 4)}, 0')
    a(f'v_add_f32 v{SY}, v{SMM}, v{SMM + 1}')
    a(f'v_add_f32 v{SM}, v{K0}, v{K0 + 1}')
    a(f'v_mfma_f32_16x16x16_bf16 {vr(O0, 4)}, {vr(V0, 2)}, {vr(BM, 2)}, {vr(O0, 4)}')
    KVq(True)
    a(f'v_fma_f32 v{SM}, v{SY}, 0.5, v{SM}')
    a(f'v_mfma_f32_16x16x16_bf16 {vr(O1, 4)}, {vr(V0 + 2, 2)}, {vr(BM, 2)}, {vr(O1, 4)}')
    ACC2 = [Q0, K0, Q1, K1, P[4]]
    zero(a, Q0, 2)
    a(f'v_add_f32_dpp v{SM}, v{SM}, v{SM} row_ror:8 row_mask:0xf bank_mask:0xf')
    a(f'v_mov_b32 v{SY}, v{SM}')
    M()
    zero(a, Q0 + 2, 4)
    a(f'v_permlane16_swap_b32 v{SM}, v{SY}')
    a(f'v_add_f32 v{SM}, v{SM}, v{SY}')
    a(f'v_mov_b32 v{SY}, v{SM}')
    KVq(True)
    if OPT.get('kvlat'):
        stamp('kv0')
        a('s_waitcnt vmcnt(0)')
        stamp('kv1')
    zero(a, K0 + 2, 4)
    a(f'v_permlane32_swap_b32 v{SM}, v{SY}')
    a(f'v_add_f32 v{SM}, v{SM}, v{SY}')
    a(f'v_rcp_f32 v{SM}, v{SM}')
    M()
    for o in (O0, O0 + 2, O1, O1 + 2):
        a(f'v_pk_mul_f32 {vr(o, 2)}, {vr(o, 2)}, {vr(SM, 2)} op_sel_hi:[1,0]')
    OP = V0
    for r in range(4):
        cvt(OP + r, O0 + r, O1 + r)
    a(f's_mov_b64 exec, s[{sMASK}:{sMASK + 1}]')
    tr.ds(f'ds_write_b128 v{VW}, {vr(OP, 4)} offset:{LS_O}', 'ow')
    a('s_mov_b64 exec, -1')
    KVq(True)
    stamp('b3a')
    OA = [OP, GM[1], GM[2], GM[0]]
    PQr, PPr = T1, T2

    def pack2(x):
        b = ACC2[2 * x]
        for r in range(4):
            cvt(b + r, b + r, b + 4 + r)
        tr.vmem(f'buffer_store_dwordx4 {vr(b, 4)}, v{PQr}, {WS}, s{sPST1 if x else sPST} offen{sc}', 'ps')

    a(f'v_and_b32 v{T0}, 0xffff, v{ORDTMR}')
    seq2 = [(U, 0) for U in range(5)] + [(U, n) for U in range(5) for n in (1, 2, 3)]
    RS, RDD = V1, GM[1]
    for i, (U, n) in enumerate(seq2):
        if U == 0 and n > 0:
            tr.wait_lg(('oa', n))
        smf(a, ACC2[U], OA[n], ('o', U, n))
        if i == 0:
            M()
            zero(a, Q1 + 2, 2)
            zero(a, K1, 2)
            a(f'v_xor_b32 v{T1}, 4096, v{T0}')
        if i == 1:
            zero(a, K1 + 2, 2)
            zero(a, P[4], 2)
            a(f'v_xor_b32 v{T2}, 8192, v{T0}')
        if i == 2:
            zero(a, P[4] + 2, 2)
            a(f'v_xor_b32 v{T0}, 12288, v{T0}')
            tr.wait_lg('ow')
            a('s_barrier')
            stamp(5)
            for k, ad in ((1, T1), (2, T2), (3, T0)):
                tr.ds(f'ds_read_b128 {vr(OA[k], 4)}, v{ad}', ('oa', k))
        if i == 3:
            assert not mq and not kvq, (mq, kvq)
            a(f'v_and_b32 v{PQr}, 0xffff, v{PQPP}')
        if i == 4:
            a(f'v_lshrrev_b32 v{PPr}, 16, v{PQPP}')
        if i in (5, 8, 11, 15):
            M()
        if i == 6:
            a(f's_lshl_b32 s{sTMP}, s{sRS}, 10')
            a(f'v_add_u32 v{T0}, s{sTMP}, v{L16}')
        if i == 7:
            a(f'v_ashrrev_i32 v{T3}, 16, v{IDX}')
        if i == 9:
            a(f'ds_read_b128 {vr(RS, 4)}, v{T0} offset:{LRSEL}')
        if i == 12:
            pack2(0)
        if i == 18:
            pack2(1)
    assert not mq
    RA_ = [Q0, K0, Q1, K1]
    b = ACC2[4]
    cvt(b, b, b + 1)
    cvt(b + 1, b + 2, b + 3)
    tr.vmem(f'buffer_store_dwordx2 {vr(b, 2)}, v{PPr}, {WS}, s{sPST2} offen{sc}', 'ps')
    stamp(6)
    skip = f'{name}_nored'
    a(f's_mov_b32 s{sSPIN}, 0')
    a(f's_cmp_eq_u32 s{sHASRED}, 0')
    a(f's_cbranch_scc1 {skip}')
    rl = f'{name}_rpoll'
    rg = f'{name}_rgo'

    def rloads(regs):
        for j in range(4):
            a(f'buffer_load_dwordx4 {vr(regs[j], 4)}, v{L16}, {WS}, s{sRED} offen' + (f' offset:{1024 * j}' if j else '') + ' sc1')

    def rcheck(regs, extra):
        for j in range(4):
            r = regs[j]
            a(f's_waitcnt vmcnt({3 - j + extra})' + (' lgkmcnt(0)' if j == 0 else ''))
            a(f'v_mfma_f32_16x16x32_bf16 {vr(RDD, 4)}, {vr(RS, 4)}, {vr(r, 4)}, ' + (vr(RDD, 4) if j else '0'))
            if j == 0:
                a(f'v_max3_u32 v{T0}, v{r}, v{r + 1}, v{r + 2}')
                a(f'v_max_u32 v{T0}, v{T0}, v{r + 3}')
            else:
                a(f'v_max3_u32 v{T0}, v{T0}, v{r}, v{r + 1}')
                a(f'v_max3_u32 v{T0}, v{T0}, v{r + 2}, v{r + 3}')
        a(f'v_cmp_eq_u32 vcc, -1, v{T0}')
        a(f's_cbranch_vccz {rg}')

    if OPT.get('ack'):
        a('s_waitcnt vmcnt(0)')
    a.label(rl)
    rloads(RA_)
    a(f's_add_u32 s{sSPIN}, s{sSPIN}, 1')
    rcheck(RA_, 0)
    a(f's_cmp_lt_u32 s{sSPIN}, {SPINMAX}')
    a(f's_cbranch_scc1 {rl}')
    a.label(rg)
    stamp('rg')
    a('s_nop 3')
    for r in range(4):
        a(f'v_add_f32_dpp v{RDD + r}, v{RDD + r}, v{RDD + r} row_ror:8 row_mask:0xf bank_mask:0xf')
    cvt(RDD, RDD, RDD + 1)
    cvt(RDD + 1, RDD + 2, RDD + 3)
    a(f'buffer_store_dword v{RDD}, v{T3}, {WS}, s{sMW} offen{sc}')
    a(f'buffer_store_dword v{RDD + 1}, v{T3}, {WS}, s{sMW} offen offset:16{sc}')
    a(f's_mov_b32 s{sREDP}, s{sRED}')
    a.label(skip)
    if timing:
        stamp(7)
        a('s_waitcnt lgkmcnt(0)')
        assert len(used) <= 13
        OPT['used'] = used
        for i in range(len(used) - 1):
            a(f's_sub_u32 s{sTMP}, s{66 + 2 * i}, s{64 + 2 * i}')
            a(f's_add_u32 s{90 + i}, s{90 + i}, s{sTMP}')
    lds_stage(tr, ('k', 0, 1))
    zero(a, Q0, 24)
    if OPT.get('mack'):
        a('s_waitcnt vmcnt(0)')
    a('s_barrier')
    a(f's_cmp_lt_u32 s{sSTEP}, s{sNSTEP}')
    a(f's_cbranch_scc1 {top}')
    a(f's_branch {name}_exit')
    for k, ok, rt in side:
        g = GM[k]
        a.label(rt)
        a(ld[k])
        a(f's_add_u32 s{sSPIN}, s{sSPIN}, 1')
        a(f's_cmp_lt_u32 s{sSPIN}, {SPINMAX}')
        a('s_waitcnt vmcnt(0)')
        a(f's_cbranch_scc0 {ok}')
        a(f'v_max3_u32 v{T0}, v{g}, v{g + 1}, v{g + 2}')
        a(f'v_max_u32 v{T0}, v{T0}, v{g + 3}')
        a(f'v_cmp_eq_u32 vcc, -1, v{T0}')
        a(f's_cbranch_vccnz {rt}')
        a(f's_branch {ok}')
    if not OPT.get('nopub'):
        a.label(f'{name}_pub')
        for d in range(6):
            k = d >> 1
            buf = (GM[1], GM[2], GM[0])[k]
            if d < 5:
                a(f's_cmp_eq_u32 s{sMCP}, {d}')
                a(f's_cbranch_scc0 {name}_pub{d + 1}')
            if d & 1:
                a(f's_add_u32 s{sTMP}, s{sMCO + k}, s{sMRP}')
                a(f'buffer_store_dwordx4 {vr(V1, 4)}, v{L16}, {WS}, s{sTMP} offen{sc}')
            else:
                a(f's_add_u32 s{sTMP}, s{sMCO + k}, s{sMCB}')
                a(f'buffer_store_dwordx4 {vr(buf, 4)}, v{L16}, {WS}, s{sTMP} offen sc1')
            a(f's_branch {name}_mokpub')
            if d < 5:
                a.label(f'{name}_pub{d + 1}')
    a.label(f'{name}_exit')
```

```python
import struct
from asmlib import *
from layout import *
from common import *
from chain import Track, f32


def allreduce32(a, x, t):
    for r in (8, 4, 2, 1):
        a(f'v_add_f32_dpp v{x}, v{x}, v{x} row_ror:{r} row_mask:0xf bank_mask:0xf')
    a(f'v_mov_b32 v{t}, v{x}')
    a(f'v_permlane16_swap_b32 v{x}, v{t}')
    a(f'v_add_f32 v{x}, v{x}, v{t}')


def rbf(a, x):
    a(f'v_cvt_pk_bf16_f32 v{x}, v{x}, v{x}')
    a(f'v_and_b32 v{x}, 0xffff0000, v{x}')


def ln_pass(a, X, P, S, T, U):
    a(f'v_add_f32 v{S}, v{X}, v{X + 1}')
    a(f'v_add_f32 v{T}, v{X + 2}, v{X + 3}')
    for i in range(4, 20, 2):
        a(f'v_add_f32 v{S}, v{S}, v{X + i}')
        a(f'v_add_f32 v{T}, v{T}, v{X + i + 1}')
    a(f'v_add_f32 v{S}, v{S}, v{T}')
    allreduce32(a, S, T)
    a(f'v_mul_f32 v{S}, {f32(1.0 / 640)}, v{S}')
    a(f'v_sub_f32 v{T}, v{X}, v{S}')
    a(f'v_mul_f32 v{U}, v{T}, v{T}')
    for i in range(1, 20):
        a(f'v_sub_f32 v{T}, v{X + i}, v{S}')
        a(f'v_fmac_f32 v{U}, v{T}, v{T}')
    allreduce32(a, U, T)
    a(f'v_mul_f32 v{U}, {f32(1.0 / 640)}, v{U}')
    rbf(a, S)
    rbf(a, U)
    a(f'v_add_f32 v{U}, {f32(1e-5)}, v{U}')
    rbf(a, U)
    a(f'v_sqrt_f32 v{U}, v{U}')
    rbf(a, U)
    a(f'v_rcp_f32 v{U}, v{U}')
    for i in range(10):
        a(f'v_sub_f32 v{X + 2 * i}, v{X + 2 * i}, v{S}')
        a(f'v_sub_f32 v{X + 2 * i + 1}, v{X + 2 * i + 1}, v{S}')
        a(f'v_cvt_pk_bf16_f32 v{P + i}, v{X + 2 * i}, v{X + 2 * i + 1}')
    for i in range(10):
        a(f'v_lshlrev_b32 v{X + 2 * i}, 16, v{P + i}')
        a(f'v_and_b32 v{X + 2 * i + 1}, 0xffff0000, v{P + i}')
        a(f'v_mul_f32 v{X + 2 * i}, v{X + 2 * i}, v{U}')
        a(f'v_mul_f32 v{X + 2 * i + 1}, v{X + 2 * i + 1}, v{U}')
        a(f'v_cvt_pk_bf16_f32 v{P + i}, v{X + 2 * i}, v{X + 2 * i + 1}')


def unpack(a, X, P, n):
    for i in range(n):
        a(f'v_lshlrev_b32 v{X + 2 * i}, 16, v{P + i}')
        a(f'v_and_b32 v{X + 2 * i + 1}, 0xffff0000, v{P + i}')


def ln_kernel(a, name, src_ws_off, dst_off, double, frag, init=None):
    kernel_head(a, name)
    a(f's_cmp_ge_u32 s2, 256')
    a(f's_cbranch_scc1 {name}_end')
    a(f's_load_dwordx2 s[16:17], s[0:1], {KA_WS}')
    a(f's_load_dwordx4 s[20:23], s[0:1], {KA_X}')
    a('s_waitcnt lgkmcnt(0)')
    srd(a, 4, 16, WS_SIZE)
    srd(a, 8, 20, 2048 * 640 * 2)
    a('v_lshrrev_b32 v1, 5, v0')
    a('s_lshl_b32 s3, s2, 3')
    a('v_add_u32 v1, s3, v1')
    a('v_and_b32 v2, 31, v0')
    a('s_movk_i32 s12, 1280')
    a('v_mul_lo_u32 v3, v1, s12')
    a('v_lshl_add_u32 v3, v2, 3, v3')
    P, X, S, T, U = 10, 20, 6, 7, 8
    if src_ws_off is not None:
        a(f's_mov_b32 s13, {src_ws_off}')
    for j in range(5):
        if src_ws_off is None:
            a(f'buffer_load_dwordx2 {vr(P + 2 * j, 2)}, v3, s[8:11], 0 offen offset:{256 * j}')
        else:
            a(f'buffer_load_dwordx2 {vr(P + 2 * j, 2)}, v3, s[4:7], s13 offen offset:{256 * j}')
    if frag:
        a('v_lshrrev_b32 v4, 5, v1')
        a('v_mul_u32_u24 v4, 40, v4')
        a('v_lshrrev_b32 v5, 2, v2')
        a('v_add_u32 v4, v4, v5')
        a('v_lshlrev_b32 v4, 10, v4')
        a('v_bfe_u32 v5, v2, 1, 1')
        a('v_lshl_add_u32 v4, v5, 9, v4')
        a('v_and_b32 v5, 1, v2')
        a('v_lshl_add_u32 v4, v5, 3, v4')
        a('v_and_b32 v5, 3, v1')
        a('v_lshl_add_u32 v4, v5, 4, v4')
        a('v_bfe_u32 v5, v1, 2, 2')
        a('v_lshl_add_u32 v4, v5, 7, v4')
        a('v_bfe_u32 v5, v1, 4, 1')
        a('v_lshl_add_u32 v4, v5, 6, v4')
    if init:
        init(a)
    a('s_waitcnt vmcnt(0)' if not init else f's_waitcnt vmcnt({init.nstores})')
    unpack(a, X, P, 10)
    ln_pass(a, X, P, S, T, U)
    if double:
        unpack(a, X, P, 10)
        ln_pass(a, X, P, S, T, U)
    for j in range(5):
        if frag:
            a(f's_mov_b32 s13, {dst_off + 8192 * j}')
            a(f'buffer_store_dwordx2 {vr(P + 2 * j, 2)}, v4, s[4:7], s13 offen')
        else:
            a(f's_mov_b32 s13, {dst_off}')
            a(f'buffer_store_dwordx2 {vr(P + 2 * j, 2)}, v3, s[4:7], s13 offen offset:{256 * j}')
    a.label(f'{name}_end')
    a('s_endpgm')


class InitChain:
    def __init__(self, lb):
        self.lb = lb
        self.nstores = 4

    def __call__(self, a):
        a('s_lshl_b32 s24, s2, 12')
        a('v_lshlrev_b32 v40, 4, v0')
        a('v_add_u32 v40, s24, v40')
        for r in range(4):
            a(f'v_mov_b32 v{44 + r}, -1')
            a(f'v_mov_b32 v{48 + r}, 0')
        a(f'v_mov_b32 v41, 0x80000000')
        a(f'v_cmp_gt_u32 vcc, 0x{WS_STREAM - WS_MRING:x}, v40')
        a('v_cndmask_b32 v42, v41, v40, vcc')
        a(f's_mov_b32 s25, {WS_MRING}')
        a('buffer_store_dwordx4 v[44:47], v42, s[4:7], s25 offen')
        a(f'v_cmp_gt_u32 vcc, 0x{64 * MSLOT:x}, v40')
        a('v_cndmask_b32 v42, v41, v40, vcc')
        a(f's_mov_b32 s25, {self.lb + L_MC}')
        a('buffer_store_dwordx4 v[44:47], v42, s[4:7], s25 offen')
        a(f's_mov_b32 s25, {self.lb + LSTRIDE + L_MC}')
        a('buffer_store_dwordx4 v[44:47], v42, s[4:7], s25 offen')
        a(f'v_cmp_gt_u32 vcc, 0x{WS_M0 - WS_FLAGS:x}, v40')
        a('v_cndmask_b32 v42, v41, v40, vcc')
        a('buffer_store_dwordx4 v[48:51], v42, s[4:7], 0 offen')
        srd(a, 28, 22, 10240)
        a('v_lshrrev_b32 v43, 4, v40')
        a('v_and_b32 v52, 7, v43')
        a('v_mul_u32_u24 v52, 0x500, v52')
        a('v_lshrrev_b32 v53, 3, v43')
        a('v_lshl_add_u32 v52, v53, 4, v52')
        a('v_cmp_gt_u32 vcc, 640, v43')
        a('v_cndmask_b32 v52, v41, v52, vcc')
        a('v_cndmask_b32 v53, v41, v40, vcc')
        a('buffer_load_dwordx4 v[56:59], v52, s[28:31], 0 offen')
        a(f's_mov_b32 s25, {WS_M0}')
        a('s_waitcnt vmcnt(0)')
        a('buffer_store_dwordx4 v[56:59], v53, s[4:7], s25 offen')
        self.nstores = 1


NRING = 7
GST = 20480


def tr_lane_addr(a, dst, lane, t1, t2, pitch, cmap, swz=None, hirows=8):
    a(f'v_lshrrev_b32 v{t1}, 5, v{lane}')
    a(f'v_mul_u32_u24 v{t1}, {hirows}, v{t1}')
    a(f'v_bfe_u32 v{t2}, v{lane}, 2, 2')
    a(f'v_add_u32 v{t1}, v{t1}, v{t2}')
    a(f'v_mul_u32_u24 v{dst}, {pitch}, v{t1}')
    src = {'g0': 0, 'g1': 1, 'g2': 4}
    for k, nm in enumerate(cmap):
        a(f'v_bfe_u32 v{t2}, v{lane}, {src[nm]}, 1')
        a(f'v_lshl_add_u32 v{dst}, v{t2}, {3 + k}, v{dst}')
    if swz is not None:
        swz(t1, t2, dst)


CM_NAT = ('g0', 'g1', 'g2')
CM_PI = ('g1', 'g2', 'g0')
CM_SIG = ('g1', 'g0', 'g2')


def g_kernel(a, name, which, lb, final):
    nx = 18 if which == 1 else 22
    nst = 32 if which == 1 else 27
    xpitch = 3456 if which == 1 else 4096
    kernel_head(a, name)
    a(f's_cmp_ge_u32 s2, {nx * 10}')
    a(f's_cbranch_scc1 {name}_end')
    a(f's_load_dwordx4 s[16:19], s[0:1], {KA_W1 if which == 1 else KA_W2}')
    a(f's_load_dwordx2 s[20:21], s[0:1], {KA_WS}')
    a(f's_load_dwordx2 s[22:23], s[0:1], {KA_OUT}')
    a('s_mul_i32 s24, s2, 6554')
    a('s_lshr_b32 s24, s24, 16')
    a('s_mul_i32 s25, s24, 10')
    a('s_sub_u32 s25, s2, s25')
    LN, W, T1, T2 = 1, 2, 3, 4
    VX = [5, 6, 7]
    VY = [8, 9]
    RX, RY = 10, 11
    a(f'v_and_b32 v{LN}, 63, v0')
    a(f'v_lshrrev_b32 v{W}, 6, v0')
    a(f'v_readfirstlane_b32 s26, v{W}')
    a('s_waitcnt lgkmcnt(0)')
    srd(a, 4, 20, WS_SIZE)
    srd(a, 8, 16, 2048 * 1728 * 2)
    srd(a, 12, 18, (1728 if which == 1 else 2048) * 2)
    a(f's_mov_b32 s27, 5462')
    a(f's_mov_b32 s28, {xpitch}')
    a('s_mul_i32 s29, s24, 192')
    for k in range(3):
        a(f'v_add_u32 v{T1}, {256 * k}, v0')
        a(f'v_mul_lo_u32 v{T2}, v{T1}, s27')
        a(f'v_lshrrev_b32 v{T2}, 16, v{T2}')
        a(f'v_mul_u32_u24 v{VX[k]}, 12, v{T2}')
        a(f'v_sub_u32 v{T1}, v{T1}, v{VX[k]}')
        a(f'v_mul_lo_u32 v{T2}, v{T2}, s28')
        a(f'v_lshl_add_u32 v{T2}, v{T1}, 4, v{T2}')
        a(f'v_add_u32 v{VX[k]}, s29, v{T2}')
    a('s_lshl_b32 s29, s25, 7')
    a('s_movk_i32 s28, 1280')
    for k in range(2):
        a(f'v_add_u32 v{T1}, {256 * k}, v0')
        a(f'v_lshrrev_b32 v{T2}, 3, v{T1}')
        a(f'v_and_b32 v{T1}, 7, v{T1}')
        a(f'v_bfe_u32 v{VY[k]}, v{T2}, 1, 1')
        a(f'v_lshlrev_b32 v{VY[k]}, 2, v{VY[k]}')
        a(f'v_xor_b32 v{T1}, v{T1}, v{VY[k]}')
        a(f'v_mul_lo_u32 v{T2}, v{T2}, s28')
        a(f'v_lshl_add_u32 v{T2}, v{T1}, 4, v{T2}')
        a(f'v_add_u32 v{VY[k]}, s29, v{T2}')
    tr_lane_addr(a, RX, LN, T1, T2, 192, CM_NAT)
    a('s_mul_i32 s28, s26, 3072')
    a(f'v_add_u32 v{RX}, s28, v{RX}')

    def swzY(row, t, dst):
        a(f'v_bfe_u32 v{t}, v{row}, 1, 1')
        a(f'v_lshlrev_b32 v{t}, 6, v{t}')
        a(f'v_xor_b32 v{dst}, v{t}, v{dst}')
    tr_lane_addr(a, RY, LN, T1, T2, 128, CM_PI, swzY)
    a('s_lshl_b32 s28, s26, 11')
    a('s_add_u32 s28, s28, 12288')
    a(f'v_add_u32 v{RY}, s28, v{RY}')
    RY2 = 12
    a(f'v_xor_b32 v{RY2}, 64, v{RY}')
    RXb = [RX, 13, 14]
    RYb = [RY, 15, 16]
    RY2b = [RY2, 17, 18]
    for k in (1, 2):
        a(f'v_add_u32 v{RXb[k]}, {3 * GST * k}, v{RX}')
        a(f'v_add_u32 v{RYb[k]}, {3 * GST * k}, v{RY}')
        a(f'v_add_u32 v{RY2b[k]}, {3 * GST * k}, v{RY2}')
    a('s_lshl_b32 s30, s26, 10')
    ybase = lb + (L_HT if which == 1 else L_U)
    tr = Track(a)

    def dma(i):
        slot = i % NRING
        a(f's_mov_b32 s31, {i * 64 * xpitch}')
        a(f's_mov_b32 s32, {ybase + i * 64 * 1280}')
        for k in range(3):
            a(f's_add_u32 m0, s30, {slot * GST + 4096 * k}')
            tr.vmem(f'buffer_load_dwordx4 v{VX[k]}, s[8:11], s31 offen lds', ('st', i))
        for k in range(2):
            a(f's_add_u32 m0, s30, {slot * GST + 12288 + 4096 * k}')
            tr.vmem(f'buffer_load_dwordx4 v{VY[k]}, s[4:7], s32 offen lds', ('st', i))

    FR = [20, 40]

    def reads(i):
        slot = i % NRING
        b = FR[i & 1]
        k, off = slot // 3, (slot % 3) * GST
        for y, rb in ((0, RYb), (1, RY2b)):
            for u in range(2):
                tr.ds(f'ds_read_b64_tr_b16 {vr(b + 12 + 4 * y + 2 * u, 2)}, v{rb[k]} offset:{off + 512 * u}', ('fr', i))
        for x in range(3):
            for u in range(2):
                tr.ds(f'ds_read_b64_tr_b16 {vr(b + 4 * x + 2 * u, 2)}, v{RXb[k]} offset:{off + 64 * x + 768 * u}', ('fr', i))

    for i in range(NRING - 1):
        dma(i)
    CO, DO = 60, 61
    a(f'v_and_b32 v{CO}, 31, v{LN}')
    a('s_mul_i32 s28, s24, 96')
    a(f'v_add_u32 v{CO}, s28, v{CO}')
    a(f'v_lshlrev_b32 v{T1}, 1, v{CO}')
    BI = 62
    for x in range(3):
        tr.vmem(f'buffer_load_ushort v{BI + x}, v{T1}, s[12:15], 0 offen offset:{64 * x}', 'bias')
    a(f'v_lshrrev_b32 v{DO}, 5, v{LN}')
    a(f'v_lshlrev_b32 v{DO}, 5, v{DO}')
    a('s_lshl_b32 s28, s25, 7')
    a('s_lshl_b32 s29, s26, 3')
    a('s_add_u32 s28, s28, s29')
    a(f'v_add_u32 v{DO}, s28, v{DO}')
    a('s_movk_i32 s28, 1280')
    a(f'v_mul_lo_u32 v{T1}, v{CO}, s28')
    a(f'v_add_u32 v{DO}, v{DO}, v{T1}')
    RES = 66
    if which == 2:
        for x in range(3):
            a(f's_mov_b32 s28, {lb + L_X1 + x * 32 * 1280}')
            for y in range(2):
                tr.vmem(f'buffer_load_dwordx2 {vr(RES + 4 * x + 2 * y, 2)}, v{DO}, s[4:7], s28 offen offset:{64 * y}', 'res')
    for r in range(96):
        a(f'v_accvgpr_write_b32 a{r}, 0')
    tr.wait_vm(('st', 0))
    a('s_barrier')
    reads(0)
    for i in range(nst):
        if i + 1 < nst:
            tr.wait_vm(('st', i + 1))
        tr.drain_lg()
        a('s_barrier')
        if i + 1 < nst:
            reads(i + 1)
        if i + NRING - 1 < nst:
            dma(i + NRING - 1)
        b = FR[i & 1]
        for x in range(3):
            for y in range(2):
                acc = ar(16 * (2 * x + y), 16)
                a(f'v_mfma_f32_32x32x16_bf16 {acc}, {vr(b + 12 + 4 * y, 4)}, {vr(b + 4 * x, 4)}, {acc}')
    a('s_barrier')
    a(f'v_lshlrev_b32 v{T1}, 4, v{LN}')
    a(f'v_add_u32 v{T2}, s30, v{T1}')
    a('s_lshl_b32 s28, s26, 12')
    a(f'v_add_u32 v{T1}, s28, v{T1}')
    a(f'v_add_u32 v19, {3 * 16384}, v{T2}')
    a(f'v_add_u32 v59, {3 * 16384}, v{T1}')
    a('s_nop 7')
    for t in range(6):
        for q in range(4):
            tr.ds(f'ds_write_b128 v{T2 if t < 3 else 19}, {ar(16 * t + 4 * q, 4)} offset:{(t % 3) * 16384 + q * 4096}')
    tr.drain_lg()
    a('s_barrier')
    RB = 80
    for t in range(6):
        for w in range(4):
            tr.ds(f'ds_read_b128 {vr(RB + 16 * t + 4 * w, 4)}, v{T1 if t < 3 else 59} offset:{(t % 3) * 16384 + w * 1024}', ('rr', t))
    tr.drain_vm()
    for x in range(3):
        a(f'v_lshlrev_b32 v{BI + x}, 16, v{BI + x}')
    if which == 1:
        a(f's_mov_b32 s31, {f32(-2.0 * 1.4426950408889634 * 0.7978845608028654)}')
        a(f's_mov_b32 s32, {f32(-2.0 * 1.4426950408889634 * 0.7978845608028654 * 0.044715)}')
    if which == 2 and final:
        srd(a, 8, 22, 2048 * 640 * 2)
    for t in range(6):
        x, y = t >> 1, t & 1
        b = RB + 16 * t
        tr.wait_lg(('rr', t))
        for h in (0, 2):
            a(f'v_pk_add_f32 {vr(b + h, 2)}, {vr(b + h, 2)}, {vr(b + 4 + h, 2)}')
            a(f'v_pk_add_f32 {vr(b + 8 + h, 2)}, {vr(b + 8 + h, 2)}, {vr(b + 12 + h, 2)}')
        for h in (0, 2):
            a(f'v_pk_add_f32 {vr(b + h, 2)}, {vr(b + h, 2)}, {vr(b + 8 + h, 2)}')
        a(f'v_cvt_pk_bf16_f32 v{b + 4}, v{b}, v{b + 1}')
        a(f'v_cvt_pk_bf16_f32 v{b + 5}, v{b + 2}, v{b + 3}')
        unpack(a, b, b + 4, 2)
        for r in range(4):
            a(f'v_add_f32 v{b + r}, v{b + r}, v{BI + x}')
        a(f'v_cvt_pk_bf16_f32 v{b + 4}, v{b}, v{b + 1}')
        a(f'v_cvt_pk_bf16_f32 v{b + 5}, v{b + 2}, v{b + 3}')
        unpack(a, b, b + 4, 2)
        if which == 1:
            for r in range(4):
                a(f'v_mul_f32 v{b + 8 + r}, v{b + r}, v{b + r}')
            for r in range(4):
                a(f'v_mov_b32 v{b + 12 + r}, s31')
                a(f'v_fmac_f32 v{b + 12 + r}, s32, v{b + 8 + r}')
            for r in range(4):
                a(f'v_mul_f32 v{b + 8 + r}, v{b + 12 + r}, v{b + r}')
            for r in range(4):
                a(f'v_exp_f32 v{b + 8 + r}, v{b + 8 + r}')
            for r in range(4):
                a(f'v_add_f32 v{b + 8 + r}, 1.0, v{b + 8 + r}')
            for r in range(4):
                a(f'v_rcp_f32 v{b + 8 + r}, v{b + 8 + r}')
            for r in range(4):
                a(f'v_mul_f32 v{b + r}, v{b + r}, v{b + 8 + r}')
        else:
            unpack(a, b + 8, RES + 4 * x + 2 * y, 2)
            for r in range(4):
                a(f'v_add_f32 v{b + r}, v{b + r}, v{b + 8 + r}')
        a(f'v_cvt_pk_bf16_f32 v{b + 4}, v{b}, v{b + 1}')
        a(f'v_cvt_pk_bf16_f32 v{b + 5}, v{b + 2}, v{b + 3}')
        if which == 2 and final:
            a(f's_mov_b32 s28, {x * 32 * 1280}')
            a(f'buffer_store_dwordx2 {vr(b + 4, 2)}, v{DO}, s[8:11], s28 offen offset:{64 * y}')
        else:
            a(f's_mov_b32 s28, {lb + (L_U if which == 1 else L_X2) + x * 32 * 1280}')
            a(f'buffer_store_dwordx2 {vr(b + 4, 2)}, v{DO}, s[4:7], s28 offen offset:{64 * y}')
    a.label(f'{name}_end')
    a('s_endpgm')


G_LDS = NRING * GST
```

```python
import sys
from asmlib import *
from layout import *
from common import *
import chain as C
import bulk as B
import small as S

NAME = 'interleave_layers__memory_aug_recurrent_mem_tr__mixer_token_mlp__prompt'

def a_kernel(a, name, layer, force_slow=False):
    lb = LAYER0 + layer * LSTRIDE
    kernel_head(a, name)
    a(f's_cmp_ge_u32 s2, {NWG}')
    a(f's_cbranch_scc1 {name}_end')
    a(f's_load_dwordx8 s[{C.sPTR}:{C.sPTR + 7}], s[0:1], {KA_WQ}')
    a(f's_load_dwordx2 s[{B.sXP}:{B.sXP + 1}], s[0:1], {KA_X}')
    a(f's_load_dwordx4 s[72:75], s[0:1], {KA_DBG}')
    a('s_waitcnt lgkmcnt(0)')
    srd(a, C.S_WS, 74, WS_SIZE)
    srd(a, 76, 72, 32)
    team_select(a, 76, 80, 81, 84, 82, 83, 92, 94, force_slow)
    a('s_cmp_eq_u32 s82, 0')
    a(f's_cbranch_scc1 {name}_worker')
    a(f's_mov_b32 s{C.sH}, s83')
    if C.OPT.get('timing'):
        a('s_memrealtime s[2:3]')
    C.chain_consts(a)
    C.chain_load_weights(a)
    C.chain_prologue_state(a, lb)
    a(f's_mov_b32 s{C.sNSTEP}, 63')
    tm = C.OPT.get('timing')
    if tm:
        a('s_memrealtime s[56:57]')
        for i in range(12):
            a(f's_mov_b32 s{90 + i}, 0')
    a('s_cmp_eq_u32 s82, 2')
    a(f's_cbranch_scc1 {name}_slow')
    C.chain_step(a, '', name + 'cf', tm)
    a(f's_branch {name}_fin')
    a.label(f'{name}_slow')
    C.chain_step(a, ' sc1', name + 'cs', tm)
    a.label(f'{name}_fin')
    C.chain_epilogue(a)
    if tm:
        a('s_memrealtime s[64:65]')
        a('s_waitcnt lgkmcnt(0)')
        a('s_sub_u32 s64, s64, s56')
        a('s_sub_u32 s56, s56, s2')
        for i in range(12):
            a(f'v_mov_b32 v{20 + i}, s{90 + i}')
        a('v_mov_b32 v32, s56')
        a('v_mov_b32 v33, s64')
        a(f's_lshl_b32 s88, s{C.sH}, 2')
        a(f's_add_u32 s88, s88, s{C.sWV}')
        a('s_lshl_b32 s88, s88, 6')
        a(f's_add_u32 s88, s88, {0xF00000 + layer * 0x2000}')
        for i in range(4):
            a(f'buffer_store_dwordx4 v[{20 + 4 * i}:{23 + 4 * i}], off, s[{C.S_WS}:{C.S_WS + 3}], s88 offset:{16 * i}')
    a('s_endpgm')
    a.label(f'{name}_worker')
    a(f's_mov_b32 s{B.sWI}, s83')
    B.wstamp(a, 0)
    B.worker_setup(a)
    a(f's_lshl_b32 s{B.sT}, s{B.sNH}, 1')
    a(f's_cmp_lt_u32 s{B.sLI}, s{B.sT}')
    a(f's_cbranch_scc1 {name}_att')
    a(f's_sub_u32 s{B.sLI}, s{B.sLI}, s{B.sT}')
    B.qkv_phase(a, lb)
    B.wstamp(a, 1)
    if C.OPT.get('noqa'):
        a('s_endpgm')
    B.wo_phase(a, lb, layer, f'{name}_wend')
    a.label(f'{name}_wend')
    B.wdump(a, layer)
    a('s_endpgm')
    a.label(f'{name}_att')
    if C.OPT.get('noqa'):
        a('s_endpgm')
    a(f's_and_b32 s100, s{B.sLI}, 1')
    a(f's_lshr_b32 s{B.sLI}, s{B.sLI}, 1')
    a(f's_mul_i32 s{C.sH}, s{B.sLI}, 7')
    a(f's_add_u32 s{C.sH}, s{C.sH}, s{B.sJ}')
    B.att_phase(a, lb)
    B.wdump(a, layer)
    a.label(f'{name}_end')
    a('s_endpgm')


def build(force_slow=False):
    a = Asm()
    launches = []
    descs = ''
    for layer in range(2):
        lb = LAYER0 + layer * LSTRIDE
        n = f'ln1_{layer}_kernel'
        S.ln_kernel(a, n, None if layer == 0 else LAYER0 + L_X2, lb + L_XN, False, True, S.InitChain(lb))
        launches.append((n, 256, 256, 0)); descs += kernel_desc(n, 64, 64, 40)
        n = f'a_{layer}_kernel'
        a_kernel(a, n, layer, force_slow)
        launches.append((n, 256, 256, 163840)); descs += kernel_desc(n)
        n = f'ln2_{layer}_kernel'
        S.ln_kernel(a, n, lb + L_X1, lb + L_HT, True, False)
        launches.append((n, 256, 256, 0)); descs += kernel_desc(n, 64, 64, 40)
        n = f'g1_{layer}_kernel'
        S.g_kernel(a, n, 1, lb, False)
        launches.append((n, 180, 256, S.G_LDS)); descs += kernel_desc(n, 272, 176, 48)
        n = f'g2_{layer}_kernel'
        S.g_kernel(a, n, 2, lb, layer == 1)
        launches.append((n, 220, 256, S.G_LDS)); descs += kernel_desc(n, 272, 176, 48)
    a.fix_hazards()
    for e in a.verify_waits():
        print('WAITERR', e)
    hdr = ''.join(f'; @launch kernel={n} grid=({g},1,1) block=({b},1,1) lds={l}\n' for n, g, b, l in launches)
    hdr += '.amdgcn_target "amdgcn-amd-amdhsa--gfx950"\n.text\n'
    return hdr + a.text() + '.section .rodata,"a"\n' + descs, a


if __name__ == '__main__':
    C.OPT['stamps'] = []
    C.OPT['notouch'] = True
    for o in sys.argv[2:]:
        if o.startswith('st='):
            C.OPT['stamps'] = o[3:].split(',')
            C.OPT['timing'] = True
        elif '=' in o:
            k, v = o.split('=')
            C.OPT[k] = ' ' + v.replace('+', ' ')
        else:
            C.OPT[o] = True
    s, a = build('slow' in sys.argv[2:])
    if C.OPT.get('timing'):
        s = s.replace('.amdgcn_target', '; STAMPS ' + ' '.join(map(str, C.OPT['used'])) + '\n.amdgcn_target', 1)
    open(sys.argv[1], 'w').write(s)
    print(len(a.ins), 'instrs', len(s), 'bytes')
```

```python
from asmlib import *
from layout import *
from common import *
from chain import Track, f32
import chain as C
from small import tr_lane_addr, CM_NAT, CM_PI, CM_SIG, unpack

S_WS = 4
S_WA, S_WB = 8, 12
sWI, sWV, sJ, sLI, sNH = 16, 17, 18, 19, 20
sR, sBLK, sH, sT, sU, sV = 21, 22, 23, 24, 25, 26
sXO, sWO, sLW, sSPIN = 27, 28, 29, 30
sE = 32
sSC = 34
sPTR = 56
sXP = 64
S_X = 68
S_WC = 36

sKS = 31
sGI = 35

LN, L16, T1, T2, T3 = 1, 2, 3, 4, 5


def wstamp(a, i):
    if C.OPT.get('timing'):
        a(f's_memrealtime s[{84 + 2 * i}:{85 + 2 * i}]')


def wdump(a, layer):
    if not C.OPT.get('timing'):
        return
    a('s_waitcnt lgkmcnt(0)')
    for i in range(8):
        a(f'v_mov_b32 v{20 + i}, s{84 + 2 * i}')
    a(f's_lshl_b32 s88, s83, 5')
    a(f's_add_u32 s88, s88, {0xF10000 + layer * 0x4000}')
    a(f'buffer_store_dwordx4 v[20:23], off, s[4:7], s88')
    a(f'buffer_store_dwordx4 v[24:27], off, s[4:7], s88 offset:16')


def worker_setup(a):
    a(f'v_and_b32 v{LN}, 63, v0')
    a(f'v_lshrrev_b32 v{T1}, 6, v0')
    a(f'v_lshlrev_b32 v{L16}, 4, v{LN}')
    a(f'v_readfirstlane_b32 s{sWV}, v{T1}')
    a(f's_lshr_b32 s{sJ}, s{sWI}, 5')
    a(f's_and_b32 s{sLI}, s{sWI}, 31')
    a(f's_cmp_lt_u32 s{sJ}, 4')
    a(f's_cselect_b32 s{sNH}, 5, 4')
    a(f's_lshl_b32 s{sLW}, s{sWV}, 10')


def unit_decode(a, done):
    a(f's_lshl_b32 s{sT}, s{sNH}, 1')
    a(f's_sub_u32 s{sT}, 32, s{sT}')
    a(f's_mul_i32 s{sT}, s{sR}, s{sT}')
    a(f's_add_u32 s{sT}, s{sT}, s{sLI}')
    a(f's_mul_i32 s{sBLK}, s{sT}, 13108')
    a(f's_lshr_b32 s{sBLK}, s{sBLK}, 16')
    a(f's_lshr_b32 s{sU}, s{sT}, 2')
    a(f's_cmp_eq_u32 s{sNH}, 4')
    a(f's_cselect_b32 s{sBLK}, s{sU}, s{sBLK}')
    a(f's_mul_i32 s{sU}, s{sBLK}, s{sNH}')
    a(f's_sub_u32 s{sU}, s{sT}, s{sU}')
    a(f's_mul_i32 s{sH}, s{sU}, 7')
    a(f's_add_u32 s{sH}, s{sH}, s{sJ}')
    a(f's_cmp_ge_u32 s{sBLK}, 16')
    a(f's_cbranch_scc1 {done}')


def w_swz(a):
    def f(row, t, dst):
        a(f'v_and_b32 v{t}, 3, v{row}')
        a(f'v_lshlrev_b32 v{t}, 6, v{t}')
        a(f'v_xor_b32 v{dst}, v{t}, v{dst}')
    return f


def proj_gemm(a, tag, nmat, lb, VSW, xtiles, wtiles, mf, FR, nring=4):
    tr = Track(a)
    SB = nmat * 8192
    XB = 8192
    WBASE = nring * 8192
    srds = [S_WA, S_WB, S_WC]

    def dma_ops(slot):
        g = []
        for ks in range(2):
            g.append([f's_add_u32 m0, s{sLW2}, {slot * XB + ks * 1024}',
                      f'buffer_load_dwordx4 v{L16}, s[{S_WS}:{S_WS + 3}], s{sXO} offen sc1 lds',
                      f's_add_u32 s{sXO}, s{sXO}, 1024'])
        for m in range(nmat):
            for k in range(2):
                g.append([f's_add_u32 m0, s{sLW}, {WBASE + slot * SB + m * 8192 + k * 4096}',
                          f'buffer_load_dwordx4 v{VSW[k]}, s[{srds[m]}:{srds[m] + 3}], s{sWO} offen lds'])
        g[-1] += [f's_add_u32 s{sWO}, s{sWO}, {32 * 8192}',
                  f's_add_u32 s{sKS}, s{sKS}, 1',
                  f's_cmp_eq_u32 s{sKS}, 20',
                  f's_cselect_b32 s{sU}, 40960, 0',
                  f's_sub_u32 s{sXO}, s{sXO}, s{sU}',
                  f's_lshl_b32 s{sU}, s{sU}, 7',
                  f's_sub_u32 s{sWO}, s{sWO}, s{sU}']
        return g

    per = 2 + 2 * nmat
    sLW2 = sSC
    a(f's_lshl_b32 s{sLW2}, s{sWV}, 11')

    def read_ops(slot, ks, b):
        r = []
        for i, xr in enumerate(xtiles):
            r.append(f'ds_read_b128 {vr(b + 4 * i, 4)}, v{xr} offset:{slot * XB + ks * 1024}')
        for i, (m, wr) in enumerate(wtiles):
            for u in range(2):
                off = WBASE + slot * SB + m * 8192 + (16 * ks + 4 * u) * 256
                r.append(f'ds_read_b64_tr_b16 {vr(b + 4 * len(xtiles) + 4 * i + 2 * u, 2)}, v{wr[off >> 16]} offset:{off & 0xffff}')
        return r

    def mix(mfs, rds, dms):
        n = len(mfs)
        for i, t in enumerate(mfs):
            a(t)
            for _ in range(2):
                if rds:
                    a(rds.pop(0))
            if dms and (i % 3 != 2):
                for x in dms.pop(0):
                    a(x)
        assert not rds and not dms

    for s in range(nring - 1):
        for g in dma_ops(s):
            for x in g:
                a(x)
    a(f's_waitcnt vmcnt({per * (nring - 2)})')
    a('s_barrier')
    for x in read_ops(0, 0, FR[0]):
        a(x)
    a(f's_mov_b32 s{sV}, 0')
    lp = a.newlabel(tag)
    a.label(lp)
    for s in range(nring):
        d = dma_ops((s + nring - 1) % nring)
        a('s_waitcnt lgkmcnt(0)')
        mix(mf(FR[0]), read_ops(s, 1, FR[1]), d[:per // 2])
        a(f's_waitcnt vmcnt({per * (nring - 3) + per // 2}) lgkmcnt(0)')
        a('s_barrier')
        mix(mf(FR[1]), read_ops((s + 1) % nring, 0, FR[0]), d[per // 2:])
    a(f's_add_u32 s{sV}, s{sV}, 1')
    a(f's_cmp_lt_u32 s{sV}, {20 // nring}')
    a(f's_cbranch_scc1 {lp}')
    a('s_waitcnt vmcnt(0) lgkmcnt(0)')
    a('s_barrier')


def w_src(a, VSW):
    a(f'v_lshrrev_b32 v{T1}, 4, v{LN}')
    a(f'v_lshlrev_b32 v{T2}, 2, v{T1}')
    a(f'v_and_b32 v{T3}, 15, v{LN}')
    a(f'v_xor_b32 v{T2}, v{T2}, v{T3}')
    a(f'v_lshlrev_b32 v{T2}, 4, v{T2}')
    a(f'v_lshl_add_u32 v{T2}, v{T1}, 13, v{T2}')
    a(f's_lshl_b32 s{sU}, s{sWV}, 15')
    a(f'v_add_u32 v{VSW[0]}, s{sU}, v{T2}')
    a(f'v_add_u32 v{VSW[1]}, {16 * 8192}, v{VSW[0]}')


def signal(a, off_sgpr):
    L = a.newlabel('sig')
    a('s_waitcnt vmcnt(0)')
    a('s_barrier')
    a('v_cmp_eq_u32 vcc, 0, v0')
    a(f's_and_saveexec_b64 s[{sE}:{sE + 1}], vcc')
    a(f's_cbranch_execz {L}')
    a(f'v_mov_b32 v{T1}, 0')
    a(f'v_mov_b32 v{T2}, 1')
    a(f'buffer_atomic_add v{T2}, v{T1}, s[{S_WS}:{S_WS + 3}], s{off_sgpr} offen')
    a.label(L)
    a(f's_mov_b64 exec, s[{sE}:{sE + 1}]')


def wait_flag(a, off_sgpr, val):
    L = a.newlabel('wf')
    a(f's_mov_b32 s{sSPIN}, 0')
    a(f'v_mov_b32 v{T1}, 0')
    a.label(L)
    a(f'buffer_load_dword v{T2}, v{T1}, s[{S_WS}:{S_WS + 3}], s{off_sgpr} offen sc1')
    a('s_waitcnt vmcnt(0)')
    a(f'v_readfirstlane_b32 s{sU}, v{T2}')
    a(f's_add_u32 s{sSPIN}, s{sSPIN}, 1')
    a(f's_cmp_ge_u32 s{sU}, {val}')
    a(f's_cbranch_scc1 {L}_ok')
    a('s_sleep 8')
    a(f's_cmp_lt_u32 s{sSPIN}, 0x40000')
    a(f's_cbranch_scc1 {L}')
    a.label(f'{L}_ok')


def unit_addr(a, lb):
    a(f's_lshl_b32 s{sXO}, s{sBLK}, 2')
    a(f's_add_u32 s{sXO}, s{sXO}, s{sWV}')
    a(f's_mul_i32 s{sXO}, s{sXO}, 40960')
    a(f's_add_u32 s{sXO}, s{sXO}, {lb + L_XN}')
    a(f's_lshl_b32 s{sWO}, s{sH}, 8')
    a(f's_mul_i32 s{sKS}, s{sH}, 9363')
    a(f's_lshr_b32 s{sKS}, s{sKS}, 16')
    a(f's_lshl_b32 s{sKS}, s{sKS}, 1')
    a(f's_add_u32 s{sKS}, s{sKS}, s{sBLK}')
    a(f's_mul_i32 s{sU}, s{sKS}, 13108')
    a(f's_lshr_b32 s{sU}, s{sU}, 16')
    a(f's_mul_i32 s{sU}, s{sU}, 5')
    a(f's_sub_u32 s{sKS}, s{sKS}, s{sU}')
    a(f's_lshl_b32 s{sKS}, s{sKS}, 2' if not C.OPT.get('norot') else f's_mov_b32 s{sKS}, 0')
    a(f's_lshl_b32 s{sU}, s{sKS}, 11')
    a(f's_add_u32 s{sXO}, s{sXO}, s{sU}')
    a(f's_lshl_b32 s{sU}, s{sKS}, 18')
    a(f's_add_u32 s{sWO}, s{sWO}, s{sU}')


def vperm_addr(a, d):
    a(f'v_lshrrev_b32 v{T1}, 5, v{LN}')
    a(f'v_lshlrev_b32 v{d}, 9, v{T1}')
    a(f'v_bfe_u32 v{T1}, v{LN}, 1, 4')
    a(f'v_lshl_add_u32 v{d}, v{T1}, 4, v{d}')
    a(f'v_and_b32 v{T1}, 1, v{LN}')
    a(f'v_lshl_add_u32 v{d}, v{T1}, 8, v{d}')


def qkv_phase(a, lb, fb, wait_xn, r0=0, r1=99):
    VSW = [6, 22]
    XR = [7, 8]
    WK = [[9, 13], [10, 14]]
    WVv = [[11, 15], [12, 16]]
    WQ = [[18, 20], [19, 21]]
    FR = [24, 56]
    srd(a, S_WA, sPTR + 2, 5242880)
    srd(a, S_WB, sPTR + 4, 5242880)
    srd(a, S_WC, sPTR, 5242880)
    w_src(a, VSW)
    a(f's_and_b32 s{sT}, s{sWV}, 1')
    a(f's_lshl_b32 s{sT}, s{sT}, 12')
    a(f'v_add_u32 v{XR[0]}, s{sT}, v{L16}')
    a(f'v_add_u32 v{XR[1]}, 2048, v{XR[0]}')
    a(f's_lshr_b32 s{sT}, s{sWV}, 1')
    a(f's_lshl_b32 s{sT}, s{sT}, 7')
    for regs, cm in ((WK, CM_PI), (WVv, CM_NAT), (WQ, CM_SIG)):
        tr_lane_addr(a, regs[0][0], LN, T1, T2, 256, cm, w_swz(a))
        a(f'v_xor_b32 v{regs[0][0]}, s{sT}, v{regs[0][0]}')
        a(f'v_xor_b32 v{regs[1][0]}, 64, v{regs[0][0]}')
        for k in range(2):
            a(f'v_add_u32 v{regs[k][1]}, 0x10000, v{regs[k][0]}')
    vperm_addr(a, 17)
    a(f's_mov_b32 s{sR}, {r0}')
    top, done = a.newlabel('kvtop'), a.newlabel('kvdone')
    a.label(top)
    unit_decode(a, done)
    unit_addr(a, lb)
    if wait_xn:
        a(f's_lshl_b32 s{sT}, s{sBLK}, 2')
        a(f's_add_u32 s{sT}, s{sT}, {fb + FL_XN}')
        wait_flag(a, sT, 16)
    for r in range(192):
        a(f'v_accvgpr_write_b32 a{r}, 0')

    def mf(b):
        o = []
        for m in range(3):
            for ct in range(2):
                for tt in range(2):
                    acc = ar(64 * m + 16 * (2 * ct + tt), 16)
                    wf, xf = vr(b + 8 + 8 * m + 4 * ct, 4), vr(b + 4 * tt, 4)
                    if m == 1:
                        o.append(f'v_mfma_f32_32x32x16_bf16 {acc}, {xf}, {wf}, {acc}')
                    else:
                        o.append(f'v_mfma_f32_32x32x16_bf16 {acc}, {wf}, {xf}, {acc}')
        return o

    if C.OPT.get('qkvt'):
        a('s_memrealtime s[100:101]')
    proj_gemm(a, 'kvl', 3, lb, VSW, XR,
              [(0, WK[0]), (0, WK[1]), (1, WVv[0]), (1, WVv[1]), (2, WQ[0]), (2, WQ[1])], mf, FR)
    if C.OPT.get('qkvt'):
        a('s_memrealtime s[98:99]')
    lab = a.newlabel('prio')
    a(f's_cmp_eq_u32 s{sBLK}, 0')
    a(f's_cbranch_scc1 {lab}')
    a(f's_min_u32 s{sT}, s{sBLK}, {int(C.OPT.get("prio", "2"))}')
    a(f's_lshl_b32 s{sT}, s{sT}, 2')
    a(f's_add_u32 s{sT}, s{sT}, {fb + FL_KV - 4}')
    wait_flag(a, sT, 32)
    a.label(lab)
    a(f's_lshl_b32 s{sT}, s{sBLK}, 2')
    a(f's_and_b32 s{sU}, s{sWV}, 1')
    a(f's_lshl_b32 s{sU}, s{sU}, 1')
    a(f's_add_u32 s{sT}, s{sT}, s{sU}')
    a(f's_lshl_b32 s{sT}, s{sT}, 5')
    a(f's_add_u32 s{sT}, s{sT}, s{sH}')
    a(f's_lshl_b32 s{sT}, s{sT}, 13')
    a(f's_lshr_b32 s{sU}, s{sWV}, 1')
    a(f's_lshl_b32 s{sU}, s{sU}, 12')
    a(f's_add_u32 s{sT}, s{sT}, s{sU}')
    E = 24
    for m in range(3):
        for ct in range(2):
            for tt in range(2):
                acc = 64 * m + 16 * (2 * ct + tt)
                e = E + 24 * ((2 * ct + tt) & 1)
                for r in range(16):
                    a(f'v_accvgpr_read_b32 v{e + r}, a{acc + r}')
                for r in range(8):
                    a(f'v_cvt_pk_bf16_f32 v{e + 16 + r}, v{e + 2 * r}, v{e + 2 * r + 1}')
                a(f's_add_u32 s{sU}, s{sT}, {lb + (L_KB, L_VB, L_Q)[m] + tt * 32 * 8192 + ct * 2048}')
                ad = 17 if m == 1 else L16
                a(f'buffer_store_dwordx4 {vr(e + 16, 4)}, v{ad}, s[{S_WS}:{S_WS + 3}], s{sU} offen sc1')
                a(f'buffer_store_dwordx4 {vr(e + 20, 4)}, v{ad}, s[{S_WS}:{S_WS + 3}], s{sU} offen offset:1024 sc1')
    a(f's_lshl_b32 s{sT}, s{sBLK}, 2')
    a(f's_add_u32 s{sT}, s{sT}, {fb + FL_KV}')
    signal(a, sT)
    if C.OPT.get('qkvt'):
        a('s_memrealtime s[96:97]')
        a('s_waitcnt lgkmcnt(0)')
        a('s_sub_u32 s96, s96, s98')
        a('s_sub_u32 s98, s98, s100')
        a('v_mov_b32 v24, s98')
        a('v_mov_b32 v25, s96')
        a(f's_lshl_b32 s96, s{sGI}, 5')
        a(f's_lshl_b32 s98, s{sR}, 3')
        a('s_add_u32 s96, s96, s98')
        a(f's_add_u32 s96, s96, {0xF20000 + (0x4000 if wait_xn else 0)}')
        a('buffer_store_dwordx2 v[24:25], off, s[4:7], s96')
    a(f's_add_u32 s{sR}, s{sR}, 1')
    a(f's_cmp_lt_u32 s{sR}, {r1}')
    a(f's_cbranch_scc1 {top}')
    a.label(done)


def att_loc():
    loc = {}
    i = 0
    for n in range(10):
        for m, t in (('k', 0), ('v', 0), ('k', 1), ('v', 1)):
            loc[(m, t, n)] = ('a', 8 * i) if i < 32 else ('v', 192 + 8 * (i - 32))
            i += 1
    return loc


def att_phase(a):
    WS = f's[{C.S_WS}:{C.S_WS + 3}]'
    loc = att_loc()
    C.chain_consts(a)
    C.chain_load_weights(a, loc, (1, 2))
    L16, VW, GM = C.L16, C.VW, C.GM
    X, LNn = 40, 41
    KA, KMA, VMA, TOK, VA = 3, 4, 5, 6, 7
    a(f'v_lshrrev_b32 v{LNn}, 4, v{L16}')
    a(f'v_lshrrev_b32 v{X}, 5, v{LNn}')
    a(f'v_and_b32 v42, 31, v{LNn}')
    a(f'v_lshlrev_b32 v{KA}, 10, v{X}')
    a(f'v_lshl_add_u32 v{KA}, v42, 4, v{KA}')
    a(f'v_and_b32 v43, 7, v{LNn}')
    a(f'v_lshlrev_b32 v{KMA}, 8, v{X}')
    a(f'v_lshl_add_u32 v{KMA}, v43, 4, v{KMA}')
    a(f'v_lshrrev_b32 v43, 1, v42')
    a(f'v_lshlrev_b32 v{VMA}, 8, v{X}')
    a(f'v_lshl_add_u32 v{VMA}, v43, 4, v{VMA}')
    a(f'v_and_b32 v44, 1, v{LNn}')
    a(f'v_lshl_add_u32 v{VMA}, v44, 3, v{VMA}')
    a(f's_lshl_b32 s{C.sTMP}, s{C.sWV}, 10')
    a(f'v_add_u32 v{VMA}, s{C.sTMP}, v{VMA}')
    a(f'v_add_u32 v46, s{C.sTMP}, v{L16}')
    a(f'v_lshlrev_b32 v{VA}, 9, v{X}')
    a(f'v_lshl_add_u32 v{VA}, v43, 4, v{VA}')
    a(f'v_lshl_add_u32 v{VA}, v44, 8, v{VA}')
    a(f's_lshl_b32 s{C.sTMP}, s{C.sWV}, 11')
    a(f'v_add_u32 v{VA}, s{C.sTMP}, v{VA}')
    a(f'v_and_b32 v{TOK}, 3, v{LNn}')
    a(f'v_bfe_u32 v43, v{LNn}, 3, 2')
    a(f'v_lshl_add_u32 v{TOK}, v43, 2, v{TOK}')
    a(f'v_bfe_u32 v43, v{LNn}, 2, 1')
    a(f'v_lshl_add_u32 v{TOK}, v43, 4, v{TOK}')
    a(f'v_lshlrev_b32 v43, 4, v{X}')
    a(f'v_sub_u32 v{TOK}, v{TOK}, v43')
    SEL = 8
    SEL = 44
    a(f'v_and_b32 v43, 0x1f0, v{L16}')
    a(f'ds_read_b64 {vr(SEL, 2)}, v43 offset:{C.LSEL}')
    for layer in range(2):
        att_layer(a, LAYER0 + layer * LSTRIDE, WS_FLAGS + layer * FSTRIDE, loc)


def att_layer(a, lb, fb, loc):
    WS = f's[{C.S_WS}:{C.S_WS + 3}]'
    L16, VW, GM = C.L16, C.VW, C.GM
    KA, KMA, VMA, TOK, VA = 3, 4, 5, 6, 7
    SEL = 44
    sKB, sOO, sFO, sA, sB = C.sKB, C.sVB, C.sKMQ, C.sPST, C.sPST1
    a(f's_lshl_b32 s{sKB}, s{C.sH}, 13')
    a(f's_lshl_b32 s{sOO}, s{C.sH}, 13')
    a(f's_lshl_b32 s{C.sTMP}, s{C.sWV}, 11')
    a(f's_add_u32 s{sOO}, s{sOO}, s{C.sTMP}')
    a(f's_add_u32 s{sOO}, s{sOO}, {lb + L_O}')
    a(f's_mov_b32 s{sFO}, {fb + FL_O}')
    a(f's_mov_b32 s{C.sFLB}, {fb + FL_KV}')
    a(f's_add_u32 s{C.sPOLL}, s{C.sTMP}, {lb + L_MC}')
    a(f's_add_u32 s{C.sPOLL8}, s{C.sB8}, {lb + L_MC + 8192 - C.LB8}')
    a(f's_mov_b32 s{C.sSTEP}, s100')
    a(f's_mul_i32 s{C.sTMP}, s100, {32 * 8192}')
    a(f's_add_u32 s{sKB}, s{sKB}, s{C.sTMP}')
    a(f's_add_u32 s{sOO}, s{sOO}, s{C.sTMP}')
    a(f's_lshl_b32 s{C.sTMP}, s100, 7')
    a(f's_add_u32 s{sFO}, s{sFO}, s{C.sTMP}')
    a(f's_mul_i32 s{C.sTMP}, s100, {MSLOT}')
    a(f's_add_u32 s{C.sPOLL}, s{C.sPOLL}, s{C.sTMP}')
    a(f's_add_u32 s{C.sPOLL8}, s{C.sPOLL8}, s{C.sTMP}')
    a(f's_mov_b32 s{C.sRDY}, 0')
    K0, V0, K1, V1 = 24, 28, 32, 36
    QF, KF, VF, SS, SM_, OA, TMP, VMF = 48, 80, 112, 120, 136, 152, 168, 184
    T0, T1, T2 = C.T0, C.T1, C.T2
    MX, MY, NI = TMP, TMP + 1, TMP + 2
    cvt = lambda d, x, y: a(f'v_cvt_pk_bf16_f32 v{d}, v{x}, v{y}')
    pka = lambda d, x, y: a(f'v_pk_add_f32 {vr(d, 2)}, {vr(x, 2)}, {vr(y, 2)}')

    def ld_kq(tr):
        for half in range(2):
            a(f's_add_u32 s{sA}, s{sKB}, {lb + L_KB + half * 4096}')
            a(f's_add_u32 s{sB}, s{sKB}, {lb + L_Q + half * 4096}')
            for k in range(4):
                ks = 4 * half + k
                tr.vmem(f'buffer_load_dwordx4 {vr(KF + 4 * ks, 4)}, v{KA}, {WS}, s{sA} offen offset:{(k >> 1) * 2048 + (k & 1) * 512} sc1', ('k', ks))
                tr.vmem(f'buffer_load_dwordx4 {vr(QF + 4 * ks, 4)}, v{L16}, {WS}, s{sB} offen offset:{k * 1024} sc1', ('k', ks))

    def ld_v(tr):
        a(f's_add_u32 s{sA}, s{sKB}, {lb + L_VB}')
        for m in range(2):
            tr.vmem(f'buffer_load_dwordx4 {vr(VF + 4 * m, 4)}, v{VA}, {WS}, s{sA} offen offset:{m * 1024} sc1', 'v')

    tr = Track(a)
    wstamp(a, 1)
    C.kv_ready(a, a.newlabel('akv'), 0)
    wstamp(a, 2)
    a('s_mov_b32 s92, 0')
    ld_kq(tr)
    ld_v(tr)
    a(f's_mov_b32 s{C.sMW}, {C.OOB}')
    for _ in range(2):
        tr.vmem(f'buffer_store_dword v{T0}, off, {WS}, s{C.sMW}', 'o')
    q0 = list(tr.vm)
    top = a.newlabel('att')
    a.label(top)
    st = {}
    C.zero(a, K0, 16)
    C.m_addr(a, 2, st)
    for ks in range(8):
        tr.wait_vm(('k', ks))
        a(f'v_mfma_f32_32x32x16_bf16 {vr(SS, 16)}, {vr(KF + 4 * ks, 4)}, {vr(QF + 4 * ks, 4)}, ' + (vr(SS, 16) if ks else '0'))
    a(f'v_mov_b32 v{NI}, 0xff800000')
    for r in range(0, 16, 2):
        a(f'v_cmp_gt_i32 vcc, {r}, v{TOK}')
        a(f'v_cmp_gt_i32 s[{C.sT64}:{C.sT64 + 1}], {r + 1}, v{TOK}')
        a(f'v_cndmask_b32 v{SS + r}, v{SS + r}, v{NI}, vcc')
        a(f'v_cndmask_b32 v{SS + r + 1}, v{SS + r + 1}, v{NI}, s[{C.sT64}:{C.sT64 + 1}]')
    a(f'v_max3_f32 v{MX}, v{SS}, v{SS + 1}, v{SS + 2}')
    for r in range(3, 15, 2):
        a(f'v_max3_f32 v{MX}, v{MX}, v{SS + r}, v{SS + r + 1}')
    a(f'v_max_f32 v{MX}, v{MX}, v{SS + 15}')
    a('s_waitcnt vmcnt(0)')
    a('s_mov_b64 exec, 1')
    a(f'v_mov_b32 v{T0}, 1')
    a(f'buffer_atomic_add v{T0}, off, {WS}, s{C.sMW}')
    a('s_mov_b64 exec, -1')
    a(f's_cmp_ge_u32 s{C.sSTEP}, 64')
    a(f's_cbranch_scc1 {top}_done')
    pl, go = a.newlabel('apoll'), a.newlabel('ago')
    a(f's_mov_b32 s{C.sSPIN}, 0')
    a.label(pl)
    a(f'buffer_load_dwordx4 {vr(GM[0], 4)}, v{L16}, {WS}, s{C.sPOLL} offen sc1')
    a(f'buffer_load_dwordx4 {vr(GM[1], 4)}, v{L16}, {WS}, s{C.sPOLL} offen offset:1024 sc1')
    a(f'buffer_load_dwordx4 {vr(GM[2], 4)}, v{L16}, {WS}, s{C.sPOLL8} offen sc1')
    a(f's_add_u32 s{C.sSPIN}, s{C.sSPIN}, 1')
    g = GM[0]
    a('s_waitcnt vmcnt(0)')
    a(f'v_max3_u32 v{T0}, v{g}, v{g + 1}, v{g + 2}')
    for r in range(3, 11, 2):
        a(f'v_max3_u32 v{T0}, v{T0}, v{g + r}, v{g + r + 1}')
    a(f'v_max_u32 v{T0}, v{T0}, v{g + 11}')
    a(f'v_cmp_eq_u32 vcc, -1, v{T0}')
    a(f's_cbranch_vccz {go}')
    a('s_sleep 2')
    a(f's_cmp_lt_u32 s{C.sSPIN}, {C.SPINMAX}')
    a(f's_cbranch_scc1 {pl}')
    a.label(go)
    wstamp(a, 5)
    tr.vm = []
    tr.ds(f'ds_write_b128 v{VW}, {vr(GM[0], 4)}', 'mw')
    tr.ds(f'ds_write_b128 v{VW}, {vr(GM[1], 4)} offset:1024', 'mw')
    tr.ds(f'ds_write_b128 v{T2}, {vr(GM[2], 4)}', 'mw')
    order = [('k', 0, K0), ('k', 1, K1), ('v', 0, V0), ('v', 1, V1)]
    for n in range(10):
        buf = GM[n % 3]
        if n >= 3:
            tr.wait_lg(('A', n))
        for p, (m, t, acc) in enumerate(order):
            C.smf(a, acc, buf, (m, t, n), loc)
            if p == 1 and n == 1:
                tr.wait_lg('mw')
                a('s_barrier')
                C.m_read(tr, 3, GM[0], st)
            if p == 2 and n + 3 <= 9:
                C.m_addr(a, n + 3, st)
        if 1 <= n <= 6:
            C.m_read(tr, n + 3, buf, st)
    cvt(K0, K0, K0 + 1)
    cvt(K0 + 1, K0 + 2, K0 + 3)
    cvt(K1, K1, K1 + 1)
    cvt(K1 + 1, K1 + 2, K1 + 3)
    a(f'v_mfma_f32_16x16x16_bf16 {vr(GM[0], 4)}, {vr(K0, 2)}, {vr(SEL, 2)}, 0')
    a(f'v_mfma_f32_16x16x16_bf16 {vr(GM[1], 4)}, {vr(K1, 2)}, {vr(SEL, 2)}, 0')
    cvt(V0, V0, V0 + 1)
    cvt(V0 + 1, V0 + 2, V0 + 3)
    cvt(V0 + 2, V1, V1 + 1)
    cvt(V0 + 3, V1 + 2, V1 + 3)
    tr.ds(f'ds_write_b128 v46, {vr(V0, 4)} offset:20480', 'xw')
    for r in range(4):
        cvt(K0 + r, GM[0] + r, GM[1] + r)
    tr.ds(f'ds_write_b128 v46, {vr(K0, 4)} offset:16384', 'xw')
    a(f's_mov_b32 s{C.sMW}, s{sFO}')
    a(f's_add_u32 s{sKB}, s{sKB}, {64 * 8192}')
    a(f's_add_u32 s{sFO}, s{sFO}, 256')
    a(f's_add_u32 s{C.sPOLL}, s{C.sPOLL}, {2 * MSLOT}')
    a(f's_add_u32 s{C.sPOLL8}, s{C.sPOLL8}, {2 * MSLOT}')
    a(f's_add_u32 s{C.sSTEP}, s{C.sSTEP}, 2')
    tr.drain_lg()
    a('s_barrier')
    for ks in range(8):
        tr.ds(f'ds_read_b128 {vr(KF + 4 * ks, 4)}, v{KMA} offset:{16384 + ks * 512}', ('km', ks))
    for u in range(2):
        tr.ds(f'ds_read_b64 {vr(VMF + 2 * u, 2)}, v{VMA} offset:{20480 + u * 512}', 'vm')
    C.kv_ready(a, a.newlabel('akv'), 0)
    for ks in range(8):
        tr.wait_lg(('km', ks))
        a(f'v_mfma_f32_32x32x16_bf16 {vr(SM_, 16)}, {vr(KF + 4 * ks, 4)}, {vr(QF + 4 * ks, 4)}, ' + (vr(SM_, 16) if ks else '0'))
    ld_kq(tr)
    a(f'v_max3_f32 v{MX}, v{MX}, v{SM_}, v{SM_ + 1}')
    a(f'v_max3_f32 v{MX}, v{MX}, v{SM_ + 2}, v{SM_ + 3}')
    a(f'v_mov_b32 v{MY}, v{MX}')
    a(f'v_permlane32_swap_b32 v{MX}, v{MY}')
    a(f'v_max_f32 v{MX}, v{MX}, v{MY}')
    a(f'v_mul_f32 v{MX}, s{C.sSCALE}, v{MX}')
    vals = [SS + r for r in range(16)] + [SM_ + r for r in range(4)]
    for s in vals:
        a(f'v_fma_f32 v{s}, v{s}, s{C.sSCALE}, -v{MX}')
    for s in vals:
        a(f'v_exp_f32 v{s}, v{s}')
    PB = TMP + 4
    for r in range(8):
        cvt(PB + r, SS + 2 * r, SS + 2 * r + 1)
    cvt(PB + 8, SM_, SM_ + 1)
    cvt(PB + 9, SM_ + 2, SM_ + 3)
    a(f'v_mov_b64 {vr(PB + 10, 2)}, {vr(PB + 8, 2)}')
    tr.wait_lg('vm')
    a(f'v_mfma_f32_32x32x16_bf16 {vr(OA, 16)}, {vr(VF, 4)}, {vr(PB, 4)}, 0')
    a(f'v_mfma_f32_32x32x16_bf16 {vr(OA, 16)}, {vr(VF + 4, 4)}, {vr(PB + 4, 4)}, {vr(OA, 16)}')
    a(f'v_mfma_f32_32x32x16_bf16 {vr(OA, 16)}, {vr(VMF, 4)}, {vr(PB + 8, 4)}, {vr(OA, 16)}')
    ld_v(tr)
    for r in range(0, 16, 4):
        pka(SS + r, SS + r, SS + r + 2)
    pka(SM_, SM_, SM_ + 2)
    pka(SS, SS, SS + 4)
    pka(SS + 8, SS + 8, SS + 12)
    pka(SS, SS, SS + 8)
    pka(SS, SS, SM_)
    a(f'v_add_f32 v{MX}, v{SS}, v{SS + 1}')
    a(f'v_mov_b32 v{MY}, v{MX}')
    a(f'v_permlane32_swap_b32 v{MX}, v{MY}')
    a(f'v_add_f32 v{MX}, v{MX}, v{MY}')
    a(f'v_rcp_f32 v{MX}, v{MX}')
    for r in range(0, 16, 2):
        a(f'v_pk_mul_f32 {vr(OA + r, 2)}, {vr(OA + r, 2)}, {vr(MX, 2)} op_sel_hi:[1,0]')
    for r in range(8):
        cvt(SM_ + r, OA + 2 * r, OA + 2 * r + 1)
    tr.vmem(f'buffer_store_dwordx4 {vr(SM_, 4)}, v{L16}, {WS}, s{sOO} offen sc1', 'o')
    tr.vmem(f'buffer_store_dwordx4 {vr(SM_ + 4, 4)}, v{L16}, {WS}, s{sOO} offen offset:1024 sc1', 'o')
    assert tr.vm == q0
    a(f's_add_u32 s{sOO}, s{sOO}, {512 * 1024}')
    a(f's_branch {top}')
    a.label(f'{top}_done')


def wo_phase(a, lb, fb, layer):
    WS = f's[{S_WS}:{S_WS + 3}]'
    sSET, sDT, sSEG = sBLK, sH, sR
    a(f's_mov_b32 s{sT}, s{sGI}')
    a(f's_mul_i32 s{sSET}, s{sT}, 3277')
    a(f's_lshr_b32 s{sSET}, s{sSET}, 16')
    a(f's_mul_i32 s{sU}, s{sSET}, 20')
    a(f's_sub_u32 s{sDT}, s{sT}, s{sU}')
    srd(a, S_WA, sPTR + 6, 5242880)
    VS, RA, RO = 6, 7, 8
    a(f'v_lshrrev_b32 v{T1}, 2, v{LN}')
    a(f'v_mul_u32_u24 v{T1}, 0x500, v{T1}')
    a(f'v_and_b32 v{T2}, 3, v{LN}')
    a(f'v_lshl_add_u32 v{VS}, v{T2}, 4, v{T1}')
    tr_lane_addr(a, RA, LN, T1, T2, 64, CM_PI, None, hirows=4)
    a(f's_lshl_b32 s{sV}, s{sWV}, 15')
    a(f'v_add_u32 v{RA}, s{sV}, v{RA}')
    a(f's_mul_i32 s{sWO}, s{sWV}, {1024 * 1280}')
    a(f's_lshl_b32 s{sU}, s{sDT}, 6')
    a(f's_add_u32 s{sWO}, s{sWO}, s{sU}')
    for half in range(2):
        for i in range(32):
            a(f's_add_u32 m0, s{sV}, {i * 1024}')
            a(f'buffer_load_dwordx4 v{VS}, s[{S_WA}:{S_WA + 3}], s{sWO} offen lds')
            a(f's_add_u32 s{sWO}, s{sWO}, {16 * 1280}')
        for i in range(32):
            if i % 8 == 0:
                a(f's_waitcnt vmcnt({24 - i})')
            for u in range(2):
                a(f'ds_read_b64_tr_b16 {ar(128 * half + 4 * i + 2 * u, 2)}, v{RA} offset:{i * 1024 + 512 * u}')
            if i % 4 == 3:
                a('s_waitcnt lgkmcnt(0)')
    a('s_barrier')
    a(f'v_and_b32 v{T1}, 3, v{LN}')
    a(f'v_bfe_u32 v{T2}, v{LN}, 3, 2')
    a(f'v_lshl_add_u32 v{T1}, v{T2}, 2, v{T1}')
    a(f'v_bfe_u32 v{T2}, v{LN}, 2, 1')
    a(f'v_lshl_add_u32 v{T1}, v{T2}, 4, v{T1}')
    a(f'v_mul_u32_u24 v{RO}, 0x500, v{T1}')
    a(f'v_lshrrev_b32 v{T1}, 5, v{LN}')
    a(f'v_lshl_add_u32 v{RO}, v{T1}, 5, v{RO}')
    a(f's_lshl_b32 s{sU}, s{sDT}, 6')
    a(f's_lshl_b32 s{sT}, s{sWV}, 3')
    a(f's_add_u32 s{sU}, s{sU}, s{sT}')
    a(f'v_add_u32 v{RO}, s{sU}, v{RO}')
    WB_, RB_ = 9, 10
    a(f'v_add_u32 v{WB_}, s{sLW}, v{L16}')
    a(f's_lshl_b32 s{sU}, s{sWV}, 12')
    a(f'v_add_u32 v{RB_}, s{sU}, v{L16}')
    RI = 11
    if layer == 0:
        srd(a, S_X, sXP, 2048 * 640 * 2)
    else:
        a(f'v_lshrrev_b32 v{T1}, 5, v{LN}')
        a(f'v_lshlrev_b32 v{RI}, 10, v{T1}')
        a(f'v_and_b32 v{T1}, 31, v{LN}')
        a(f'v_lshl_add_u32 v{RI}, v{T1}, 4, v{RI}')
        a(f's_lshl_b32 s{sU}, s{sDT}, 11')
        a(f's_lshr_b32 s{sT}, s{sWV}, 1')
        a(f's_lshl_b32 s{sT}, s{sT}, 9')
        a(f's_add_u32 s{sU}, s{sU}, s{sT}')
        a(f's_and_b32 s{sT}, s{sWV}, 1')
        a(f's_lshl_b32 s{sT}, s{sT}, 3')
        a(f's_add_u32 s{sU}, s{sU}, s{sT}')
        a(f'v_add_u32 v{RI}, s{sU}, v{RI}')
    a(f's_mov_b32 s{sSEG}, s{sSET}')
    wstamp(a, 2)
    a('s_mov_b32 s92, 0')
    top = a.newlabel('wotop')
    a.label(top)
    RES, ACC, OF = 12, 16, 64
    a(f's_mul_i32 s{sXO}, s{sSEG}, 40960')
    if layer == 0:
        a(f'buffer_load_dwordx2 {vr(RES, 2)}, v{RO}, s[{S_X}:{S_X + 3}], s{sXO} offen')
    else:
        a(f's_add_u32 s{sU}, s{sXO}, {lb - LSTRIDE + L_X2}')
        a(f'buffer_load_dwordx2 {vr(RES, 2)}, v{RI}, {WS}, s{sU} offen sc1')
    a(f's_lshl_b32 s{sT}, s{sSEG}, 7')
    a(f's_add_u32 s{sT}, s{sT}, {fb + FL_O}')
    wait_flag(a, sT, 128)
    wstamp(a, 5)
    a(f's_lshl_b32 s{sT}, s{sSEG}, 18')
    a(f's_lshl_b32 s{sU}, s{sWV}, 16')
    a(f's_add_u32 s{sT}, s{sT}, s{sU}')
    a(f's_add_u32 s{sT}, s{sT}, {lb + L_O}')
    tr = Track(a)
    NB = 40

    def ld(i):
        if i % 4 == 0 and i:
            a(f's_add_u32 s{sT}, s{sT}, 4096')
        tr.vmem(f'buffer_load_dwordx4 {vr(OF + 4 * (i % NB), 4)}, v{L16}, {WS}, s{sT} offen offset:{(i % 4) * 1024} sc1', i)
    for i in range(NB):
        ld(i)
    for i in range(64):
        tr.wait_vm(i)
        acc = ACC + 16 * (i & 1)
        a(f'v_mfma_f32_32x32x16_bf16 {vr(acc, 16)}, {ar(4 * i, 4)}, {vr(OF + 4 * (i % NB), 4)}, ' + (vr(acc, 16) if i > 1 else '0'))
        if i + NB < 64:
            ld(i + NB)
    for r in range(0, 16, 2):
        a(f'v_pk_add_f32 {vr(ACC + r, 2)}, {vr(ACC + r, 2)}, {vr(ACC + 16 + r, 2)}')
    for q in range(4):
        a(f'ds_write_b128 v{WB_}, {vr(ACC + 4 * q, 4)} offset:{q * 4096}')
    a('s_waitcnt lgkmcnt(0)')
    a('s_barrier')
    for w in range(4):
        a(f'ds_read_b128 {vr(ACC + 4 * w, 4)}, v{RB_} offset:{w * 1024}')
    a('s_waitcnt lgkmcnt(0)')
    a('s_barrier')
    b = ACC
    for h in (0, 2):
        a(f'v_pk_add_f32 {vr(b + h, 2)}, {vr(b + h, 2)}, {vr(b + 4 + h, 2)}')
        a(f'v_pk_add_f32 {vr(b + 8 + h, 2)}, {vr(b + 8 + h, 2)}, {vr(b + 12 + h, 2)}')
    for h in (0, 2):
        a(f'v_pk_add_f32 {vr(b + h, 2)}, {vr(b + h, 2)}, {vr(b + 8 + h, 2)}')
    a(f'v_cvt_pk_bf16_f32 v{b + 4}, v{b}, v{b + 1}')
    a(f'v_cvt_pk_bf16_f32 v{b + 5}, v{b + 2}, v{b + 3}')
    unpack(a, b, b + 4, 2)
    unpack(a, b + 8, RES, 2)
    for r in range(4):
        a(f'v_add_f32 v{b + r}, v{b + r}, v{b + 8 + r}')
    a(f'v_cvt_pk_bf16_f32 v{b + 4}, v{b}, v{b + 1}')
    a(f'v_cvt_pk_bf16_f32 v{b + 5}, v{b + 2}, v{b + 3}')
    a(f's_add_u32 s{sU}, s{sXO}, {lb + L_X1}')
    a(f'buffer_store_dwordx2 {vr(b + 4, 2)}, v{RO}, {WS}, s{sU} offen sc1')
    a(f's_lshl_b32 s{sT}, s{sSEG}, 6')
    a(f's_add_u32 s{sT}, s{sT}, {fb + FL_X1}')
    signal(a, sT)
    a(f's_add_u32 s{sSEG}, s{sSEG}, {NWO // 20}')
    a(f's_cmp_lt_u32 s{sSEG}, 64')
    a(f's_cbranch_scc1 {top}')
```

```python
import struct
from asmlib import *
from layout import *


def f32(x):
    return '0x%08x' % struct.unpack('<I', struct.pack('<f', x))[0]


class Track:
    def __init__(self, a):
        self.a = a
        self.vm = []
        self.lg = []

    def vmem(self, text, tag=None):
        self.a(text)
        self.vm.append(tag)

    def ds(self, text, tag=None):
        self.a(text)
        self.lg.append(tag)

    def _wait(self, q, tag, name, maxn):
        idx = [i for i, t in enumerate(q) if t == tag]
        if not idx:
            return None
        last = idx[-1]
        n = len(q) - 1 - last
        del q[:last + 1]
        if n > maxn:
            extra = n - maxn
            del q[:extra]
            n = maxn
        return n

    def wait_vm(self, tag):
        n = self._wait(self.vm, tag, 'vmcnt', 63)
        if n is not None:
            self.a(f's_waitcnt vmcnt({n})')

    def wait_lg(self, tag):
        n = self._wait(self.lg, tag, 'lgkmcnt', 15)
        if n is not None:
            self.a(f's_waitcnt lgkmcnt({n})')

    def drain_vm(self):
        self.a('s_waitcnt vmcnt(0)')
        self.vm = []

    def drain_lg(self):
        self.a('s_waitcnt lgkmcnt(0)')
        self.lg = []


IDX, L16, VW, KT, VT, WB, PQPP, ORDTMR, T3, T2, T0, T1 = range(12)
TB = 8
GM = [12, 16, 20]
Q0, K0, Q1, K1, V0, V1 = 24, 28, 32, 36, 40, 44
KR = 48
VR = 56
P = [64, 72, 80, 88]
RESV = 96

MST = 2048
LB8 = 8192
LS_S = 10240
LS_TM = 14336
LSEL = 15360
LRSEL = 15872
LWT = 16384
NLDS = 18
LWT_W = NLDS * 2048
CHAIN_LDS = LWT + 4 * LWT_W

S_WS = 4
S_W = 8
sH, sWV, sSTEP, sTMP, sTMP2 = 12, 13, 14, 15, 16
sPOLL, sPOLL8, sKB, sVB, sKMQ, sVM = 17, 18, 19, 20, 21, 22
sPST, sPST1, sPST2, sRED, sMW, sMR = 23, 24, 25, 26, 27, 28
sSTR = 30
sMASK = 36
sHASRED, sB8, sSCALE, sSPIN = 38, 39, 40, 41
sREDP = 42
sMRP = 44
sPAR = 44
sPERMLO, sPERMHI = 45, 46
sNSTEP = 47
sRS = 48
sT64 = 50
sTIME = 52
sEP = 52
sSW, sTW = 53, 54
sMASK2 = 42
sTOFF = 29
sMCB = 55
sMCO = 60
sMCP = 63
sFLB = 22
sLB = 21
sRDY = 49
FL_KV = 0
FL_MF = 0x1000
sPTR = 56


VSRC = 'R R R L3 R L3 R L2 R L2 R L2 L2 L3 s1 L2 R L3 s0 s1'.split()
SQK = {4: 0, 6: 1, 9: 0}
NVQ = 12
VORD = [0, 1, 2, 4, 5, 6, 9, 7, 8, 3]


LQ = {1: 2, 2: 2, 3: 2, 4: 3, 5: 3, 6: 3, 7: 3, 8: 2, 9: 3}
LQP = {1: 3}


def vk(j):
    return ('v', j & 1, VORD[j >> 1])


def frag_plan():
    loc = {}
    na = 0
    nv = 0
    nl = 0
    ns = 0

    def res():
        nonlocal na, nv
        if na < 32:
            na += 1
            return ('a', 8 * (na - 1))
        nv += 1
        return ('v', RESV + 8 * (nv - 1))

    order = [('q', 0), ('k', 0), ('q', 1), ('k', 1)]
    lq = {1: 4, 3: 3, 4: 4, 5: 4, 6: 3, 7: 4, 8: 3, 9: 4}
    lq = LQ
    for n in range(10):
        for p, (m, t) in enumerate(order):
            if n == 0:
                loc[(m, t, n)] = ('s', ns, P[p]); ns += 1
            elif n in lq and p == LQP.get(n, 1):
                loc[(m, t, n)] = ('l', nl, P[lq[n]]); nl += 1
            elif p == 3 and n in SQK:
                loc[(m, t, n)] = ('s', ns, P[SQK[n]]); ns += 1
            else:
                loc[(m, t, n)] = res()
    for j, s in enumerate(VSRC):
        key = vk(j)
        if s[0] == 'L':
            loc[key] = ('l', nl, P[int(s[1])]); nl += 1
        elif s[0] == 's':
            loc[key] = ('s', ns, P[int(s[1])]); ns += 1
        else:
            loc[key] = res()
    for n in range(4):
        for U in range(5):
            loc[('o', U, n)] = res()
    assert (na, nv, nl, ns) == (32, 20, 18, 10), (na, nv, nl, ns)
    return loc


LOC = frag_plan()


def breg(key, loc=None):
    l = (loc or LOC)[key]
    if l[0] == 'a':
        return ar(l[1], 8)
    if l[0] == 'v':
        return vr(l[1], 8)
    return vr(l[2], 8)


def rowconst(r):
    return 32 * (r >> 2) + 8 * (r & 1) + 2 * ((r >> 1) & 1)


def chain_consts(a):
    G, C, LN, X, Y = 12, 13, 14, 15, 16
    a(f'v_lshrrev_b32 v{X}, 6, v0')
    a(f'v_and_b32 v{LN}, 63, v0')
    a(f'v_readfirstlane_b32 s{sWV}, v{X}')
    a(f'v_lshrrev_b32 v{G}, 4, v{LN}')
    a(f'v_and_b32 v{C}, 15, v{LN}')
    a(f'v_lshlrev_b32 v{L16}, 4, v{LN}')
    a(f'v_mov_b32 v{X}, 0x4444')
    a(f'v_mov_b32 v{Y}, 0xeeee')
    a(f'v_cmp_gt_u32 vcc, 8, v{C}')
    a(f'v_cndmask_b32 v{IDX}, v{Y}, v{X}, vcc')
    a(f's_mov_b32 s{sMASK}, 0x00ff00ff')
    a(f's_mov_b32 s{sMASK + 1}, 0x00ff00ff')
    a(f's_lshl_b32 s{sTMP}, s{sWV}, 11')
    a(f'v_add_u32 v{VW}, s{sTMP}, v{L16}')
    a(f's_mul_i32 s{sTMP}, s{sWV}, {LWT_W}')
    a(f's_add_u32 s{sTMP}, s{sTMP}, {LWT}')
    a(f'v_add_u32 v{WB}, s{sTMP}, v{L16}')
    a(f'v_and_b32 v{X}, 1, v{G}')
    a(f'v_lshlrev_b32 v{X}, 10, v{X}')
    a(f'v_lshrrev_b32 v{Y}, 1, v{G}')
    a(f'v_lshl_add_u32 v{X}, v{Y}, 9, v{X}')
    a(f's_lshl_b32 s{sTMP}, s{sWV}, 11')
    a(f'v_add_u32 v{X}, s{sTMP}, v{X}')
    a(f'v_lshl_add_u32 v{VT}, v{C}, 4, v{X}')
    a(f'v_bfe_u32 v{Y}, v{C}, 2, 1')
    a(f'v_lshl_add_u32 v{X}, v{Y}, 8, v{X}')
    a(f'v_lshrrev_b32 v{Y}, 3, v{C}')
    a(f'v_lshl_add_u32 v{X}, v{Y}, 6, v{X}')
    a(f'v_and_b32 v{Y}, 3, v{C}')
    a(f'v_lshl_add_u32 v{KT}, v{Y}, 4, v{X}')
    a(f'v_lshrrev_b32 v{X}, 3, v{LN}')
    a(f'v_lshlrev_b32 v{X}, 12, v{X}')
    a(f'v_and_b32 v{Y}, 7, v{LN}')
    a(f'v_lshl_add_u32 v{X}, v{Y}, 4, v{X}')
    a(f'v_lshlrev_b32 v{Y}, 12, v{G}')
    a(f'v_lshl_add_u32 v{Y}, v{C}, 3, v{Y}')
    a(f'v_lshl_add_u32 v{PQPP}, v{Y}, 16, v{X}')
    a(f'v_lshlrev_b32 v{X}, 8, v{G}')
    a(f'v_and_b32 v{Y}, 7, v{C}')
    a(f'v_lshl_add_u32 v{X}, v{Y}, 4, v{X}')
    a(f's_lshl_b32 s{sTMP}, s{sWV}, 11')
    a(f'v_add_u32 v{X}, s{sTMP}, v{X}')
    a(f's_lshl_b32 s{sSW}, s{sWV}, 10')
    a(f's_and_b32 s{sTW}, s{sWV}, 1')
    a(f's_lshl_b32 s{sTW}, s{sTW}, 7')
    a(f's_lshr_b32 s{sTMP}, s{sWV}, 1')
    a(f's_lshl_b32 s{sTMP}, s{sTMP}, 9')
    a(f's_add_u32 s{sTW}, s{sTW}, s{sTMP}')
    a(f's_mov_b32 s{sMASK2}, 0')
    a(f's_mov_b32 s{sMASK2 + 1}, 0x00ff00ff')
    a(f'v_lshlrev_b32 v17, 4, v{Y}')
    a(f'v_and_b32 v{Y}, 1, v{G}')
    a(f'v_lshl_add_u32 v17, v{Y}, 8, v17')
    a(f'v_lshrrev_b32 v{Y}, 3, v{C}')
    a(f'v_lshl_add_u32 v17, v{Y}, 3, v17')
    a(f'v_add_u32 v17, {LS_TM}, v17')
    a(f'v_lshl_add_u32 v{ORDTMR}, v17, 16, v{X}')
    lab = a.newlabel('rb')
    a(f's_lshl_b32 s{sTMP}, s{sH}, 1')
    a(f's_add_u32 s{sTMP}, s{sTMP}, s{sWV}')
    a(f's_mov_b32 s{sHASRED}, 1')
    a(f's_cmp_lt_u32 s{sWV}, 2')
    a(f's_cbranch_scc1 {lab}')
    a(f's_add_u32 s{sTMP}, s{sH}, 64')
    a(f's_cmp_lt_u32 s{sH}, 16')
    a(f's_cselect_b32 s{sHASRED}, 1, 0')
    a(f's_cmp_eq_u32 s{sWV}, 2')
    a(f's_cselect_b32 s{sHASRED}, s{sHASRED}, 0')
    a(f's_cmp_eq_u32 s{sHASRED}, 1')
    a(f's_cselect_b32 s{sTMP}, s{sTMP}, 0')
    a.label(lab)
    a(f's_lshl_b32 s{sRED}, s{sTMP}, 12')
    a(f's_add_u32 s{sRED}, s{sRED}, {WS_PRING}')
    a(f's_mul_i32 s{sTMP2}, s{sTMP}, 3277')
    a(f's_lshr_b32 s{sTMP2}, s{sTMP2}, 16')
    a(f's_mul_i32 s{sT64}, s{sTMP2}, 20')
    a(f's_sub_u32 s{sTMP}, s{sTMP}, s{sT64}')
    a(f's_mul_i32 s{sTMP2}, s{sTMP2}, 160')
    a(f's_lshr_b32 s{sT64}, s{sTMP}, 3')
    a(f's_lshl_b32 s{sT64}, s{sT64}, 6')
    a(f's_add_u32 s{sTMP2}, s{sTMP2}, s{sT64}')
    a(f's_lshr_b32 s{sT64 + 1}, s{sTMP}, 1')
    a(f's_and_b32 s{sT64 + 1}, s{sT64 + 1}, 3')
    a(f's_and_b32 s{sT64}, s{sTMP}, 3')
    a(f's_cmp_ge_u32 s{sTMP}, 16')
    a(f's_cselect_b32 s{sRS}, 1, 0')
    a(f's_cselect_b32 s{sT64 + 1}, s{sT64}, s{sT64 + 1}')
    a(f's_and_b32 s{sT64}, s{sT64 + 1}, 2')
    a(f's_lshl_b32 s{sSPIN}, s{sT64}, 4')
    a(f's_and_b32 s{sTMP}, s{sTMP}, 1')
    a(f's_lshl_b32 s{sTMP}, s{sTMP}, 4')
    a(f's_add_u32 s{sSPIN}, s{sSPIN}, s{sTMP}')
    a(f's_lshl_b32 s{sT64}, s{sT64}, 3')
    a(f's_cmp_eq_u32 s{sRS}, 1')
    a(f's_cselect_b32 s{sT64}, s{sT64}, s{sSPIN}')
    a(f's_add_u32 s{sTMP2}, s{sTMP2}, s{sT64}')
    a(f's_and_b32 s{sT64}, s{sT64 + 1}, 1')
    a(f's_lshl_b32 s{sT64}, s{sT64}, 6')
    a(f'v_lshlrev_b32 v{X}, 1, v{C}')
    a(f'v_add_u32 v{X}, s{sTMP2}, v{X}')
    a(f'v_lshrrev_b32 v{Y}, 3, v{X}')
    a(f'v_lshlrev_b32 v{Y}, 7, v{Y}')
    a(f'v_and_b32 v{X}, 7, v{X}')
    a(f'v_lshl_add_u32 v{Y}, v{X}, 1, v{Y}')
    a(f'v_lshl_add_u32 v{Y}, v{G}, 5, v{Y}')
    a(f'v_add_u32 v{Y}, s{sT64}, v{Y}')
    a(f'v_and_b32 v{X}, 0x28, v{LN}')
    a(f'v_cmp_eq_u32 vcc, 0, v{X}')
    a(f'v_mov_b32 v{X}, 0x8000')
    a(f'v_cndmask_b32 v{Y}, v{X}, v{Y}, vcc')
    a(f'v_lshl_or_b32 v{IDX}, v{Y}, 16, v{IDX}')
    a(f's_and_b32 s{sB8}, s{sWV}, 1')
    a(f's_lshl_b32 s{sB8}, s{sB8}, 10')
    a(f's_add_u32 s{sB8}, s{sB8}, {LB8}')
    a(f's_mov_b32 s{sSCALE}, {f32(128 ** -0.5 * 1.4426950408889634)}')
    a(f's_mov_b32 s{sPERMLO}, 0x05040100')
    a(f's_mov_b32 s{sPERMHI}, 0x07060302')
    a(f's_lshl_b32 s{sTMP}, s{sH}, 2')
    a(f's_add_u32 s{sTMP}, s{sTMP}, s{sWV}')
    a(f's_mul_i32 s{sTMP}, s{sTMP}, {NSTR * 2048}')
    a(f's_add_u32 s{sTMP}, s{sTMP}, {WS_STREAM}')
    for i in range(NSTR // 2):
        a(f's_add_u32 s{sSTR + i}, s{sTMP}, {i * 4096}')
    a(f's_mul_i32 s{sPST}, s{sWV}, {20 * 4096}')
    a(f's_lshl_b32 s{sTMP}, s{sH}, 7')
    a(f's_add_u32 s{sPST}, s{sPST}, s{sTMP}')
    a(f's_add_u32 s{sPST}, s{sPST}, {WS_PRING}')
    a(f's_add_u32 s{sPST1}, s{sPST}, {8 * 4096}')
    a(f's_add_u32 s{sPST2}, s{sPST}, {16 * 4096}')


def slot_kk_salu(a, n, dst):
    if n < 2:
        a(f's_lshl_b32 s{dst}, s{sWV}, 1')
        if n:
            a(f's_add_u32 s{dst}, s{dst}, 1')
    elif n == 2:
        a(f's_and_b32 s{dst}, s{sWV}, 1')
        a(f's_add_u32 s{dst}, s{dst}, 8')
    elif n == 3:
        a(f's_and_b32 s{dst}, s{sWV}, 1')
        a(f's_sub_u32 s{dst}, 9, s{dst}')
    else:
        q = (n - 2) >> 1
        a(f's_xor_b32 s{dst}, s{sWV}, {q}')
        a(f's_lshl_b32 s{dst}, s{dst}, 1')
        if n & 1:
            a(f's_add_u32 s{dst}, s{dst}, 1')


def chain_load_weights(a, LOC=None, mats=(0, 1, 2, 3)):
    LOC = LOC or globals()['LOC']
    tr = Track(a)
    LN, G, C = 14, 12, 13
    VSRC = 17
    VO = [18, 19, 20, 21, 22]
    RA, RB, RC = 23, 24, 25
    X, Y = 26, 27
    RD = 32
    PT = 64
    sSCR = sPOLL
    sHO, sKK, sSO, sSP = sPOLL8, sKB, sVB, sKMQ
    a(f's_mul_i32 s{sSCR}, s{sWV}, 40960')
    a(f's_lshl_b32 s{sSP}, s{sH}, 2')
    a(f's_add_u32 s{sSP}, s{sSP}, s{sWV}')
    a(f's_mul_i32 s{sSP}, s{sSP}, {NLDS * 2048}')
    a(f's_add_u32 s{sSP}, s{sSP}, {WS_SPILL}')
    a(f'v_lshrrev_b32 v{X}, 3, v{LN}')
    a(f'v_lshlrev_b32 v{X}, 13, v{X}')
    a(f'v_and_b32 v{Y}, 7, v{LN}')
    a(f'v_lshl_add_u32 v{X}, v{Y}, 4, v{X}')
    a(f's_lshr_b32 s{sTMP}, s{sWV}, 1')
    a(f's_lshl_b32 s{sTMP}, s{sTMP}, 7')
    a(f'v_add_u32 v{VSRC}, s{sTMP}, v{X}')
    a(f's_mul_i32 s{sTMP}, s{sWV}, 320')
    a(f's_mov_b32 s{sTMP2}, 3277')
    a(f's_movk_i32 s{sT64}, 1280')
    for i in range(5):
        a(f'v_add_u32 v{X}, {64 * i}, v{LN}')
        a(f'v_mul_lo_u32 v{Y}, v{X}, s{sTMP2}')
        a(f'v_lshrrev_b32 v{Y}, 16, v{Y}')
        a(f'v_mul_u32_u24 v{VO[i]}, 20, v{Y}')
        a(f'v_sub_u32 v{X}, v{X}, v{VO[i]}')
        a(f'v_mul_lo_u32 v{Y}, v{Y}, s{sT64}')
        a(f'v_lshl_add_u32 v{Y}, v{X}, 4, v{Y}')
        a(f'v_add_u32 v{VO[i]}, s{sTMP}, v{Y}')
    LP = 28
    a(f'v_lshrrev_b32 v{X}, 1, v{G}')
    a(f'v_lshlrev_b32 v{X}, 4, v{X}')
    a(f'v_and_b32 v{Y}, 1, v{G}')
    a(f'v_lshl_add_u32 v{LP}, v{Y}, 2, v{X}')

    def set_srd(mi):
        a(f's_mov_b32 s{S_W}, s{sPTR + 2 * mi}')
        a(f's_and_b32 s{S_W + 1}, s{sPTR + 2 * mi + 1}, 0xffff')
        a(f's_mov_b32 s{S_W + 2}, 5242880')
        a(f's_mov_b32 s{S_W + 3}, 0x00020000')

    POS = [0, 1, 2, 6, 7]
    PART = [4, 5, 3, 8, 9]
    GRP = [(0, 1), (2,), (3, 4)]

    def dma_pos(mi, p):
        if mi < 3:
            slot_kk_salu(a, POS[p], sKK)
            a(f's_lshl_b32 s{sKK}, s{sKK}, 19')
            a(f's_lshl_b32 s{sSO}, s{sH}, 8')
            a(f's_add_u32 s{sKK}, s{sKK}, s{sSO}')
            for i in range(8):
                a(f's_add_u32 s{sSO}, s{sKK}, {i * 8 * 8192}')
                a(f's_add_u32 m0, s{sSCR}, {p * 8192 + i * 1024}')
                tr.vmem(f'buffer_load_dwordx4 v{VSRC}, s[{S_W}:{S_W + 3}], s{sSO} offen lds', ('dma', mi, p))
        else:
            a(f's_mul_i32 s{sKK}, s{sH}, 163840')
            for i in range(8):
                ii = 8 * p + i
                a(f's_add_u32 s{sSO}, s{sKK}, {(ii // 5) * 16 * 1280}')
                a(f's_add_u32 m0, s{sSCR}, {ii * 1024}')
                tr.vmem(f'buffer_load_dwordx4 v{VO[ii % 5]}, s[{S_W}:{S_W + 3}], s{sSO} offen lds', ('dma', mi, p))

    def dest(key, k):
        l = LOC[key]
        if l[0] == 'v':
            return l[1]
        return PT + 8 * k

    def finish(key, k):
        l = LOC[key]
        base = PT + 8 * k
        if l[0] == 'a':
            for r in range(8):
                a(f'v_accvgpr_write_b32 a{l[1] + r}, v{base + r}')
        elif l[0] in 'ls':
            a(f's_add_u32 s{sSO}, s{sSTR if l[0] == "s" else sSP}, {l[1] * 2048}')
            tr.vmem(f'buffer_store_dwordx4 {vr(base, 4)}, v{L16}, s[{S_WS}:{S_WS + 3}], s{sSO} offen', 'spill')
            tr.vmem(f'buffer_store_dwordx4 {vr(base + 4, 4)}, v{L16}, s[{S_WS}:{S_WS + 3}], s{sSO} offen offset:1024',
                    'spill')

    set_srd(mats[0])
    for p in range(5):
        dma_pos(mats[0], p)
    RCP = 29
    a(f'v_lshlrev_b32 v{X}, 7, v{LP}')
    a(f'v_lshl_add_u32 v{X}, v{C}, 2, v{X}')
    a(f's_and_b32 s{sTMP}, s{sWV}, 1')
    a(f's_lshl_b32 s{sTMP}, s{sTMP}, 6')
    a(f'v_add_u32 v{X}, s{sTMP}, v{X}')
    a(f'v_add_u32 v{RC}, s{sSCR}, v{X}')
    a(f's_xor_b32 s{sTMP}, s{sWV}, 1')
    a(f's_mul_i32 s{sTMP}, s{sTMP}, 40960')
    a(f'v_add_u32 v{RCP}, s{sTMP}, v{X}')
    R4 = [RA, RB, 30, 31]
    pending = None
    for ix, mi in enumerate(mats):
        if mi == 3:
            break
        m = 'qkv'[mi]
        nxt = mats[ix + 1] if ix + 1 < len(mats) else None
        for gi_, grp in enumerate(GRP):
            tr.wait_vm(('dma', mi, grp[-1]))
            a('s_barrier')
            if OPT.get('wlt') and 3 in mats and gi_ == 0:
                a(f's_memrealtime s[{64 + 2 * ix}:{65 + 2 * ix}]')
            if pending is not None:
                pm, pg = pending
                set_srd(pm)
                for p in pg:
                    dma_pos(pm, p)
            pending = (nxt, grp) if nxt is not None else None
            for p in grp:
                for n, base in ((POS[p], RC), (PART[p], RCP)):
                    for k in range(4):
                        a(f'v_add_u32 v{R4[k]}, {p * 8192 + (k >> 1) * 4096 + (k & 1) * 1024}, v{base}')
                    for r in range(8):
                        rc = rowconst(r) & 31
                        o = (rc & 7) * 32
                        tr.ds(f'ds_read2_b32 {vr(RD + 2 * r, 2)}, v{R4[2 * (r >> 2) + (rc >> 3)]} offset0:{o} offset1:{o + 32}')
                    tr.drain_lg()
                    for t in range(2):
                        key = (m, t, n)
                        d = dest(key, t)
                        for r in range(8):
                            a(f'v_perm_b32 v{d + r}, v{RD + 2 * r + 1}, v{RD + 2 * r}, s{sPERMHI if t else sPERMLO}')
                        finish(key, t)
    if pending is not None:
        a('s_barrier')
        set_srd(pending[0])
        for p in pending[1]:
            dma_pos(pending[0], p)
    if OPT.get('wlt') and 3 in mats:
        a('s_memrealtime s[90:91]')
    if 3 in mats:
        a(f's_movk_i32 s{sT64}, {4 * 320}')
        a(f'v_mul_lo_u32 v{X}, v{G}, s{sT64}')
        a(f'v_add_u32 v{X}, s{sSCR}, v{X}')
        a(f'v_lshl_add_u32 v{RC}, v{C}, 2, v{X}')
        a(f'v_lshrrev_b32 v{Y}, 1, v{C}')
        a(f'v_lshl_add_u32 v{Y}, v{Y}, 2, v{X}')
        a(f'v_add_u32 v{Y}, 256, v{Y}')
        SELV = 29
        a(f'v_and_b32 v{X}, 1, v{C}')
        a(f'v_mov_b32 v{SELV}, s{sPERMLO}')
        a(f'v_mov_b32 v30, s{sPERMHI}')
        a(f'v_cmp_eq_u32 vcc, 1, v{X}')
        a(f'v_cndmask_b32 v{SELV}, v{SELV}, v30, vcc')
        tr.wait_vm(('dma', 3, 4))
        if OPT.get('wlt'):
            a('s_memrealtime s[92:93]')
        for n in range(4):
            a(f's_xor_b32 s{sKK}, s{sWV}, {n}')
            a(f's_mul_i32 s{sKK}, s{sKK}, {32 * 320}')
            for grp in range(3):
                for r in range(8):
                    off = (16 * (r >> 2) + 2 * ((r >> 1) & 1)) * 320
                    if grp < 2:
                        off += 128 * grp + 64 * (r & 1)
                    else:
                        off += 32 * (r & 1)
                    a(f's_add_u32 s{sSO}, s{sKK}, {off}')
                    a(f'v_add_u32 v{RA}, s{sSO}, v{RC if grp < 2 else Y}')
                    tr.ds(f'ds_read2_b32 {vr(RD + 2 * r, 2)}, v{RA} offset0:0 offset1:80')
                tr.drain_lg()
                for t in range(2 if grp < 2 else 1):
                    key = ('o', 2 * grp + t, n)
                    d = dest(key, t)
                    for r in range(8):
                        sel = f'v{SELV}' if grp == 2 else f's{sPERMHI if t else sPERMLO}'
                        a(f'v_perm_b32 v{d + r}, v{RD + 2 * r + 1}, v{RD + 2 * r}, {sel}')
                    finish(key, t)
    if OPT.get('wlt') and 3 in mats:
        a('s_memrealtime s[94:95]')
    tr.drain_vm()
    a('s_barrier')
    if OPT.get('wlt') and 3 in mats:
        a('s_memrealtime s[96:97]')
    a(f's_mul_i32 s{sSCR}, s{sWV}, {LWT_W}')
    a(f's_add_u32 s{sSCR}, s{sSCR}, {LWT}')
    for i in range(2 * NLDS if 3 in mats else 0):
        a(f's_add_u32 s{sSO}, s{sSP}, {i * 1024}')
        a(f's_add_u32 m0, s{sSCR}, {i * 1024}')
        tr.vmem(f'buffer_load_dwordx4 v{L16}, s[{S_WS}:{S_WS + 3}], s{sSO} offen lds')
    a(f'v_and_b32 v{X}, 1, v{G}')
    a(f'v_lshlrev_b32 v{X}, 2, v{X}')
    a(f'v_sub_u32 v{X}, v{C}, v{X}')
    a(f'v_mov_b32 v{RA}, 0x3f80')
    a(f'v_mov_b32 v{RB}, 0x3f800000')
    for p, k in enumerate((0, 2, 8, 10)):
        reg = RD + p
        a(f'v_mov_b32 v{reg}, 0')
        a(f'v_cmp_eq_u32 vcc, {k}, v{X}')
        a(f'v_cndmask_b32 v{reg}, v{reg}, v{RA}, vcc')
        a(f'v_cmp_eq_u32 vcc, {k + 1}, v{X}')
        a(f'v_cndmask_b32 v{reg}, v{reg}, v{RB}, vcc')
    a(f'v_and_b32 v{Y}, 0x1f0, v{L16}')
    tr.ds(f'ds_write_b128 v{Y}, {vr(RD, 4)} offset:{LSEL}')
    for var in range(2):
        if var == 0:
            a(f'v_mov_b32 v{X}, v{C}')
        else:
            a(f'v_and_b32 v{X}, 8, v{C}')
            a(f'v_bfe_u32 v{Y}, v{C}, 1, 2')
            a(f'v_add_u32 v{X}, v{X}, v{Y}')
            a(f'v_and_b32 v{Y}, 1, v{C}')
            a(f'v_lshl_add_u32 v{X}, v{Y}, 2, v{X}')
        for p in range(4):
            reg = RD + 4 + p
            a(f'v_mov_b32 v{reg}, 0')
            a(f'v_cmp_eq_u32 vcc, {2 * p}, v{X}')
            a(f'v_cndmask_b32 v{reg}, v{reg}, v{RA}, vcc')
            a(f'v_cmp_eq_u32 vcc, {2 * p + 1}, v{X}')
            a(f'v_cndmask_b32 v{reg}, v{reg}, v{RB}, vcc')
        a(f'v_and_b32 v{Y}, 0xf0, v{L16}')
        tr.ds(f'ds_write_b128 v{Y}, {vr(RD + 4, 4)} offset:{LRSEL + var * 256}')
    tr.drain_vm()
    tr.drain_lg()
    a('s_barrier')


assert CHAIN_LDS <= 163840


OPT = {}
OOB = 0x7ffff000


def fill_ops(keys, tag):
    ops = []
    if OPT.get('nofill'):
        return ops
    for key in keys:
        l = LOC[key]
        assert l[0] == 's'
        idx = l[1]
        for hf in range(2):
            off = (idx & 1) * 2048 + hf * 1024
            ops.append((f'buffer_load_dwordx4 {vr(l[2] + 4 * hf, 4)}, v{L16}, s[{S_WS}:{S_WS + 3}], s{sSTR + (idx >> 1)} offen'
                        + (f' offset:{off}' if off else '') + ('' if str(idx) in OPT.get('l1', ' 99').strip().split(',') else ' sc1'), tag))
    return ops


def lds_stage(tr, key):
    l = LOC[key]
    assert l[0] == 'l'
    for hf in range(2):
        tr.ds(f'ds_read_b128 {vr(l[2] + 4 * hf, 4)}, v{WB} offset:{l[1] * 2048 + hf * 1024}', ('B',) + key)


def m_addr(a, n, state):
    if n < 2:
        return
    if n == 2:
        a(f'v_add_u32 v{T2}, s{sB8}, v{L16}')
        state['t2'] = 'b8'
    elif n == 3:
        assert state['t2'] == 'b8'
        a(f'v_xor_b32 v{T2}, 0x400, v{T2}')
        state['t2'] = 'b9'
    elif (n & 1) == 0:
        q = (n - 2) >> 1
        a(f'v_xor_b32 v{T2}, {q * MST}, v{VW}')
        state['t2'] = ('p', q)


def m_read(tr, n, buf, state):
    tag = ('A', n)
    if n < 2:
        tr.ds(f'ds_read_b128 {vr(buf, 4)}, v{VW} offset:{n * 1024}', tag)
    elif n < 4:
        assert state['t2'] == ('b8' if n == 2 else 'b9')
        tr.ds(f'ds_read_b128 {vr(buf, 4)}, v{T2}', tag)
    else:
        assert state['t2'] == ('p', (n - 2) >> 1)
        tr.ds(f'ds_read_b128 {vr(buf, 4)}, v{T2} offset:{(n & 1) * 1024}', tag)


def smf(a, acc, abuf, key, loc=None):
    a(f'v_smfmac_f32_16x16x64_bf16 {vr(acc, 4)}, {vr(abuf, 4)}, {breg(key, loc)}, v{IDX}')


def zero(a, base, n):
    for i in range(0, n, 2):
        a(f'v_mov_b64 {vr(base + i, 2)}, 0')


H01 = [('q', 0, 0), ('k', 0, 0)]
H23 = [('q', 1, 0), ('k', 1, 0)]
SPINMAX = 0x40000


def kv_ready(a, name, seg_sgpr_plus):
    if OPT.get('noflags'):
        return
    WS = f's[{S_WS}:{S_WS + 3}]'
    a(f's_add_u32 s{sTMP}, s{sSTEP}, {seg_sgpr_plus}')
    a(f's_lshr_b32 s{sTMP}, s{sTMP}, 2')
    a(f's_min_u32 s{sTMP}, s{sTMP}, 15')
    a(f's_cmp_lt_u32 s{sTMP}, s{sRDY}')
    a(f's_cbranch_scc1 {name}_ok')
    a(f's_mov_b32 s{sSPIN}, 0')
    a.label(f'{name}_sp')
    a(f'v_lshrrev_b32 v{T1}, 2, v{L16}')
    a(f'buffer_load_dword v{T1}, v{T1}, {WS}, s{sFLB} offen sc1')
    a('s_waitcnt vmcnt(0)')
    a(f'v_cmp_le_u32 vcc, 32, v{T1}')
    a(f's_add_u32 s{sSPIN}, s{sSPIN}, 1')
    a(f's_and_b32 s{sRDY}, vcc_lo, 0xffff')
    a(f's_ff0_i32_b32 s{sRDY}, s{sRDY}')
    a(f's_cmp_lt_u32 s{sTMP}, s{sRDY}')
    a(f's_cbranch_scc1 {name}_ok')
    a(f's_cmp_lt_u32 s{sSPIN}, {SPINMAX}')
    a(f's_cbranch_scc1 {name}_sp')
    a.label(f'{name}_ok')


def mc_init(a):
    for k, n in enumerate((7, 8, 3)):
        slot_kk_salu(a, n, sMCO + k)
        a(f's_lshl_b32 s{sMCO + k}, s{sMCO + k}, 10')
    a(f's_lshl_b32 s{sTOFF}, s{sWV}, 3')
    a(f's_add_u32 s{sTOFF}, s{sTOFF}, s{sH}')


def chain_epilogue(a):
    pass


def chain_init_state(a):
    tr = Track(a)
    for t, tag in fill_ops(H01 + H23, 'h'):
        a(t)
    mc_init(a)
    zero(a, Q0, 24)
    a(f's_mov_b32 s{sMW}, {WS_MRING}')
    a(f's_mov_b32 s{sMR}, {WS_MRING + 3 * MSLOT}')
    a(f's_mov_b32 s{sLB}, {LAYER0}')
    a(f's_mov_b32 s{sFLB}, {WS_FLAGS + FL_KV}')


def chain_layer_state(a):
    WS = f's[{S_WS}:{S_WS + 3}]'
    a(f's_lshl_b32 s{sTMP}, s{sH}, 13')
    a(f's_add_u32 s{sTMP}, s{sTMP}, s{sLB}')
    a(f's_add_u32 s{sKB}, s{sTMP}, {L_KB}')
    a(f's_add_u32 s{sVB}, s{sTMP}, {L_VB}')
    a(f's_add_u32 s{sMCB}, s{sLB}, {L_MC - MSLOT}')
    a(f's_lshl_b32 s{sTMP}, s{sWV}, 11')
    a(f's_add_u32 s{sPOLL}, s{sTMP}, {WS_M0}')
    a(f's_add_u32 s{sPOLL8}, s{sB8}, {WS_M0 + 8192 - LB8}')
    a(f's_mov_b32 s{sSTEP}, 0')
    a(f's_mov_b32 s{sRDY}, 0')
    kv_ready(a, a.newlabel('kvr0'), 0)
    for i in range(2):
        a(f'buffer_load_dwordx4 {vr(KR + 4 * i, 4)}, v{KT}, {WS}, s{sKB} offen offset:{128 * i} sc1')
        a(f'buffer_load_dwordx4 {vr(VR + 4 * i, 4)}, v{VT}, {WS}, s{sVB} offen offset:{256 * i} sc1')
    a(f's_mov_b32 s{sSTEP}, -1')


class Rec:
    def __init__(self):
        self.l = []

    def __call__(self, t):
        self.l.append(t)


def chain_step(a, sc, name, timing=False):
    tr = Track(a)
    WS = f's[{S_WS}:{S_WS + 3}]'
    st = {}
    top = f'{name}_top'
    a.label(top)
    mq = []
    KVM = OPT.get('kvmod', ' sc1 nt')

    def M(cnt=1):
        for _ in range(cnt):
            if mq:
                t, tag = mq.pop(0)
                if tag == 'ra':
                    lab = a.newlabel('ras')
                    a(f's_cbranch_scc1 {lab}')
                    a(t)
                    a.label(lab)
                else:
                    tr.vmem(t, tag)

    used = []

    def stamp(i):
        if timing and (str(i) in OPT['stamps'] or i in (0, 7)):
            k = len(used)
            used.append(i)
            a(f's_memtime s[{64 + 2 * k}:{65 + 2 * k}]')
    stamp(0)
    m_addr(a, 2, st)
    a(f's_mov_b32 s{sSPIN}, 0')
    pl = f'{name}_mpoll'
    ld = [f'buffer_load_dwordx4 {vr(GM[0], 4)}, v{L16}, {WS}, s{sPOLL} offen sc1',
          f'buffer_load_dwordx4 {vr(GM[1], 4)}, v{L16}, {WS}, s{sPOLL} offen offset:1024 sc1',
          f'buffer_load_dwordx4 {vr(GM[2], 4)}, v{L16}, {WS}, s{sPOLL8} offen sc1']
    wr = [f'ds_write_b128 v{VW}, {vr(GM[0], 4)}', f'ds_write_b128 v{VW}, {vr(GM[1], 4)} offset:1024',
          f'ds_write_b128 v{T2}, {vr(GM[2], 4)}']
    a.label(pl)
    for t in ld:
        a(t)
    a(f's_add_u32 s{sSPIN}, s{sSPIN}, 1')
    a(f's_cmp_lt_u32 s{sSPIN}, {SPINMAX}')
    a(f's_cselect_b64 s[{sT64}:{sT64 + 1}], -1, 0')
    a(f's_waitcnt vmcnt(2)')
    g = GM[0]
    a(f'v_max3_u32 v{T0}, v{g}, v{g + 1}, v{g + 2}')
    a(wr[0])
    a(f'v_max_u32 v{T0}, v{T0}, v{g + 3}')
    a(f'v_cmp_eq_u32 vcc, -1, v{T0}')
    a(f's_and_b64 vcc, vcc, s[{sT64}:{sT64 + 1}]')
    a(f's_cbranch_vccnz {pl}')
    tr.lg += ['mw']
    tr.vm = ['m1', 'm2']
    side = []

    def mcheck(k):
        g = GM[k]
        ok, rt = f'{name}_mok{k}', f'{name}_mrt{k}'
        tr.wait_vm(f'm{k}')
        a(f'v_max3_u32 v{T0}, v{g}, v{g + 1}, v{g + 2}')
        a(f'v_max_u32 v{T0}, v{T0}, v{g + 3}')
        a(f'v_cmp_eq_u32 vcc, -1, v{T0}')
        a(f's_cbranch_vccnz {rt}')
        a.label(ok)
        tr.ds(wr[k], 'mw')
        side.append((k, ok, rt))

    sq = Rec()
    for r in (sKB, sVB):
        sq(f's_add_u32 s{r}, s{r}, {32 * 8192}')
    sq(f's_add_u32 s{sMCB}, s{sMCB}, {MSLOT}')
    sq(f's_add_u32 s{sSTEP}, s{sSTEP}, 1')
    sq(f's_and_b32 s{sEP}, s{sSTEP}, 1')
    sq(f's_mov_b32 s{sMRP}, s{sMR}')
    sq(f's_mov_b32 s{sMR}, s{sMW}')
    sq(f's_add_u32 s{sMW}, s{sMW}, {MSLOT}')
    sq(f's_cmp_ge_u32 s{sMW}, {WS_MRING + 4 * MSLOT}')
    sq(f's_cselect_b32 s{sMW}, {WS_MRING}, s{sMW}')
    sq(f's_lshl_b32 s{sTMP}, s{sWV}, 11')
    sq(f's_add_u32 s{sPOLL}, s{sMW}, s{sTMP}')
    sq(f's_add_u32 s{sPOLL8}, s{sMW}, s{sB8}')
    sq(f's_add_u32 s{sPOLL8}, s{sPOLL8}, {8192 - LB8}')
    sq(f's_add_u32 s{sMCP}, s{sSTEP}, s{sTOFF}')
    sq(f's_and_b32 s{sMCP}, s{sMCP}, 31')

    def SQ(n=1):
        for _ in range(n):
            if sq.l:
                a(sq.l.pop(0))

    stamp(1)
    for n in (4, 6):
        mq += fill_ops([('k', 1, n)], ('s', n))
    order = [('q', 0, Q0), ('k', 0, K0), ('q', 1, Q1), ('k', 1, K1)]
    SELR = TB
    BARP = int(OPT.get('barp', '1'))
    merged = {VORD[q]: q for q in range(NVQ // 2)}
    seq = []
    for n in range(10):
        if n in LQ:
            seq.append(order[LQP.get(n, 1)][:2] + (n,))
        if n in merged:
            seq += [vk(j) for j in (2 * merged[n], 2 * merged[n] + 1) if VSRC[j][0] == 'L']
    seq += [vk(j) for j in range(NVQ, 20) if VSRC[j][0] == 'L']

    def restage(key):
        for k2 in seq[seq.index(key) + 1:]:
            if LOC[k2][2] == LOC[key][2]:
                lds_stage(tr, k2)
                return

    for n in range(10):
        buf = GM[n % 3]
        ops = [((m, t, n), acc) for m, t, acc in order]
        if n in merged:
            ops += [(vk(2 * merged[n]), V0), (vk(2 * merged[n] + 1), V1)]
        for p, (key, acc) in enumerate(ops):
            last = p == len(ops) - 1
            if p == 3 and n in SQK:
                assert not any(tag == ('s', n) for _, tag in mq)
                tr.wait_vm(('s', n))
            smf(a, acc, buf, key)
            nins = len(a.ins)
            post = None
            if LOC[key][0] == 'l':
                restage(key)
            if p == 0 and n >= 1:
                M()
            if p == 0 and n == 0:
                mcheck(1)
            if p == 2 and n == 0:
                lds_stage(tr, seq[0])
                mcheck(2)
            if p == 4 and n == 0:
                M()
                post = 3
            if p == BARP and n == 2:
                tr.wait_lg('mw')
                a('s_barrier')
                m_read(tr, 3, GM[0], st)
                m_addr(a, 4, st)
                m_read(tr, 4, GM[1], st)
            if p == 2 and 3 <= n <= 6:
                post = n + 3
            if p == 4 and n in (4, 6):
                M()
            if p == 3 and n == 0:
                lds_stage(tr, vk(3))
            if p == 3 and n == 4:
                mq += fill_ops([('k', 1, 9)], ('s', 9))
            if p == 3 and n == 6:
                mq += fill_ops([vk(14)], 's14')
            if p == 3 and n == 9:
                mq += fill_ops([vk(18)], 's18')
            if p == 3 and n == 8:
                tr.ds(f'ds_read_b128 {vr(SELR, 4)}, v{T0} offset:{LSEL}', 'sel')
                st['t2'] = None
            if last:
                if 2 <= n <= 6:
                    m_read(tr, n + 3, buf, st)
                if n == 9:
                    M()
                if 2 <= n < 9:
                    tr.wait_lg(('A', n + 1))
            elif LOC[ops[p + 1][0]][0] == 'l':
                tr.wait_lg(('B',) + ops[p + 1][0])
            if n >= 1:
                SQ(max(0, 2 - (len(a.ins) - nins) - (1 if post else 0)))
            if post:
                m_addr(a, post, st)
            if p == 2 and n == 8:
                a(f'v_and_b32 v{T0}, 0x1f0, v{L16}')
            if last:
                stamp(f'n{n}')
    assert len(mq) <= 1 and not sq.l, mq
    vbuf = {9: GM[0], 7: GM[1], 8: GM[2], 3: GM[0]}
    fstate = {'j': NVQ}
    stag = {14: 's14', 18: 's18', 19: 's19'}

    def F(cnt=1):
        for _ in range(cnt):
            j = fstate['j']
            assert j < 20
            fstate['j'] += 1
            q, t = j >> 1, j & 1
            n = VORD[q]
            key = vk(j)
            if j == 18:
                tr.wait_lg(('A', 3))
            if LOC[key][0] == 'l':
                tr.wait_lg(('B',) + key)
            if j in stag:
                assert not any(tag == stag[j] for _, tag in mq)
                tr.wait_vm(stag[j])
            smf(a, V1 if t else V0, vbuf[n], key)
            if LOC[key][0] == 'l':
                restage(key)
            if j == 13:
                m_read(tr, 3, GM[0], st)
            if j == 14:
                mq.extend(fill_ops([vk(19)], 's19'))
            if j in (15, 17, 18, 19):
                mq.extend(fill_ops([(H01 + H23)[{15: 2, 17: 3, 18: 0, 19: 1}[j]]], 'h'))

    cvt = lambda d, x, y: a(f'v_cvt_pk_bf16_f32 v{d}, v{x}, v{y}')
    dpp = lambda d, x, bm: a(f'v_mov_b32_dpp v{d}, v{x} row_ror:8 row_mask:0xf bank_mask:{bm}')
    pka = lambda d, x, y: a(f'v_pk_add_f32 {vr(d, 2)}, {vr(x, 2)}, {vr(y, 2)}')
    stamp(2)
    cvt(Q0, Q0, Q0 + 1)
    cvt(Q0 + 1, Q0 + 2, Q0 + 3)
    cvt(Q0 + 2, K0, K0 + 1)
    cvt(Q0 + 3, K0 + 2, K0 + 3)
    cvt(Q1, Q1, Q1 + 1)
    tr.wait_lg('sel')
    a(f'v_mfma_f32_16x16x32_bf16 {vr(K0, 4)}, {vr(Q0, 4)}, {vr(SELR, 4)}, 0')
    cvt(Q1 + 1, Q1 + 2, Q1 + 3)
    cvt(Q1 + 2, K1, K1 + 1)
    cvt(Q1 + 3, K1 + 2, K1 + 3)
    a(f'v_mfma_f32_16x16x32_bf16 {vr(K1, 4)}, {vr(Q1, 4)}, {vr(SELR, 4)}, 0')
    F(1)
    M()
    m_addr(a, 2, st)
    m_addr(a, 3, st)
    for r in range(4):
        cvt(Q0 + r, K0 + r, K1 + r)
    a(f'v_lshrrev_b32 v{T0}, 16, v{ORDTMR}')
    a(f'v_mfma_f32_16x16x32_bf16 {vr(K0, 4)}, {vr(KR, 4)}, {vr(Q0, 4)}, 0')
    a(f'v_add_u32 v{T1}, s{sSW}, v{L16}')
    a(f'v_mfma_f32_16x16x32_bf16 {vr(K1, 4)}, {vr(KR + 4, 4)}, {vr(Q0, 4)}, 0')
    a(f'v_add_u32 v{T3}, s{sTW}, v{L16}')
    a(f'v_mfma_f32_16x16x32_bf16 {vr(Q1, 4)}, {vr(Q0, 4)}, {vr(Q0, 4)}, 0')
    stamp('smf')
    M()
    for r in range(4):
        dpp(K0 + r, K1 + r, '0xc')
    F(1)
    tr.ds(f'ds_write_b128 v{T1}, {vr(K0, 4)} offset:{LS_S}', 'sw')
    F(1)
    a(f's_mov_b64 exec, s[{sMASK2}:{sMASK2 + 1}]')
    tr.ds(f'ds_write_b128 v{T3}, {vr(Q1, 4)} offset:{LS_TM - 512}', 'sw')
    a('s_mov_b64 exec, -1')
    M()
    F(2)
    M()
    kv_ready(a, f'{name}_kvr', 1)
    stamp('b2a')
    tr.wait_lg('sw')
    a('s_barrier')
    stamp(3)
    SR = [K0, K1, Q1, Q0]
    for w in range(4):
        tr.ds(f'ds_read_b128 {vr(SR[w], 4)}, v{L16} offset:{w * 1024 + LS_S}', ('sr', w))
    TM = KR
    tr.ds(f'ds_read2_b64 {vr(TM, 4)}, v{T0} offset0:0 offset1:16', 'tm')
    tr.ds(f'ds_read2_b64 {vr(TM + 4, 4)}, v{T0} offset0:64 offset1:80', 'tm')
    M()
    F(1)
    M()
    F(1)
    M()
    if OPT.get('vearly'):
        tr.vmem(f'buffer_load_dwordx4 {vr(VR, 4)}, v{VT}, {WS}, s{sVB} offen{KVM}', 'vt')
        tr.vmem(f'buffer_load_dwordx4 {vr(VR + 4, 4)}, v{VT}, {WS}, s{sVB} offen offset:256{KVM}', 'vt')
        tr.vm = [None if x == 'vt' else x for x in tr.vm]
    stamp('sr')
    tr.wait_lg(('sr', 1))
    pka(K0, K0, K1)
    pka(K0 + 2, K0 + 2, K1 + 2)
    tr.wait_lg(('sr', 3))
    pka(Q1, Q1, Q0)
    pka(Q1 + 2, Q1 + 2, Q0 + 2)
    M()
    tr.wait_lg('tm')
    pka(TM, TM, TM + 2)
    pka(TM + 4, TM + 4, TM + 6)
    pka(K0, K0, Q1)
    pka(K0 + 2, K0 + 2, Q1 + 2)
    SMM = Q1
    pka(SMM, TM, TM + 4)
    MX, MY = K1, K1 + 1
    a(f'v_max3_f32 v{MX}, v{K0}, v{K0 + 1}, v{K0 + 2}')
    a(f'v_max3_f32 v{MY}, v{K0 + 3}, v{SMM}, v{SMM + 1}')
    a(f'v_max_f32 v{MX}, v{MX}, v{MY}')
    F(1)
    M()
    cvt(V0, V0, V0 + 1)
    a(f'v_max_f32_dpp v{MX}, v{MX}, v{MX} row_ror:8 row_mask:0xf bank_mask:0xf')
    a(f'v_mov_b32 v{MY}, v{MX}')
    cvt(V0 + 1, V0 + 2, V0 + 3)
    M()
    a(f'v_permlane16_swap_b32 v{MX}, v{MY}')
    a(f'v_max_f32 v{MX}, v{MX}, v{MY}')
    a(f'v_mov_b32 v{MY}, v{MX}')
    cvt(V0 + 2, V1, V1 + 1)
    cvt(V0 + 3, V1 + 2, V1 + 3)
    a(f'v_permlane32_swap_b32 v{MX}, v{MY}')
    a(f'v_max_f32 v{MX}, v{MX}, v{MY}')
    a(f'v_mul_f32 v{MX}, s{sSCALE}, v{MX}')
    stamp('mx')
    S = [K0, K0 + 1, K0 + 2, K0 + 3, SMM, SMM + 1]
    for i, s in enumerate(S):
        a(f'v_fma_f32 v{s}, v{s}, s{sSCALE}, -v{MX}')
        if i in (0, 3):
            M()
    hq = list(mq)
    del mq[:]
    kvq = []
    if not OPT.get('nokv'):
        kvq = [(f'buffer_load_dwordx4 {vr(KR, 4)}, v{KT}, {WS}, s{sKB} offen{KVM}', 'kt'),
               (f'buffer_load_dwordx4 {vr(KR + 4, 4)}, v{KT}, {WS}, s{sKB} offen offset:128{KVM}', 'kt'),
               (f'buffer_load_dwordx4 {vr(VR, 4)}, v{VT}, {WS}, s{sVB} offen{KVM}', 'vt'),
               (f'buffer_load_dwordx4 {vr(VR + 4, 4)}, v{VT}, {WS}, s{sVB} offen offset:256{KVM}', 'vt')]

    kvq = hq + kvq

    def KVq(v=False):
        if kvq and (v or kvq[0][1] != 'vt'):
            tr.vmem(*kvq.pop(0))

    if not OPT.get('nopub'):
        a(f's_cmp_lt_u32 s{sMCP}, 6')
        a(f's_cbranch_scc1 {name}_pub')
        a.label(f'{name}_mokpub')
    for i, s in enumerate(S):
        a(f'v_exp_f32 v{s}, v{s}')
        if i == 1:
            KVq()
        if i == 5:
            KVq()
            if OPT.get('klat'):
                stamp('k0')
                a('s_waitcnt vmcnt(0)')
                stamp('k1')
    PB = GM[2]
    BM = Q1 + 2
    cvt(PB, K0, K0 + 1)
    cvt(PB + 1, K0 + 2, K0 + 3)
    cvt(PB + 2, K0, K0 + 1)
    cvt(PB + 3, K0 + 2, K0 + 3)
    cvt(BM, SMM, SMM + 1)
    KVq()
    dpp(PB + 2, PB, '0x3')
    dpp(PB + 3, PB + 1, '0x3')
    dpp(PB, PB, '0xc')
    dpp(PB + 1, PB + 1, '0xc')
    cvt(BM + 1, SMM, SMM + 1)
    stamp(4)
    O0, O1 = TB, GM[0]
    SM, SY = K1 + 2, K1 + 3
    pka(K0, K0, K0 + 2)
    a(f'v_mfma_f32_16x16x32_bf16 {vr(O0, 4)}, {vr(VR, 4)}, {vr(PB, 4)}, 0')
    M()
    dpp(BM + 1, BM, '0x3')
    dpp(BM, BM, '0xc')
    a(f'v_mfma_f32_16x16x32_bf16 {vr(O1, 4)}, {vr(VR + 4, 4)}, {vr(PB, 4)}, 0')
    a(f'v_add_f32 v{SY}, v{SMM}, v{SMM + 1}')
    a(f'v_add_f32 v{SM}, v{K0}, v{K0 + 1}')
    a(f'v_mfma_f32_16x16x16_bf16 {vr(O0, 4)}, {vr(V0, 2)}, {vr(BM, 2)}, {vr(O0, 4)}')
    KVq(True)
    a(f'v_fma_f32 v{SM}, v{SY}, 0.5, v{SM}')
    a(f'v_mfma_f32_16x16x16_bf16 {vr(O1, 4)}, {vr(V0 + 2, 2)}, {vr(BM, 2)}, {vr(O1, 4)}')
    ACC2 = [Q0, K0, Q1, K1, V1]
    zero(a, Q0, 2)
    a(f'v_add_f32_dpp v{SM}, v{SM}, v{SM} row_ror:8 row_mask:0xf bank_mask:0xf')
    a(f'v_mov_b32 v{SY}, v{SM}')
    M()
    zero(a, Q0 + 2, 4)
    a(f'v_permlane16_swap_b32 v{SM}, v{SY}')
    a(f'v_add_f32 v{SM}, v{SM}, v{SY}')
    a(f'v_mov_b32 v{SY}, v{SM}')
    KVq(True)
    if OPT.get('kvlat'):
        stamp('kv0')
        a('s_waitcnt vmcnt(0)')
        stamp('kv1')
    zero(a, K0 + 2, 4)
    a(f'v_permlane32_swap_b32 v{SM}, v{SY}')
    a(f'v_add_f32 v{SM}, v{SM}, v{SY}')
    a(f'v_rcp_f32 v{SM}, v{SM}')
    M()
    for o in (O0, O0 + 2, O1, O1 + 2):
        a(f'v_pk_mul_f32 {vr(o, 2)}, {vr(o, 2)}, {vr(SM, 2)} op_sel_hi:[1,0]')
    OP = V0
    for r in range(4):
        cvt(OP + r, O0 + r, O1 + r)
    a(f's_mov_b64 exec, s[{sMASK}:{sMASK + 1}]')
    tr.ds(f'ds_write_b128 v{VW}, {vr(OP, 4)}', 'ow')
    a('s_mov_b64 exec, -1')
    KVq(True)
    stamp('b3a')
    OA = [OP, GM[1], GM[2], GM[0]]
    PQr, PPr = T1, T2

    def pack2(x):
        b = ACC2[2 * x]
        for r in (0, 2, 1, 3):
            cvt(b + r, b + r, b + 4 + r)
        for r in (0, 2):
            a(f'v_and_or_b32 v{b + r}, v{b + r}, -2, s{sEP}')
        tr.vmem(f'buffer_store_dwordx4 {vr(b, 4)}, v{PQr}, {WS}, s{sPST1 if x else sPST} offen{sc}', 'ps')

    a(f'v_and_b32 v{T0}, 0xffff, v{ORDTMR}')
    seq2 = [(U, 0) for U in range(5)] + [(U, n) for U in range(5) for n in (1, 2, 3)]
    RS, RDD = GM[2], GM[1]
    for i, (U, n) in enumerate(seq2):
        if U == 0 and n > 0:
            tr.wait_lg(('oa', n))
        smf(a, ACC2[U], OA[n], ('o', U, n))
        if i == 0:
            M()
            zero(a, Q1 + 2, 2)
            zero(a, K1, 2)
            a(f'v_xor_b32 v{T1}, {MST}, v{T0}')
        if i == 1:
            zero(a, K1 + 2, 2)
            zero(a, V1, 2)
            a(f'v_xor_b32 v{T2}, {2 * MST}, v{T0}')
        if i == 2:
            zero(a, V1 + 2, 2)
            a(f'v_xor_b32 v{T0}, {3 * MST}, v{T0}')
            tr.wait_lg('ow')
            a('s_barrier')
            stamp(5)
            for k, ad in ((1, T1), (2, T2), (3, T0)):
                tr.ds(f'ds_read_b128 {vr(OA[k], 4)}, v{ad}', ('oa', k))
        if i == 3:
            assert not mq and not kvq, (mq, kvq)
            a(f'v_and_b32 v{PQr}, 0xffff, v{PQPP}')
        if i == 4:
            a(f'v_lshrrev_b32 v{PPr}, 16, v{PQPP}')
        if i in (5, 8, 11, 15):
            M()
        if i == 6:
            a(f'v_and_b32 v{T0}, 0xf0, v{L16}')
        if i == 7:
            a(f'v_ashrrev_i32 v{T3}, 16, v{IDX}')
        if i == 9:
            a(f'v_lshl_add_u32 v{T0}, s{sRS}, 8, v{T0}')
        if i == 19:
            a(f'ds_read_b128 {vr(RS, 4)}, v{T0} offset:{LRSEL}')
        if i == 12:
            pack2(0)
        if i == 18:
            pack2(1)
    assert not mq
    RA_ = [Q0, K0, Q1, K1]
    b = ACC2[4]
    cvt(b, b, b + 1)
    cvt(b + 1, b + 2, b + 3)
    a(f'v_and_or_b32 v{b}, v{b}, -2, s{sEP}')
    tr.vmem(f'buffer_store_dwordx2 {vr(b, 2)}, v{PPr}, {WS}, s{sPST2} offen{sc}', 'ps')
    stamp(6)
    skip = f'{name}_nored'
    a(f's_mov_b32 s{sSPIN}, 0')
    a(f's_cmp_eq_u32 s{sHASRED}, 0')
    a(f's_cbranch_scc1 {skip}')
    rl = f'{name}_rpoll'
    rg = f'{name}_rgo'

    def rloads(regs):
        for j in range(4):
            a(f'buffer_load_dwordx4 {vr(regs[j], 4)}, v{L16}, {WS}, s{sRED} offen' + (f' offset:{1024 * j}' if j else '') + ' sc1')

    def rcheck(regs, ep):
        op = (lambda d, x, y, z: f'v_bitop3_b32 v{d}, v{x}, v{y}, v{z} bitop3:0x80') if ep else \
             (lambda d, x, y, z: f'v_or3_b32 v{d}, v{x}, v{y}, v{z}')
        for j in range(4):
            r = regs[j]
            a(f's_waitcnt vmcnt({3 - j})' + (' lgkmcnt(0)' if j == 0 else ''))
            a(f'v_mfma_f32_16x16x32_bf16 {vr(RDD, 4)}, {vr(RS, 4)}, {vr(r, 4)}, ' + (vr(RDD, 4) if j else '0'))
            a(op(T0, r, r + 2, r if j == 0 else T0))
        a(f'v_and_b32 v{T0}, 1, v{T0}')
        a(f'v_cmp_ne_u32 vcc, {ep}, v{T0}')
        a(f's_cbranch_vccz {rg}')

    if not OPT.get('noack'):
        a('s_waitcnt vmcnt(0)')
    for _ in range(int(OPT.get('rdelay', '0'))):
        a('s_nop 15')
    a(f's_cmp_eq_u32 s{sEP}, 0')
    a(f's_cbranch_scc1 {rl}0')
    for ep in (1, 0):
        a.label(f'{rl}{ep}')
        rloads(RA_)
        a(f's_add_u32 s{sSPIN}, s{sSPIN}, 1')
        rcheck(RA_, ep)
        a(f's_cmp_lt_u32 s{sSPIN}, {SPINMAX}')
        a(f's_cbranch_scc1 {rl}{ep}')
        if ep == 1:
            a(f's_branch {rg}')
    a.label(rg)
    stamp('rg')
    a('s_nop 4')
    for r in range(4):
        a(f'v_add_f32_dpp v{RDD + r}, v{RDD + r}, v{RDD + r} row_ror:8 row_mask:0xf bank_mask:0xf')
    cvt(RDD, RDD, RDD + 1)
    cvt(RDD + 1, RDD + 2, RDD + 3)
    a(f'buffer_store_dword v{RDD}, v{T3}, {WS}, s{sMW} offen{sc}')
    a(f'buffer_store_dword v{RDD + 1}, v{T3}, {WS}, s{sMW} offen offset:16{sc}')
    a.label(skip)
    if timing:
        stamp(7)
        a('s_waitcnt lgkmcnt(0)')
        assert len(used) <= 13
        OPT['used'] = used
        for i in range(len(used) - 1):
            a(f's_sub_u32 s{sTMP}, s{66 + 2 * i}, s{64 + 2 * i}')
            a(f's_add_u32 s{90 + i}, s{90 + i}, s{sTMP}')
    zero(a, Q0, 24)
    if not OPT.get('nomack'):
        a('s_waitcnt vmcnt(0)')
    a('s_barrier')
    a(f's_cmp_lt_u32 s{sSTEP}, s{sNSTEP}')
    a(f's_cbranch_scc1 {top}')
    a(f's_branch {name}_exit')
    for k, ok, rt in side:
        g = GM[k]
        a.label(rt)
        a(ld[k])
        a(f's_add_u32 s{sSPIN}, s{sSPIN}, 1')
        a(f's_cmp_lt_u32 s{sSPIN}, {SPINMAX}')
        a('s_waitcnt vmcnt(0)')
        a(f's_cbranch_scc0 {ok}')
        a(f'v_max3_u32 v{T0}, v{g}, v{g + 1}, v{g + 2}')
        a(f'v_max_u32 v{T0}, v{T0}, v{g + 3}')
        a(f'v_cmp_eq_u32 vcc, -1, v{T0}')
        a(f's_cbranch_vccnz {rt}')
        a(f's_branch {ok}')
    if not OPT.get('nopub'):
        a.label(f'{name}_pub')
        for d in range(6):
            k = d >> 1
            buf = (GM[1], GM[2], GM[0])[k]
            if d < 5:
                a(f's_cmp_eq_u32 s{sMCP}, {d}')
                a(f's_cbranch_scc0 {name}_pub{d + 1}')
            if d & 1:
                a(f'v_mov_b64 {vr(V1, 2)}, -1')
                a(f'v_mov_b64 {vr(V1 + 2, 2)}, -1')
                a(f's_add_u32 s{sTMP}, s{sMCO + k}, s{sMRP}')
                a(f'buffer_store_dwordx4 {vr(V1, 4)}, v{L16}, {WS}, s{sTMP} offen{sc}')
            else:
                a(f's_add_u32 s{sTMP}, s{sMCO + k}, s{sMCB}')
                a(f'buffer_store_dwordx4 {vr(buf, 4)}, v{L16}, {WS}, s{sTMP} offen sc1')
            a(f's_branch {name}_mokpub')
            if d < 5:
                a.label(f'{name}_pub{d + 1}')
    a.label(f'{name}_exit')
```

```python
KA_X, KA_MEM0, KA_WQ, KA_WK, KA_WV, KA_WO, KA_SEG, KA_BX, KA_W1, KA_B1, KA_W2, KA_B2, KA_OUT, KA_DBG, KA_WS = \
    [8 * i for i in range(15)]

WS_SIZE = 268435456
WS_FLAGS = 0
WS_M0 = 0x10000
WS_MRING = 0x14000
MSLOT = 0x2800
WS_PRING = 0x20000
PSLOT = 327680
WS_SPILL = 0x400000
NSTR = 10
WS_STREAM = 0x70000
LAYER0 = 0x1000000
LSTRIDE = 0x6000000
L_XN = 0
L_KB = 0x0300000
L_VB = 0x1300000
L_Q = 0x2300000
L_MC = 0x3300000
L_O = 0x3B00000
L_X1 = 0x4B00000
L_HT = 0x4E00000
L_U = 0x5100000
L_X2 = 0x5400000

FSTRIDE = 0x8000
FL_KV = 0
FL_XN = 0x800
FL_X2 = 0x900
FL_HH = 0x1000
FL_U = 0x1800
FL_X1 = 0x2000
FL_O = 0x4000
WS_W2F = 0x800000
FL_W2 = 0x1C00
NWO, NLN, NG1 = 60, 8, 90
```

```python
from asmlib import *
from layout import *
from common import *
from chain import Track, f32
import chain as C
from small import tr_lane_addr, CM_NAT, CM_PI, CM_SIG, unpack, ln_pass, rbf
from bulk import *

WS = f's[{S_WS}:{S_WS + 3}]'
sBP = 40
sOUTP = 48
S_B = 52


def wait_all(a, off, ndw, tb=100):
    L = a.newlabel('wa')
    a(f's_mov_b32 s{sSPIN}, 0')
    a(f's_mov_b32 s{sT}, {off}')
    a(f'v_lshlrev_b32 v{T3}, 2, v{LN}')
    a.label(L)
    a(f'buffer_load_dwordx4 {vr(tb, 4)}, v{L16}, {WS}, s{sT} offen sc1')
    a('s_waitcnt vmcnt(0)')
    if ndw % 4:
        for k in range(4):
            a(f'v_cmp_le_u32 vcc, {ndw - k}, v{T3}' if ndw - k <= 64 else f'v_cmp_le_u32 vcc, 0x{ndw - k:x}, v{T3}')
            a(f'v_cndmask_b32 v{tb + k}, v{tb + k}, 1, vcc' if False else f'v_cndmask_b32_e64 v{tb + k}, v{tb + k}, 1, vcc')
    a(f'v_min3_u32 v{tb}, v{tb}, v{tb + 1}, v{tb + 2}')
    a(f'v_min_u32 v{tb}, v{tb}, v{tb + 3}')
    a(f'v_cmp_eq_u32 vcc, 0, v{tb}')
    if ndw < 256 and ndw % 4 == 0:
        a(f's_and_b64 vcc, vcc, {(1 << (ndw // 4)) - 1}')
    a(f's_add_u32 s{sSPIN}, s{sSPIN}, 1')
    a(f's_cbranch_vccz {L}_ok')
    a('s_sleep 4')
    a(f's_cmp_lt_u32 s{sSPIN}, 0x40000')
    a(f's_cbranch_scc1 {L}')
    a.label(f'{L}_ok')


def set_flag(a, off_sgpr):
    a('s_waitcnt vmcnt(0)')
    a('s_barrier')
    L = a.newlabel('sf')
    a(f's_cmp_eq_u32 s{sWV}, 0')
    a(f's_cbranch_scc0 {L}')
    a(f'v_mov_b32 v{T2}, 1')
    a(f'buffer_store_dword v{T2}, off, {WS}, s{off_sgpr} sc1')
    a.label(L)


def ln2_role(a, lb, fb):
    sK, sSEG = sBLK, sR
    a(f's_sub_u32 s{sK}, s{sGI}, {NWO}')
    a(f's_lshr_b32 s{sSEG}, s{sK}, 2')
    a(f's_and_b32 s{sK}, s{sK}, 3')
    AD = 6
    a('v_lshrrev_b32 v7, 5, v0')
    a(f's_lshl_b32 s{sT}, s{sK}, 3')
    a(f'v_add_u32 v7, s{sT}, v7')
    a(f'v_mul_u32_u24 v{AD}, 0x500, v7')
    a('v_and_b32 v7, 31, v0')
    a(f'v_lshl_add_u32 v{AD}, v7, 3, v{AD}')
    top = a.newlabel('ln2')
    a.label(top)
    a(f's_lshl_b32 s{sT}, s{sSEG}, 6')
    a(f's_add_u32 s{sT}, s{sT}, {fb + FL_X1}')
    wait_flag(a, sT, 20)
    P, X, S, T, U = 10, 20, 7, 8, 9
    a(f's_mul_i32 s{sXO}, s{sSEG}, 40960')
    a(f's_add_u32 s{sU}, s{sXO}, {lb + L_X1}')
    for j in range(5):
        a(f'buffer_load_dwordx2 {vr(P + 2 * j, 2)}, v{AD}, {WS}, s{sU} offen offset:{256 * j} sc1')
    a('s_waitcnt vmcnt(0)')
    for _ in range(2):
        unpack(a, X, P, 10)
        ln_pass(a, X, P, S, T, U)
    a(f's_add_u32 s{sU}, s{sXO}, {lb + L_HT}')
    for j in range(5):
        a(f'buffer_store_dwordx2 {vr(P + 2 * j, 2)}, v{AD}, {WS}, s{sU} offen offset:{256 * j} sc1')
    a(f's_lshl_b32 s{sT}, s{sSEG}, 4')
    a(f's_lshl_b32 s{sU}, s{sK}, 2')
    a(f's_add_u32 s{sT}, s{sT}, s{sU}')
    a(f's_add_u32 s{sT}, s{sT}, {fb + FL_HH}')
    set_flag(a, sT)
    a(f's_add_u32 s{sSEG}, s{sSEG}, {NLN // 4}')
    a(f's_cmp_lt_u32 s{sSEG}, 64')
    a(f's_cbranch_scc1 {top}')


def gelu(a, b, n, u, v, c1, c2):
    for r in range(n):
        a(f'v_mul_f32 v{u + r}, v{b + r}, v{b + r}')
    for r in range(n):
        a(f'v_mov_b32 v{v + r}, s{c1}')
        a(f'v_fmac_f32 v{v + r}, s{c2}, v{u + r}')
    for r in range(n):
        a(f'v_mul_f32 v{u + r}, v{v + r}, v{b + r}')
    for r in range(n):
        a(f'v_exp_f32 v{u + r}, v{u + r}')
    for r in range(n):
        a(f'v_add_f32 v{u + r}, 1.0, v{u + r}')
    for r in range(n):
        a(f'v_rcp_f32 v{u + r}, v{u + r}')
    for r in range(n):
        a(f'v_mul_f32 v{b + r}, v{b + r}, v{u + r}')


def w2f_prep(a):
    done = a.newlabel('w2d')
    sK = sBLK
    a(f's_sub_u32 s{sK}, s{sGI}, {NWO + NLN}')
    a(f's_cmp_ge_u32 s{sK}, 64')
    a(f's_cbranch_scc1 {done}')
    srd(a, S_WA, sBP + 4, 2048 * 1728 * 2)
    VS, RA = 6, 7
    a(f'v_lshrrev_b32 v{T1}, 2, v{LN}')
    a(f'v_lshlrev_b32 v{T1}, 12, v{T1}')
    a(f'v_and_b32 v{T2}, 3, v{LN}')
    a(f'v_lshl_add_u32 v{VS}, v{T2}, 4, v{T1}')
    tr_lane_addr(a, RA, LN, T1, T2, 64, CM_PI, None)
    a(f's_lshl_b32 s{sV}, s{sWV}, 15')
    a(f'v_add_u32 v{RA}, s{sV}, v{RA}')
    a(f's_mul_i32 s{sWO}, s{sWV}, {27 * 16 * 4096}')
    a(f's_lshl_b32 s{sU}, s{sK}, 6')
    a(f's_add_u32 s{sWO}, s{sWO}, s{sU}')
    a('s_barrier')
    for i in range(27):
        a(f's_add_u32 m0, s{sV}, {i * 1024}')
        a(f'buffer_load_dwordx4 v{VS}, s[{S_WA}:{S_WA + 3}], s{sWO} offen lds')
        a(f's_add_u32 s{sWO}, s{sWO}, {16 * 4096}')
    a(f's_mul_i32 s{sXO}, s{sK}, {108 * 1024}')
    a(f's_mul_i32 s{sU}, s{sWV}, {27 * 1024}')
    a(f's_add_u32 s{sXO}, s{sXO}, s{sU}')
    a(f's_add_u32 s{sXO}, s{sXO}, {WS_W2F}')
    a('s_waitcnt vmcnt(0)')
    for i in range(27):
        for u in range(2):
            a(f'ds_read_b64_tr_b16 {vr(16 + 4 * i + 2 * u, 2)}, v{RA} offset:{i * 1024 + 256 * u}')
        if i % 7 == 6:
            a('s_waitcnt lgkmcnt(0)')
    a('s_waitcnt lgkmcnt(0)')
    for i in range(27):
        if i % 4 == 0 and i:
            a(f's_add_u32 s{sXO}, s{sXO}, 4096')
        a(f'buffer_store_dwordx4 {vr(16 + 4 * i, 4)}, v{L16}, {WS}, s{sXO} offen offset:{(i % 4) * 1024} sc1')
    a(f's_lshl_b32 s{sT}, s{sK}, 2')
    a(f's_add_u32 s{sT}, s{sT}, {WS_FLAGS + FL_W2}')
    set_flag(a, sT)
    a.label(done)


def wait_words(a, off_sgpr, n, tmp):
    L = a.newlabel('ww')
    a(f's_mov_b32 s{sSPIN}, 0')
    a.label(L)
    a(f'buffer_load_dword v{tmp}, v{T3}, {WS}, s{off_sgpr} offen sc1')
    a('s_waitcnt vmcnt(0)')
    a(f'v_cmp_eq_u32 vcc, 0, v{tmp}')
    a(f's_add_u32 s{sSPIN}, s{sSPIN}, 1')
    if n < 32:
        a(f's_and_b32 s{sU}, vcc_lo, {(1 << n) - 1}')
        a(f's_cbranch_scc0 {L}_ok')
    else:
        assert n == 64
        a(f's_cbranch_vccz {L}_ok')
    a('s_sleep 2')
    a(f's_cmp_lt_u32 s{sSPIN}, 0x80000')
    a(f's_cbranch_scc1 {L}')
    a.label(f'{L}_ok')


def g1p_role(a, lb, fb):
    sXT, sYT, sSEG, sFL = sBLK, sH, sR, sKS
    a(f's_sub_u32 s{sT}, s{sGI}, {NWO + NLN}')
    a(f's_mul_i32 s{sXT}, s{sT}, 13108')
    a(f's_lshr_b32 s{sXT}, s{sXT}, 16')
    a(f's_mul_i32 s{sU}, s{sXT}, 5')
    a(f's_sub_u32 s{sYT}, s{sT}, s{sU}')
    srd(a, S_WA, sBP, 2048 * 1728 * 2)
    srd(a, S_B, sBP + 2, 1728 * 2)
    VX, VY, RX, RY = [6, 7], [8, 9], 10, 11
    a(f's_mov_b32 s{sV}, 5462')
    a(f's_movk_i32 s{sU}, 3456')
    a(f's_mul_i32 s{sT}, s{sXT}, 192')
    for k in range(2):
        a(f'v_add_u32 v{T1}, {256 * k}, v0')
        a(f'v_mul_lo_u32 v{T2}, v{T1}, s{sV}')
        a(f'v_lshrrev_b32 v{T2}, 16, v{T2}')
        a(f'v_mul_u32_u24 v{T3}, 12, v{T2}')
        a(f'v_sub_u32 v{T1}, v{T1}, v{T3}')
        a(f'v_mul_lo_u32 v{T2}, v{T2}, s{sU}')
        a(f'v_lshl_add_u32 v{T2}, v{T1}, 4, v{T2}')
        a(f'v_add_u32 v{VX[k]}, s{sT}, v{T2}')
    a(f's_lshl_b32 s{sT}, s{sYT}, 8')
    for k in range(2):
        a(f'v_add_u32 v{T1}, {256 * k}, v0')
        a(f'v_lshrrev_b32 v{T2}, 4, v{T1}')
        a(f'v_and_b32 v{T1}, 15, v{T1}')
        a(f'v_and_b32 v{T3}, 3, v{T2}')
        a(f'v_lshlrev_b32 v{T3}, 2, v{T3}')
        a(f'v_xor_b32 v{T1}, v{T1}, v{T3}')
        a(f'v_mul_u32_u24 v{T2}, 0x500, v{T2}')
        a(f'v_lshl_add_u32 v{T2}, v{T1}, 4, v{T2}')
        a(f'v_add_u32 v{VY[k]}, s{sT}, v{T2}')
    tr_lane_addr(a, RX, LN, T1, T2, 192, CM_SIG)
    tr_lane_addr(a, RY, LN, T1, T2, 256, CM_PI, w_swz(a))
    a(f's_lshl_b32 s{sT}, s{sWV}, 6')
    a(f'v_xor_b32 v{RY}, s{sT}, v{RY}')
    a(f'v_lshlrev_b32 v{T3}, 2, v{LN}')
    BI = 40
    a(f'v_lshrrev_b32 v{T1}, 5, v{LN}')
    a(f'v_lshlrev_b32 v{T1}, 4, v{T1}')
    a(f's_mul_i32 s{sT}, s{sXT}, 192')
    for i in range(6):
        a(f'buffer_load_dwordx4 {vr(BI + 4 * i, 4)}, v{T1}, s[{S_B}:{S_B + 3}], s{sT} offen offset:{32 * i}')
    for r in range(48):
        a(f'v_accvgpr_write_b32 a{r}, 0')
    XL = [0, 8192]
    YL = 16384
    a(f's_mov_b32 s{sXO}, 0')
    a(f's_mov_b32 s{sWO}, {lb + L_HT}')
    a(f's_mov_b32 s{sFL}, {fb + FL_HH}')
    a(f's_mov_b32 s{sSEG}, 0')

    def dx(par):
        for k in range(2):
            a(f's_add_u32 m0, s{sLW}, {XL[par] + 4096 * k}')
            a(f'buffer_load_dwordx4 v{VX[k]}, s[{S_WA}:{S_WA + 3}], s{sXO} offen lds')
        a(f's_add_u32 s{sXO}, s{sXO}, {32 * 3456}')

    a('s_barrier')
    dx(0)
    top = a.newlabel('g1p')
    a.label(top)
    FRG = 16
    for par in range(2):
        wait_words(a, sFL, 4, 12)
        for k in range(2):
            a(f's_add_u32 m0, s{sLW}, {YL + 4096 * k}')
            a(f'buffer_load_dwordx4 v{VY[k]}, {WS}, s{sWO} offen sc1 lds')
        dx(1 - par)
        a(f's_add_u32 s{sWO}, s{sWO}, 40960')
        a(f's_add_u32 s{sFL}, s{sFL}, 16')
        a('s_waitcnt vmcnt(2)')
        a('s_barrier')
        for ks in range(2):
            b = FRG if ks == 0 else 12 + 0
            b = FRG + 0 if ks == 0 else 64
            for u in range(2):
                a(f'ds_read_b64_tr_b16 {vr(b + 12 + 2 * u, 2)}, v{RY} offset:{YL + (16 * ks + 4 * u) * 256}')
            for x in range(3):
                for u in range(2):
                    a(f'ds_read_b64_tr_b16 {vr(b + 4 * x + 2 * u, 2)}, v{RX} offset:{XL[par] + (16 * ks + 4 * u) * 192 + 64 * x}')
        for ks in range(2):
            b = FRG if ks == 0 else 64
            a(f's_waitcnt lgkmcnt({8 if ks == 0 else 0})')
            for x in range(3):
                acc = ar(16 * x, 16)
                a(f'v_mfma_f32_32x32x16_bf16 {acc}, {vr(b + 4 * x, 4)}, {vr(b + 12, 4)}, {acc}')
        a('s_barrier')
    a(f's_add_u32 s{sSEG}, s{sSEG}, 2')
    a(f's_cmp_lt_u32 s{sSEG}, 64')
    a(f's_cbranch_scc1 {top}')
    a(f's_lshl_b32 s{sT}, s{sYT}, 2')
    a(f's_add_u32 s{sT}, s{sT}, s{sWV}')
    a(f's_mul_i32 s{sV}, s{sT}, {108 * 1024}')
    a(f's_mul_i32 s{sT}, s{sXT}, 6144')
    a(f's_add_u32 s{sV}, s{sV}, s{sT}')
    a(f's_add_u32 s{sV}, s{sV}, {lb + L_U}')
    a(f's_mov_b32 s{sT}, {f32(-2.0 * 1.4426950408889634 * 0.7978845608028654)}')
    a(f's_mov_b32 s{sXO}, {f32(-2.0 * 1.4426950408889634 * 0.7978845608028654 * 0.044715)}')
    b, u, v, PK = 64, 80, 96, 16
    for x in range(3):
        pk = PK + 8 * x
        for r in range(16):
            a(f'v_accvgpr_read_b32 v{b + r}, a{16 * x + r}')

        def pack():
            for r in range(8):
                a(f'v_cvt_pk_bf16_f32 v{pk + r}, v{b + 2 * r}, v{b + 2 * r + 1}')
        pack()
        unpack(a, b, pk, 8)
        unpack(a, u, BI + 8 * x, 8)
        for r in range(0, 16, 2):
            a(f'v_pk_add_f32 {vr(b + r, 2)}, {vr(b + r, 2)}, {vr(u + r, 2)}')
        pack()
        unpack(a, b, pk, 8)
        gelu(a, b, 8, u, BI + 8 * x, sT, sXO)
        gelu(a, b + 8, 8, u + 8, BI + 8 * x, sT, sXO)
        pack()
        if x == 2:
            a(f's_add_u32 s{sV}, s{sV}, 4096')
        for m in range(2):
            a(f'buffer_store_dwordx4 {vr(pk + 4 * m, 4)}, v{L16}, {WS}, s{sV} offen offset:{((2 * x + m) % 4) * 1024} sc1')
    a(f's_lshl_b32 s{sT}, s{sGI}, 2')
    a(f's_add_u32 s{sT}, s{sT}, {fb + FL_U - 4 * (NWO + NLN)}')
    set_flag(a, sT)


UV0, STG = 56, 24
WLDS = 24576
sW = [72, 73, 74, 75]
sUu = [76, 77]
sOW, sOU = 78, 79


def adv27(a, r):
    a(f's_add_u32 s{r}, s{r}, 4096')
    a(f's_cmp_eq_u32 s{r}, {27 * 4096}')
    a(f's_cselect_b32 s{r}, 0, s{r}')


def wreg(i, x):
    if i < 8 or 16 <= i < 24:
        return ar(128 + 16 * (i % 8) + 4 * x, 4)
    if i < 16:
        return vr(STG + 16 * (i & 1) + 4 * x, 4)
    return vr(UV0 + 16 + 16 * (i - 24) + 4 * x, 4)


def g2_tile(a):
    a(f's_mul_i32 s{sBLK}, s{sGI}, 6554')
    a(f's_lshr_b32 s{sBLK}, s{sBLK}, 16')
    a(f's_mul_i32 s{sT}, s{sBLK}, 10')
    a(f's_sub_u32 s{sH}, s{sGI}, s{sT}')


def g2_pre(a, first):
    g2_tile(a)
    a(f'v_lshlrev_b32 v{T3}, 2, v{LN}')
    if first:
        a(f's_lshl_b32 s{sT}, s{sBLK}, 4')
        a(f's_add_u32 s{sT}, s{sT}, {WS_FLAGS + FL_W2}')
        wait_words(a, sT, 4, 12)
    a(f's_mul_i32 s{sT}, s{sBLK}, {4 * 108 * 1024}')
    a(f's_add_u32 s{sT}, s{sT}, s{sLW}')
    for x in range(4):
        a(f's_add_u32 s{sW[x]}, s{sT}, {WS_W2F + x * 108 * 1024}')
    a(f's_mul_i32 s{sOW}, s{sBLK}, 21846')
    a(f's_lshr_b32 s{sOW}, s{sOW}, 16')
    a(f's_mul_i32 s{sOW}, s{sOW}, 3')
    a(f's_sub_u32 s{sOW}, s{sBLK}, s{sOW}')
    a(f's_mul_i32 s{sOW}, s{sOW}, {9 * 4096 if not C.OPT.get("norot") else 0}')
    a(f's_mov_b32 s{sOU}, s{sOW}')
    a(f's_lshl_b32 s{sU}, s{sWV}, 15')
    for i in range(16):
        if i == 12:
            a('s_waitcnt vmcnt(32)')
        for x in range(4):
            a(f's_add_u32 s{sT}, s{sW[x]}, s{sOW}')
            if i < 8:
                a(f'buffer_load_dwordx4 {wreg(i, x)}, v{L16}, {WS}, s{sT} offen sc1')
            else:
                a(f's_add_u32 m0, s{sU}, {WLDS + (i - 8) * 4096 + x * 1024}')
                a(f'buffer_load_dwordx4 v{L16}, {WS}, s{sT} offen sc1 lds')
        adv27(a, sOW)
    if not C.OPT.get('nowarm'):
        a(f's_mov_b32 s{sV}, s{sOW}')
        for i in range(11):
            lab = a.newlabel('wm')
            a(f's_cmp_eq_u32 s{sH}, {i % 10}')
            a(f's_cbranch_scc0 {lab}')
            for x in range(4):
                a(f's_add_u32 s{sT}, s{sW[x]}, s{sV}')
                a(f'buffer_load_dwordx4 v[12:15], v{L16}, {WS}, s{sT} offen sc1')
            a.label(lab)
            adv27(a, sV)
        a('s_waitcnt vmcnt(0)')


def g2_phase(a, lb, fb, final):
    sXT, sYT = sBLK, sH
    g2_tile(a)
    srd(a, S_B, sBP + 6, 2048 * 2)
    a(f's_mul_i32 s{sT}, s{sYT}, {2 * 108 * 1024}')
    a(f's_add_u32 s{sT}, s{sT}, s{sLW}')
    for y in range(2):
        a(f's_add_u32 s{sUu[y]}, s{sT}, {lb + L_U + y * 108 * 1024}')
    tr = Track(a)

    def ureg(i, y):
        return vr(UV0 + 8 * (i % 25) + 4 * y, 4)

    def ldw(i):
        for x in range(4):
            a(f's_add_u32 s{sT}, s{sW[x]}, s{sOW}')
            tr.vmem(f'buffer_load_dwordx4 {wreg(i, x)}, v{L16}, {WS}, s{sT} offen sc1', ('w', i))
        adv27(a, sOW)

    def ldu(i):
        for y in range(2):
            a(f's_add_u32 s{sT}, s{sUu[y]}, s{sOU}')
            tr.vmem(f'buffer_load_dwordx4 {ureg(i, y)}, v{L16}, {WS}, s{sT} offen sc1', ('u', i))
        adv27(a, sOU)

    CO, DO, BI, XA, RES = 6, 7, 8, 9, 24
    a(f'v_and_b32 v{T1}, 31, v{LN}')
    a(f'v_lshrrev_b32 v{T2}, 5, v{LN}')
    a(f'v_and_b32 v{CO}, 3, v{LN}')
    a(f'v_bfe_u32 v10, v{LN}, 3, 2')
    a(f'v_lshl_add_u32 v{CO}, v10, 2, v{CO}')
    a(f'v_bfe_u32 v10, v{LN}, 2, 1')
    a(f'v_lshl_add_u32 v{CO}, v10, 4, v{CO}')
    a(f's_lshl_b32 s{sT}, s{sXT}, 2')
    a(f's_add_u32 s{sT}, s{sT}, s{sWV}')
    a(f's_lshl_b32 s{sU}, s{sT}, 5')
    a(f'v_add_u32 v{CO}, s{sU}, v{CO}')
    a(f's_movk_i32 s{sU}, 1280')
    a(f'v_mul_lo_u32 v{DO}, v{CO}, s{sU}')
    a(f'v_lshl_add_u32 v{DO}, v{T2}, 5, v{DO}')
    a(f's_lshl_b32 s{sU}, s{sYT}, 7')
    a(f'v_add_u32 v{DO}, s{sU}, v{DO}')
    a(f'v_lshlrev_b32 v{XA}, 10, v{T2}')
    a(f'v_lshl_add_u32 v{XA}, v{T1}, 4, v{XA}')
    a(f's_mul_i32 s{sV}, s{sT}, 40960')
    a(f's_lshl_b32 s{sU}, s{sYT}, 12')
    a(f's_add_u32 s{sV}, s{sV}, s{sU}')
    a(f's_add_u32 s{sV}, s{sV}, {lb + L_X2}')
    a(f'v_lshlrev_b32 v{T1}, 1, v{CO}')
    for r in range(128):
        a(f'v_accvgpr_write_b32 a{r}, 0')
    tr.vmem(f'buffer_load_ushort v{BI}, v{T1}, s[{S_B}:{S_B + 3}], 0 offen', 'bias')
    wait_all(a, fb + FL_U, NG1, 12)
    wstamp(a, 6)
    tr.vm = []
    late = []
    for i in range(25):
        ldu(i)
    a(f's_lshl_b32 s{sU}, s{sWV}, 15')
    a(f's_add_u32 s{sU}, s{sU}, {WLDS}')
    a(f'v_add_u32 v10, s{sU}, v{L16}')

    def stage(i):
        for x in range(4):
            tr.ds(f'ds_read_b128 {wreg(i, x)}, v10 offset:{(i - 8) * 4096 + x * 1024}', ('w', i))
    stage(8)
    stage(9)
    for i in range(27):
        tr.wait_vm(('w', i))
        tr.wait_vm(('u', i))
        tr.wait_lg(('w', i))
        for x in range(4):
            for y in range(2):
                acc = ar(16 * (2 * x + y), 16)
                a(f'v_mfma_f32_32x32x16_bf16 {acc}, {ureg(i, y)}, {wreg(i, x)}, {acc}')
        if i < 8:
            ldw(i + 16)
        if i < 2:
            pass
        if i in (3, 5, 7):
            late.append(24 + (i - 3) // 2)
        if i == 8:
            for j in late:
                ldw(j)
            ldu(25)
            ldu(26)
        if 8 <= i < 14:
            stage(i + 2)
        if i == 16:
            a(f's_mov_b32 s{sU}, {lb + L_X1}')
            for y in range(2):
                for q in range(2):
                    tr.vmem(f'buffer_load_dwordx4 {vr(RES + 8 * y + 4 * q, 4)}, v{DO}, {WS}, s{sU} offen offset:{64 * y + 16 * q} sc1', 'res')
    tr.drain_vm()
    wstamp(a, 4)
    a('s_barrier')
    WA = [12, 13]
    a(f's_lshl_b32 s{sT}, s{sWV}, 12')
    a(f'v_add_u32 v{WA[0]}, s{sT}, v{L16}')
    a(f'v_add_u32 v{WA[1]}, 0x10000, v{WA[0]}')
    a(f's_lshl_b32 s{sT}, s{sWV}, 15')
    a(f'v_add_u32 v14, s{sT}, v{L16}')
    a('s_nop 7')
    for x in range(4):
        for y in range(2):
            for q in range(4):
                off = x * 32768 + y * 16384 + q * 1024
                tr.ds(f'ds_write_b128 v{WA[off >> 16]}, {ar(16 * (2 * x + y) + 4 * q, 4)} offset:{off & 0xffff}')
    tr.drain_lg()
    a('s_barrier')
    RB = 100
    for j in range(2):
        for w in range(4):
            for q in range(4):
                tr.ds(f'ds_read_b128 {vr(RB + 64 * j + 16 * w + 4 * q, 4)}, v14 offset:{j * 16384 + w * 4096 + q * 1024}', ('rr', j, w))
    a(f'v_lshlrev_b32 v{BI}, 16, v{BI}')
    if final:
        srd(a, S_WA, sOUTP, 2048 * 640 * 2)
    for j in range(2):
        b = RB + 64 * j
        tr.wait_lg(('rr', j, 1))
        for h in range(0, 16, 2):
            a(f'v_pk_add_f32 {vr(b + h, 2)}, {vr(b + h, 2)}, {vr(b + 16 + h, 2)}')
        tr.wait_lg(('rr', j, 3))
        for h in range(0, 16, 2):
            a(f'v_pk_add_f32 {vr(b + 32 + h, 2)}, {vr(b + 32 + h, 2)}, {vr(b + 48 + h, 2)}')
        for h in range(0, 16, 2):
            a(f'v_pk_add_f32 {vr(b + h, 2)}, {vr(b + h, 2)}, {vr(b + 32 + h, 2)}')
        PK = b + 16

        def pack():
            for r in range(8):
                a(f'v_cvt_pk_bf16_f32 v{PK + r}, v{b + 2 * r}, v{b + 2 * r + 1}')
        pack()
        unpack(a, b, PK, 8)
        for r in range(16):
            a(f'v_add_f32 v{b + r}, v{b + r}, v{BI}')
        pack()
        unpack(a, b, PK, 8)
        unpack(a, b + 32, RES + 8 * j, 8)
        for r in range(0, 16, 2):
            a(f'v_pk_add_f32 {vr(b + r, 2)}, {vr(b + r, 2)}, {vr(b + 32 + r, 2)}')
        pack()
        for q in range(2):
            if final:
                a(f'buffer_store_dwordx4 {vr(PK + 4 * q, 4)}, v{DO}, s[{S_WA}:{S_WA + 3}], 0 offen offset:{64 * j + 16 * q}')
            else:
                a(f'buffer_store_dwordx4 {vr(PK + 4 * q, 4)}, v{XA}, {WS}, s{sV} offen offset:{2048 * j + 512 * q} sc1')
    if not final:
        a(f's_lshl_b32 s{sT}, s{sXT}, 2')
        a(f's_add_u32 s{sT}, s{sT}, {fb + FL_X2}')
        signal(a, sT)


def red8(a, x, t):
    a(f'v_add_f32_dpp v{x}, v{x}, v{x} row_ror:8 row_mask:0xf bank_mask:0xf')
    a(f'v_mov_b32 v{t}, v{x}')
    a(f'v_permlane16_swap_b32 v{x}, v{t}')
    a(f'v_add_f32 v{x}, v{x}, v{t}')
    a(f'v_mov_b32 v{t}, v{x}')
    a(f'v_permlane32_swap_b32 v{x}, v{t}')
    a(f'v_add_f32 v{x}, v{x}, v{t}')


def ln1f_phase(a, lb_src, lb_dst, fb_src, fb_dst, rnd):
    sUN, sF = sR, sSC
    AD, LW, LR = 6, 7, 8
    P, X, S, T, U = 12, 24, 9, 10, 11
    a(f'v_lshrrev_b32 v{T1}, 3, v0')
    a(f'v_lshlrev_b32 v{AD}, 9, v{T1}')
    a(f'v_and_b32 v{T1}, 7, v0')
    a(f'v_lshl_add_u32 v{AD}, v{T1}, 4, v{AD}')
    a(f'v_lshlrev_b32 v{LR}, 4, v{T1}')
    a(f's_lshl_b32 s{sT}, s{sWV}, 2')
    a(f'v_add_u32 v{LW}, s{sT}, v{LR}')
    a(f's_cmp_lt_u32 s{sWV}, 2')
    a(f's_cselect_b32 s{sF}, 1.0, 0')
    a(f's_cselect_b32 s{sV}, {2 * 16384}, 0x60000000' if False else f's_mov_b32 s{sV}, 0x60000000')
    a(f's_cselect_b32 s{sV}, {2 * 16384}, s{sV}')
    a(f's_add_u32 s{sUN}, s{sGI}, {160 * rnd}')
    top = a.newlabel('lnf')
    a(f's_cmp_ge_u32 s{sUN}, 256')
    a(f's_cbranch_scc1 {top}')
    a(f's_lshr_b32 s{sT}, s{sUN}, 4')
    a(f's_lshl_b32 s{sBLK}, s{sT}, 2')
    a(f's_add_u32 s{sT}, s{sBLK}, {fb_src + FL_X2}')
    wait_flag(a, sT, 10)
    a(f's_lshr_b32 s{sXO}, s{sUN}, 2')
    a(f's_mul_i32 s{sXO}, s{sXO}, 40960')
    a(f's_and_b32 s{sT}, s{sUN}, 3')
    a(f's_lshl_b32 s{sT}, s{sT}, 7')
    a(f's_add_u32 s{sXO}, s{sXO}, s{sT}')
    for i in range(3):
        if i < 2:
            a(f's_add_u32 s{sU}, s{sXO}, {lb_src + L_X2 + i * 16384}')
        else:
            a(f's_add_u32 s{sU}, s{sXO}, s{sV}')
            a(f's_add_u32 s{sU}, s{sU}, {lb_src + L_X2}')
        a(f'buffer_load_dwordx4 {vr(P + 4 * i, 4)}, v{AD}, {WS}, s{sU} offen sc1')
    a('s_waitcnt vmcnt(0)')
    unpack(a, X, P, 12)
    a(f'v_add_f32 v{S}, v{X}, v{X + 1}')
    a(f'v_add_f32 v{T}, v{X + 2}, v{X + 3}')
    for i in range(4, 24, 2):
        a(f'v_add_f32 v{S}, v{S}, v{X + i}')
        a(f'v_add_f32 v{T}, v{T}, v{X + i + 1}')
    a(f'v_add_f32 v{S}, v{S}, v{T}')
    red8(a, S, T)

    def xwave(x, off):
        a(f'ds_write_b32 v{LW}, v{x} offset:{off}')
        a('s_waitcnt lgkmcnt(0)')
        a('s_barrier')
        a(f'ds_read_b128 v[48:51], v{LR} offset:{off}')
        a('s_waitcnt lgkmcnt(0)')
        a('v_add_f32 v48, v48, v49')
        a('v_add_f32 v50, v50, v51')
        a(f'v_add_f32 v{x}, v48, v50')
    xwave(S, 0)
    a(f'v_mul_f32 v{S}, {f32(1.0 / 640)}, v{S}')
    a(f'v_mov_b32 v{U}, 0')
    a(f'v_mov_b32 v52, 0')
    for i in range(24):
        a(f'v_sub_f32 v{T}, v{X + i}, v{S}')
        a(f'v_fmac_f32 v{U if i < 16 else 52}, v{T}, v{T}')
    a(f'v_fmac_f32 v{U}, s{sF}, v52')
    red8(a, U, T)
    xwave(U, 128)
    a(f'v_mul_f32 v{U}, {f32(1.0 / 640)}, v{U}')
    rbf(a, S)
    rbf(a, U)
    a(f'v_add_f32 v{U}, {f32(1e-5)}, v{U}')
    rbf(a, U)
    a(f'v_sqrt_f32 v{U}, v{U}')
    rbf(a, U)
    a(f'v_rcp_f32 v{U}, v{U}')
    for i in range(12):
        a(f'v_sub_f32 v{X + 2 * i}, v{X + 2 * i}, v{S}')
        a(f'v_sub_f32 v{X + 2 * i + 1}, v{X + 2 * i + 1}, v{S}')
        a(f'v_cvt_pk_bf16_f32 v{P + i}, v{X + 2 * i}, v{X + 2 * i + 1}')
    for i in range(12):
        a(f'v_lshlrev_b32 v{X + 2 * i}, 16, v{P + i}')
        a(f'v_and_b32 v{X + 2 * i + 1}, 0xffff0000, v{P + i}')
        a(f'v_mul_f32 v{X + 2 * i}, v{X + 2 * i}, v{U}')
        a(f'v_mul_f32 v{X + 2 * i + 1}, v{X + 2 * i + 1}, v{U}')
        a(f'v_cvt_pk_bf16_f32 v{P + i}, v{X + 2 * i}, v{X + 2 * i + 1}')
    for i in range(3):
        if i < 2:
            a(f's_add_u32 s{sU}, s{sXO}, {lb_dst + L_XN + i * 16384}')
        else:
            a(f's_add_u32 s{sU}, s{sXO}, s{sV}')
            a(f's_add_u32 s{sU}, s{sU}, {lb_dst + L_XN}')
        a(f'buffer_store_dwordx4 {vr(P + 4 * i, 4)}, v{AD}, {WS}, s{sU} offen sc1')
    a(f's_add_u32 s{sT}, s{sBLK}, {fb_dst + FL_XN}')
    signal(a, sT)
    a.label(top)
```

```python
import sys
from asmlib import *
from layout import *
from common import *
import chain as C
import bulk as B
import small as S
import mega as M


def mega_kernel(a, name, force_slow=False):
    tm = C.OPT.get('timing')
    kernel_head(a, name)
    a(f's_cmp_lt_u32 s2, {NWG}')
    a(f's_cbranch_scc1 {name}_go')
    a('s_endpgm')
    a.label(f'{name}_go')
    a(f's_load_dwordx8 s[{C.sPTR}:{C.sPTR + 7}], s[0:1], {KA_WQ}')
    a(f's_load_dwordx2 s[{B.sXP}:{B.sXP + 1}], s[0:1], {KA_X}')
    a(f's_load_dwordx4 s[72:75], s[0:1], {KA_DBG}')
    a('s_waitcnt lgkmcnt(0)')
    srd(a, C.S_WS, 74, WS_SIZE)
    srd(a, 76, 72, 32)
    team_select(a, 76, 80, 81, 84, 82, 83, 92, 94, force_slow)
    a('s_cmp_eq_u32 s82, 0')
    a(f's_cbranch_scc1 {name}_worker')
    a(f's_mov_b32 s{C.sH}, s83')
    if tm:
        a('s_memrealtime s[2:3]')
    C.chain_consts(a)
    C.chain_load_weights(a)
    C.chain_init_state(a)
    a(f's_mov_b32 s{C.sNSTEP}, 63')
    a(f's_mov_b32 s59, s82')
    if tm:
        a('s_memrealtime s[88:89]')
        a('s_waitcnt lgkmcnt(0)')
        a('s_sub_u32 s3, s88, s2')
        if C.OPT.get('wlt'):
            for i, r in enumerate((64, 66, 68, 90, 92, 94, 96, 88)):
                a(f's_sub_u32 s{r}, s{r}, s2')
                a(f'v_mov_b32 v{12 + i}, s{r}')
            a(f's_lshl_b32 s88, s{C.sH}, 5')
            a(f's_add_u32 s88, s88, {0xF30000}')
            a(f'buffer_store_dwordx4 v[12:15], off, s[4:7], s88')
            a(f'buffer_store_dwordx4 v[16:19], off, s[4:7], s88 offset:16')
    a.label(f'{name}_layer')
    C.chain_layer_state(a)
    if tm:
        a('s_memrealtime s[56:57]')
        for i in range(12):
            a(f's_mov_b32 s{90 + i}, 0')
    a('s_cmp_eq_u32 s59, 2')
    a(f's_cbranch_scc1 {name}_slow')
    C.chain_step(a, '', name + 'cf', tm)
    a(f's_branch {name}_fin')
    a.label(f'{name}_slow')
    C.chain_step(a, ' sc1', name + 'cs', tm)
    a.label(f'{name}_fin')
    if tm:
        a('s_memrealtime s[64:65]')
        a('s_waitcnt lgkmcnt(0)')
        a('s_sub_u32 s64, s64, s2')
        a('s_sub_u32 s56, s56, s2')
        for i in range(12):
            a(f'v_mov_b32 v{12 + i}, s{90 + i}')
        a('s_lshr_b32 s66, s22, 2')
        a(f's_lshl_b32 s88, s{C.sH}, 2')
        a(f's_add_u32 s88, s88, s{C.sWV}')
        a('s_lshl_b32 s88, s88, 6')
        a('s_add_u32 s88, s88, s66')
        a(f's_add_u32 s88, s88, {0xF00000}')
        for i in range(3):
            a(f'buffer_store_dwordx4 v[{12 + 4 * i}:{15 + 4 * i}], off, s[{C.S_WS}:{C.S_WS + 3}], s88 offset:{16 * i}')
        a('s_nop 1')
        a('v_mov_b32 v12, s56')
        a('v_mov_b32 v13, s64')
        a('v_mov_b32 v14, s3')
        a('v_mov_b32 v15, s2')
        a(f'buffer_store_dwordx4 v[12:15], off, s[{C.S_WS}:{C.S_WS + 3}], s88 offset:48')
    a(f's_cmp_eq_u32 s{C.sLB}, {LAYER0}')
    a(f's_mov_b32 s{C.sLB}, {LAYER0 + LSTRIDE}')
    a(f's_mov_b32 s{C.sFLB}, {WS_FLAGS + FSTRIDE + FL_KV}')
    a(f's_cbranch_scc1 {name}_layer')
    a('s_endpgm')
    a.label(f'{name}_worker')
    a(f's_mov_b32 s{B.sWI}, s83')
    a(f's_load_dwordx8 s[{M.sBP}:{M.sBP + 7}], s[0:1], {KA_W1}')
    a(f's_load_dwordx2 s[{M.sOUTP}:{M.sOUTP + 1}], s[0:1], {KA_OUT}')
    B.worker_setup(a)
    a('s_waitcnt lgkmcnt(0)')
    a(f's_lshl_b32 s{B.sT}, s{B.sNH}, 1')
    a(f's_cmp_lt_u32 s{B.sLI}, s{B.sT}')
    a(f's_cbranch_scc0 {name}_gw')
    a(f's_and_b32 s100, s{B.sLI}, 1')
    a(f's_lshr_b32 s{B.sLI}, s{B.sLI}, 1')
    a(f's_mul_i32 s{C.sH}, s{B.sLI}, 7')
    a(f's_add_u32 s{C.sH}, s{C.sH}, s{B.sJ}')
    B.att_phase(a)
    a('s_endpgm')
    a.label(f'{name}_gw')
    a(f's_sub_u32 s{B.sLI}, s{B.sLI}, s{B.sT}')
    a(f's_mul_i32 s{B.sGI}, s{B.sJ}, 22')
    a(f's_mul_i32 s{B.sT}, s{B.sJ}, 24')
    a(f's_sub_u32 s{B.sT}, s{B.sT}, 8')
    a(f's_cmp_lt_u32 s{B.sJ}, 4')
    a(f's_cselect_b32 s{B.sGI}, s{B.sGI}, s{B.sT}')
    a(f's_add_u32 s{B.sGI}, s{B.sGI}, s{B.sLI}')
    for layer in range(2):
        lb = LAYER0 + layer * LSTRIDE
        fb = WS_FLAGS + layer * FSTRIDE
        B.wstamp(a, 0)
        if layer == 0:
            B.qkv_phase(a, lb, fb, False)
        else:
            B.qkv_phase(a, lb, fb, True, 0, 1)
            M.ln1f_phase(a, lb - LSTRIDE, lb, fb - FSTRIDE, fb, 1)
            B.qkv_phase(a, lb, fb, True, 1)
        B.wstamp(a, 1)
        a(f's_cmp_lt_u32 s{B.sGI}, {NWO}')
        a(f's_cbranch_scc0 {name}_nwo{layer}')
        B.wo_phase(a, lb, fb, layer)
        a(f's_branch {name}_g2p{layer}')
        a.label(f'{name}_nwo{layer}')
        a(f's_cmp_lt_u32 s{B.sGI}, {NWO + NLN}')
        a(f's_cbranch_scc0 {name}_nln{layer}')
        M.ln2_role(a, lb, fb)
        a(f's_branch {name}_g2p{layer}')
        a.label(f'{name}_nln{layer}')
        a(f's_cmp_lt_u32 s{B.sGI}, {NWO + NLN + NG1}')
        a(f's_cbranch_scc0 {name}_g2p{layer}')
        if layer == 0:
            M.w2f_prep(a)
        M.g2_pre(a, layer == 0)
        M.g1p_role(a, lb, fb)
        B.wstamp(a, 3)
        a(f's_branch {name}_g2{layer}')
        a.label(f'{name}_g2p{layer}')
        B.wstamp(a, 3)
        M.g2_pre(a, layer == 0)
        a.label(f'{name}_g2{layer}')
        M.g2_phase(a, lb, fb, layer == 1)
        B.wstamp(a, 7)
        if layer == 0:
            M.ln1f_phase(a, lb, lb + LSTRIDE, fb, fb + FSTRIDE, 0)
        B.wstamp(a, 5)
        B.wdump(a, layer)
    a('s_endpgm')


def build(force_slow=False):
    a = Asm()
    launches = []
    descs = ''
    n = 'init_kernel'
    S.ln_kernel(a, n, None, LAYER0 + L_XN, False, True, S.InitChain(LAYER0))
    launches.append((n, 256, 256, 0)); descs += kernel_desc(n, 64, 64, 40)
    n = 'mega_kernel'
    mega_kernel(a, n, force_slow)
    launches.append((n, 256, 256, 163840)); descs += kernel_desc(n)
    a.fix_hazards()
    for e in a.verify_waits():
        print('WAITERR', e)
    hdr = ''.join(f'; @launch kernel={n} grid=({g},1,1) block=({b},1,1) lds={l}\n' for n, g, b, l in launches)
    hdr += '.amdgcn_target "amdgcn-amd-amdhsa--gfx950"\n.text\n'
    return hdr + a.text() + '.section .rodata,"a"\n' + descs, a


if __name__ == '__main__':
    C.OPT['stamps'] = []
    for o in sys.argv[2:]:
        if o.startswith('st='):
            C.OPT['stamps'] = o[3:].split(',')
            C.OPT['timing'] = True
        elif '=' in o:
            k, v = o.split('=')
            C.OPT[k] = ' ' + v.replace('+', ' ')
        else:
            C.OPT[o] = True
    s, a = build('slow' in sys.argv[2:])
    if C.OPT.get('timing'):
        s = s.replace('.amdgcn_target', '; STAMPS ' + ' '.join(map(str, C.OPT['used'])) + '\n.amdgcn_target', 1)
    open(sys.argv[1], 'w').write(s)
    print(len(a.ins), 'instrs', len(s), 'bytes')
```

```python
from asmlib import *
from layout import *
from common import *
from chain import Track, f32
import chain as C
from small import tr_lane_addr, CM_NAT, CM_PI, CM_SIG, unpack

S_WS = 4
S_WA, S_WB = 8, 12
sWI, sWV, sJ, sLI, sNH = 16, 17, 18, 19, 20
sR, sBLK, sH, sT, sU, sV = 21, 22, 23, 24, 25, 26
sXO, sWO, sLW = 27, 28, 29
sSPIN = 0
sE = 32
sSC = 34
sPTR = 56
sXP = 64
S_X = 68
S_WC = 36

sKS = 31
sGI = 35

LN, L16, T1, T2, T3 = 1, 2, 3, 4, 5


def wstamp(a, i):
    if C.OPT.get('timing'):
        a(f's_memrealtime s[{84 + 2 * i}:{85 + 2 * i}]')


def wdump(a, layer):
    if not C.OPT.get('timing'):
        return
    a('s_waitcnt lgkmcnt(0)')
    for i in range(8):
        a(f'v_mov_b32 v{20 + i}, s{84 + 2 * i}')
    a(f's_lshl_b32 s88, s83, 5')
    a(f's_add_u32 s88, s88, {0xF10000 + layer * 0x4000}')
    a(f'buffer_store_dwordx4 v[20:23], off, s[4:7], s88')
    a(f'buffer_store_dwordx4 v[24:27], off, s[4:7], s88 offset:16')


def worker_setup(a):
    a(f'v_and_b32 v{LN}, 63, v0')
    a(f'v_lshrrev_b32 v{T1}, 6, v0')
    a(f'v_lshlrev_b32 v{L16}, 4, v{LN}')
    a(f'v_readfirstlane_b32 s{sWV}, v{T1}')
    a(f's_lshr_b32 s{sJ}, s{sWI}, 5')
    a(f's_and_b32 s{sLI}, s{sWI}, 31')
    a(f's_cmp_lt_u32 s{sJ}, 4')
    a(f's_cselect_b32 s{sNH}, 5, 4')
    a(f's_lshl_b32 s{sLW}, s{sWV}, 10')


def unit_decode(a, done):
    a(f's_lshl_b32 s{sT}, s{sNH}, 1')
    a(f's_sub_u32 s{sT}, 32, s{sT}')
    a(f's_mul_i32 s{sT}, s{sR}, s{sT}')
    a(f's_add_u32 s{sT}, s{sT}, s{sLI}')
    a(f's_mul_i32 s{sBLK}, s{sT}, 13108')
    a(f's_lshr_b32 s{sBLK}, s{sBLK}, 16')
    a(f's_lshr_b32 s{sU}, s{sT}, 2')
    a(f's_cmp_eq_u32 s{sNH}, 4')
    a(f's_cselect_b32 s{sBLK}, s{sU}, s{sBLK}')
    a(f's_mul_i32 s{sU}, s{sBLK}, s{sNH}')
    a(f's_sub_u32 s{sU}, s{sT}, s{sU}')
    a(f's_mul_i32 s{sH}, s{sU}, 7')
    a(f's_add_u32 s{sH}, s{sH}, s{sJ}')
    a(f's_cmp_ge_u32 s{sBLK}, 16')
    a(f's_cbranch_scc1 {done}')


def w_swz(a):
    def f(row, t, dst):
        a(f'v_and_b32 v{t}, 3, v{row}')
        a(f'v_lshlrev_b32 v{t}, 6, v{t}')
        a(f'v_xor_b32 v{dst}, v{t}, v{dst}')
    return f


def proj_gemm(a, tag, nmat, lb, VSW, xtiles, wtiles, mf, FR, nring=4):
    tr = Track(a)
    SB = nmat * 8192
    XB = 8192
    WBASE = nring * 8192
    srds = [S_WA, S_WB, S_WC]

    def dma_ops(slot):
        g = []
        for ks in range(2):
            g.append([f's_add_u32 m0, s{sLW2}, {slot * XB + ks * 1024}',
                      f'buffer_load_dwordx4 v{L16}, s[{S_WS}:{S_WS + 3}], s{sXO} offen sc1 lds',
                      f's_add_u32 s{sXO}, s{sXO}, 1024'])
        for m in range(nmat):
            for k in range(2):
                g.append([f's_add_u32 m0, s{sLW}, {WBASE + slot * SB + m * 8192 + k * 4096}',
                          f'buffer_load_dwordx4 v{VSW[k]}, s[{srds[m]}:{srds[m] + 3}], s{sWO} offen lds'])
        g[-1] += [f's_add_u32 s{sWO}, s{sWO}, {32 * 8192}',
                  f's_add_u32 s{sKS}, s{sKS}, 1',
                  f's_cmp_eq_u32 s{sKS}, 20',
                  f's_cselect_b32 s{sU}, 40960, 0',
                  f's_sub_u32 s{sXO}, s{sXO}, s{sU}',
                  f's_lshl_b32 s{sU}, s{sU}, 7',
                  f's_sub_u32 s{sWO}, s{sWO}, s{sU}']
        return g

    per = 2 + 2 * nmat
    sLW2 = sSC
    a(f's_lshl_b32 s{sLW2}, s{sWV}, 11')

    def read_ops(slot, ks, b):
        r = []
        for i, xr in enumerate(xtiles):
            r.append(f'ds_read_b128 {vr(b + 4 * i, 4)}, v{xr} offset:{slot * XB + ks * 1024}')
        for i, (m, wr) in enumerate(wtiles):
            for u in range(2):
                off = WBASE + slot * SB + m * 8192 + (16 * ks + 4 * u) * 256
                r.append(f'ds_read_b64_tr_b16 {vr(b + 4 * len(xtiles) + 4 * i + 2 * u, 2)}, v{wr[off >> 16]} offset:{off & 0xffff}')
        return r

    def mix(mfs, rds, dms):
        n = len(mfs)
        for i, t in enumerate(mfs):
            a(t)
            for _ in range(2):
                if rds:
                    a(rds.pop(0))
            if dms and (i % 3 != 2):
                for x in dms.pop(0):
                    a(x)
        assert not rds and not dms

    for s in range(nring - 1):
        for g in dma_ops(s):
            for x in g:
                a(x)
    a(f's_waitcnt vmcnt({per * (nring - 2)})')
    a('s_barrier')
    for x in read_ops(0, 0, FR[0]):
        a(x)
    a(f's_mov_b32 s{sV}, 0')
    lp = a.newlabel(tag)
    a.label(lp)
    for s in range(nring):
        d = dma_ops((s + nring - 1) % nring)
        a('s_waitcnt lgkmcnt(0)')
        mix(mf(FR[0]), read_ops(s, 1, FR[1]), d[:per // 2])
        a(f's_waitcnt vmcnt({per * (nring - 3) + per // 2}) lgkmcnt(0)')
        a('s_barrier')
        mix(mf(FR[1]), read_ops((s + 1) % nring, 0, FR[0]), d[per // 2:])
    a(f's_add_u32 s{sV}, s{sV}, 1')
    a(f's_cmp_lt_u32 s{sV}, {20 // nring}')
    a(f's_cbranch_scc1 {lp}')
    a('s_waitcnt vmcnt(0) lgkmcnt(0)')
    a('s_barrier')


def w_src(a, VSW):
    a(f'v_lshrrev_b32 v{T1}, 4, v{LN}')
    a(f'v_lshlrev_b32 v{T2}, 2, v{T1}')
    a(f'v_and_b32 v{T3}, 15, v{LN}')
    a(f'v_xor_b32 v{T2}, v{T2}, v{T3}')
    a(f'v_lshlrev_b32 v{T2}, 4, v{T2}')
    a(f'v_lshl_add_u32 v{T2}, v{T1}, 13, v{T2}')
    a(f's_lshl_b32 s{sU}, s{sWV}, 15')
    a(f'v_add_u32 v{VSW[0]}, s{sU}, v{T2}')
    a(f'v_add_u32 v{VSW[1]}, {16 * 8192}, v{VSW[0]}')


def signal(a, off_sgpr):
    L = a.newlabel('sig')
    a('s_waitcnt vmcnt(0)')
    a('s_barrier')
    a('v_cmp_eq_u32 vcc, 0, v0')
    a(f's_and_saveexec_b64 s[{sE}:{sE + 1}], vcc')
    a(f's_cbranch_execz {L}')
    a(f'v_mov_b32 v{T1}, 0')
    a(f'v_mov_b32 v{T2}, 1')
    a(f'buffer_atomic_add v{T2}, v{T1}, s[{S_WS}:{S_WS + 3}], s{off_sgpr} offen')
    a.label(L)
    a(f's_mov_b64 exec, s[{sE}:{sE + 1}]')


def wait_flag(a, off_sgpr, val):
    L = a.newlabel('wf')
    a(f'v_mov_b32 v{T1}, 0')
    a.label(L)
    a(f'buffer_load_dword v{T2}, v{T1}, s[{S_WS}:{S_WS + 3}], s{off_sgpr} offen sc1')
    a('s_waitcnt vmcnt(0)')
    a(f'v_readfirstlane_b32 s{sU}, v{T2}')
    a(f's_add_u32 s{sSPIN}, s{sSPIN}, 1')
    a(f's_cmp_ge_u32 s{sU}, {val}')
    a(f's_cbranch_scc1 {L}_ok')
    a('s_sleep 8')
    a(f's_cmp_lt_u32 s{sSPIN}, {C.SPINMAX}')
    a(f's_cbranch_scc1 {L}')
    a.label(f'{L}_ok')


def unit_addr(a, lb):
    a(f's_lshl_b32 s{sXO}, s{sBLK}, 2')
    a(f's_add_u32 s{sXO}, s{sXO}, s{sWV}')
    a(f's_mul_i32 s{sXO}, s{sXO}, 40960')
    a(f's_add_u32 s{sXO}, s{sXO}, {lb + L_XN}')
    a(f's_lshl_b32 s{sWO}, s{sH}, 8')
    a(f's_mul_i32 s{sKS}, s{sH}, 9363')
    a(f's_lshr_b32 s{sKS}, s{sKS}, 16')
    a(f's_lshl_b32 s{sKS}, s{sKS}, 1')
    a(f's_add_u32 s{sKS}, s{sKS}, s{sBLK}')
    a(f's_mul_i32 s{sU}, s{sKS}, 13108')
    a(f's_lshr_b32 s{sU}, s{sU}, 16')
    a(f's_mul_i32 s{sU}, s{sU}, 5')
    a(f's_sub_u32 s{sKS}, s{sKS}, s{sU}')
    a(f's_lshl_b32 s{sKS}, s{sKS}, 2' if not C.OPT.get('norot') else f's_mov_b32 s{sKS}, 0')
    a(f's_lshl_b32 s{sU}, s{sKS}, 11')
    a(f's_add_u32 s{sXO}, s{sXO}, s{sU}')
    a(f's_lshl_b32 s{sU}, s{sKS}, 18')
    a(f's_add_u32 s{sWO}, s{sWO}, s{sU}')


def vperm_addr(a, d):
    a(f'v_lshrrev_b32 v{T1}, 5, v{LN}')
    a(f'v_lshlrev_b32 v{d}, 9, v{T1}')
    a(f'v_bfe_u32 v{T1}, v{LN}, 1, 4')
    a(f'v_lshl_add_u32 v{d}, v{T1}, 4, v{d}')
    a(f'v_and_b32 v{T1}, 1, v{LN}')
    a(f'v_lshl_add_u32 v{d}, v{T1}, 8, v{d}')


def qkv_ids(a):
    a(f's_lshr_b32 s{sH}, s{sLI}, 2')
    a(f's_mul_i32 s{sH}, s{sH}, 7')
    a(f's_add_u32 s{sH}, s{sH}, s{sJ}')
    a(f's_and_b32 s{sV}, s{sLI}, 3')


def qkv_pre(a, done):
    a(f's_lshl_b32 s{sT}, s{sNH}, 2')
    a(f's_cmp_ge_u32 s{sLI}, s{sT}')
    a(f's_cbranch_scc1 {done}')
    qkv_ids(a)
    sCT = sV
    srd(a, S_WA, sPTR + 2, 5242880)
    srd(a, S_WB, sPTR + 4, 5242880)
    srd(a, S_WC, sPTR, 5242880)
    VS = 6
    a(f'v_lshrrev_b32 v{T1}, 2, v{LN}')
    a(f'v_lshlrev_b32 v{T1}, 13, v{T1}')
    a(f'v_and_b32 v{T2}, 3, v{LN}')
    a(f'v_lshl_add_u32 v{VS}, v{T2}, 4, v{T1}')
    a(f's_lshl_b32 s{sWO}, s{sH}, 8')
    a(f's_lshl_b32 s{sU}, s{sCT}, 6')
    a(f's_add_u32 s{sWO}, s{sWO}, s{sU}')
    a(f's_lshl_b32 s{sU}, s{sWV}, 17')
    a(f's_add_u32 s{sWO}, s{sWO}, s{sU}')
    for i in range(10):
        for m, sr_ in enumerate((S_WA, S_WB, S_WC)):
            a(f's_add_u32 m0, s{sLW}, {m * 40960 + i * 4096}')
            a(f'buffer_load_dwordx4 v{VS}, s[{sr_}:{sr_ + 3}], s{sWO} offen lds')
        a(f's_add_u32 s{sWO}, s{sWO}, {64 * 8192}')


def qkv_phase(a, lb, fb, wait_xn, mid=None):
    WS = f's[{S_WS}:{S_WS + 3}]'
    qkv_ids(a)
    sCT = sV
    VP = 7
    RW = [[8, 9], [10, 11], [12, 13]]
    def vsetup():
        for m, cm in enumerate((CM_PI, CM_NAT, CM_SIG)):
            tr_lane_addr(a, RW[m][0], LN, T1, T2, 64, cm, None)
            a(f'v_add_u32 v{RW[m][0]}, {m * 40960}, v{RW[m][0]}')
        vperm_addr(a, VP)

    vsetup()
    a(f's_mul_i32 s{sXO}, s{sWV}, 40960')
    a(f's_add_u32 s{sXO}, s{sXO}, {lb + L_XN}')
    sOUT, sFL, sXF = sWO, sKS, sSC
    a(f's_lshl_b32 s{sOUT}, s{sWV}, 5')
    a(f's_add_u32 s{sOUT}, s{sOUT}, s{sH}')
    a(f's_lshl_b32 s{sOUT}, s{sOUT}, 13')
    a(f's_lshl_b32 s{sU}, s{sCT}, 11')
    a(f's_add_u32 s{sOUT}, s{sOUT}, s{sU}')
    a(f's_lshl_b32 s{sFL}, s{sH}, 6')
    a(f's_add_u32 s{sFL}, s{sFL}, {fb + FL_KV}')
    a(f's_mov_b32 s{sXF}, {fb + FL_XN}')
    XV, FRW, E = 96, [16, 28], 40

    def ldx(i):
        if i % 4 == 0 and i:
            a(f's_add_u32 s{sXO}, s{sXO}, 4096')
        a(f'buffer_load_dwordx4 {vr(XV + 4 * i, 4)}, v{L16}, {WS}, s{sXO} offen offset:{(i % 4) * 1024} sc1')
        if i == 39:
            a(f's_add_u32 s{sXO}, s{sXO}, {4 * 40960 - 9 * 4096}')

    def rdw(i):
        bb = FRW[i & 1]
        for m in range(3):
            for u in range(2):
                a(f'ds_read_b64_tr_b16 {vr(bb + 4 * m + 2 * u, 2)}, v{RW[m][0]} offset:{i * 1024 + 256 * u}')

    SIG = 24
    sXR = 74

    def xn_ready(plus):
        if not wait_xn:
            return
        L = a.newlabel('xr')
        a(f's_add_u32 s{sT}, s{sBLK}, {plus}')
        a(f's_min_u32 s{sT}, s{sT}, 15')
        a(f's_cmp_lt_u32 s{sT}, s{sXR}')
        a(f's_cbranch_scc1 {L}_ok')
        a(f'v_lshlrev_b32 v{T3}, 2, v{LN}')
        a.label(f'{L}_sp')
        a(f'buffer_load_dword v{T1}, v{T3}, {WS}, s{sXF} offen sc1')
        a('s_waitcnt vmcnt(0)')
        a(f'v_cmp_le_u32 vcc, 16, v{T1}')
        a(f's_add_u32 s{sSPIN}, s{sSPIN}, 1')
        a(f's_and_b32 s{sXR}, vcc_lo, 0xffff')
        a(f's_ff0_i32_b32 s{sXR}, s{sXR}')
        a(f's_cmp_lt_u32 s{sT}, s{sXR}')
        a(f's_cbranch_scc1 {L}_ok')
        a('s_sleep 2')
        a(f's_cmp_lt_u32 s{sSPIN}, {C.SPINMAX}')
        a(f's_cbranch_scc1 {L}_sp')
        a.label(f'{L}_ok')

    def body(first):
        if not first:
            xn_ready(1)
        rdw(0)
        for i in range(40):
            if i + 1 < 40:
                rdw(i + 1)
            n = 39 - i if first else 39 - i + 6 + i
            a(f's_waitcnt vmcnt({n}) lgkmcnt({6 if i + 1 < 40 else 0})')
            bb = FRW[i & 1]
            xf = vr(XV + 4 * i, 4)
            for m in range(3):
                acc = ar(16 * m, 16)
                wf = vr(bb + 4 * m, 4)
                c = acc if i else '0'
                a(f'v_mfma_f32_32x32x16_bf16 {acc}, {xf if m == 1 else wf}, {wf if m == 1 else xf}, {c}')
            if first:
                continue
            ldx(i)
            if i == SIG:
                lab = a.newlabel('wqs')
                a(f's_cmp_eq_u32 s{sBLK}, 1')
                a(f's_cbranch_scc1 {lab}')
                sig(SIG + 1)
                a.label(lab)
        for m in range(3):
            e = E + 0
            for r in range(16):
                a(f'v_accvgpr_read_b32 v{e + r}, a{16 * m + r}')
            pk = E + 16 + 8 * m
            for r in range(8):
                a(f'v_cvt_pk_bf16_f32 v{pk + r}, v{e + 2 * r}, v{e + 2 * r + 1}')
            a(f's_add_u32 s{sU}, s{sOUT}, {lb + (L_KB, L_VB, L_Q)[m]}')
            ad = VP if m == 1 else L16
            a(f'buffer_store_dwordx4 {vr(pk, 4)}, v{ad}, {WS}, s{sU} offen sc1')
            a(f'buffer_store_dwordx4 {vr(pk + 4, 4)}, v{ad}, {WS}, s{sU} offen offset:1024 sc1')
        a(f's_add_u32 s{sOUT}, s{sOUT}, {4 * 32 * 8192}')

    def sig(n=0):
        a(f's_waitcnt vmcnt({n})')
        a('s_barrier')
        a(f's_cmp_eq_u32 s{sWV}, 0')
        a(f's_cselect_b32 s{sU}, s{sFL}, {C.OOB}')
        a('s_mov_b64 exec, 1')
        a(f'v_mov_b32 v{T2}, 1')
        a(f'buffer_atomic_add v{T2}, off, {WS}, s{sU}')
        a('s_mov_b64 exec, -1')
        a(f's_add_u32 s{sFL}, s{sFL}, 4')

    a(f's_mov_b32 s{sXR}, 0')
    a(f's_mov_b32 s{sBLK}, 0')
    xn_ready(0)
    for i in range(40):
        ldx(i)
    a('s_waitcnt vmcnt(40)')
    a('s_barrier')
    body(True)
    sig()
    if mid:
        for r, sv in ((sXO, 81), (sWO, 82), (sKS, 72), (sSC, 73)):
            a(f's_mov_b32 s{sv}, s{r}')
        mid()
        for r, sv in ((sXO, 81), (sWO, 82), (sKS, 72), (sSC, 73)):
            a(f's_mov_b32 s{r}, s{sv}')
        vsetup()
    a(f's_mov_b32 s{sBLK}, 0')
    xn_ready(1)
    for i in range(40):
        ldx(i)
    a(f's_mov_b32 s{sU}, {C.OOB}')
    for _ in range(6):
        a(f'buffer_store_dword v{T1}, off, {WS}, s{sU}')
    a(f's_mov_b32 s{sBLK}, 1')
    top = a.newlabel('wq')
    a.label(top)
    body(False)
    a(f's_add_u32 s{sBLK}, s{sBLK}, 1')
    a(f's_cmp_lt_u32 s{sBLK}, 16')
    a(f's_cbranch_scc1 {top}')
    sig()


def att_loc():
    loc = {}
    i = 0
    for n in range(10):
        for m, t in (('k', 0), ('v', 0), ('k', 1), ('v', 1)):
            loc[(m, t, n)] = ('a', 8 * i) if i < 32 else ('v', 192 + 8 * (i - 32))
            i += 1
    return loc


def att_phase(a):
    WS = f's[{C.S_WS}:{C.S_WS + 3}]'
    loc = att_loc()
    C.chain_consts(a)
    C.chain_load_weights(a, loc, (1, 2))
    L16, VW, GM = C.L16, C.VW, C.GM
    X, LNn = 40, 41
    KA, KMA, VMA, TOK, VA = 3, 4, 5, 6, 7
    a(f'v_lshrrev_b32 v{LNn}, 4, v{L16}')
    a(f'v_lshrrev_b32 v{X}, 5, v{LNn}')
    a(f'v_and_b32 v42, 31, v{LNn}')
    a(f'v_lshlrev_b32 v{KA}, 10, v{X}')
    a(f'v_lshl_add_u32 v{KA}, v42, 4, v{KA}')
    a(f'v_and_b32 v43, 7, v{LNn}')
    a(f'v_lshlrev_b32 v{KMA}, 8, v{X}')
    a(f'v_lshl_add_u32 v{KMA}, v43, 4, v{KMA}')
    a(f'v_lshrrev_b32 v43, 1, v42')
    a(f'v_lshlrev_b32 v{VMA}, 8, v{X}')
    a(f'v_lshl_add_u32 v{VMA}, v43, 4, v{VMA}')
    a(f'v_and_b32 v44, 1, v{LNn}')
    a(f'v_lshl_add_u32 v{VMA}, v44, 3, v{VMA}')
    a(f's_lshl_b32 s{C.sTMP}, s{C.sWV}, 10')
    a(f'v_add_u32 v{VMA}, s{C.sTMP}, v{VMA}')
    a(f'v_add_u32 v46, s{C.sTMP}, v{L16}')
    a(f'v_lshlrev_b32 v{VA}, 9, v{X}')
    a(f'v_lshl_add_u32 v{VA}, v43, 4, v{VA}')
    a(f'v_lshl_add_u32 v{VA}, v44, 8, v{VA}')
    a(f's_lshl_b32 s{C.sTMP}, s{C.sWV}, 11')
    a(f'v_add_u32 v{VA}, s{C.sTMP}, v{VA}')
    a(f'v_and_b32 v{TOK}, 3, v{LNn}')
    a(f'v_bfe_u32 v43, v{LNn}, 3, 2')
    a(f'v_lshl_add_u32 v{TOK}, v43, 2, v{TOK}')
    a(f'v_bfe_u32 v43, v{LNn}, 2, 1')
    a(f'v_lshl_add_u32 v{TOK}, v43, 4, v{TOK}')
    a(f'v_lshlrev_b32 v43, 4, v{X}')
    a(f'v_sub_u32 v{TOK}, v{TOK}, v43')
    SEL = 8
    SEL = 44
    a(f'v_and_b32 v43, 0x1f0, v{L16}')
    a(f'ds_read_b64 {vr(SEL, 2)}, v43 offset:{C.LSEL}')
    import mega
    mega.init_wait(a, 40, 41, C.sTMP, C.sTMP2, C.sSPIN)
    for layer in range(2):
        att_layer(a, LAYER0 + layer * LSTRIDE, WS_FLAGS + layer * FSTRIDE, loc)


def att_layer(a, lb, fb, loc):
    WS = f's[{C.S_WS}:{C.S_WS + 3}]'
    L16, VW, GM = C.L16, C.VW, C.GM
    KA, KMA, VMA, TOK, VA = 3, 4, 5, 6, 7
    SEL = 44
    sKB, sOO, sFO, sA, sB = C.sKB, C.sVB, C.sKMQ, C.sPST, C.sPST1
    a(f's_lshl_b32 s{sKB}, s{C.sH}, 13')
    a(f's_lshl_b32 s{sOO}, s{C.sH}, 13')
    a(f's_lshl_b32 s{C.sTMP}, s{C.sWV}, 11')
    a(f's_add_u32 s{sOO}, s{sOO}, s{C.sTMP}')
    a(f's_add_u32 s{sOO}, s{sOO}, {lb + L_O}')
    a(f's_mov_b32 s{sFO}, {fb + FL_O}')
    a(f's_lshl_b32 s{C.sFLB}, s{C.sH}, 6')
    a(f's_add_u32 s{C.sFLB}, s{C.sFLB}, {fb + FL_KV}')
    a(f's_add_u32 s{C.sPOLL}, s{C.sTMP}, {lb + L_MC}')
    a(f's_add_u32 s{C.sPOLL8}, s{C.sB8}, {lb + L_MC + 8192 - C.LB8}')
    a(f's_mov_b32 s{C.sSTEP}, s100')
    a(f's_mul_i32 s{C.sTMP}, s100, {32 * 8192}')
    a(f's_add_u32 s{sKB}, s{sKB}, s{C.sTMP}')
    a(f's_add_u32 s{sOO}, s{sOO}, s{C.sTMP}')
    a(f's_lshl_b32 s{C.sTMP}, s100, 7')
    a(f's_add_u32 s{sFO}, s{sFO}, s{C.sTMP}')
    a(f's_mul_i32 s{C.sTMP}, s100, {MSLOT}')
    a(f's_add_u32 s{C.sPOLL}, s{C.sPOLL}, s{C.sTMP}')
    a(f's_add_u32 s{C.sPOLL8}, s{C.sPOLL8}, s{C.sTMP}')
    a(f's_mov_b32 s{C.sRDY}, 0')
    K0, V0, K1, V1 = 24, 28, 32, 36
    QF, KF, VF, SS, SM_, OA, TMP, VMF = 48, 80, 112, 120, 136, 152, 168, 184
    T0, T1, T2 = C.T0, C.T1, C.T2
    MX, MY, NI = TMP, TMP + 1, TMP + 2
    cvt = lambda d, x, y: a(f'v_cvt_pk_bf16_f32 v{d}, v{x}, v{y}')
    pka = lambda d, x, y: a(f'v_pk_add_f32 {vr(d, 2)}, {vr(x, 2)}, {vr(y, 2)}')

    def ld_kq(tr):
        for half in range(2):
            a(f's_add_u32 s{sA}, s{sKB}, {lb + L_KB + half * 4096}')
            a(f's_add_u32 s{sB}, s{sKB}, {lb + L_Q + half * 4096}')
            for k in range(4):
                ks = 4 * half + k
                tr.vmem(f'buffer_load_dwordx4 {vr(KF + 4 * ks, 4)}, v{KA}, {WS}, s{sA} offen offset:{(k >> 1) * 2048 + (k & 1) * 512} sc1', ('k', ks))
                tr.vmem(f'buffer_load_dwordx4 {vr(QF + 4 * ks, 4)}, v{L16}, {WS}, s{sB} offen offset:{k * 1024} sc1', ('k', ks))

    def ld_v(tr):
        a(f's_add_u32 s{sA}, s{sKB}, {lb + L_VB}')
        for m in range(2):
            tr.vmem(f'buffer_load_dwordx4 {vr(VF + 4 * m, 4)}, v{VA}, {WS}, s{sA} offen offset:{m * 1024} sc1', 'v')

    tr = Track(a)
    wstamp(a, 1)
    C.kv_ready(a, a.newlabel('akv'), 0)
    wstamp(a, 2)
    a('s_mov_b32 s92, 0')
    ld_kq(tr)
    ld_v(tr)
    a(f's_mov_b32 s{C.sMW}, {C.OOB}')
    for _ in range(2):
        tr.vmem(f'buffer_store_dword v{T0}, off, {WS}, s{C.sMW}', 'o')
    q0 = list(tr.vm)
    top = a.newlabel('att')
    a.label(top)
    st = {}
    C.zero(a, K0, 16)
    C.m_addr(a, 2, st)
    for ks in range(8):
        tr.wait_vm(('k', ks))
        a(f'v_mfma_f32_32x32x16_bf16 {vr(SS, 16)}, {vr(KF + 4 * ks, 4)}, {vr(QF + 4 * ks, 4)}, ' + (vr(SS, 16) if ks else '0'))
    a(f'v_mov_b32 v{NI}, 0xff800000')
    for r in range(0, 16, 2):
        a(f'v_cmp_gt_i32 vcc, {r}, v{TOK}')
        a(f'v_cmp_gt_i32 s[{C.sT64}:{C.sT64 + 1}], {r + 1}, v{TOK}')
        a(f'v_cndmask_b32 v{SS + r}, v{SS + r}, v{NI}, vcc')
        a(f'v_cndmask_b32 v{SS + r + 1}, v{SS + r + 1}, v{NI}, s[{C.sT64}:{C.sT64 + 1}]')
    a(f'v_max3_f32 v{MX}, v{SS}, v{SS + 1}, v{SS + 2}')
    for r in range(3, 15, 2):
        a(f'v_max3_f32 v{MX}, v{MX}, v{SS + r}, v{SS + r + 1}')
    a(f'v_max_f32 v{MX}, v{MX}, v{SS + 15}')
    a('s_waitcnt vmcnt(0)')
    a('s_mov_b64 exec, 1')
    a(f'v_mov_b32 v{T0}, 1')
    a(f'buffer_atomic_add v{T0}, off, {WS}, s{C.sMW}')
    a('s_mov_b64 exec, -1')
    a(f's_cmp_ge_u32 s{C.sSTEP}, 64')
    a(f's_cbranch_scc1 {top}_done')
    pl, go = a.newlabel('apoll'), a.newlabel('ago')
    a.label(pl)
    a(f'buffer_load_dwordx4 {vr(GM[0], 4)}, v{L16}, {WS}, s{C.sPOLL} offen sc1')
    a(f'buffer_load_dwordx4 {vr(GM[1], 4)}, v{L16}, {WS}, s{C.sPOLL} offen offset:1024 sc1')
    a(f'buffer_load_dwordx4 {vr(GM[2], 4)}, v{L16}, {WS}, s{C.sPOLL8} offen sc1')
    a(f's_add_u32 s{C.sSPIN}, s{C.sSPIN}, 1')
    g = GM[0]
    a('s_waitcnt vmcnt(0)')
    a(f'v_max3_u32 v{T0}, v{g}, v{g + 1}, v{g + 2}')
    for r in range(3, 11, 2):
        a(f'v_max3_u32 v{T0}, v{T0}, v{g + r}, v{g + r + 1}')
    a(f'v_max_u32 v{T0}, v{T0}, v{g + 11}')
    a(f'v_cmp_eq_u32 vcc, -1, v{T0}')
    a(f's_cbranch_vccz {go}')
    a('s_sleep 2')
    a(f's_cmp_lt_u32 s{C.sSPIN}, {C.SPINMAX}')
    a(f's_cbranch_scc1 {pl}')
    a.label(go)
    wstamp(a, 5)
    tr.vm = []
    tr.ds(f'ds_write_b128 v{VW}, {vr(GM[0], 4)}', 'mw')
    tr.ds(f'ds_write_b128 v{VW}, {vr(GM[1], 4)} offset:1024', 'mw')
    tr.ds(f'ds_write_b128 v{T2}, {vr(GM[2], 4)}', 'mw')
    order = [('k', 0, K0), ('k', 1, K1), ('v', 0, V0), ('v', 1, V1)]
    for n in range(10):
        buf = GM[n % 3]
        if n >= 3:
            tr.wait_lg(('A', n))
        for p, (m, t, acc) in enumerate(order):
            C.smf(a, acc, buf, (m, t, n), loc)
            if p == 1 and n == 1:
                tr.wait_lg('mw')
                a('s_barrier')
                C.m_read(tr, 3, GM[0], st)
            if p == 2 and n + 3 <= 9:
                C.m_addr(a, n + 3, st)
        if 1 <= n <= 6:
            C.m_read(tr, n + 3, buf, st)
    cvt(K0, K0, K0 + 1)
    cvt(K0 + 1, K0 + 2, K0 + 3)
    cvt(K1, K1, K1 + 1)
    cvt(K1 + 1, K1 + 2, K1 + 3)
    a(f'v_mfma_f32_16x16x16_bf16 {vr(GM[0], 4)}, {vr(K0, 2)}, {vr(SEL, 2)}, 0')
    a(f'v_mfma_f32_16x16x16_bf16 {vr(GM[1], 4)}, {vr(K1, 2)}, {vr(SEL, 2)}, 0')
    cvt(V0, V0, V0 + 1)
    cvt(V0 + 1, V0 + 2, V0 + 3)
    cvt(V0 + 2, V1, V1 + 1)
    cvt(V0 + 3, V1 + 2, V1 + 3)
    tr.ds(f'ds_write_b128 v46, {vr(V0, 4)} offset:20480', 'xw')
    for r in range(4):
        cvt(K0 + r, GM[0] + r, GM[1] + r)
    tr.ds(f'ds_write_b128 v46, {vr(K0, 4)} offset:16384', 'xw')
    a(f's_mov_b32 s{C.sMW}, s{sFO}')
    a(f's_add_u32 s{sKB}, s{sKB}, {64 * 8192}')
    a(f's_add_u32 s{sFO}, s{sFO}, 256')
    a(f's_add_u32 s{C.sPOLL}, s{C.sPOLL}, {2 * MSLOT}')
    a(f's_add_u32 s{C.sPOLL8}, s{C.sPOLL8}, {2 * MSLOT}')
    a(f's_add_u32 s{C.sSTEP}, s{C.sSTEP}, 2')
    tr.drain_lg()
    a('s_barrier')
    for ks in range(8):
        tr.ds(f'ds_read_b128 {vr(KF + 4 * ks, 4)}, v{KMA} offset:{16384 + ks * 512}', ('km', ks))
    for u in range(2):
        tr.ds(f'ds_read_b64 {vr(VMF + 2 * u, 2)}, v{VMA} offset:{20480 + u * 512}', 'vm')
    C.kv_ready(a, a.newlabel('akv'), 0)
    for ks in range(8):
        tr.wait_lg(('km', ks))
        a(f'v_mfma_f32_32x32x16_bf16 {vr(SM_, 16)}, {vr(KF + 4 * ks, 4)}, {vr(QF + 4 * ks, 4)}, ' + (vr(SM_, 16) if ks else '0'))
    ld_kq(tr)
    a(f'v_max3_f32 v{MX}, v{MX}, v{SM_}, v{SM_ + 1}')
    a(f'v_max3_f32 v{MX}, v{MX}, v{SM_ + 2}, v{SM_ + 3}')
    a(f'v_mov_b32 v{MY}, v{MX}')
    a(f'v_permlane32_swap_b32 v{MX}, v{MY}')
    a(f'v_max_f32 v{MX}, v{MX}, v{MY}')
    a(f'v_mul_f32 v{MX}, s{C.sSCALE}, v{MX}')
    vals = [SS + r for r in range(16)] + [SM_ + r for r in range(4)]
    for s in vals:
        a(f'v_fma_f32 v{s}, v{s}, s{C.sSCALE}, -v{MX}')
    for s in vals:
        a(f'v_exp_f32 v{s}, v{s}')
    PB = TMP + 4
    for r in range(8):
        cvt(PB + r, SS + 2 * r, SS + 2 * r + 1)
    cvt(PB + 8, SM_, SM_ + 1)
    cvt(PB + 9, SM_ + 2, SM_ + 3)
    a(f'v_mov_b64 {vr(PB + 10, 2)}, {vr(PB + 8, 2)}')
    tr.wait_lg('vm')
    a(f'v_mfma_f32_32x32x16_bf16 {vr(OA, 16)}, {vr(VF, 4)}, {vr(PB, 4)}, 0')
    a(f'v_mfma_f32_32x32x16_bf16 {vr(OA, 16)}, {vr(VF + 4, 4)}, {vr(PB + 4, 4)}, {vr(OA, 16)}')
    a(f'v_mfma_f32_32x32x16_bf16 {vr(OA, 16)}, {vr(VMF, 4)}, {vr(PB + 8, 4)}, {vr(OA, 16)}')
    ld_v(tr)
    for r in range(0, 16, 4):
        pka(SS + r, SS + r, SS + r + 2)
    pka(SM_, SM_, SM_ + 2)
    pka(SS, SS, SS + 4)
    pka(SS + 8, SS + 8, SS + 12)
    pka(SS, SS, SS + 8)
    pka(SS, SS, SM_)
    a(f'v_add_f32 v{MX}, v{SS}, v{SS + 1}')
    a(f'v_mov_b32 v{MY}, v{MX}')
    a(f'v_permlane32_swap_b32 v{MX}, v{MY}')
    a(f'v_add_f32 v{MX}, v{MX}, v{MY}')
    a(f'v_rcp_f32 v{MX}, v{MX}')
    for r in range(0, 16, 2):
        a(f'v_pk_mul_f32 {vr(OA + r, 2)}, {vr(OA + r, 2)}, {vr(MX, 2)} op_sel_hi:[1,0]')
    for r in range(8):
        cvt(SM_ + r, OA + 2 * r, OA + 2 * r + 1)
    tr.vmem(f'buffer_store_dwordx4 {vr(SM_, 4)}, v{L16}, {WS}, s{sOO} offen sc1', 'o')
    tr.vmem(f'buffer_store_dwordx4 {vr(SM_ + 4, 4)}, v{L16}, {WS}, s{sOO} offen offset:1024 sc1', 'o')
    assert tr.vm == q0
    a(f's_add_u32 s{sOO}, s{sOO}, {512 * 1024}')
    a(f's_branch {top}')
    a.label(f'{top}_done')


def wo_phase(a, lb, fb, layer):
    WS = f's[{S_WS}:{S_WS + 3}]'
    sSET, sDT, sSEG = sBLK, sH, sR
    a(f's_mov_b32 s{sT}, s{sGI}')
    a(f's_mul_i32 s{sSET}, s{sT}, 3277')
    a(f's_lshr_b32 s{sSET}, s{sSET}, 16')
    a(f's_mul_i32 s{sU}, s{sSET}, 20')
    a(f's_sub_u32 s{sDT}, s{sT}, s{sU}')
    srd(a, S_WA, sPTR + 6, 5242880)
    VS, RA, RO = 6, 7, 8
    a(f'v_lshrrev_b32 v{T1}, 2, v{LN}')
    a(f'v_mul_u32_u24 v{T1}, 0x500, v{T1}')
    a(f'v_and_b32 v{T2}, 3, v{LN}')
    a(f'v_lshl_add_u32 v{VS}, v{T2}, 4, v{T1}')
    tr_lane_addr(a, RA, LN, T1, T2, 64, CM_PI, None, hirows=4)
    a(f's_lshl_b32 s{sV}, s{sWV}, 15')
    a(f'v_add_u32 v{RA}, s{sV}, v{RA}')
    a(f's_mul_i32 s{sWO}, s{sWV}, {1024 * 1280}')
    a(f's_lshl_b32 s{sU}, s{sDT}, 6')
    a(f's_add_u32 s{sWO}, s{sWO}, s{sU}')
    for half in range(2):
        for i in range(32):
            a(f's_add_u32 m0, s{sV}, {i * 1024}')
            a(f'buffer_load_dwordx4 v{VS}, s[{S_WA}:{S_WA + 3}], s{sWO} offen lds')
            a(f's_add_u32 s{sWO}, s{sWO}, {16 * 1280}')
        for i in range(32):
            if i % 8 == 0:
                a(f's_waitcnt vmcnt({24 - i})')
            for u in range(2):
                a(f'ds_read_b64_tr_b16 {ar(128 * half + 4 * i + 2 * u, 2)}, v{RA} offset:{i * 1024 + 512 * u}')
            if i % 4 == 3:
                a('s_waitcnt lgkmcnt(0)')
    a('s_barrier')
    a(f'v_and_b32 v{T1}, 3, v{LN}')
    a(f'v_bfe_u32 v{T2}, v{LN}, 3, 2')
    a(f'v_lshl_add_u32 v{T1}, v{T2}, 2, v{T1}')
    a(f'v_bfe_u32 v{T2}, v{LN}, 2, 1')
    a(f'v_lshl_add_u32 v{T1}, v{T2}, 4, v{T1}')
    a(f'v_mul_u32_u24 v{RO}, 0x500, v{T1}')
    a(f'v_lshrrev_b32 v{T1}, 5, v{LN}')
    a(f'v_lshl_add_u32 v{RO}, v{T1}, 5, v{RO}')
    a(f's_lshl_b32 s{sU}, s{sDT}, 6')
    a(f's_lshl_b32 s{sT}, s{sWV}, 3')
    a(f's_add_u32 s{sU}, s{sU}, s{sT}')
    a(f'v_add_u32 v{RO}, s{sU}, v{RO}')
    WB_, RB_ = 9, 10
    a(f'v_add_u32 v{WB_}, s{sLW}, v{L16}')
    a(f's_lshl_b32 s{sU}, s{sWV}, 12')
    a(f'v_add_u32 v{RB_}, s{sU}, v{L16}')
    RI = 11
    if layer == 0:
        srd(a, S_X, sXP, 2048 * 640 * 2)
    else:
        a(f'v_lshrrev_b32 v{T1}, 5, v{LN}')
        a(f'v_lshlrev_b32 v{RI}, 10, v{T1}')
        a(f'v_and_b32 v{T1}, 31, v{LN}')
        a(f'v_lshl_add_u32 v{RI}, v{T1}, 4, v{RI}')
        a(f's_lshl_b32 s{sU}, s{sDT}, 11')
        a(f's_lshr_b32 s{sT}, s{sWV}, 1')
        a(f's_lshl_b32 s{sT}, s{sT}, 9')
        a(f's_add_u32 s{sU}, s{sU}, s{sT}')
        a(f's_and_b32 s{sT}, s{sWV}, 1')
        a(f's_lshl_b32 s{sT}, s{sT}, 3')
        a(f's_add_u32 s{sU}, s{sU}, s{sT}')
        a(f'v_add_u32 v{RI}, s{sU}, v{RI}')
    a(f's_mov_b32 s{sSEG}, s{sSET}')
    wstamp(a, 2)
    a('s_mov_b32 s92, 0')
    top = a.newlabel('wotop')
    a.label(top)
    RES, ACC, OF = 12, 16, 64
    a(f's_mul_i32 s{sXO}, s{sSEG}, 40960')
    if layer == 0:
        a(f'buffer_load_dwordx2 {vr(RES, 2)}, v{RO}, s[{S_X}:{S_X + 3}], s{sXO} offen')
    else:
        a(f's_add_u32 s{sU}, s{sXO}, {lb - LSTRIDE + L_X2}')
        a(f'buffer_load_dwordx2 {vr(RES, 2)}, v{RI}, {WS}, s{sU} offen sc1')
    a(f's_lshl_b32 s{sT}, s{sSEG}, 7')
    a(f's_add_u32 s{sT}, s{sT}, {fb + FL_O}')
    wait_flag(a, sT, 128)
    wstamp(a, 5)
    a(f's_lshl_b32 s{sT}, s{sSEG}, 18')
    a(f's_lshl_b32 s{sU}, s{sWV}, 16')
    a(f's_add_u32 s{sT}, s{sT}, s{sU}')
    a(f's_add_u32 s{sT}, s{sT}, {lb + L_O}')
    tr = Track(a)
    NB = 40

    def ld(i):
        if i % 4 == 0 and i:
            a(f's_add_u32 s{sT}, s{sT}, 4096')
        tr.vmem(f'buffer_load_dwordx4 {vr(OF + 4 * (i % NB), 4)}, v{L16}, {WS}, s{sT} offen offset:{(i % 4) * 1024} sc1', i)
    for i in range(NB):
        ld(i)
    for i in range(64):
        tr.wait_vm(i)
        acc = ACC + 16 * (i & 1)
        a(f'v_mfma_f32_32x32x16_bf16 {vr(acc, 16)}, {ar(4 * i, 4)}, {vr(OF + 4 * (i % NB), 4)}, ' + (vr(acc, 16) if i > 1 else '0'))
        if i + NB < 64:
            ld(i + NB)
    for r in range(0, 16, 2):
        a(f'v_pk_add_f32 {vr(ACC + r, 2)}, {vr(ACC + r, 2)}, {vr(ACC + 16 + r, 2)}')
    for q in range(4):
        a(f'ds_write_b128 v{WB_}, {vr(ACC + 4 * q, 4)} offset:{q * 4096}')
    a('s_waitcnt lgkmcnt(0)')
    a('s_barrier')
    for w in range(4):
        a(f'ds_read_b128 {vr(ACC + 4 * w, 4)}, v{RB_} offset:{w * 1024}')
    a('s_waitcnt lgkmcnt(0)')
    a('s_barrier')
    b = ACC
    for h in (0, 2):
        a(f'v_pk_add_f32 {vr(b + h, 2)}, {vr(b + h, 2)}, {vr(b + 4 + h, 2)}')
        a(f'v_pk_add_f32 {vr(b + 8 + h, 2)}, {vr(b + 8 + h, 2)}, {vr(b + 12 + h, 2)}')
    for h in (0, 2):
        a(f'v_pk_add_f32 {vr(b + h, 2)}, {vr(b + h, 2)}, {vr(b + 8 + h, 2)}')
    a(f'v_cvt_pk_bf16_f32 v{b + 4}, v{b}, v{b + 1}')
    a(f'v_cvt_pk_bf16_f32 v{b + 5}, v{b + 2}, v{b + 3}')
    unpack(a, b, b + 4, 2)
    unpack(a, b + 8, RES, 2)
    for r in range(4):
        a(f'v_add_f32 v{b + r}, v{b + r}, v{b + 8 + r}')
    a(f'v_cvt_pk_bf16_f32 v{b + 4}, v{b}, v{b + 1}')
    a(f'v_cvt_pk_bf16_f32 v{b + 5}, v{b + 2}, v{b + 3}')
    a(f's_add_u32 s{sU}, s{sXO}, {lb + L_X1}')
    a(f'buffer_store_dwordx2 {vr(b + 4, 2)}, v{RO}, {WS}, s{sU} offen sc1')
    a(f's_lshl_b32 s{sT}, s{sSEG}, 6')
    a(f's_add_u32 s{sT}, s{sT}, {fb + FL_X1}')
    signal(a, sT)
    a(f's_add_u32 s{sSEG}, s{sSEG}, {NWO // 20}')
    a(f's_cmp_lt_u32 s{sSEG}, 64')
    a(f's_cbranch_scc1 {top}')
```

```python
import struct
from asmlib import *
from layout import *


def f32(x):
    return '0x%08x' % struct.unpack('<I', struct.pack('<f', x))[0]


class Track:
    def __init__(self, a):
        self.a = a
        self.vm = []
        self.lg = []

    def vmem(self, text, tag=None):
        self.a(text)
        self.vm.append(tag)

    def ds(self, text, tag=None):
        self.a(text)
        self.lg.append(tag)

    def _wait(self, q, tag, name, maxn):
        idx = [i for i, t in enumerate(q) if t == tag]
        if not idx:
            return None
        last = idx[-1]
        n = len(q) - 1 - last
        del q[:last + 1]
        if n > maxn:
            extra = n - maxn
            del q[:extra]
            n = maxn
        return n

    def wait_vm(self, tag):
        n = self._wait(self.vm, tag, 'vmcnt', 63)
        if n is not None:
            self.a(f's_waitcnt vmcnt({n})')

    def wait_lg(self, tag):
        n = self._wait(self.lg, tag, 'lgkmcnt', 15)
        if n is not None:
            self.a(f's_waitcnt lgkmcnt({n})')

    def drain_vm(self):
        self.a('s_waitcnt vmcnt(0)')
        self.vm = []

    def drain_lg(self):
        self.a('s_waitcnt lgkmcnt(0)')
        self.lg = []


IDX, L16, VW, KT, VT, WB, PQPP, ORDTMR, T3, T2, T0, T1 = range(12)
TB = 8
GM = [12, 16, 20]
Q0, K0, Q1, K1, V0, V1 = 24, 28, 32, 36, 40, 44
KR = 48
VR = 56
P = [64, 72, 80, 88]
RESV = 96

MST = 2048
LB8 = 8192
LS_S = 10240
LS_TM = 14336
LSEL = 15360
LRSEL = 15872
LWT = 16384
NLDS = 18
LWT_W = NLDS * 2048
CHAIN_LDS = LWT + 4 * LWT_W

S_WS = 4
S_W = 8
sH, sWV, sSTEP, sTMP, sTMP2 = 12, 13, 14, 15, 16
sPOLL, sPOLL8, sKB, sVB, sKMQ, sVM = 17, 18, 19, 20, 21, 22
sPST, sPST1, sPST2, sRED, sMW, sMR = 23, 24, 25, 26, 27, 28
sSTR = 30
sMASK = 36
sHASRED, sB8, sSCALE, sX41 = 38, 39, 40, 41
sSPIN = 0
sREDP = 42
sMRP = 44
sPAR = 44
sPERMLO, sPERMHI = 45, 46
sNSTEP = 47
sRS = 48
sT64 = 50
sTIME = 52
sEP = 52
sSW, sTW = 53, 54
sMASK2 = 42
sTOFF = 29
sMCB = 55
sMCO = 60
sMCP = 63
sFLB = 22
sLB = 21
sRDY = 49
FL_KV = 0
FL_MF = 0x1000
sPTR = 56


VSRC = 'R R R L3 R L3 R L2 R L2 R L2 L2 L3 s1 L2 R L3 s0 s1'.split()
SQK = {4: 0, 6: 1, 9: 0}
NVQ = 12
VORD = [0, 1, 2, 4, 5, 6, 9, 7, 8, 3]


LQ = {1: 2, 2: 2, 3: 2, 4: 3, 5: 3, 6: 3, 7: 3, 8: 2, 9: 3}
LQP = {1: 3}


def vk(j):
    return ('v', j & 1, VORD[j >> 1])


def frag_plan():
    loc = {}
    na = 0
    nv = 0
    nl = 0
    ns = 0

    def res():
        nonlocal na, nv
        if na < 32:
            na += 1
            return ('a', 8 * (na - 1))
        nv += 1
        return ('v', RESV + 8 * (nv - 1))

    order = [('q', 0), ('k', 0), ('q', 1), ('k', 1)]
    lq = {1: 4, 3: 3, 4: 4, 5: 4, 6: 3, 7: 4, 8: 3, 9: 4}
    lq = LQ
    for n in range(10):
        for p, (m, t) in enumerate(order):
            if n == 0:
                loc[(m, t, n)] = ('s', ns, P[p]); ns += 1
            elif n in lq and p == LQP.get(n, 1):
                loc[(m, t, n)] = ('l', nl, P[lq[n]]); nl += 1
            elif p == 3 and n in SQK:
                loc[(m, t, n)] = ('s', ns, P[SQK[n]]); ns += 1
            else:
                loc[(m, t, n)] = res()
    for j, s in enumerate(VSRC):
        key = vk(j)
        if s[0] == 'L':
            loc[key] = ('l', nl, P[int(s[1])]); nl += 1
        elif s[0] == 's':
            loc[key] = ('s', ns, P[int(s[1])]); ns += 1
        else:
            loc[key] = res()
    for n in range(4):
        for U in range(5):
            loc[('o', U, n)] = res()
    assert (na, nv, nl, ns) == (32, 20, 18, 10), (na, nv, nl, ns)
    return loc


LOC = frag_plan()


def breg(key, loc=None):
    l = (loc or LOC)[key]
    if l[0] == 'a':
        return ar(l[1], 8)
    if l[0] == 'v':
        return vr(l[1], 8)
    return vr(l[2], 8)


def rowconst(r):
    return 32 * (r >> 2) + 8 * (r & 1) + 2 * ((r >> 1) & 1)


def chain_consts(a):
    G, C, LN, X, Y = 12, 13, 14, 15, 16
    a(f'v_lshrrev_b32 v{X}, 6, v0')
    a(f'v_and_b32 v{LN}, 63, v0')
    a(f'v_readfirstlane_b32 s{sWV}, v{X}')
    a(f'v_lshrrev_b32 v{G}, 4, v{LN}')
    a(f'v_and_b32 v{C}, 15, v{LN}')
    a(f'v_lshlrev_b32 v{L16}, 4, v{LN}')
    a(f'v_mov_b32 v{X}, 0x4444')
    a(f'v_mov_b32 v{Y}, 0xeeee')
    a(f'v_cmp_gt_u32 vcc, 8, v{C}')
    a(f'v_cndmask_b32 v{IDX}, v{Y}, v{X}, vcc')
    a(f's_mov_b32 s{sMASK}, 0x00ff00ff')
    a(f's_mov_b32 s{sMASK + 1}, 0x00ff00ff')
    a(f's_lshl_b32 s{sTMP}, s{sWV}, 11')
    a(f'v_add_u32 v{VW}, s{sTMP}, v{L16}')
    a(f's_mul_i32 s{sTMP}, s{sWV}, {LWT_W}')
    a(f's_add_u32 s{sTMP}, s{sTMP}, {LWT}')
    a(f'v_add_u32 v{WB}, s{sTMP}, v{L16}')
    a(f'v_and_b32 v{X}, 1, v{G}')
    a(f'v_lshlrev_b32 v{X}, 10, v{X}')
    a(f'v_lshrrev_b32 v{Y}, 1, v{G}')
    a(f'v_lshl_add_u32 v{X}, v{Y}, 9, v{X}')
    a(f's_lshl_b32 s{sTMP}, s{sWV}, 11')
    a(f'v_add_u32 v{X}, s{sTMP}, v{X}')
    a(f'v_lshl_add_u32 v{VT}, v{C}, 4, v{X}')
    a(f'v_bfe_u32 v{Y}, v{C}, 2, 1')
    a(f'v_lshl_add_u32 v{X}, v{Y}, 8, v{X}')
    a(f'v_lshrrev_b32 v{Y}, 3, v{C}')
    a(f'v_lshl_add_u32 v{X}, v{Y}, 6, v{X}')
    a(f'v_and_b32 v{Y}, 3, v{C}')
    a(f'v_lshl_add_u32 v{KT}, v{Y}, 4, v{X}')
    a(f'v_lshrrev_b32 v{X}, 3, v{LN}')
    a(f'v_lshlrev_b32 v{X}, 12, v{X}')
    a(f'v_and_b32 v{Y}, 7, v{LN}')
    a(f'v_lshl_add_u32 v{X}, v{Y}, 4, v{X}')
    a(f'v_lshlrev_b32 v{Y}, 12, v{G}')
    a(f'v_lshl_add_u32 v{Y}, v{C}, 3, v{Y}')
    a(f'v_lshl_add_u32 v{PQPP}, v{Y}, 16, v{X}')
    a(f'v_lshlrev_b32 v{X}, 8, v{G}')
    a(f'v_and_b32 v{Y}, 7, v{C}')
    a(f'v_lshl_add_u32 v{X}, v{Y}, 4, v{X}')
    a(f's_lshl_b32 s{sTMP}, s{sWV}, 11')
    a(f'v_add_u32 v{X}, s{sTMP}, v{X}')
    a(f's_lshl_b32 s{sSW}, s{sWV}, 10')
    a(f's_and_b32 s{sTW}, s{sWV}, 1')
    a(f's_lshl_b32 s{sTW}, s{sTW}, 7')
    a(f's_lshr_b32 s{sTMP}, s{sWV}, 1')
    a(f's_lshl_b32 s{sTMP}, s{sTMP}, 9')
    a(f's_add_u32 s{sTW}, s{sTW}, s{sTMP}')
    a(f's_mov_b32 s{sMASK2}, 0')
    a(f's_mov_b32 s{sMASK2 + 1}, 0x00ff00ff')
    a(f'v_lshlrev_b32 v17, 4, v{Y}')
    a(f'v_and_b32 v{Y}, 1, v{G}')
    a(f'v_lshl_add_u32 v17, v{Y}, 8, v17')
    a(f'v_lshrrev_b32 v{Y}, 3, v{C}')
    a(f'v_lshl_add_u32 v17, v{Y}, 3, v17')
    a(f'v_add_u32 v17, {LS_TM}, v17')
    a(f'v_lshl_add_u32 v{ORDTMR}, v17, 16, v{X}')
    lab = a.newlabel('rb')
    a(f's_lshl_b32 s{sTMP}, s{sH}, 1')
    a(f's_add_u32 s{sTMP}, s{sTMP}, s{sWV}')
    a(f's_mov_b32 s{sHASRED}, 1')
    a(f's_cmp_lt_u32 s{sWV}, 2')
    a(f's_cbranch_scc1 {lab}')
    a(f's_add_u32 s{sTMP}, s{sH}, 64')
    a(f's_cmp_lt_u32 s{sH}, 16')
    a(f's_cselect_b32 s{sHASRED}, 1, 0')
    a(f's_cmp_eq_u32 s{sWV}, 2')
    a(f's_cselect_b32 s{sHASRED}, s{sHASRED}, 0')
    a(f's_cmp_eq_u32 s{sHASRED}, 1')
    a(f's_cselect_b32 s{sTMP}, s{sTMP}, 0')
    a.label(lab)
    a(f's_lshl_b32 s{sRED}, s{sTMP}, 12')
    a(f's_add_u32 s{sRED}, s{sRED}, {WS_PRING}')
    a(f's_mul_i32 s{sTMP2}, s{sTMP}, 3277')
    a(f's_lshr_b32 s{sTMP2}, s{sTMP2}, 16')
    a(f's_mul_i32 s{sT64}, s{sTMP2}, 20')
    a(f's_sub_u32 s{sTMP}, s{sTMP}, s{sT64}')
    a(f's_mul_i32 s{sTMP2}, s{sTMP2}, 160')
    a(f's_lshr_b32 s{sT64}, s{sTMP}, 3')
    a(f's_lshl_b32 s{sT64}, s{sT64}, 6')
    a(f's_add_u32 s{sTMP2}, s{sTMP2}, s{sT64}')
    a(f's_lshr_b32 s{sT64 + 1}, s{sTMP}, 1')
    a(f's_and_b32 s{sT64 + 1}, s{sT64 + 1}, 3')
    a(f's_and_b32 s{sT64}, s{sTMP}, 3')
    a(f's_cmp_ge_u32 s{sTMP}, 16')
    a(f's_cselect_b32 s{sRS}, 1, 0')
    a(f's_cselect_b32 s{sT64 + 1}, s{sT64}, s{sT64 + 1}')
    a(f's_and_b32 s{sT64}, s{sT64 + 1}, 2')
    a(f's_lshl_b32 s{sX41}, s{sT64}, 4')
    a(f's_and_b32 s{sTMP}, s{sTMP}, 1')
    a(f's_lshl_b32 s{sTMP}, s{sTMP}, 4')
    a(f's_add_u32 s{sX41}, s{sX41}, s{sTMP}')
    a(f's_lshl_b32 s{sT64}, s{sT64}, 3')
    a(f's_cmp_eq_u32 s{sRS}, 1')
    a(f's_cselect_b32 s{sT64}, s{sT64}, s{sX41}')
    a(f's_add_u32 s{sTMP2}, s{sTMP2}, s{sT64}')
    a(f's_and_b32 s{sT64}, s{sT64 + 1}, 1')
    a(f's_lshl_b32 s{sT64}, s{sT64}, 6')
    a(f'v_lshlrev_b32 v{X}, 1, v{C}')
    a(f'v_add_u32 v{X}, s{sTMP2}, v{X}')
    a(f'v_lshrrev_b32 v{Y}, 3, v{X}')
    a(f'v_lshlrev_b32 v{Y}, 7, v{Y}')
    a(f'v_and_b32 v{X}, 7, v{X}')
    a(f'v_lshl_add_u32 v{Y}, v{X}, 1, v{Y}')
    a(f'v_lshl_add_u32 v{Y}, v{G}, 5, v{Y}')
    a(f'v_add_u32 v{Y}, s{sT64}, v{Y}')
    a(f'v_and_b32 v{X}, 0x28, v{LN}')
    a(f'v_cmp_eq_u32 vcc, 0, v{X}')
    a(f'v_mov_b32 v{X}, 0x8000')
    a(f'v_cndmask_b32 v{Y}, v{X}, v{Y}, vcc')
    a(f'v_lshl_or_b32 v{IDX}, v{Y}, 16, v{IDX}')
    a(f's_and_b32 s{sB8}, s{sWV}, 1')
    a(f's_lshl_b32 s{sB8}, s{sB8}, 10')
    a(f's_add_u32 s{sB8}, s{sB8}, {LB8}')
    a(f's_mov_b32 s{sSCALE}, {f32(128 ** -0.5 * 1.4426950408889634)}')
    a(f's_mov_b32 s{sPERMLO}, 0x05040100')
    a(f's_mov_b32 s{sPERMHI}, 0x07060302')
    a(f's_lshl_b32 s{sTMP}, s{sH}, 2')
    a(f's_add_u32 s{sTMP}, s{sTMP}, s{sWV}')
    a(f's_mul_i32 s{sTMP}, s{sTMP}, {NSTR * 2048}')
    a(f's_add_u32 s{sTMP}, s{sTMP}, {WS_STREAM}')
    for i in range(NSTR // 2):
        a(f's_add_u32 s{sSTR + i}, s{sTMP}, {i * 4096}')
    a(f's_mul_i32 s{sPST}, s{sWV}, {20 * 4096}')
    a(f's_lshl_b32 s{sTMP}, s{sH}, 7')
    a(f's_add_u32 s{sPST}, s{sPST}, s{sTMP}')
    a(f's_add_u32 s{sPST}, s{sPST}, {WS_PRING}')
    a(f's_add_u32 s{sPST1}, s{sPST}, {8 * 4096}')
    a(f's_add_u32 s{sPST2}, s{sPST}, {16 * 4096}')


def slot_kk_salu(a, n, dst):
    if n < 2:
        a(f's_lshl_b32 s{dst}, s{sWV}, 1')
        if n:
            a(f's_add_u32 s{dst}, s{dst}, 1')
    elif n == 2:
        a(f's_and_b32 s{dst}, s{sWV}, 1')
        a(f's_add_u32 s{dst}, s{dst}, 8')
    elif n == 3:
        a(f's_and_b32 s{dst}, s{sWV}, 1')
        a(f's_sub_u32 s{dst}, 9, s{dst}')
    else:
        q = (n - 2) >> 1
        a(f's_xor_b32 s{dst}, s{sWV}, {q}')
        a(f's_lshl_b32 s{dst}, s{dst}, 1')
        if n & 1:
            a(f's_add_u32 s{dst}, s{dst}, 1')


def chain_load_weights(a, LOC=None, mats=(0, 1, 2, 3)):
    LOC = LOC or globals()['LOC']
    tr = Track(a)
    LN, G, C = 14, 12, 13
    VSRC = 17
    VO = [18, 19, 20, 21, 22]
    RA, RB, RC = 23, 24, 25
    X, Y = 26, 27
    RD = 32
    PT = 64
    sSCR = sPOLL
    sHO, sKK, sSO, sSP = sPOLL8, sKB, sVB, sKMQ
    a(f's_mul_i32 s{sSCR}, s{sWV}, 40960')
    a(f's_lshl_b32 s{sSP}, s{sH}, 2')
    a(f's_add_u32 s{sSP}, s{sSP}, s{sWV}')
    a(f's_mul_i32 s{sSP}, s{sSP}, {NLDS * 2048}')
    a(f's_add_u32 s{sSP}, s{sSP}, {WS_SPILL}')
    a(f'v_lshrrev_b32 v{X}, 3, v{LN}')
    a(f'v_lshlrev_b32 v{X}, 13, v{X}')
    a(f'v_and_b32 v{Y}, 7, v{LN}')
    a(f'v_lshl_add_u32 v{X}, v{Y}, 4, v{X}')
    a(f's_lshr_b32 s{sTMP}, s{sWV}, 1')
    a(f's_lshl_b32 s{sTMP}, s{sTMP}, 7')
    a(f'v_add_u32 v{VSRC}, s{sTMP}, v{X}')
    a(f's_mul_i32 s{sTMP}, s{sWV}, 320')
    a(f's_mov_b32 s{sTMP2}, 3277')
    a(f's_movk_i32 s{sT64}, 1280')
    for i in range(5):
        a(f'v_add_u32 v{X}, {64 * i}, v{LN}')
        a(f'v_mul_lo_u32 v{Y}, v{X}, s{sTMP2}')
        a(f'v_lshrrev_b32 v{Y}, 16, v{Y}')
        a(f'v_mul_u32_u24 v{VO[i]}, 20, v{Y}')
        a(f'v_sub_u32 v{X}, v{X}, v{VO[i]}')
        a(f'v_mul_lo_u32 v{Y}, v{Y}, s{sT64}')
        a(f'v_lshl_add_u32 v{Y}, v{X}, 4, v{Y}')
        a(f'v_add_u32 v{VO[i]}, s{sTMP}, v{Y}')
    LP = 28
    a(f'v_lshrrev_b32 v{X}, 1, v{G}')
    a(f'v_lshlrev_b32 v{X}, 4, v{X}')
    a(f'v_and_b32 v{Y}, 1, v{G}')
    a(f'v_lshl_add_u32 v{LP}, v{Y}, 2, v{X}')

    def set_srd(mi):
        a(f's_mov_b32 s{S_W}, s{sPTR + 2 * mi}')
        a(f's_and_b32 s{S_W + 1}, s{sPTR + 2 * mi + 1}, 0xffff')
        a(f's_mov_b32 s{S_W + 2}, 5242880')
        a(f's_mov_b32 s{S_W + 3}, 0x00020000')

    POS = [0, 1, 2, 6, 7]
    PART = [4, 5, 3, 8, 9]
    GRP = [(0, 1), (2,), (3, 4)]

    def dma_pos(mi, p):
        if mi < 3:
            slot_kk_salu(a, POS[p], sKK)
            a(f's_lshl_b32 s{sKK}, s{sKK}, 19')
            a(f's_lshl_b32 s{sSO}, s{sH}, 8')
            a(f's_add_u32 s{sKK}, s{sKK}, s{sSO}')
            for i in range(8):
                a(f's_add_u32 s{sSO}, s{sKK}, {i * 8 * 8192}')
                a(f's_add_u32 m0, s{sSCR}, {p * 8192 + i * 1024}')
                tr.vmem(f'buffer_load_dwordx4 v{VSRC}, s[{S_W}:{S_W + 3}], s{sSO} offen lds', ('dma', mi, p))
        else:
            a(f's_mul_i32 s{sKK}, s{sH}, 163840')
            for i in range(8):
                ii = 8 * p + i
                a(f's_add_u32 s{sSO}, s{sKK}, {(ii // 5) * 16 * 1280}')
                a(f's_add_u32 m0, s{sSCR}, {ii * 1024}')
                tr.vmem(f'buffer_load_dwordx4 v{VO[ii % 5]}, s[{S_W}:{S_W + 3}], s{sSO} offen lds', ('dma', mi, p))

    def dest(key, k):
        l = LOC[key]
        if l[0] == 'v':
            return l[1]
        return PT + 8 * k

    def finish(key, k):
        l = LOC[key]
        base = PT + 8 * k
        if l[0] == 'a':
            for r in range(8):
                a(f'v_accvgpr_write_b32 a{l[1] + r}, v{base + r}')
        elif l[0] in 'ls':
            a(f's_add_u32 s{sSO}, s{sSTR if l[0] == "s" else sSP}, {l[1] * 2048}')
            tr.vmem(f'buffer_store_dwordx4 {vr(base, 4)}, v{L16}, s[{S_WS}:{S_WS + 3}], s{sSO} offen', 'spill')
            tr.vmem(f'buffer_store_dwordx4 {vr(base + 4, 4)}, v{L16}, s[{S_WS}:{S_WS + 3}], s{sSO} offen offset:1024',
                    'spill')

    set_srd(mats[0])
    for p in range(5):
        dma_pos(mats[0], p)
    RCP = 29
    a(f'v_lshlrev_b32 v{X}, 7, v{LP}')
    a(f'v_lshl_add_u32 v{X}, v{C}, 2, v{X}')
    a(f's_and_b32 s{sTMP}, s{sWV}, 1')
    a(f's_lshl_b32 s{sTMP}, s{sTMP}, 6')
    a(f'v_add_u32 v{X}, s{sTMP}, v{X}')
    a(f'v_add_u32 v{RC}, s{sSCR}, v{X}')
    a(f's_xor_b32 s{sTMP}, s{sWV}, 1')
    a(f's_mul_i32 s{sTMP}, s{sTMP}, 40960')
    a(f'v_add_u32 v{RCP}, s{sTMP}, v{X}')
    R4 = [RA, RB, 30, 31]
    pending = None
    for ix, mi in enumerate(mats):
        if mi == 3:
            break
        m = 'qkv'[mi]
        nxt = mats[ix + 1] if ix + 1 < len(mats) else None
        for gi_, grp in enumerate(GRP):
            tr.wait_vm(('dma', mi, grp[-1]))
            a('s_barrier')
            if OPT.get('wlt') and 3 in mats and gi_ == 0:
                a(f's_memrealtime s[{64 + 2 * ix}:{65 + 2 * ix}]')
            if pending is not None:
                pm, pg = pending
                set_srd(pm)
                for p in pg:
                    dma_pos(pm, p)
            pending = (nxt, grp) if nxt is not None else None
            for p in grp:
                for n, base in ((POS[p], RC), (PART[p], RCP)):
                    for k in range(4):
                        a(f'v_add_u32 v{R4[k]}, {p * 8192 + (k >> 1) * 4096 + (k & 1) * 1024}, v{base}')
                    for r in range(8):
                        rc = rowconst(r) & 31
                        o = (rc & 7) * 32
                        tr.ds(f'ds_read2_b32 {vr(RD + 2 * r, 2)}, v{R4[2 * (r >> 2) + (rc >> 3)]} offset0:{o} offset1:{o + 32}')
                    tr.drain_lg()
                    for t in range(2):
                        key = (m, t, n)
                        d = dest(key, t)
                        for r in range(8):
                            a(f'v_perm_b32 v{d + r}, v{RD + 2 * r + 1}, v{RD + 2 * r}, s{sPERMHI if t else sPERMLO}')
                        finish(key, t)
    if pending is not None:
        a('s_barrier')
        set_srd(pending[0])
        for p in pending[1]:
            dma_pos(pending[0], p)
    if OPT.get('wlt') and 3 in mats:
        a('s_memrealtime s[90:91]')
    if 3 in mats:
        a(f's_movk_i32 s{sT64}, {4 * 320}')
        a(f'v_mul_lo_u32 v{X}, v{G}, s{sT64}')
        a(f'v_add_u32 v{X}, s{sSCR}, v{X}')
        a(f'v_lshl_add_u32 v{RC}, v{C}, 2, v{X}')
        a(f'v_lshrrev_b32 v{Y}, 1, v{C}')
        a(f'v_lshl_add_u32 v{Y}, v{Y}, 2, v{X}')
        a(f'v_add_u32 v{Y}, 256, v{Y}')
        SELV = 29
        a(f'v_and_b32 v{X}, 1, v{C}')
        a(f'v_mov_b32 v{SELV}, s{sPERMLO}')
        a(f'v_mov_b32 v30, s{sPERMHI}')
        a(f'v_cmp_eq_u32 vcc, 1, v{X}')
        a(f'v_cndmask_b32 v{SELV}, v{SELV}, v30, vcc')
        tr.wait_vm(('dma', 3, 4))
        if OPT.get('wlt'):
            a('s_memrealtime s[92:93]')
        for n in range(4):
            a(f's_xor_b32 s{sKK}, s{sWV}, {n}')
            a(f's_mul_i32 s{sKK}, s{sKK}, {32 * 320}')
            for grp in range(3):
                for r in range(8):
                    off = (16 * (r >> 2) + 2 * ((r >> 1) & 1)) * 320
                    if grp < 2:
                        off += 128 * grp + 64 * (r & 1)
                    else:
                        off += 32 * (r & 1)
                    a(f's_add_u32 s{sSO}, s{sKK}, {off}')
                    a(f'v_add_u32 v{RA}, s{sSO}, v{RC if grp < 2 else Y}')
                    tr.ds(f'ds_read2_b32 {vr(RD + 2 * r, 2)}, v{RA} offset0:0 offset1:80')
                tr.drain_lg()
                for t in range(2 if grp < 2 else 1):
                    key = ('o', 2 * grp + t, n)
                    d = dest(key, t)
                    for r in range(8):
                        sel = f'v{SELV}' if grp == 2 else f's{sPERMHI if t else sPERMLO}'
                        a(f'v_perm_b32 v{d + r}, v{RD + 2 * r + 1}, v{RD + 2 * r}, {sel}')
                    finish(key, t)
    if OPT.get('wlt') and 3 in mats:
        a('s_memrealtime s[94:95]')
    tr.drain_vm()
    a('s_barrier')
    if OPT.get('wlt') and 3 in mats:
        a('s_memrealtime s[96:97]')
    a(f's_mul_i32 s{sSCR}, s{sWV}, {LWT_W}')
    a(f's_add_u32 s{sSCR}, s{sSCR}, {LWT}')
    for i in range(2 * NLDS if 3 in mats else 0):
        a(f's_add_u32 s{sSO}, s{sSP}, {i * 1024}')
        a(f's_add_u32 m0, s{sSCR}, {i * 1024}')
        tr.vmem(f'buffer_load_dwordx4 v{L16}, s[{S_WS}:{S_WS + 3}], s{sSO} offen lds')
    a(f'v_and_b32 v{X}, 1, v{G}')
    a(f'v_lshlrev_b32 v{X}, 2, v{X}')
    a(f'v_sub_u32 v{X}, v{C}, v{X}')
    a(f'v_mov_b32 v{RA}, 0x3f80')
    a(f'v_mov_b32 v{RB}, 0x3f800000')
    for p, k in enumerate((0, 2, 8, 10)):
        reg = RD + p
        a(f'v_mov_b32 v{reg}, 0')
        a(f'v_cmp_eq_u32 vcc, {k}, v{X}')
        a(f'v_cndmask_b32 v{reg}, v{reg}, v{RA}, vcc')
        a(f'v_cmp_eq_u32 vcc, {k + 1}, v{X}')
        a(f'v_cndmask_b32 v{reg}, v{reg}, v{RB}, vcc')
    a(f'v_and_b32 v{Y}, 0x1f0, v{L16}')
    tr.ds(f'ds_write_b128 v{Y}, {vr(RD, 4)} offset:{LSEL}')
    for var in range(2):
        if var == 0:
            a(f'v_mov_b32 v{X}, v{C}')
        else:
            a(f'v_and_b32 v{X}, 8, v{C}')
            a(f'v_bfe_u32 v{Y}, v{C}, 1, 2')
            a(f'v_add_u32 v{X}, v{X}, v{Y}')
            a(f'v_and_b32 v{Y}, 1, v{C}')
            a(f'v_lshl_add_u32 v{X}, v{Y}, 2, v{X}')
        for p in range(4):
            reg = RD + 4 + p
            a(f'v_mov_b32 v{reg}, 0')
            a(f'v_cmp_eq_u32 vcc, {2 * p}, v{X}')
            a(f'v_cndmask_b32 v{reg}, v{reg}, v{RA}, vcc')
            a(f'v_cmp_eq_u32 vcc, {2 * p + 1}, v{X}')
            a(f'v_cndmask_b32 v{reg}, v{reg}, v{RB}, vcc')
        a(f'v_and_b32 v{Y}, 0xf0, v{L16}')
        tr.ds(f'ds_write_b128 v{Y}, {vr(RD + 4, 4)} offset:{LRSEL + var * 256}')
    tr.drain_vm()
    tr.drain_lg()
    a('s_barrier')


assert CHAIN_LDS <= 163840


OPT = {}
OOB = 0x7ffff000


def fill_ops(keys, tag):
    ops = []
    if OPT.get('nofill'):
        return ops
    for key in keys:
        l = LOC[key]
        assert l[0] == 's'
        idx = l[1]
        for hf in range(2):
            off = (idx & 1) * 2048 + hf * 1024
            ops.append((f'buffer_load_dwordx4 {vr(l[2] + 4 * hf, 4)}, v{L16}, s[{S_WS}:{S_WS + 3}], s{sSTR + (idx >> 1)} offen'
                        + (f' offset:{off}' if off else '') + ('' if str(idx) in OPT.get('l1', ' 99').strip().split(',') else ' sc1'), tag))
    return ops


def lds_stage(tr, key):
    l = LOC[key]
    assert l[0] == 'l'
    for hf in range(2):
        tr.ds(f'ds_read_b128 {vr(l[2] + 4 * hf, 4)}, v{WB} offset:{l[1] * 2048 + hf * 1024}', ('B',) + key)


def m_addr(a, n, state):
    if n < 2:
        return
    if n == 2:
        a(f'v_add_u32 v{T2}, s{sB8}, v{L16}')
        state['t2'] = 'b8'
    elif n == 3:
        assert state['t2'] == 'b8'
        a(f'v_xor_b32 v{T2}, 0x400, v{T2}')
        state['t2'] = 'b9'
    elif (n & 1) == 0:
        q = (n - 2) >> 1
        a(f'v_xor_b32 v{T2}, {q * MST}, v{VW}')
        state['t2'] = ('p', q)


def m_read(tr, n, buf, state):
    tag = ('A', n)
    if n < 2:
        tr.ds(f'ds_read_b128 {vr(buf, 4)}, v{VW} offset:{n * 1024}', tag)
    elif n < 4:
        assert state['t2'] == ('b8' if n == 2 else 'b9')
        tr.ds(f'ds_read_b128 {vr(buf, 4)}, v{T2}', tag)
    else:
        assert state['t2'] == ('p', (n - 2) >> 1)
        tr.ds(f'ds_read_b128 {vr(buf, 4)}, v{T2} offset:{(n & 1) * 1024}', tag)


def smf(a, acc, abuf, key, loc=None):
    a(f'v_smfmac_f32_16x16x64_bf16 {vr(acc, 4)}, {vr(abuf, 4)}, {breg(key, loc)}, v{IDX}')


def zero(a, base, n):
    for i in range(0, n, 2):
        a(f'v_mov_b64 {vr(base + i, 2)}, 0')


H01 = [('q', 0, 0), ('k', 0, 0)]
H23 = [('q', 1, 0), ('k', 1, 0)]
SPINMAX = 0x180000


def kv_ready(a, name, seg_sgpr_plus):
    if OPT.get('noflags'):
        return
    WS = f's[{S_WS}:{S_WS + 3}]'
    a(f's_add_u32 s{sTMP}, s{sSTEP}, {seg_sgpr_plus}')
    a(f's_lshr_b32 s{sTMP}, s{sTMP}, 2')
    a(f's_min_u32 s{sTMP}, s{sTMP}, 15')
    a(f's_cmp_lt_u32 s{sTMP}, s{sRDY}')
    a(f's_cbranch_scc1 {name}_ok')
    a.label(f'{name}_sp')
    a(f'v_lshrrev_b32 v{T1}, 2, v{L16}')
    a(f'buffer_load_dword v{T1}, v{T1}, {WS}, s{sFLB} offen sc1')
    a('s_waitcnt vmcnt(0)')
    a(f'v_cmp_le_u32 vcc, 4, v{T1}')
    a(f's_add_u32 s{sSPIN}, s{sSPIN}, 1')
    a(f's_and_b32 s{sRDY}, vcc_lo, 0xffff')
    a(f's_ff0_i32_b32 s{sRDY}, s{sRDY}')
    a(f's_cmp_lt_u32 s{sTMP}, s{sRDY}')
    a(f's_cbranch_scc1 {name}_ok')
    a(f's_cmp_lt_u32 s{sSPIN}, {SPINMAX}')
    a(f's_cbranch_scc1 {name}_sp')
    a.label(f'{name}_ok')


def mc_init(a):
    for k, n in enumerate((7, 8, 3)):
        slot_kk_salu(a, n, sMCO + k)
        a(f's_lshl_b32 s{sMCO + k}, s{sMCO + k}, 10')
    a(f's_lshl_b32 s{sTOFF}, s{sWV}, 3')
    a(f's_add_u32 s{sTOFF}, s{sTOFF}, s{sH}')


def chain_epilogue(a):
    pass


def chain_init_state(a):
    tr = Track(a)
    for t, tag in fill_ops(H01 + H23, 'h'):
        a(t)
    mc_init(a)
    zero(a, Q0, 24)
    a(f's_mov_b32 s{sMW}, {WS_MRING}')
    a(f's_mov_b32 s{sMR}, {WS_MRING + 3 * MSLOT}')
    a(f's_mov_b32 s{sLB}, {LAYER0}')
    a(f's_lshl_b32 s{sFLB}, s{sH}, 6')
    a(f's_add_u32 s{sFLB}, s{sFLB}, {WS_FLAGS + FL_KV}')


def chain_layer_state(a):
    WS = f's[{S_WS}:{S_WS + 3}]'
    a(f's_lshl_b32 s{sTMP}, s{sH}, 13')
    a(f's_add_u32 s{sTMP}, s{sTMP}, s{sLB}')
    a(f's_add_u32 s{sKB}, s{sTMP}, {L_KB}')
    a(f's_add_u32 s{sVB}, s{sTMP}, {L_VB}')
    a(f's_add_u32 s{sMCB}, s{sLB}, {L_MC - MSLOT}')
    a(f's_lshl_b32 s{sTMP}, s{sWV}, 11')
    a(f's_add_u32 s{sPOLL}, s{sTMP}, {WS_M0}')
    a(f's_add_u32 s{sPOLL8}, s{sB8}, {WS_M0 + 8192 - LB8}')
    a(f's_mov_b32 s{sSTEP}, 0')
    a(f's_mov_b32 s{sRDY}, 0')
    kv_ready(a, a.newlabel('kvr0'), 0)
    for i in range(2):
        a(f'buffer_load_dwordx4 {vr(KR + 4 * i, 4)}, v{KT}, {WS}, s{sKB} offen offset:{128 * i} sc1')
        a(f'buffer_load_dwordx4 {vr(VR + 4 * i, 4)}, v{VT}, {WS}, s{sVB} offen offset:{256 * i} sc1')
    a(f's_mov_b32 s{sSTEP}, -1')


class Rec:
    def __init__(self):
        self.l = []

    def __call__(self, t):
        self.l.append(t)


def chain_step(a, sc, name, timing=False):
    tr = Track(a)
    WS = f's[{S_WS}:{S_WS + 3}]'
    st = {}
    top = f'{name}_top'
    a.label(top)
    mq = []
    KVM = OPT.get('kvmod', ' sc1 nt')

    def M(cnt=1):
        for _ in range(cnt):
            if mq:
                t, tag = mq.pop(0)
                if tag == 'ra':
                    lab = a.newlabel('ras')
                    a(f's_cbranch_scc1 {lab}')
                    a(t)
                    a.label(lab)
                else:
                    tr.vmem(t, tag)

    used = []

    def stamp(i):
        if timing and (str(i) in OPT['stamps'] or i in (0, 7)):
            k = len(used)
            used.append(i)
            a(f's_memtime s[{64 + 2 * k}:{65 + 2 * k}]')
    stamp(0)
    m_addr(a, 2, st)
    pl = f'{name}_mpoll'
    ld = [f'buffer_load_dwordx4 {vr(GM[0], 4)}, v{L16}, {WS}, s{sPOLL} offen sc1',
          f'buffer_load_dwordx4 {vr(GM[1], 4)}, v{L16}, {WS}, s{sPOLL} offen offset:1024 sc1',
          f'buffer_load_dwordx4 {vr(GM[2], 4)}, v{L16}, {WS}, s{sPOLL8} offen sc1']
    wr = [f'ds_write_b128 v{VW}, {vr(GM[0], 4)}', f'ds_write_b128 v{VW}, {vr(GM[1], 4)} offset:1024',
          f'ds_write_b128 v{T2}, {vr(GM[2], 4)}']
    a.label(pl)
    for t in ld:
        a(t)
    a(f's_add_u32 s{sSPIN}, s{sSPIN}, 1')
    a(f's_cmp_lt_u32 s{sSPIN}, {SPINMAX}')
    a(f's_cselect_b64 s[{sT64}:{sT64 + 1}], -1, 0')
    a(f's_waitcnt vmcnt(2)')
    g = GM[0]
    a(f'v_max3_u32 v{T0}, v{g}, v{g + 1}, v{g + 2}')
    a(wr[0])
    a(f'v_max_u32 v{T0}, v{T0}, v{g + 3}')
    a(f'v_cmp_eq_u32 vcc, -1, v{T0}')
    a(f's_and_b64 vcc, vcc, s[{sT64}:{sT64 + 1}]')
    a(f's_cbranch_vccnz {pl}')
    tr.lg += ['mw']
    tr.vm = ['m1', 'm2']
    side = []

    def mcheck(k):
        g = GM[k]
        ok, rt = f'{name}_mok{k}', f'{name}_mrt{k}'
        tr.wait_vm(f'm{k}')
        a(f'v_max3_u32 v{T0}, v{g}, v{g + 1}, v{g + 2}')
        a(f'v_max_u32 v{T0}, v{T0}, v{g + 3}')
        a(f'v_cmp_eq_u32 vcc, -1, v{T0}')
        a(f's_cbranch_vccnz {rt}')
        a.label(ok)
        tr.ds(wr[k], 'mw')
        side.append((k, ok, rt))

    sq = Rec()
    for r in (sKB, sVB):
        sq(f's_add_u32 s{r}, s{r}, {32 * 8192}')
    sq(f's_add_u32 s{sMCB}, s{sMCB}, {MSLOT}')
    sq(f's_add_u32 s{sSTEP}, s{sSTEP}, 1')
    sq(f's_and_b32 s{sEP}, s{sSTEP}, 1')
    sq(f's_mov_b32 s{sMRP}, s{sMR}')
    sq(f's_mov_b32 s{sMR}, s{sMW}')
    sq(f's_add_u32 s{sMW}, s{sMW}, {MSLOT}')
    sq(f's_cmp_ge_u32 s{sMW}, {WS_MRING + 4 * MSLOT}')
    sq(f's_cselect_b32 s{sMW}, {WS_MRING}, s{sMW}')
    sq(f's_lshl_b32 s{sTMP}, s{sWV}, 11')
    sq(f's_add_u32 s{sPOLL}, s{sMW}, s{sTMP}')
    sq(f's_add_u32 s{sPOLL8}, s{sMW}, s{sB8}')
    sq(f's_add_u32 s{sPOLL8}, s{sPOLL8}, {8192 - LB8}')
    sq(f's_add_u32 s{sMCP}, s{sSTEP}, s{sTOFF}')
    sq(f's_and_b32 s{sMCP}, s{sMCP}, 31')

    def SQ(n=1):
        for _ in range(n):
            if sq.l:
                a(sq.l.pop(0))

    stamp(1)
    for n in (4, 6):
        mq += fill_ops([('k', 1, n)], ('s', n))
    order = [('q', 0, Q0), ('k', 0, K0), ('q', 1, Q1), ('k', 1, K1)]
    SELR = TB
    BARP = int(OPT.get('barp', '1'))
    merged = {VORD[q]: q for q in range(NVQ // 2)}
    seq = []
    for n in range(10):
        if n in LQ:
            seq.append(order[LQP.get(n, 1)][:2] + (n,))
        if n in merged:
            seq += [vk(j) for j in (2 * merged[n], 2 * merged[n] + 1) if VSRC[j][0] == 'L']
    seq += [vk(j) for j in range(NVQ, 20) if VSRC[j][0] == 'L']

    def restage(key):
        for k2 in seq[seq.index(key) + 1:]:
            if LOC[k2][2] == LOC[key][2]:
                lds_stage(tr, k2)
                return

    for n in range(10):
        buf = GM[n % 3]
        ops = [((m, t, n), acc) for m, t, acc in order]
        if n in merged:
            ops += [(vk(2 * merged[n]), V0), (vk(2 * merged[n] + 1), V1)]
        for p, (key, acc) in enumerate(ops):
            last = p == len(ops) - 1
            if p == 3 and n in SQK:
                assert not any(tag == ('s', n) for _, tag in mq)
                tr.wait_vm(('s', n))
            smf(a, acc, buf, key)
            nins = len(a.ins)
            post = None
            if LOC[key][0] == 'l':
                restage(key)
            if p == 0 and n >= 1:
                M()
            if p == 0 and n == 0:
                mcheck(1)
            if p == 2 and n == 0:
                lds_stage(tr, seq[0])
                mcheck(2)
            if p == 4 and n == 0:
                M()
                post = 3
            if p == BARP and n == 2:
                tr.wait_lg('mw')
                a('s_barrier')
                m_read(tr, 3, GM[0], st)
                m_addr(a, 4, st)
                m_read(tr, 4, GM[1], st)
            if p == 2 and 3 <= n <= 6:
                post = n + 3
            if p == 4 and n in (4, 6):
                M()
            if p == 3 and n == 0:
                lds_stage(tr, vk(3))
            if p == 3 and n == 4:
                mq += fill_ops([('k', 1, 9)], ('s', 9))
            if p == 3 and n == 6:
                mq += fill_ops([vk(14)], 's14')
            if p == 3 and n == 9:
                mq += fill_ops([vk(18)], 's18')
            if p == 3 and n == 8:
                tr.ds(f'ds_read_b128 {vr(SELR, 4)}, v{T0} offset:{LSEL}', 'sel')
                st['t2'] = None
            if last:
                if 2 <= n <= 6:
                    m_read(tr, n + 3, buf, st)
                if n == 9:
                    M()
                if 2 <= n < 9:
                    tr.wait_lg(('A', n + 1))
            elif LOC[ops[p + 1][0]][0] == 'l':
                tr.wait_lg(('B',) + ops[p + 1][0])
            if n >= 1:
                SQ(max(0, 2 - (len(a.ins) - nins) - (1 if post else 0)))
            if post:
                m_addr(a, post, st)
            if p == 2 and n == 8:
                a(f'v_and_b32 v{T0}, 0x1f0, v{L16}')
            if last:
                stamp(f'n{n}')
    assert len(mq) <= 1 and not sq.l, mq
    vbuf = {9: GM[0], 7: GM[1], 8: GM[2], 3: GM[0]}
    fstate = {'j': NVQ}
    stag = {14: 's14', 18: 's18', 19: 's19'}

    def F(cnt=1):
        for _ in range(cnt):
            j = fstate['j']
            assert j < 20
            fstate['j'] += 1
            q, t = j >> 1, j & 1
            n = VORD[q]
            key = vk(j)
            if j == 18:
                tr.wait_lg(('A', 3))
            if LOC[key][0] == 'l':
                tr.wait_lg(('B',) + key)
            if j in stag:
                assert not any(tag == stag[j] for _, tag in mq)
                tr.wait_vm(stag[j])
            smf(a, V1 if t else V0, vbuf[n], key)
            if LOC[key][0] == 'l':
                restage(key)
            if j == 13:
                m_read(tr, 3, GM[0], st)
            if j == 14:
                mq.extend(fill_ops([vk(19)], 's19'))
            if j in (15, 17, 18, 19):
                mq.extend(fill_ops([(H01 + H23)[{15: 2, 17: 3, 18: 0, 19: 1}[j]]], 'h'))

    cvt = lambda d, x, y: a(f'v_cvt_pk_bf16_f32 v{d}, v{x}, v{y}')
    dpp = lambda d, x, bm: a(f'v_mov_b32_dpp v{d}, v{x} row_ror:8 row_mask:0xf bank_mask:{bm}')
    pka = lambda d, x, y: a(f'v_pk_add_f32 {vr(d, 2)}, {vr(x, 2)}, {vr(y, 2)}')
    stamp(2)
    cvt(Q0, Q0, Q0 + 1)
    cvt(Q0 + 1, Q0 + 2, Q0 + 3)
    cvt(Q0 + 2, K0, K0 + 1)
    cvt(Q0 + 3, K0 + 2, K0 + 3)
    cvt(Q1, Q1, Q1 + 1)
    tr.wait_lg('sel')
    a(f'v_mfma_f32_16x16x32_bf16 {vr(K0, 4)}, {vr(Q0, 4)}, {vr(SELR, 4)}, 0')
    cvt(Q1 + 1, Q1 + 2, Q1 + 3)
    cvt(Q1 + 2, K1, K1 + 1)
    cvt(Q1 + 3, K1 + 2, K1 + 3)
    a(f'v_mfma_f32_16x16x32_bf16 {vr(K1, 4)}, {vr(Q1, 4)}, {vr(SELR, 4)}, 0')
    F(1)
    M()
    m_addr(a, 2, st)
    m_addr(a, 3, st)
    for r in range(4):
        cvt(Q0 + r, K0 + r, K1 + r)
    a(f'v_lshrrev_b32 v{T0}, 16, v{ORDTMR}')
    a(f'v_mfma_f32_16x16x32_bf16 {vr(K0, 4)}, {vr(KR, 4)}, {vr(Q0, 4)}, 0')
    a(f'v_add_u32 v{T1}, s{sSW}, v{L16}')
    a(f'v_mfma_f32_16x16x32_bf16 {vr(K1, 4)}, {vr(KR + 4, 4)}, {vr(Q0, 4)}, 0')
    a(f'v_add_u32 v{T3}, s{sTW}, v{L16}')
    a(f'v_mfma_f32_16x16x32_bf16 {vr(Q1, 4)}, {vr(Q0, 4)}, {vr(Q0, 4)}, 0')
    stamp('smf')
    M()
    for r in range(4):
        dpp(K0 + r, K1 + r, '0xc')
    F(1)
    tr.ds(f'ds_write_b128 v{T1}, {vr(K0, 4)} offset:{LS_S}', 'sw')
    F(1)
    a(f's_mov_b64 exec, s[{sMASK2}:{sMASK2 + 1}]')
    tr.ds(f'ds_write_b128 v{T3}, {vr(Q1, 4)} offset:{LS_TM - 512}', 'sw')
    a('s_mov_b64 exec, -1')
    M()
    F(2)
    M()
    kv_ready(a, f'{name}_kvr', 1)
    stamp('b2a')
    tr.wait_lg('sw')
    a('s_barrier')
    stamp(3)
    SR = [K0, K1, Q1, Q0]
    for w in range(4):
        tr.ds(f'ds_read_b128 {vr(SR[w], 4)}, v{L16} offset:{w * 1024 + LS_S}', ('sr', w))
    TM = KR
    tr.ds(f'ds_read2_b64 {vr(TM, 4)}, v{T0} offset0:0 offset1:16', 'tm')
    tr.ds(f'ds_read2_b64 {vr(TM + 4, 4)}, v{T0} offset0:64 offset1:80', 'tm')
    M()
    F(1)
    M()
    F(1)
    M()
    if OPT.get('vearly'):
        tr.vmem(f'buffer_load_dwordx4 {vr(VR, 4)}, v{VT}, {WS}, s{sVB} offen{KVM}', 'vt')
        tr.vmem(f'buffer_load_dwordx4 {vr(VR + 4, 4)}, v{VT}, {WS}, s{sVB} offen offset:256{KVM}', 'vt')
        tr.vm = [None if x == 'vt' else x for x in tr.vm]
    stamp('sr')
    tr.wait_lg(('sr', 1))
    pka(K0, K0, K1)
    pka(K0 + 2, K0 + 2, K1 + 2)
    tr.wait_lg(('sr', 3))
    pka(Q1, Q1, Q0)
    pka(Q1 + 2, Q1 + 2, Q0 + 2)
    M()
    tr.wait_lg('tm')
    pka(TM, TM, TM + 2)
    pka(TM + 4, TM + 4, TM + 6)
    pka(K0, K0, Q1)
    pka(K0 + 2, K0 + 2, Q1 + 2)
    SMM = Q1
    pka(SMM, TM, TM + 4)
    MX, MY = K1, K1 + 1
    a(f'v_max3_f32 v{MX}, v{K0}, v{K0 + 1}, v{K0 + 2}')
    a(f'v_max3_f32 v{MY}, v{K0 + 3}, v{SMM}, v{SMM + 1}')
    a(f'v_max_f32 v{MX}, v{MX}, v{MY}')
    F(1)
    M()
    cvt(V0, V0, V0 + 1)
    a(f'v_max_f32_dpp v{MX}, v{MX}, v{MX} row_ror:8 row_mask:0xf bank_mask:0xf')
    a(f'v_mov_b32 v{MY}, v{MX}')
    cvt(V0 + 1, V0 + 2, V0 + 3)
    M()
    a(f'v_permlane16_swap_b32 v{MX}, v{MY}')
    a(f'v_max_f32 v{MX}, v{MX}, v{MY}')
    a(f'v_mov_b32 v{MY}, v{MX}')
    cvt(V0 + 2, V1, V1 + 1)
    cvt(V0 + 3, V1 + 2, V1 + 3)
    a(f'v_permlane32_swap_b32 v{MX}, v{MY}')
    a(f'v_max_f32 v{MX}, v{MX}, v{MY}')
    a(f'v_mul_f32 v{MX}, s{sSCALE}, v{MX}')
    stamp('mx')
    S = [K0, K0 + 1, K0 + 2, K0 + 3, SMM, SMM + 1]
    for i, s in enumerate(S):
        a(f'v_fma_f32 v{s}, v{s}, s{sSCALE}, -v{MX}')
        if i in (0, 3):
            M()
    hq = list(mq)
    del mq[:]
    kvq = []
    if not OPT.get('nokv'):
        kvq = [(f'buffer_load_dwordx4 {vr(KR, 4)}, v{KT}, {WS}, s{sKB} offen{KVM}', 'kt'),
               (f'buffer_load_dwordx4 {vr(KR + 4, 4)}, v{KT}, {WS}, s{sKB} offen offset:128{KVM}', 'kt'),
               (f'buffer_load_dwordx4 {vr(VR, 4)}, v{VT}, {WS}, s{sVB} offen{KVM}', 'vt'),
               (f'buffer_load_dwordx4 {vr(VR + 4, 4)}, v{VT}, {WS}, s{sVB} offen offset:256{KVM}', 'vt')]

    kvq = hq + kvq

    def KVq(v=False):
        if kvq and (v or kvq[0][1] != 'vt'):
            tr.vmem(*kvq.pop(0))

    if not OPT.get('nopub'):
        a(f's_cmp_lt_u32 s{sMCP}, 6')
        a(f's_cbranch_scc1 {name}_pub')
        a.label(f'{name}_mokpub')
    for i, s in enumerate(S):
        a(f'v_exp_f32 v{s}, v{s}')
        if i == 1:
            KVq()
        if i == 5:
            KVq()
            if OPT.get('klat'):
                stamp('k0')
                a('s_waitcnt vmcnt(0)')
                stamp('k1')
    PB = GM[2]
    BM = Q1 + 2
    cvt(PB, K0, K0 + 1)
    cvt(PB + 1, K0 + 2, K0 + 3)
    cvt(PB + 2, K0, K0 + 1)
    cvt(PB + 3, K0 + 2, K0 + 3)
    cvt(BM, SMM, SMM + 1)
    KVq()
    dpp(PB + 2, PB, '0x3')
    dpp(PB + 3, PB + 1, '0x3')
    dpp(PB, PB, '0xc')
    dpp(PB + 1, PB + 1, '0xc')
    cvt(BM + 1, SMM, SMM + 1)
    stamp(4)
    O0, O1 = TB, GM[0]
    SM, SY = K1 + 2, K1 + 3
    pka(K0, K0, K0 + 2)
    a(f'v_mfma_f32_16x16x32_bf16 {vr(O0, 4)}, {vr(VR, 4)}, {vr(PB, 4)}, 0')
    M()
    dpp(BM + 1, BM, '0x3')
    dpp(BM, BM, '0xc')
    a(f'v_mfma_f32_16x16x32_bf16 {vr(O1, 4)}, {vr(VR + 4, 4)}, {vr(PB, 4)}, 0')
    a(f'v_add_f32 v{SY}, v{SMM}, v{SMM + 1}')
    a(f'v_add_f32 v{SM}, v{K0}, v{K0 + 1}')
    a(f'v_mfma_f32_16x16x16_bf16 {vr(O0, 4)}, {vr(V0, 2)}, {vr(BM, 2)}, {vr(O0, 4)}')
    KVq(True)
    a(f'v_fma_f32 v{SM}, v{SY}, 0.5, v{SM}')
    a(f'v_mfma_f32_16x16x16_bf16 {vr(O1, 4)}, {vr(V0 + 2, 2)}, {vr(BM, 2)}, {vr(O1, 4)}')
    ACC2 = [Q0, K0, Q1, K1, V1]
    zero(a, Q0, 2)
    a(f'v_add_f32_dpp v{SM}, v{SM}, v{SM} row_ror:8 row_mask:0xf bank_mask:0xf')
    a(f'v_mov_b32 v{SY}, v{SM}')
    M()
    zero(a, Q0 + 2, 4)
    a(f'v_permlane16_swap_b32 v{SM}, v{SY}')
    a(f'v_add_f32 v{SM}, v{SM}, v{SY}')
    a(f'v_mov_b32 v{SY}, v{SM}')
    KVq(True)
    if OPT.get('kvlat'):
        stamp('kv0')
        a('s_waitcnt vmcnt(0)')
        stamp('kv1')
    zero(a, K0 + 2, 4)
    a(f'v_permlane32_swap_b32 v{SM}, v{SY}')
    a(f'v_add_f32 v{SM}, v{SM}, v{SY}')
    a(f'v_rcp_f32 v{SM}, v{SM}')
    M()
    for o in (O0, O0 + 2, O1, O1 + 2):
        a(f'v_pk_mul_f32 {vr(o, 2)}, {vr(o, 2)}, {vr(SM, 2)} op_sel_hi:[1,0]')
    OP = V0
    for r in range(4):
        cvt(OP + r, O0 + r, O1 + r)
    a(f's_mov_b64 exec, s[{sMASK}:{sMASK + 1}]')
    tr.ds(f'ds_write_b128 v{VW}, {vr(OP, 4)}', 'ow')
    a('s_mov_b64 exec, -1')
    KVq(True)
    stamp('b3a')
    OA = [OP, GM[1], GM[2], GM[0]]
    PQr, PPr = T1, T2

    def pack2(x):
        b = ACC2[2 * x]
        for r in (0, 2, 1, 3):
            cvt(b + r, b + r, b + 4 + r)
        for r in (0, 2):
            a(f'v_and_or_b32 v{b + r}, v{b + r}, -2, s{sEP}')
        tr.vmem(f'buffer_store_dwordx4 {vr(b, 4)}, v{PQr}, {WS}, s{sPST1 if x else sPST} offen{sc}', 'ps')

    a(f'v_and_b32 v{T0}, 0xffff, v{ORDTMR}')
    seq2 = [(U, 0) for U in range(5)] + [(U, n) for U in range(5) for n in (1, 2, 3)]
    RS, RDD = GM[2], GM[1]
    for i, (U, n) in enumerate(seq2):
        if U == 0 and n > 0:
            tr.wait_lg(('oa', n))
        smf(a, ACC2[U], OA[n], ('o', U, n))
        if i == 0:
            M()
            zero(a, Q1 + 2, 2)
            zero(a, K1, 2)
            a(f'v_xor_b32 v{T1}, {MST}, v{T0}')
        if i == 1:
            zero(a, K1 + 2, 2)
            zero(a, V1, 2)
            a(f'v_xor_b32 v{T2}, {2 * MST}, v{T0}')
        if i == 2:
            zero(a, V1 + 2, 2)
            a(f'v_xor_b32 v{T0}, {3 * MST}, v{T0}')
            tr.wait_lg('ow')
            a('s_barrier')
            stamp(5)
            for k, ad in ((1, T1), (2, T2), (3, T0)):
                tr.ds(f'ds_read_b128 {vr(OA[k], 4)}, v{ad}', ('oa', k))
        if i == 3:
            assert not mq and not kvq, (mq, kvq)
            a(f'v_and_b32 v{PQr}, 0xffff, v{PQPP}')
        if i == 4:
            a(f'v_lshrrev_b32 v{PPr}, 16, v{PQPP}')
        if i in (5, 8, 11, 15):
            M()
        if i == 6:
            a(f'v_and_b32 v{T0}, 0xf0, v{L16}')
        if i == 7:
            a(f'v_ashrrev_i32 v{T3}, 16, v{IDX}')
        if i == 9:
            a(f'v_lshl_add_u32 v{T0}, s{sRS}, 8, v{T0}')
        if i == 19:
            a(f'ds_read_b128 {vr(RS, 4)}, v{T0} offset:{LRSEL}')
        if i == 12:
            pack2(0)
        if i == 18:
            pack2(1)
    assert not mq
    RA_ = [Q0, K0, Q1, K1]
    b = ACC2[4]
    cvt(b, b, b + 1)
    cvt(b + 1, b + 2, b + 3)
    a(f'v_and_or_b32 v{b}, v{b}, -2, s{sEP}')
    tr.vmem(f'buffer_store_dwordx2 {vr(b, 2)}, v{PPr}, {WS}, s{sPST2} offen{sc}', 'ps')
    stamp(6)
    skip = f'{name}_nored'
    a(f's_cmp_eq_u32 s{sHASRED}, 0')
    a(f's_cbranch_scc1 {skip}')
    rl = f'{name}_rpoll'
    rg = f'{name}_rgo'

    def rloads(regs):
        for j in range(4):
            a(f'buffer_load_dwordx4 {vr(regs[j], 4)}, v{L16}, {WS}, s{sRED} offen' + (f' offset:{1024 * j}' if j else '') + ' sc1')

    def rcheck(regs, ep):
        op = (lambda d, x, y, z: f'v_bitop3_b32 v{d}, v{x}, v{y}, v{z} bitop3:0x80') if ep else \
             (lambda d, x, y, z: f'v_or3_b32 v{d}, v{x}, v{y}, v{z}')
        for j in range(4):
            r = regs[j]
            a(f's_waitcnt vmcnt({3 - j})' + (' lgkmcnt(0)' if j == 0 else ''))
            a(f'v_mfma_f32_16x16x32_bf16 {vr(RDD, 4)}, {vr(RS, 4)}, {vr(r, 4)}, ' + (vr(RDD, 4) if j else '0'))
            a(op(T0, r, r + 2, r if j == 0 else T0))
        a(f'v_and_b32 v{T0}, 1, v{T0}')
        a(f'v_cmp_ne_u32 vcc, {ep}, v{T0}')
        a(f's_cbranch_vccz {rg}')

    if not OPT.get('noack'):
        a('s_waitcnt vmcnt(0)')
    for _ in range(int(OPT.get('rdelay', '0'))):
        a('s_nop 15')
    a(f's_cmp_eq_u32 s{sEP}, 0')
    a(f's_cbranch_scc1 {rl}0')
    for ep in (1, 0):
        a.label(f'{rl}{ep}')
        rloads(RA_)
        a(f's_add_u32 s{sSPIN}, s{sSPIN}, 1')
        rcheck(RA_, ep)
        a(f's_cmp_lt_u32 s{sSPIN}, {SPINMAX}')
        a(f's_cbranch_scc1 {rl}{ep}')
        if ep == 1:
            a(f's_branch {rg}')
    a.label(rg)
    stamp('rg')
    a('s_nop 4')
    for r in range(4):
        a(f'v_add_f32_dpp v{RDD + r}, v{RDD + r}, v{RDD + r} row_ror:8 row_mask:0xf bank_mask:0xf')
    cvt(RDD, RDD, RDD + 1)
    cvt(RDD + 1, RDD + 2, RDD + 3)
    a(f'buffer_store_dword v{RDD}, v{T3}, {WS}, s{sMW} offen{sc}')
    a(f'buffer_store_dword v{RDD + 1}, v{T3}, {WS}, s{sMW} offen offset:16{sc}')
    a.label(skip)
    if timing:
        stamp(7)
        a('s_waitcnt lgkmcnt(0)')
        assert len(used) <= 13
        OPT['used'] = used
        for i in range(len(used) - 1):
            a(f's_sub_u32 s{sTMP}, s{66 + 2 * i}, s{64 + 2 * i}')
            a(f's_add_u32 s{90 + i}, s{90 + i}, s{sTMP}')
    zero(a, Q0, 24)
    if not OPT.get('nomack'):
        a('s_waitcnt vmcnt(0)')
    a('s_barrier')
    a(f's_cmp_lt_u32 s{sSTEP}, s{sNSTEP}')
    a(f's_cbranch_scc1 {top}')
    a(f's_branch {name}_exit')
    for k, ok, rt in side:
        g = GM[k]
        a.label(rt)
        a(ld[k])
        a(f's_add_u32 s{sSPIN}, s{sSPIN}, 1')
        a(f's_cmp_lt_u32 s{sSPIN}, {SPINMAX}')
        a('s_waitcnt vmcnt(0)')
        a(f's_cbranch_scc0 {ok}')
        a(f'v_max3_u32 v{T0}, v{g}, v{g + 1}, v{g + 2}')
        a(f'v_max_u32 v{T0}, v{T0}, v{g + 3}')
        a(f'v_cmp_eq_u32 vcc, -1, v{T0}')
        a(f's_cbranch_vccnz {rt}')
        a(f's_branch {ok}')
    if not OPT.get('nopub'):
        a.label(f'{name}_pub')
        for d in range(6):
            k = d >> 1
            buf = (GM[1], GM[2], GM[0])[k]
            if d < 5:
                a(f's_cmp_eq_u32 s{sMCP}, {d}')
                a(f's_cbranch_scc0 {name}_pub{d + 1}')
            if d & 1:
                a(f'v_mov_b64 {vr(V1, 2)}, -1')
                a(f'v_mov_b64 {vr(V1 + 2, 2)}, -1')
                a(f's_add_u32 s{sTMP}, s{sMCO + k}, s{sMRP}')
                a(f'buffer_store_dwordx4 {vr(V1, 4)}, v{L16}, {WS}, s{sTMP} offen{sc}')
            else:
                a(f's_add_u32 s{sTMP}, s{sMCO + k}, s{sMCB}')
                a(f'buffer_store_dwordx4 {vr(buf, 4)}, v{L16}, {WS}, s{sTMP} offen sc1')
            a(f's_branch {name}_mokpub')
            if d < 5:
                a.label(f'{name}_pub{d + 1}')
    a.label(f'{name}_exit')
```

```python
from asmlib import *
from layout import *
from common import *
from chain import Track, f32
import chain as C
from small import tr_lane_addr, CM_NAT, CM_PI, CM_SIG, unpack, ln_pass, rbf
from bulk import *

WS = f's[{S_WS}:{S_WS + 3}]'
sBP = 40
sOUTP = 48
S_B = 52


def wait_all(a, off, ndw, tb=100):
    L = a.newlabel('wa')
    a(f's_mov_b32 s{sT}, {off}')
    a(f'v_lshlrev_b32 v{T3}, 2, v{LN}')
    a.label(L)
    a(f'buffer_load_dwordx4 {vr(tb, 4)}, v{L16}, {WS}, s{sT} offen sc1')
    a('s_waitcnt vmcnt(0)')
    if ndw % 4:
        for k in range(4):
            a(f'v_cmp_le_u32 vcc, {ndw - k}, v{T3}' if ndw - k <= 64 else f'v_cmp_le_u32 vcc, 0x{ndw - k:x}, v{T3}')
            a(f'v_cndmask_b32 v{tb + k}, v{tb + k}, 1, vcc' if False else f'v_cndmask_b32_e64 v{tb + k}, v{tb + k}, 1, vcc')
    a(f'v_min3_u32 v{tb}, v{tb}, v{tb + 1}, v{tb + 2}')
    a(f'v_min_u32 v{tb}, v{tb}, v{tb + 3}')
    a(f'v_cmp_eq_u32 vcc, 0, v{tb}')
    if ndw < 256 and ndw % 4 == 0:
        a(f's_and_b64 vcc, vcc, {(1 << (ndw // 4)) - 1}')
    a(f's_add_u32 s{sSPIN}, s{sSPIN}, 1')
    a(f's_cbranch_vccz {L}_ok')
    a('s_sleep 4')
    a(f's_cmp_lt_u32 s{sSPIN}, {C.SPINMAX}')
    a(f's_cbranch_scc1 {L}')
    a.label(f'{L}_ok')


def set_flag(a, off_sgpr):
    a('s_waitcnt vmcnt(0)')
    a('s_barrier')
    L = a.newlabel('sf')
    a(f's_cmp_eq_u32 s{sWV}, 0')
    a(f's_cbranch_scc0 {L}')
    a(f'v_mov_b32 v{T2}, 1')
    a(f'buffer_store_dword v{T2}, off, {WS}, s{off_sgpr} sc1')
    a.label(L)


def ln2_role(a, lb, fb):
    sK, sSEG = sBLK, sR
    a(f's_sub_u32 s{sK}, s{sGI}, {NWO}')
    a(f's_lshr_b32 s{sSEG}, s{sK}, 2')
    a(f's_and_b32 s{sK}, s{sK}, 3')
    AD = 6
    a('v_lshrrev_b32 v7, 5, v0')
    a(f's_lshl_b32 s{sT}, s{sK}, 3')
    a(f'v_add_u32 v7, s{sT}, v7')
    a(f'v_mul_u32_u24 v{AD}, 0x500, v7')
    a('v_and_b32 v7, 31, v0')
    a(f'v_lshl_add_u32 v{AD}, v7, 3, v{AD}')
    top = a.newlabel('ln2')
    a.label(top)
    a(f's_lshl_b32 s{sT}, s{sSEG}, 6')
    a(f's_add_u32 s{sT}, s{sT}, {fb + FL_X1}')
    wait_flag(a, sT, 20)
    P, X, S, T, U = 10, 20, 7, 8, 9
    a(f's_mul_i32 s{sXO}, s{sSEG}, 40960')
    a(f's_add_u32 s{sU}, s{sXO}, {lb + L_X1}')
    for j in range(5):
        a(f'buffer_load_dwordx2 {vr(P + 2 * j, 2)}, v{AD}, {WS}, s{sU} offen offset:{256 * j} sc1')
    a('s_waitcnt vmcnt(0)')
    for _ in range(2):
        unpack(a, X, P, 10)
        ln_pass(a, X, P, S, T, U)
    a(f's_add_u32 s{sU}, s{sXO}, {lb + L_HT}')
    for j in range(5):
        a(f'buffer_store_dwordx2 {vr(P + 2 * j, 2)}, v{AD}, {WS}, s{sU} offen offset:{256 * j} sc1')
    a(f's_lshl_b32 s{sT}, s{sSEG}, 4')
    a(f's_lshl_b32 s{sU}, s{sK}, 2')
    a(f's_add_u32 s{sT}, s{sT}, s{sU}')
    a(f's_add_u32 s{sT}, s{sT}, {fb + FL_HH}')
    set_flag(a, sT)
    a(f's_add_u32 s{sSEG}, s{sSEG}, {NLN // 4}')
    a(f's_cmp_lt_u32 s{sSEG}, 64')
    a(f's_cbranch_scc1 {top}')


def gelu(a, b, n, u, v, c1, c2):
    for r in range(n):
        a(f'v_mul_f32 v{u + r}, v{b + r}, v{b + r}')
    for r in range(n):
        a(f'v_mov_b32 v{v + r}, s{c1}')
        a(f'v_fmac_f32 v{v + r}, s{c2}, v{u + r}')
    for r in range(n):
        a(f'v_mul_f32 v{u + r}, v{v + r}, v{b + r}')
    for r in range(n):
        a(f'v_exp_f32 v{u + r}, v{u + r}')
    for r in range(n):
        a(f'v_add_f32 v{u + r}, 1.0, v{u + r}')
    for r in range(n):
        a(f'v_rcp_f32 v{u + r}, v{u + r}')
    for r in range(n):
        a(f'v_mul_f32 v{b + r}, v{b + r}, v{u + r}')


def w2f_prep(a):
    done = a.newlabel('w2d')
    sK = sBLK
    a(f's_sub_u32 s{sK}, s{sGI}, {NWO + NLN}')
    a(f's_cmp_ge_u32 s{sK}, 64')
    a(f's_cbranch_scc1 {done}')
    srd(a, S_WA, sBP + 4, 2048 * 1728 * 2)
    VS, RA = 6, 7
    a(f'v_lshrrev_b32 v{T1}, 2, v{LN}')
    a(f'v_lshlrev_b32 v{T1}, 12, v{T1}')
    a(f'v_and_b32 v{T2}, 3, v{LN}')
    a(f'v_lshl_add_u32 v{VS}, v{T2}, 4, v{T1}')
    tr_lane_addr(a, RA, LN, T1, T2, 64, CM_PI, None)
    a(f's_lshl_b32 s{sV}, s{sWV}, 15')
    a(f'v_add_u32 v{RA}, s{sV}, v{RA}')
    a(f's_mul_i32 s{sWO}, s{sWV}, {27 * 16 * 4096}')
    a(f's_lshl_b32 s{sU}, s{sK}, 6')
    a(f's_add_u32 s{sWO}, s{sWO}, s{sU}')
    a('s_barrier')
    for i in range(27):
        a(f's_add_u32 m0, s{sV}, {i * 1024}')
        a(f'buffer_load_dwordx4 v{VS}, s[{S_WA}:{S_WA + 3}], s{sWO} offen lds')
        a(f's_add_u32 s{sWO}, s{sWO}, {16 * 4096}')
    a(f's_mul_i32 s{sXO}, s{sK}, {108 * 1024}')
    a(f's_mul_i32 s{sU}, s{sWV}, {27 * 1024}')
    a(f's_add_u32 s{sXO}, s{sXO}, s{sU}')
    a(f's_add_u32 s{sXO}, s{sXO}, {WS_W2F}')
    a('s_waitcnt vmcnt(0)')
    for i in range(27):
        for u in range(2):
            a(f'ds_read_b64_tr_b16 {vr(16 + 4 * i + 2 * u, 2)}, v{RA} offset:{i * 1024 + 256 * u}')
        if i % 7 == 6:
            a('s_waitcnt lgkmcnt(0)')
    a('s_waitcnt lgkmcnt(0)')
    for i in range(27):
        if i % 4 == 0 and i:
            a(f's_add_u32 s{sXO}, s{sXO}, 4096')
        a(f'buffer_store_dwordx4 {vr(16 + 4 * i, 4)}, v{L16}, {WS}, s{sXO} offen offset:{(i % 4) * 1024} sc1')
    a(f's_lshl_b32 s{sT}, s{sK}, 2')
    a(f's_add_u32 s{sT}, s{sT}, {WS_FLAGS + FL_W2}')
    set_flag(a, sT)
    a.label(done)


def wait_words(a, off_sgpr, n, tmp):
    L = a.newlabel('ww')
    a.label(L)
    a(f'buffer_load_dword v{tmp}, v{T3}, {WS}, s{off_sgpr} offen sc1')
    a('s_waitcnt vmcnt(0)')
    a(f'v_cmp_eq_u32 vcc, 0, v{tmp}')
    a(f's_add_u32 s{sSPIN}, s{sSPIN}, 1')
    if n < 32:
        a(f's_and_b32 s{sU}, vcc_lo, {(1 << n) - 1}')
        a(f's_cbranch_scc0 {L}_ok')
    else:
        assert n == 64
        a(f's_cbranch_vccz {L}_ok')
    a('s_sleep 2')
    a(f's_cmp_lt_u32 s{sSPIN}, {C.SPINMAX}')
    a(f's_cbranch_scc1 {L}')
    a.label(f'{L}_ok')


def g1p_role(a, lb, fb):
    sXT, sYT, sSEG, sFL = sBLK, sH, sR, sKS
    a(f's_sub_u32 s{sT}, s{sGI}, {NWO + NLN}')
    a(f's_mul_i32 s{sXT}, s{sT}, 13108')
    a(f's_lshr_b32 s{sXT}, s{sXT}, 16')
    a(f's_mul_i32 s{sU}, s{sXT}, 5')
    a(f's_sub_u32 s{sYT}, s{sT}, s{sU}')
    srd(a, S_WA, sBP, 2048 * 1728 * 2)
    srd(a, S_B, sBP + 2, 1728 * 2)
    VX, VY, RX, RY = [6, 7], [8, 9], 10, 11
    a(f's_mov_b32 s{sV}, 5462')
    a(f's_movk_i32 s{sU}, 3456')
    a(f's_mul_i32 s{sT}, s{sXT}, 192')
    for k in range(2):
        a(f'v_add_u32 v{T1}, {256 * k}, v0')
        a(f'v_mul_lo_u32 v{T2}, v{T1}, s{sV}')
        a(f'v_lshrrev_b32 v{T2}, 16, v{T2}')
        a(f'v_mul_u32_u24 v{T3}, 12, v{T2}')
        a(f'v_sub_u32 v{T1}, v{T1}, v{T3}')
        a(f'v_mul_lo_u32 v{T2}, v{T2}, s{sU}')
        a(f'v_lshl_add_u32 v{T2}, v{T1}, 4, v{T2}')
        a(f'v_add_u32 v{VX[k]}, s{sT}, v{T2}')
    a(f's_lshl_b32 s{sT}, s{sYT}, 8')
    for k in range(2):
        a(f'v_add_u32 v{T1}, {256 * k}, v0')
        a(f'v_lshrrev_b32 v{T2}, 4, v{T1}')
        a(f'v_and_b32 v{T1}, 15, v{T1}')
        a(f'v_and_b32 v{T3}, 3, v{T2}')
        a(f'v_lshlrev_b32 v{T3}, 2, v{T3}')
        a(f'v_xor_b32 v{T1}, v{T1}, v{T3}')
        a(f'v_mul_u32_u24 v{T2}, 0x500, v{T2}')
        a(f'v_lshl_add_u32 v{T2}, v{T1}, 4, v{T2}')
        a(f'v_add_u32 v{VY[k]}, s{sT}, v{T2}')
    tr_lane_addr(a, RX, LN, T1, T2, 192, CM_SIG)
    tr_lane_addr(a, RY, LN, T1, T2, 256, CM_PI, w_swz(a))
    a(f's_lshl_b32 s{sT}, s{sWV}, 6')
    a(f'v_xor_b32 v{RY}, s{sT}, v{RY}')
    a(f'v_lshlrev_b32 v{T3}, 2, v{LN}')
    BI = 40
    a(f'v_lshrrev_b32 v{T1}, 5, v{LN}')
    a(f'v_lshlrev_b32 v{T1}, 4, v{T1}')
    a(f's_mul_i32 s{sT}, s{sXT}, 192')
    for i in range(6):
        a(f'buffer_load_dwordx4 {vr(BI + 4 * i, 4)}, v{T1}, s[{S_B}:{S_B + 3}], s{sT} offen offset:{32 * i}')
    for r in range(48):
        a(f'v_accvgpr_write_b32 a{r}, 0')
    XL = [0, 8192]
    YL = 16384
    a(f's_mov_b32 s{sXO}, 0')
    a(f's_mov_b32 s{sWO}, {lb + L_HT}')
    a(f's_mov_b32 s{sFL}, {fb + FL_HH}')
    a(f's_mov_b32 s{sSEG}, 0')

    def dx(par):
        for k in range(2):
            a(f's_add_u32 m0, s{sLW}, {XL[par] + 4096 * k}')
            a(f'buffer_load_dwordx4 v{VX[k]}, s[{S_WA}:{S_WA + 3}], s{sXO} offen lds')
        a(f's_add_u32 s{sXO}, s{sXO}, {32 * 3456}')

    a('s_barrier')
    dx(0)
    top = a.newlabel('g1p')
    a.label(top)
    FRG = 16
    for par in range(2):
        wait_words(a, sFL, 4, 12)
        for k in range(2):
            a(f's_add_u32 m0, s{sLW}, {YL + 4096 * k}')
            a(f'buffer_load_dwordx4 v{VY[k]}, {WS}, s{sWO} offen sc1 lds')
        dx(1 - par)
        a(f's_add_u32 s{sWO}, s{sWO}, 40960')
        a(f's_add_u32 s{sFL}, s{sFL}, 16')
        a('s_waitcnt vmcnt(2)')
        a('s_barrier')
        for ks in range(2):
            b = FRG if ks == 0 else 12 + 0
            b = FRG + 0 if ks == 0 else 64
            for u in range(2):
                a(f'ds_read_b64_tr_b16 {vr(b + 12 + 2 * u, 2)}, v{RY} offset:{YL + (16 * ks + 4 * u) * 256}')
            for x in range(3):
                for u in range(2):
                    a(f'ds_read_b64_tr_b16 {vr(b + 4 * x + 2 * u, 2)}, v{RX} offset:{XL[par] + (16 * ks + 4 * u) * 192 + 64 * x}')
        for ks in range(2):
            b = FRG if ks == 0 else 64
            a(f's_waitcnt lgkmcnt({8 if ks == 0 else 0})')
            for x in range(3):
                acc = ar(16 * x, 16)
                a(f'v_mfma_f32_32x32x16_bf16 {acc}, {vr(b + 4 * x, 4)}, {vr(b + 12, 4)}, {acc}')
        a('s_barrier')
    a(f's_add_u32 s{sSEG}, s{sSEG}, 2')
    a(f's_cmp_lt_u32 s{sSEG}, 64')
    a(f's_cbranch_scc1 {top}')
    a(f's_lshl_b32 s{sT}, s{sYT}, 2')
    a(f's_add_u32 s{sT}, s{sT}, s{sWV}')
    a(f's_mul_i32 s{sV}, s{sT}, {108 * 1024}')
    a(f's_mul_i32 s{sT}, s{sXT}, 6144')
    a(f's_add_u32 s{sV}, s{sV}, s{sT}')
    a(f's_add_u32 s{sV}, s{sV}, {lb + L_U}')
    a(f's_mov_b32 s{sT}, {f32(-2.0 * 1.4426950408889634 * 0.7978845608028654)}')
    a(f's_mov_b32 s{sXO}, {f32(-2.0 * 1.4426950408889634 * 0.7978845608028654 * 0.044715)}')
    b, u, v, PK = 64, 80, 96, 16
    for x in range(3):
        pk = PK + 8 * x
        for r in range(16):
            a(f'v_accvgpr_read_b32 v{b + r}, a{16 * x + r}')

        def pack():
            for r in range(8):
                a(f'v_cvt_pk_bf16_f32 v{pk + r}, v{b + 2 * r}, v{b + 2 * r + 1}')
        pack()
        unpack(a, b, pk, 8)
        unpack(a, u, BI + 8 * x, 8)
        for r in range(0, 16, 2):
            a(f'v_pk_add_f32 {vr(b + r, 2)}, {vr(b + r, 2)}, {vr(u + r, 2)}')
        pack()
        unpack(a, b, pk, 8)
        gelu(a, b, 8, u, BI + 8 * x, sT, sXO)
        gelu(a, b + 8, 8, u + 8, BI + 8 * x, sT, sXO)
        pack()
        if x == 2:
            a(f's_add_u32 s{sV}, s{sV}, 4096')
        for m in range(2):
            a(f'buffer_store_dwordx4 {vr(pk + 4 * m, 4)}, v{L16}, {WS}, s{sV} offen offset:{((2 * x + m) % 4) * 1024} sc1')
    a(f's_lshl_b32 s{sT}, s{sGI}, 2')
    a(f's_add_u32 s{sT}, s{sT}, {fb + FL_U - 4 * (NWO + NLN)}')
    set_flag(a, sT)


UV0, STG = 56, 24
WLDS = 24576
sW = [72, 73, 74, 75]
sUu = [76, 77]
sOW, sOU = 78, 79


def adv27(a, r):
    a(f's_add_u32 s{r}, s{r}, 4096')
    a(f's_cmp_eq_u32 s{r}, {27 * 4096}')
    a(f's_cselect_b32 s{r}, 0, s{r}')


def wreg(i, x):
    if i < 8 or 16 <= i < 24:
        return ar(128 + 16 * (i % 8) + 4 * x, 4)
    if i < 16:
        return vr(STG + 16 * (i & 1) + 4 * x, 4)
    return vr(UV0 + 16 + 16 * (i - 24) + 4 * x, 4)


def g2_tile(a):
    a(f's_mul_i32 s{sBLK}, s{sGI}, 6554')
    a(f's_lshr_b32 s{sBLK}, s{sBLK}, 16')
    a(f's_mul_i32 s{sT}, s{sBLK}, 10')
    a(f's_sub_u32 s{sH}, s{sGI}, s{sT}')


def g2_pre(a, first):
    g2_tile(a)
    a(f'v_lshlrev_b32 v{T3}, 2, v{LN}')
    if first:
        a(f's_lshl_b32 s{sT}, s{sBLK}, 4')
        a(f's_add_u32 s{sT}, s{sT}, {WS_FLAGS + FL_W2}')
        wait_words(a, sT, 4, 12)
    a(f's_mul_i32 s{sT}, s{sBLK}, {4 * 108 * 1024}')
    a(f's_add_u32 s{sT}, s{sT}, s{sLW}')
    for x in range(4):
        a(f's_add_u32 s{sW[x]}, s{sT}, {WS_W2F + x * 108 * 1024}')
    a(f's_mul_i32 s{sOW}, s{sBLK}, 21846')
    a(f's_lshr_b32 s{sOW}, s{sOW}, 16')
    a(f's_mul_i32 s{sOW}, s{sOW}, 3')
    a(f's_sub_u32 s{sOW}, s{sBLK}, s{sOW}')
    a(f's_mul_i32 s{sOW}, s{sOW}, {9 * 4096 if not C.OPT.get("norot") else 0}')
    a(f's_mov_b32 s{sOU}, s{sOW}')
    a(f's_lshl_b32 s{sU}, s{sWV}, 15')
    for i in range(16):
        if i == 12:
            a('s_waitcnt vmcnt(32)')
        for x in range(4):
            a(f's_add_u32 s{sT}, s{sW[x]}, s{sOW}')
            if i < 8:
                a(f'buffer_load_dwordx4 {wreg(i, x)}, v{L16}, {WS}, s{sT} offen sc1')
            else:
                a(f's_add_u32 m0, s{sU}, {WLDS + (i - 8) * 4096 + x * 1024}')
                a(f'buffer_load_dwordx4 v{L16}, {WS}, s{sT} offen sc1 lds')
        adv27(a, sOW)
    if not C.OPT.get('nowarm'):
        a(f's_mov_b32 s{sV}, s{sOW}')
        for i in range(11):
            lab = a.newlabel('wm')
            a(f's_cmp_eq_u32 s{sH}, {i % 10}')
            a(f's_cbranch_scc0 {lab}')
            for x in range(4):
                a(f's_add_u32 s{sT}, s{sW[x]}, s{sV}')
                a(f'buffer_load_dwordx4 v[12:15], v{L16}, {WS}, s{sT} offen sc1')
            a.label(lab)
            adv27(a, sV)
        a('s_waitcnt vmcnt(0)')


def g2_phase(a, lb, fb, final):
    sXT, sYT = sBLK, sH
    g2_tile(a)
    srd(a, S_B, sBP + 6, 2048 * 2)
    a(f's_mul_i32 s{sT}, s{sYT}, {2 * 108 * 1024}')
    a(f's_add_u32 s{sT}, s{sT}, s{sLW}')
    for y in range(2):
        a(f's_add_u32 s{sUu[y]}, s{sT}, {lb + L_U + y * 108 * 1024}')
    tr = Track(a)

    def ureg(i, y):
        return vr(UV0 + 8 * (i % 25) + 4 * y, 4)

    def ldw(i):
        for x in range(4):
            a(f's_add_u32 s{sT}, s{sW[x]}, s{sOW}')
            tr.vmem(f'buffer_load_dwordx4 {wreg(i, x)}, v{L16}, {WS}, s{sT} offen sc1', ('w', i))
        adv27(a, sOW)

    def ldu(i):
        for y in range(2):
            a(f's_add_u32 s{sT}, s{sUu[y]}, s{sOU}')
            tr.vmem(f'buffer_load_dwordx4 {ureg(i, y)}, v{L16}, {WS}, s{sT} offen sc1', ('u', i))
        adv27(a, sOU)

    CO, DO, BI, XA, RES = 6, 7, 8, 9, 24
    a(f'v_and_b32 v{T1}, 31, v{LN}')
    a(f'v_lshrrev_b32 v{T2}, 5, v{LN}')
    a(f'v_and_b32 v{CO}, 3, v{LN}')
    a(f'v_bfe_u32 v10, v{LN}, 3, 2')
    a(f'v_lshl_add_u32 v{CO}, v10, 2, v{CO}')
    a(f'v_bfe_u32 v10, v{LN}, 2, 1')
    a(f'v_lshl_add_u32 v{CO}, v10, 4, v{CO}')
    a(f's_lshl_b32 s{sT}, s{sXT}, 2')
    a(f's_add_u32 s{sT}, s{sT}, s{sWV}')
    a(f's_lshl_b32 s{sU}, s{sT}, 5')
    a(f'v_add_u32 v{CO}, s{sU}, v{CO}')
    a(f's_movk_i32 s{sU}, 1280')
    a(f'v_mul_lo_u32 v{DO}, v{CO}, s{sU}')
    a(f'v_lshl_add_u32 v{DO}, v{T2}, 5, v{DO}')
    a(f's_lshl_b32 s{sU}, s{sYT}, 7')
    a(f'v_add_u32 v{DO}, s{sU}, v{DO}')
    a(f'v_lshlrev_b32 v{XA}, 10, v{T2}')
    a(f'v_lshl_add_u32 v{XA}, v{T1}, 4, v{XA}')
    a(f's_mul_i32 s{sV}, s{sT}, 40960')
    a(f's_lshl_b32 s{sU}, s{sYT}, 12')
    a(f's_add_u32 s{sV}, s{sV}, s{sU}')
    a(f's_add_u32 s{sV}, s{sV}, {lb + L_X2}')
    a(f'v_lshlrev_b32 v{T1}, 1, v{CO}')
    for r in range(128):
        a(f'v_accvgpr_write_b32 a{r}, 0')
    tr.vmem(f'buffer_load_ushort v{BI}, v{T1}, s[{S_B}:{S_B + 3}], 0 offen', 'bias')
    wait_all(a, fb + FL_U, NG1, 12)
    wstamp(a, 6)
    tr.vm = []
    late = []
    for i in range(25):
        ldu(i)
    a(f's_lshl_b32 s{sU}, s{sWV}, 15')
    a(f's_add_u32 s{sU}, s{sU}, {WLDS}')
    a(f'v_add_u32 v10, s{sU}, v{L16}')

    def stage(i):
        for x in range(4):
            tr.ds(f'ds_read_b128 {wreg(i, x)}, v10 offset:{(i - 8) * 4096 + x * 1024}', ('w', i))
    stage(8)
    stage(9)
    for i in range(27):
        tr.wait_vm(('w', i))
        tr.wait_vm(('u', i))
        tr.wait_lg(('w', i))
        for x in range(4):
            for y in range(2):
                acc = ar(16 * (2 * x + y), 16)
                a(f'v_mfma_f32_32x32x16_bf16 {acc}, {ureg(i, y)}, {wreg(i, x)}, {acc}')
        if i < 8:
            ldw(i + 16)
        if i < 2:
            pass
        if i in (3, 5, 7):
            late.append(24 + (i - 3) // 2)
        if i == 8:
            for j in late:
                ldw(j)
            ldu(25)
            ldu(26)
        if 8 <= i < 14:
            stage(i + 2)
        if i == 16:
            a(f's_mov_b32 s{sU}, {lb + L_X1}')
            for y in range(2):
                for q in range(2):
                    tr.vmem(f'buffer_load_dwordx4 {vr(RES + 8 * y + 4 * q, 4)}, v{DO}, {WS}, s{sU} offen offset:{64 * y + 16 * q} sc1', 'res')
    tr.drain_vm()
    wstamp(a, 4)
    a('s_barrier')
    WA = [12, 13]
    a(f's_lshl_b32 s{sT}, s{sWV}, 12')
    a(f'v_add_u32 v{WA[0]}, s{sT}, v{L16}')
    a(f'v_add_u32 v{WA[1]}, 0x10000, v{WA[0]}')
    a(f's_lshl_b32 s{sT}, s{sWV}, 15')
    a(f'v_add_u32 v14, s{sT}, v{L16}')
    a('s_nop 7')
    for x in range(4):
        for y in range(2):
            for q in range(4):
                off = x * 32768 + y * 16384 + q * 1024
                tr.ds(f'ds_write_b128 v{WA[off >> 16]}, {ar(16 * (2 * x + y) + 4 * q, 4)} offset:{off & 0xffff}')
    tr.drain_lg()
    a('s_barrier')
    RB = 100
    for j in range(2):
        for w in range(4):
            for q in range(4):
                tr.ds(f'ds_read_b128 {vr(RB + 64 * j + 16 * w + 4 * q, 4)}, v14 offset:{j * 16384 + w * 4096 + q * 1024}', ('rr', j, w))
    a(f'v_lshlrev_b32 v{BI}, 16, v{BI}')
    if final:
        srd(a, S_WA, sOUTP, 2048 * 640 * 2)
    for j in range(2):
        b = RB + 64 * j
        tr.wait_lg(('rr', j, 1))
        for h in range(0, 16, 2):
            a(f'v_pk_add_f32 {vr(b + h, 2)}, {vr(b + h, 2)}, {vr(b + 16 + h, 2)}')
        tr.wait_lg(('rr', j, 3))
        for h in range(0, 16, 2):
            a(f'v_pk_add_f32 {vr(b + 32 + h, 2)}, {vr(b + 32 + h, 2)}, {vr(b + 48 + h, 2)}')
        for h in range(0, 16, 2):
            a(f'v_pk_add_f32 {vr(b + h, 2)}, {vr(b + h, 2)}, {vr(b + 32 + h, 2)}')
        PK = b + 16

        def pack():
            for r in range(8):
                a(f'v_cvt_pk_bf16_f32 v{PK + r}, v{b + 2 * r}, v{b + 2 * r + 1}')
        pack()
        unpack(a, b, PK, 8)
        for r in range(16):
            a(f'v_add_f32 v{b + r}, v{b + r}, v{BI}')
        pack()
        unpack(a, b, PK, 8)
        unpack(a, b + 32, RES + 8 * j, 8)
        for r in range(0, 16, 2):
            a(f'v_pk_add_f32 {vr(b + r, 2)}, {vr(b + r, 2)}, {vr(b + 32 + r, 2)}')
        pack()
        for q in range(2):
            if final:
                a(f'buffer_store_dwordx4 {vr(PK + 4 * q, 4)}, v{DO}, s[{S_WA}:{S_WA + 3}], 0 offen offset:{64 * j + 16 * q}')
            else:
                a(f'buffer_store_dwordx4 {vr(PK + 4 * q, 4)}, v{XA}, {WS}, s{sV} offen offset:{2048 * j + 512 * q} sc1')
    if not final:
        a(f's_lshl_b32 s{sT}, s{sXT}, 2')
        a(f's_add_u32 s{sT}, s{sT}, {fb + FL_X2}')
        signal(a, sT)


def red8(a, x, t):
    a(f'v_add_f32_dpp v{x}, v{x}, v{x} row_ror:8 row_mask:0xf bank_mask:0xf')
    a(f'v_mov_b32 v{t}, v{x}')
    a(f'v_permlane16_swap_b32 v{x}, v{t}')
    a(f'v_add_f32 v{x}, v{x}, v{t}')
    a(f'v_mov_b32 v{t}, v{x}')
    a(f'v_permlane32_swap_b32 v{x}, v{t}')
    a(f'v_add_f32 v{x}, v{x}, v{t}')


def ln1f_phase(a, lb_src, lb_dst, fb_src, fb_dst, rnd, from_x=False):
    sUN, sF = sR, sSC
    AD, LW, LR = 6, 7, 8
    P, X, S, T, U = 12, 24, 9, 10, 11
    a(f'v_lshrrev_b32 v{T1}, 3, v0')
    a(f'v_lshlrev_b32 v{AD}, 9, v{T1}')
    a(f'v_and_b32 v{T1}, 7, v0')
    a(f'v_lshl_add_u32 v{AD}, v{T1}, 4, v{AD}')
    a(f'v_lshlrev_b32 v{LR}, 4, v{T1}')
    a(f'v_add_u32 v{LR}, {122880}, v{LR}')
    a(f's_lshl_b32 s{sT}, s{sWV}, 2')
    a(f'v_add_u32 v{LW}, s{sT}, v{LR}')
    a(f's_cmp_lt_u32 s{sWV}, 2')
    a(f's_cselect_b32 s{sF}, 1.0, 0')
    a(f's_cselect_b32 s{sV}, {2 * 16384}, 0x60000000' if False else f's_mov_b32 s{sV}, 0x60000000')
    a(f's_cselect_b32 s{sV}, {2 * 16384}, s{sV}')
    top = a.newlabel('lnf')
    if rnd == 0:
        a(f's_mul_i32 s{sUN}, s{sJ}, 20')
        a(f's_lshl_b32 s{sT}, s{sJ}, 4')
        a(f's_add_u32 s{sT}, s{sT}, 16')
        a(f's_cmp_lt_u32 s{sJ}, 4')
        a(f's_cselect_b32 s{sUN}, s{sUN}, s{sT}')
        a(f's_add_u32 s{sUN}, s{sUN}, s{sLI}')
        a(f's_add_u32 s{sUN}, s{sUN}, 32')
    else:
        a(f's_lshl_b32 s{sUN}, s{sJ}, 1')
        a(f's_sub_u32 s{sUN}, s{sUN}, 20')
        a(f's_lshl_b32 s{sT}, s{sJ}, 3')
        a(f's_sub_u32 s{sT}, s{sT}, 40')
        a(f's_cmp_lt_u32 s{sJ}, 4')
        a(f's_cselect_b32 s{sUN}, s{sUN}, s{sT}')
        a(f's_add_u32 s{sUN}, s{sUN}, s{sLI}')
    a.label(top)
    a(f's_lshr_b32 s{sT}, s{sUN}, 4')
    a(f's_lshl_b32 s{sBLK}, s{sT}, 2')
    if not from_x:
        a(f's_add_u32 s{sT}, s{sBLK}, {fb_src + FL_X2}')
        wait_flag(a, sT, 10)
    a(f's_lshr_b32 s{sXO}, s{sUN}, 2')
    a(f's_mul_i32 s{sXO}, s{sXO}, 40960')
    a(f's_and_b32 s{sT}, s{sUN}, 3')
    a(f's_lshl_b32 s{sT}, s{sT}, 7')
    a(f's_add_u32 s{sXO}, s{sXO}, s{sT}')
    if from_x:
        srd(a, S_X, sXP, 2048 * 640 * 2)
        a(f's_lshr_b32 s{sU}, s{sUN}, 2')
        a(f's_lshl_b32 s{sU}, s{sU}, 5')
        a(f's_and_b32 s{sT}, s{sUN}, 3')
        a(f's_lshl_b32 s{sT}, s{sT}, 2')
        a(f's_add_u32 s{sU}, s{sU}, s{sT}')
        a(f's_mul_i32 s{sU}, s{sU}, 1280')
        a(f'v_bfe_u32 v{T1}, v0, 2, 1')
        a(f'v_lshlrev_b32 v{T1}, 4, v{T1}')
        a(f'v_and_b32 v{T2}, 3, v0')
        a(f'v_add_u32 v{T1}, v{T1}, v{T2}')
        a(f'v_mul_u32_u24 v{T1}, 0x500, v{T1}')
        a(f'v_lshrrev_b32 v{T2}, 3, v0')
        a(f'v_lshl_add_u32 v{T1}, v{T2}, 4, v{T1}')
        a(f's_add_u32 s{sT}, s{sU}, s{sV}')
        a(f's_cmp_lt_u32 s{sWV}, 2')
        a(f's_cselect_b32 s{sT}, s{sU}, s{sT}')
        for i in range(3):
            a(f'buffer_load_dwordx4 {vr(P + 4 * i, 4)}, v{T1}, s[{S_X}:{S_X + 3}], s{sU if i < 2 else sT} offen offset:{512 * i}')
    for i in range(3 if not from_x else 0):
        if i < 2:
            a(f's_add_u32 s{sU}, s{sXO}, {lb_src + L_X2 + i * 16384}')
        else:
            a(f's_add_u32 s{sU}, s{sXO}, s{sV}')
            a(f's_add_u32 s{sU}, s{sU}, {lb_src + L_X2}')
        a(f'buffer_load_dwordx4 {vr(P + 4 * i, 4)}, v{AD}, {WS}, s{sU} offen sc1')
    a('s_waitcnt vmcnt(0)')
    unpack(a, X, P, 12)
    a(f'v_add_f32 v{S}, v{X}, v{X + 1}')
    a(f'v_add_f32 v{T}, v{X + 2}, v{X + 3}')
    for i in range(4, 24, 2):
        a(f'v_add_f32 v{S}, v{S}, v{X + i}')
        a(f'v_add_f32 v{T}, v{T}, v{X + i + 1}')
    a(f'v_add_f32 v{S}, v{S}, v{T}')
    red8(a, S, T)

    def xwave(x, off):
        a(f'ds_write_b32 v{LW}, v{x} offset:{off}')
        a('s_waitcnt lgkmcnt(0)')
        a('s_barrier')
        a(f'ds_read_b128 v[48:51], v{LR} offset:{off}')
        a('s_waitcnt lgkmcnt(0)')
        a('v_add_f32 v48, v48, v49')
        a('v_add_f32 v50, v50, v51')
        a(f'v_add_f32 v{x}, v48, v50')
    xwave(S, 0)
    a(f'v_mul_f32 v{S}, {f32(1.0 / 640)}, v{S}')
    a(f'v_mov_b32 v{U}, 0')
    a(f'v_mov_b32 v52, 0')
    for i in range(24):
        a(f'v_sub_f32 v{T}, v{X + i}, v{S}')
        a(f'v_fmac_f32 v{U if i < 16 else 52}, v{T}, v{T}')
    a(f'v_fmac_f32 v{U}, s{sF}, v52')
    red8(a, U, T)
    xwave(U, 128)
    a(f'v_mul_f32 v{U}, {f32(1.0 / 640)}, v{U}')
    rbf(a, S)
    rbf(a, U)
    a(f'v_add_f32 v{U}, {f32(1e-5)}, v{U}')
    rbf(a, U)
    a(f'v_sqrt_f32 v{U}, v{U}')
    rbf(a, U)
    a(f'v_rcp_f32 v{U}, v{U}')
    for i in range(12):
        a(f'v_sub_f32 v{X + 2 * i}, v{X + 2 * i}, v{S}')
        a(f'v_sub_f32 v{X + 2 * i + 1}, v{X + 2 * i + 1}, v{S}')
        a(f'v_cvt_pk_bf16_f32 v{P + i}, v{X + 2 * i}, v{X + 2 * i + 1}')
    for i in range(12):
        a(f'v_lshlrev_b32 v{X + 2 * i}, 16, v{P + i}')
        a(f'v_and_b32 v{X + 2 * i + 1}, 0xffff0000, v{P + i}')
        a(f'v_mul_f32 v{X + 2 * i}, v{X + 2 * i}, v{U}')
        a(f'v_mul_f32 v{X + 2 * i + 1}, v{X + 2 * i + 1}, v{U}')
        a(f'v_cvt_pk_bf16_f32 v{P + i}, v{X + 2 * i}, v{X + 2 * i + 1}')
    for i in range(3):
        if i < 2:
            a(f's_add_u32 s{sU}, s{sXO}, {lb_dst + L_XN + i * 16384}')
        else:
            a(f's_add_u32 s{sU}, s{sXO}, s{sV}')
            a(f's_add_u32 s{sU}, s{sU}, {lb_dst + L_XN}')
        a(f'buffer_store_dwordx4 {vr(P + 4 * i, 4)}, v{AD}, {WS}, s{sU} offen sc1')
    a(f's_add_u32 s{sT}, s{sBLK}, {fb_dst + FL_XN}')
    signal(a, sT)
    if rnd:
        a(f's_cmp_lt_u32 s{sUN}, 32')
        a(f's_cselect_b32 s{sT}, 160, 32')
        a(f's_add_u32 s{sUN}, s{sUN}, s{sT}')
        a(f's_cmp_lt_u32 s{sUN}, 256')
        a(f's_cbranch_scc1 {top}')


S_DBG = 76


def init_stores(a, sX):
    a(f's_lshl_b32 s{sT}, s{sGI}, 12')
    a(f'v_lshlrev_b32 v40, 4, v0')
    a(f'v_add_u32 v40, s{sT}, v40')
    for r in range(4):
        a(f'v_mov_b32 v{44 + r}, -1')
        a(f'v_mov_b32 v{48 + r}, 0')
    a('v_mov_b32 v41, 0x80000000')
    for base in (LAYER0 + L_MC, LAYER0 + LSTRIDE + L_MC):
        a(f's_mov_b32 s{sU}, {base}')
        a(f'buffer_store_dwordx4 v[44:47], v40, {WS}, s{sU} offen sc1')
    a(f'v_cmp_gt_u32 vcc, 0x{WS_STREAM - WS_MRING:x}, v40')
    a('v_cndmask_b32 v42, v41, v40, vcc')
    a(f's_mov_b32 s{sU}, {WS_MRING}')
    a(f'buffer_store_dwordx4 v[44:47], v42, {WS}, s{sU} offen sc1')
    a(f'v_cmp_gt_u32 vcc, 0x{WS_M0 - WS_FLAGS:x}, v40')
    a('v_cndmask_b32 v42, v41, v40, vcc')
    a(f'buffer_store_dwordx4 v[48:51], v42, {WS}, 0 offen sc1')
    srd(a, S_B, 66, 10240)
    a('v_lshrrev_b32 v43, 4, v40')
    a('v_and_b32 v52, 7, v43')
    a('v_mul_u32_u24 v52, 0x500, v52')
    a('v_lshrrev_b32 v53, 3, v43')
    a('v_lshl_add_u32 v52, v53, 4, v52')
    a('v_cmp_gt_u32 vcc, 640, v43')
    a('v_cndmask_b32 v52, v41, v52, vcc')
    a('v_cndmask_b32 v53, v41, v40, vcc')
    a(f'buffer_load_dwordx4 v[56:59], v52, s[{S_B}:{S_B + 3}], 0 offen')
    a(f's_mov_b32 s{sU}, {WS_M0}')
    a('s_waitcnt vmcnt(0)')
    a(f'buffer_store_dwordx4 v[56:59], v53, {WS}, s{sU} offen sc1')
    a('s_waitcnt vmcnt(0)')
    a('s_barrier')
    a(f's_lshl_b32 s{sT}, s{sX}, 2')
    a(f's_add_u32 s{sT}, s{sT}, 32')
    a(f's_cmp_eq_u32 s{sWV}, 0')
    a(f's_cselect_b32 s{sT}, s{sT}, 0x1000')
    a('s_mov_b64 exec, 1')
    a('v_mov_b32 v40, 1')
    a(f'buffer_atomic_add v40, off, s[{S_DBG}:{S_DBG + 3}], s{sT}')
    a('s_mov_b64 exec, -1')


def init_wait(a, vl4, vt, s0, s1, s2):
    L = a.newlabel('iw')
    a(f'v_mbcnt_lo_u32_b32 v{vl4}, -1, 0')
    a(f'v_mbcnt_hi_u32_b32 v{vl4}, -1, v{vl4}')
    a(f'v_lshlrev_b32 v{vl4}, 2, v{vl4}')
    a.label(L)
    a(f'buffer_load_dword v{vt}, v{vl4}, s[{S_DBG}:{S_DBG + 3}], 0 offen offset:32 sc1')
    a('s_waitcnt vmcnt(0)')
    a(f'v_readlane_b32 s{s0}, v{vt}, 0')
    for i in range(1, 8):
        a(f'v_readlane_b32 s{s1}, v{vt}, {i}')
        a(f's_add_u32 s{s0}, s{s0}, s{s1}')
    a(f's_add_u32 s{s2}, s{s2}, 1')
    a(f's_cmp_ge_u32 s{s0}, 160')
    a(f's_cbranch_scc1 {L}_ok')
    a(f's_cmp_lt_u32 s{s2}, {C.SPINMAX}')
    a(f's_cbranch_scc1 {L}')
    a.label(f'{L}_ok')
```

```python
import sys
from asmlib import *
from layout import *
from common import *
import chain as C
import bulk as B
import small as S
import mega as M


def mega_kernel(a, kname, force_slow, name):
    tm = C.OPT.get('timing')
    kernel_head(a, kname)
    a(f's_cmp_lt_u32 s2, {NWG}')
    a(f's_cbranch_scc1 {name}_go')
    a('s_endpgm')
    a.label(f'{name}_go')
    a(f's_load_dwordx8 s[{C.sPTR}:{C.sPTR + 7}], s[0:1], {KA_WQ}')
    a(f's_load_dwordx4 s[{B.sXP}:{B.sXP + 3}], s[0:1], {KA_X}')
    a(f's_load_dwordx4 s[72:75], s[0:1], {KA_DBG}')
    a(f's_load_dwordx8 s[{M.sBP}:{M.sBP + 7}], s[0:1], {KA_W1}')
    a(f's_load_dwordx2 s[{M.sOUTP}:{M.sOUTP + 1}], s[0:1], {KA_OUT}')
    a('s_getpc_b64 s[96:97]')
    a.label(f'{name}_pc')
    a('s_waitcnt lgkmcnt(0)')
    a('s_mov_b32 s0, 0')
    srd(a, C.S_WS, 74, WS_SIZE)
    srd(a, 76, 72, 64)
    team_select(a, 76, 80, 81, 84, 82, 83, 92, 94, force_slow)
    if not C.OPT.get('nocp'):
        a('s_and_b32 s92, s81, 31')
        a('s_lshl_b32 s92, s92, 13')
        a('v_lshlrev_b32 v1, 4, v0')
        a('v_add_u32 v1, s92, v1')
        a(f's_mov_b32 s92, {name}_codeend-{name}_pc-16')
        a('v_add_u32 v2, 0x1000, v1')
        a('v_min_u32 v1, s92, v1')
        a('v_min_u32 v2, s92, v2')
        a('global_load_dwordx4 v[4:7], v1, s[96:97]')
        a('global_load_dwordx4 v[8:11], v2, s[96:97]')
        a('s_waitcnt vmcnt(0)')
    a('s_cmp_eq_u32 s82, 0')
    a(f's_cbranch_scc1 {name}_worker')
    a(f's_mov_b32 s{C.sH}, s83')
    if tm:
        a('s_memrealtime s[2:3]')
    C.chain_consts(a)
    C.chain_load_weights(a)
    C.chain_init_state(a)
    M.init_wait(a, 12, 13, C.sTMP, C.sTMP2, C.sSPIN)
    a(f's_mov_b32 s{C.sNSTEP}, 63')
    a(f's_mov_b32 s59, s82')
    if tm:
        a('s_memrealtime s[88:89]')
        a('s_waitcnt lgkmcnt(0)')
        a('s_sub_u32 s3, s88, s2')
        if C.OPT.get('wlt'):
            for i, r in enumerate((64, 66, 68, 90, 92, 94, 96, 88)):
                a(f's_sub_u32 s{r}, s{r}, s2')
                a(f'v_mov_b32 v{12 + i}, s{r}')
            a(f's_lshl_b32 s88, s{C.sH}, 5')
            a(f's_add_u32 s88, s88, {0xF30000}')
            a(f'buffer_store_dwordx4 v[12:15], off, s[4:7], s88')
            a(f'buffer_store_dwordx4 v[16:19], off, s[4:7], s88 offset:16')
    a.label(f'{name}_layer')
    C.chain_layer_state(a)
    if tm:
        a('s_memrealtime s[56:57]')
        for i in range(12):
            a(f's_mov_b32 s{90 + i}, 0')
    a('s_cmp_eq_u32 s59, 2')
    a(f's_cbranch_scc1 {name}_slow')
    C.chain_step(a, '', name + 'cf', tm)
    a(f's_branch {name}_fin')
    a.label(f'{name}_slow')
    C.chain_step(a, ' sc1', name + 'cs', tm)
    a.label(f'{name}_fin')
    if tm:
        a('s_memrealtime s[64:65]')
        a('s_waitcnt lgkmcnt(0)')
        a('s_sub_u32 s64, s64, s2')
        a('s_sub_u32 s56, s56, s2')
        for i in range(12):
            a(f'v_mov_b32 v{12 + i}, s{90 + i}')
        a('s_and_b32 s66, s22, 0x8000')
        a('s_lshr_b32 s66, s66, 2')
        a(f's_lshl_b32 s88, s{C.sH}, 2')
        a(f's_add_u32 s88, s88, s{C.sWV}')
        a('s_lshl_b32 s88, s88, 6')
        a('s_add_u32 s88, s88, s66')
        a(f's_add_u32 s88, s88, {0xF00000}')
        for i in range(3):
            a(f'buffer_store_dwordx4 v[{12 + 4 * i}:{15 + 4 * i}], off, s[{C.S_WS}:{C.S_WS + 3}], s88 offset:{16 * i}')
        a('s_nop 1')
        a('v_mov_b32 v12, s56')
        a('v_mov_b32 v13, s64')
        a('v_mov_b32 v14, s3')
        a('v_mov_b32 v15, s2')
        a(f'buffer_store_dwordx4 v[12:15], off, s[{C.S_WS}:{C.S_WS + 3}], s88 offset:48')
    a(f's_cmp_eq_u32 s{C.sLB}, {LAYER0}')
    a(f's_mov_b32 s{C.sLB}, {LAYER0 + LSTRIDE}')
    a(f's_cbranch_scc0 {name}_tend')
    a(f's_add_u32 s{C.sFLB}, s{C.sFLB}, {FSTRIDE}')
    a(f's_branch {name}_layer')
    a.label(f'{name}_tend')
    a('s_endpgm')
    a.label(f'{name}_worker')
    a(f's_mov_b32 s{B.sWI}, s83')
    B.worker_setup(a)
    a(f's_lshl_b32 s{B.sT}, s{B.sNH}, 1')
    a(f's_cmp_lt_u32 s{B.sLI}, s{B.sT}')
    a(f's_cbranch_scc0 {name}_gw')
    a(f's_and_b32 s100, s{B.sLI}, 1')
    a(f's_lshr_b32 s{B.sLI}, s{B.sLI}, 1')
    a(f's_mul_i32 s{C.sH}, s{B.sLI}, 7')
    a(f's_add_u32 s{C.sH}, s{C.sH}, s{B.sJ}')
    B.att_phase(a)
    a('s_endpgm')
    a.label(f'{name}_gw')
    a(f's_sub_u32 s{B.sLI}, s{B.sLI}, s{B.sT}')
    a(f's_mul_i32 s{B.sGI}, s{B.sJ}, 22')
    a(f's_mul_i32 s{B.sT}, s{B.sJ}, 24')
    a(f's_sub_u32 s{B.sT}, s{B.sT}, 8')
    a(f's_cmp_lt_u32 s{B.sJ}, 4')
    a(f's_cselect_b32 s{B.sGI}, s{B.sGI}, s{B.sT}')
    a(f's_add_u32 s{B.sGI}, s{B.sGI}, s{B.sLI}')
    M.init_stores(a, 80)
    for layer in range(2):
        lb = LAYER0 + layer * LSTRIDE
        fb = WS_FLAGS + layer * FSTRIDE
        B.wstamp(a, 0)
        B.qkv_pre(a, f'{name}_nq{layer}')
        if layer == 0:
            M.init_wait(a, 40, 41, B.sT, B.sU, B.sSPIN)
        B.qkv_phase(a, lb, fb, True,
                    lambda: M.ln1f_phase(a, lb - LSTRIDE, lb, fb - FSTRIDE, fb, 0, layer == 0))
        a(f's_branch {name}_dq{layer}')
        a.label(f'{name}_nq{layer}')
        if layer == 0:
            M.init_wait(a, 40, 41, B.sT, B.sU, B.sSPIN)
        M.ln1f_phase(a, lb - LSTRIDE, lb, fb - FSTRIDE, fb, 1, layer == 0)
        a.label(f'{name}_dq{layer}')
        B.wstamp(a, 1)
        a(f's_cmp_lt_u32 s{B.sGI}, {NWO}')
        a(f's_cbranch_scc0 {name}_nwo{layer}')
        B.wo_phase(a, lb, fb, layer)
        a(f's_branch {name}_g2p{layer}')
        a.label(f'{name}_nwo{layer}')
        a(f's_cmp_lt_u32 s{B.sGI}, {NWO + NLN}')
        a(f's_cbranch_scc0 {name}_nln{layer}')
        M.ln2_role(a, lb, fb)
        a(f's_branch {name}_g2p{layer}')
        a.label(f'{name}_nln{layer}')
        a(f's_cmp_lt_u32 s{B.sGI}, {NWO + NLN + NG1}')
        a(f's_cbranch_scc0 {name}_g2p{layer}')
        if layer == 0:
            M.w2f_prep(a)
        M.g2_pre(a, layer == 0)
        M.g1p_role(a, lb, fb)
        B.wstamp(a, 3)
        a(f's_branch {name}_g2{layer}')
        a.label(f'{name}_g2p{layer}')
        B.wstamp(a, 3)
        M.g2_pre(a, layer == 0)
        a.label(f'{name}_g2{layer}')
        M.g2_phase(a, lb, fb, layer == 1)
        B.wstamp(a, 7)
        B.wstamp(a, 5)
        B.wdump(a, layer)
    a('s_endpgm')
    a.label(f'{name}_codeend')


def build(force_slow=False):
    a = Asm()
    launches = []
    descs = ''
    n = 'interleave_layers__memory_aug_recurrent_mem_tr__mixer_token_mlp__prompt_kernel'
    mega_kernel(a, n, force_slow, 'mk')
    launches.append((n, 256, 256, 163840)); descs += kernel_desc(n)
    a.fix_hazards()
    for e in a.verify_waits():
        print('WAITERR', e)
    hdr = ''.join(f'; @launch kernel={n} grid=({g},1,1) block=({b},1,1) lds={l}\n' for n, g, b, l in launches)
    hdr += '.amdgcn_target "amdgcn-amd-amdhsa--gfx950"\n.text\n'
    return hdr + a.text() + '.section .rodata,"a"\n' + descs, a


if __name__ == '__main__':
    C.OPT['stamps'] = []
    for o in sys.argv[2:]:
        if o.startswith('st='):
            C.OPT['stamps'] = o[3:].split(',')
            C.OPT['timing'] = True
        elif '=' in o:
            k, v = o.split('=')
            C.OPT[k] = ' ' + v.replace('+', ' ')
        else:
            C.OPT[o] = True
    s, a = build('slow' in sys.argv[2:])
    if C.OPT.get('timing'):
        s = s.replace('.amdgcn_target', '; STAMPS ' + ' '.join(map(str, C.OPT['used'])) + '\n.amdgcn_target', 1)
    open(sys.argv[1], 'w').write(s)
    print(len(a.ins), 'instrs', len(s), 'bytes')
```

```python
from asmlib import *
from layout import *
from common import *
from chain import Track, f32
import chain as C
from small import tr_lane_addr, CM_NAT, CM_PI, CM_SIG, unpack

S_WS = 4
S_WA, S_WB = 8, 12
sWI, sWV, sJ, sLI, sNH = 16, 17, 18, 19, 20
sR, sBLK, sH, sT, sU, sV = 21, 22, 23, 24, 25, 26
sXO, sWO, sLW = 27, 28, 29
sSPIN = 0
sE = 32
sSC = 34
sPTR = 56
sXP = 64
S_X = 68
S_WC = 36

sKS = 31
sGI = 35

LN, L16, T1, T2, T3 = 1, 2, 3, 4, 5


def wstamp(a, i):
    if C.OPT.get('timing'):
        a(f's_memrealtime s[{84 + 2 * i}:{85 + 2 * i}]')


def wdump(a, layer):
    if not C.OPT.get('timing'):
        return
    a('s_waitcnt lgkmcnt(0)')
    for i in range(8):
        a(f'v_mov_b32 v{20 + i}, s{84 + 2 * i}')
    a(f's_lshl_b32 s88, s83, 5')
    a(f's_add_u32 s88, s88, {0xF10000 + layer * 0x4000}')
    a(f'buffer_store_dwordx4 v[20:23], off, s[4:7], s88')
    a(f'buffer_store_dwordx4 v[24:27], off, s[4:7], s88 offset:16')


def worker_setup(a):
    a(f'v_and_b32 v{LN}, 63, v0')
    a(f'v_lshrrev_b32 v{T1}, 6, v0')
    a(f'v_lshlrev_b32 v{L16}, 4, v{LN}')
    a(f'v_readfirstlane_b32 s{sWV}, v{T1}')
    a(f's_lshr_b32 s{sJ}, s{sWI}, 5')
    a(f's_and_b32 s{sLI}, s{sWI}, 31')
    a(f's_cmp_lt_u32 s{sJ}, 4')
    a(f's_cselect_b32 s{sNH}, 5, 4')
    a(f's_lshl_b32 s{sLW}, s{sWV}, 10')


def unit_decode(a, done):
    a(f's_lshl_b32 s{sT}, s{sNH}, 1')
    a(f's_sub_u32 s{sT}, 32, s{sT}')
    a(f's_mul_i32 s{sT}, s{sR}, s{sT}')
    a(f's_add_u32 s{sT}, s{sT}, s{sLI}')
    a(f's_mul_i32 s{sBLK}, s{sT}, 13108')
    a(f's_lshr_b32 s{sBLK}, s{sBLK}, 16')
    a(f's_lshr_b32 s{sU}, s{sT}, 2')
    a(f's_cmp_eq_u32 s{sNH}, 4')
    a(f's_cselect_b32 s{sBLK}, s{sU}, s{sBLK}')
    a(f's_mul_i32 s{sU}, s{sBLK}, s{sNH}')
    a(f's_sub_u32 s{sU}, s{sT}, s{sU}')
    a(f's_mul_i32 s{sH}, s{sU}, 7')
    a(f's_add_u32 s{sH}, s{sH}, s{sJ}')
    a(f's_cmp_ge_u32 s{sBLK}, 16')
    a(f's_cbranch_scc1 {done}')


def w_swz(a):
    def f(row, t, dst):
        a(f'v_and_b32 v{t}, 3, v{row}')
        a(f'v_lshlrev_b32 v{t}, 6, v{t}')
        a(f'v_xor_b32 v{dst}, v{t}, v{dst}')
    return f


def proj_gemm(a, tag, nmat, lb, VSW, xtiles, wtiles, mf, FR, nring=4):
    tr = Track(a)
    SB = nmat * 8192
    XB = 8192
    WBASE = nring * 8192
    srds = [S_WA, S_WB, S_WC]

    def dma_ops(slot):
        g = []
        for ks in range(2):
            g.append([f's_add_u32 m0, s{sLW2}, {slot * XB + ks * 1024}',
                      f'buffer_load_dwordx4 v{L16}, s[{S_WS}:{S_WS + 3}], s{sXO} offen sc1 lds',
                      f's_add_u32 s{sXO}, s{sXO}, 1024'])
        for m in range(nmat):
            for k in range(2):
                g.append([f's_add_u32 m0, s{sLW}, {WBASE + slot * SB + m * 8192 + k * 4096}',
                          f'buffer_load_dwordx4 v{VSW[k]}, s[{srds[m]}:{srds[m] + 3}], s{sWO} offen lds'])
        g[-1] += [f's_add_u32 s{sWO}, s{sWO}, {32 * 8192}',
                  f's_add_u32 s{sKS}, s{sKS}, 1',
                  f's_cmp_eq_u32 s{sKS}, 20',
                  f's_cselect_b32 s{sU}, 40960, 0',
                  f's_sub_u32 s{sXO}, s{sXO}, s{sU}',
                  f's_lshl_b32 s{sU}, s{sU}, 7',
                  f's_sub_u32 s{sWO}, s{sWO}, s{sU}']
        return g

    per = 2 + 2 * nmat
    sLW2 = sSC
    a(f's_lshl_b32 s{sLW2}, s{sWV}, 11')

    def read_ops(slot, ks, b):
        r = []
        for i, xr in enumerate(xtiles):
            r.append(f'ds_read_b128 {vr(b + 4 * i, 4)}, v{xr} offset:{slot * XB + ks * 1024}')
        for i, (m, wr) in enumerate(wtiles):
            for u in range(2):
                off = WBASE + slot * SB + m * 8192 + (16 * ks + 4 * u) * 256
                r.append(f'ds_read_b64_tr_b16 {vr(b + 4 * len(xtiles) + 4 * i + 2 * u, 2)}, v{wr[off >> 16]} offset:{off & 0xffff}')
        return r

    def mix(mfs, rds, dms):
        n = len(mfs)
        for i, t in enumerate(mfs):
            a(t)
            for _ in range(2):
                if rds:
                    a(rds.pop(0))
            if dms and (i % 3 != 2):
                for x in dms.pop(0):
                    a(x)
        assert not rds and not dms

    for s in range(nring - 1):
        for g in dma_ops(s):
            for x in g:
                a(x)
    a(f's_waitcnt vmcnt({per * (nring - 2)})')
    a('s_barrier')
    for x in read_ops(0, 0, FR[0]):
        a(x)
    a(f's_mov_b32 s{sV}, 0')
    lp = a.newlabel(tag)
    a.label(lp)
    for s in range(nring):
        d = dma_ops((s + nring - 1) % nring)
        a('s_waitcnt lgkmcnt(0)')
        mix(mf(FR[0]), read_ops(s, 1, FR[1]), d[:per // 2])
        a(f's_waitcnt vmcnt({per * (nring - 3) + per // 2}) lgkmcnt(0)')
        a('s_barrier')
        mix(mf(FR[1]), read_ops((s + 1) % nring, 0, FR[0]), d[per // 2:])
    a(f's_add_u32 s{sV}, s{sV}, 1')
    a(f's_cmp_lt_u32 s{sV}, {20 // nring}')
    a(f's_cbranch_scc1 {lp}')
    a('s_waitcnt vmcnt(0) lgkmcnt(0)')
    a('s_barrier')


def w_src(a, VSW):
    a(f'v_lshrrev_b32 v{T1}, 4, v{LN}')
    a(f'v_lshlrev_b32 v{T2}, 2, v{T1}')
    a(f'v_and_b32 v{T3}, 15, v{LN}')
    a(f'v_xor_b32 v{T2}, v{T2}, v{T3}')
    a(f'v_lshlrev_b32 v{T2}, 4, v{T2}')
    a(f'v_lshl_add_u32 v{T2}, v{T1}, 13, v{T2}')
    a(f's_lshl_b32 s{sU}, s{sWV}, 15')
    a(f'v_add_u32 v{VSW[0]}, s{sU}, v{T2}')
    a(f'v_add_u32 v{VSW[1]}, {16 * 8192}, v{VSW[0]}')


def signal(a, off_sgpr):
    L = a.newlabel('sig')
    a('s_waitcnt vmcnt(0)')
    a('s_barrier')
    a('v_cmp_eq_u32 vcc, 0, v0')
    a(f's_and_saveexec_b64 s[{sE}:{sE + 1}], vcc')
    a(f's_cbranch_execz {L}')
    a(f'v_mov_b32 v{T1}, 0')
    a(f'v_mov_b32 v{T2}, 1')
    a(f'buffer_atomic_add v{T2}, v{T1}, s[{S_WS}:{S_WS + 3}], s{off_sgpr} offen')
    a.label(L)
    a(f's_mov_b64 exec, s[{sE}:{sE + 1}]')


def wait_flag(a, off_sgpr, val):
    L = a.newlabel('wf')
    a(f'v_mov_b32 v{T1}, 0')
    a.label(L)
    a(f'buffer_load_dword v{T2}, v{T1}, s[{S_WS}:{S_WS + 3}], s{off_sgpr} offen sc1')
    a('s_waitcnt vmcnt(0)')
    a(f'v_readfirstlane_b32 s{sU}, v{T2}')
    a(f's_add_u32 s{sSPIN}, s{sSPIN}, 1')
    a(f's_cmp_ge_u32 s{sU}, {val}')
    a(f's_cbranch_scc1 {L}_ok')
    a('s_sleep 8')
    a(f's_cmp_lt_u32 s{sSPIN}, {C.SPINMAX}')
    a(f's_cbranch_scc1 {L}')
    a.label(f'{L}_ok')


def unit_addr(a, lb):
    a(f's_lshl_b32 s{sXO}, s{sBLK}, 2')
    a(f's_add_u32 s{sXO}, s{sXO}, s{sWV}')
    a(f's_mul_i32 s{sXO}, s{sXO}, 40960')
    a(f's_add_u32 s{sXO}, s{sXO}, {lb + L_XN}')
    a(f's_lshl_b32 s{sWO}, s{sH}, 8')
    a(f's_mul_i32 s{sKS}, s{sH}, 9363')
    a(f's_lshr_b32 s{sKS}, s{sKS}, 16')
    a(f's_lshl_b32 s{sKS}, s{sKS}, 1')
    a(f's_add_u32 s{sKS}, s{sKS}, s{sBLK}')
    a(f's_mul_i32 s{sU}, s{sKS}, 13108')
    a(f's_lshr_b32 s{sU}, s{sU}, 16')
    a(f's_mul_i32 s{sU}, s{sU}, 5')
    a(f's_sub_u32 s{sKS}, s{sKS}, s{sU}')
    a(f's_lshl_b32 s{sKS}, s{sKS}, 2' if not C.OPT.get('norot') else f's_mov_b32 s{sKS}, 0')
    a(f's_lshl_b32 s{sU}, s{sKS}, 11')
    a(f's_add_u32 s{sXO}, s{sXO}, s{sU}')
    a(f's_lshl_b32 s{sU}, s{sKS}, 18')
    a(f's_add_u32 s{sWO}, s{sWO}, s{sU}')


def vperm_addr(a, d):
    a(f'v_lshrrev_b32 v{T1}, 5, v{LN}')
    a(f'v_lshlrev_b32 v{d}, 9, v{T1}')
    a(f'v_bfe_u32 v{T1}, v{LN}, 1, 4')
    a(f'v_lshl_add_u32 v{d}, v{T1}, 4, v{d}')
    a(f'v_and_b32 v{T1}, 1, v{LN}')
    a(f'v_lshl_add_u32 v{d}, v{T1}, 8, v{d}')


def qkv_ids(a):
    a(f's_lshr_b32 s{sH}, s{sLI}, 2')
    a(f's_mul_i32 s{sH}, s{sH}, 7')
    a(f's_add_u32 s{sH}, s{sH}, s{sJ}')
    a(f's_and_b32 s{sV}, s{sLI}, 3')


def qkv_pre(a, done):
    a(f's_lshl_b32 s{sT}, s{sNH}, 2')
    a(f's_cmp_ge_u32 s{sLI}, s{sT}')
    a(f's_cbranch_scc1 {done}')
    qkv_ids(a)
    sCT = sV
    srd(a, S_WA, sPTR + 2, 5242880)
    srd(a, S_WB, sPTR + 4, 5242880)
    srd(a, S_WC, sPTR, 5242880)
    VS = 6
    a(f'v_lshrrev_b32 v{T1}, 2, v{LN}')
    a(f'v_lshlrev_b32 v{T1}, 13, v{T1}')
    a(f'v_and_b32 v{T2}, 3, v{LN}')
    a(f'v_lshl_add_u32 v{VS}, v{T2}, 4, v{T1}')
    a(f's_lshl_b32 s{sWO}, s{sH}, 8')
    a(f's_lshl_b32 s{sU}, s{sCT}, 6')
    a(f's_add_u32 s{sWO}, s{sWO}, s{sU}')
    a(f's_lshl_b32 s{sU}, s{sWV}, 17')
    a(f's_add_u32 s{sWO}, s{sWO}, s{sU}')
    for i in range(10):
        for m, sr_ in enumerate((S_WA, S_WB, S_WC)):
            a(f's_add_u32 m0, s{sLW}, {m * 40960 + i * 4096}')
            a(f'buffer_load_dwordx4 v{VS}, s[{sr_}:{sr_ + 3}], s{sWO} offen lds')
        a(f's_add_u32 s{sWO}, s{sWO}, {64 * 8192}')


def qkv_phase(a, lb, fb, wait_xn, mid=None):
    WS = f's[{S_WS}:{S_WS + 3}]'
    qkv_ids(a)
    sCT = sV
    VP = 7
    RW = [[8, 9], [10, 11], [12, 13]]
    def vsetup():
        for m, cm in enumerate((CM_PI, CM_NAT, CM_SIG)):
            tr_lane_addr(a, RW[m][0], LN, T1, T2, 64, cm, None)
            a(f'v_add_u32 v{RW[m][0]}, {m * 40960}, v{RW[m][0]}')
        vperm_addr(a, VP)

    vsetup()
    a(f's_mul_i32 s{sXO}, s{sWV}, 40960')
    a(f's_add_u32 s{sXO}, s{sXO}, {lb + L_XN}')
    sOUT, sFL, sXF = sWO, sKS, sSC
    a(f's_lshl_b32 s{sOUT}, s{sWV}, 5')
    a(f's_add_u32 s{sOUT}, s{sOUT}, s{sH}')
    a(f's_lshl_b32 s{sOUT}, s{sOUT}, 13')
    a(f's_lshl_b32 s{sU}, s{sCT}, 11')
    a(f's_add_u32 s{sOUT}, s{sOUT}, s{sU}')
    a(f's_lshl_b32 s{sFL}, s{sH}, 6')
    a(f's_add_u32 s{sFL}, s{sFL}, {fb + FL_KV}')
    a(f's_mov_b32 s{sXF}, {fb + FL_XN}')
    XV, FRW, E = 96, [16, 28], 40

    def ldx(i):
        if i % 4 == 0 and i:
            a(f's_add_u32 s{sXO}, s{sXO}, 4096')
        a(f'buffer_load_dwordx4 {vr(XV + 4 * i, 4)}, v{L16}, {WS}, s{sXO} offen offset:{(i % 4) * 1024} sc1')
        if i == 39:
            a(f's_add_u32 s{sXO}, s{sXO}, {4 * 40960 - 9 * 4096}')

    def rdw(i):
        bb = FRW[i & 1]
        for m in range(3):
            for u in range(2):
                a(f'ds_read_b64_tr_b16 {vr(bb + 4 * m + 2 * u, 2)}, v{RW[m][0]} offset:{i * 1024 + 256 * u}')

    SIG = 24
    sXR = 74

    def xn_ready(plus):
        if not wait_xn:
            return
        L = a.newlabel('xr')
        a(f's_add_u32 s{sT}, s{sBLK}, {plus}')
        a(f's_min_u32 s{sT}, s{sT}, 15')
        a(f's_cmp_lt_u32 s{sT}, s{sXR}')
        a(f's_cbranch_scc1 {L}_ok')
        a(f'v_lshlrev_b32 v{T3}, 2, v{LN}')
        a.label(f'{L}_sp')
        a(f'buffer_load_dword v{T1}, v{T3}, {WS}, s{sXF} offen sc1')
        a('s_waitcnt vmcnt(0)')
        a(f'v_cmp_le_u32 vcc, 16, v{T1}')
        a(f's_add_u32 s{sSPIN}, s{sSPIN}, 1')
        a(f's_and_b32 s{sXR}, vcc_lo, 0xffff')
        a(f's_ff0_i32_b32 s{sXR}, s{sXR}')
        a(f's_cmp_lt_u32 s{sT}, s{sXR}')
        a(f's_cbranch_scc1 {L}_ok')
        a('s_sleep 2')
        a(f's_cmp_lt_u32 s{sSPIN}, {C.SPINMAX}')
        a(f's_cbranch_scc1 {L}_sp')
        a.label(f'{L}_ok')

    def body(first):
        if not first:
            xn_ready(1)
        rdw(0)
        for i in range(40):
            if i + 1 < 40:
                rdw(i + 1)
            n = 39 - i if first else 39 - i + 6 + i
            a(f's_waitcnt vmcnt({n}) lgkmcnt({6 if i + 1 < 40 else 0})')
            bb = FRW[i & 1]
            xf = vr(XV + 4 * i, 4)
            for m in range(3):
                acc = ar(16 * m, 16)
                wf = vr(bb + 4 * m, 4)
                c = acc if i else '0'
                a(f'v_mfma_f32_32x32x16_bf16 {acc}, {xf if m == 1 else wf}, {wf if m == 1 else xf}, {c}')
            if first:
                continue
            ldx(i)
            if i == SIG:
                lab = a.newlabel('wqs')
                a(f's_cmp_eq_u32 s{sBLK}, 1')
                a(f's_cbranch_scc1 {lab}')
                sig(SIG + 1)
                a.label(lab)
        for m in range(3):
            e = E + 0
            for r in range(16):
                a(f'v_accvgpr_read_b32 v{e + r}, a{16 * m + r}')
            pk = E + 16 + 8 * m
            for r in range(8):
                a(f'v_cvt_pk_bf16_f32 v{pk + r}, v{e + 2 * r}, v{e + 2 * r + 1}')
            a(f's_add_u32 s{sU}, s{sOUT}, {lb + (L_KB, L_VB, L_Q)[m]}')
            ad = VP if m == 1 else L16
            a(f'buffer_store_dwordx4 {vr(pk, 4)}, v{ad}, {WS}, s{sU} offen sc1')
            a(f'buffer_store_dwordx4 {vr(pk + 4, 4)}, v{ad}, {WS}, s{sU} offen offset:1024 sc1')
        a(f's_add_u32 s{sOUT}, s{sOUT}, {4 * 32 * 8192}')

    def sig(n=0):
        a(f's_waitcnt vmcnt({n})')
        a('s_barrier')
        a(f's_cmp_eq_u32 s{sWV}, 0')
        a(f's_cselect_b32 s{sU}, s{sFL}, {C.OOB}')
        a('s_mov_b64 exec, 1')
        a(f'v_mov_b32 v{T2}, 1')
        a(f'buffer_atomic_add v{T2}, off, {WS}, s{sU}')
        a('s_mov_b64 exec, -1')
        a(f's_add_u32 s{sFL}, s{sFL}, 4')

    a(f's_mov_b32 s{sXR}, 0')
    a(f's_mov_b32 s{sBLK}, 0')
    xn_ready(0)
    for i in range(40):
        ldx(i)
    a('s_waitcnt vmcnt(40)')
    a('s_barrier')
    body(True)
    sig()
    if mid:
        for r, sv in ((sXO, 81), (sWO, 82), (sKS, 72), (sSC, 73)):
            a(f's_mov_b32 s{sv}, s{r}')
        mid()
        for r, sv in ((sXO, 81), (sWO, 82), (sKS, 72), (sSC, 73)):
            a(f's_mov_b32 s{r}, s{sv}')
        vsetup()
    a(f's_mov_b32 s{sBLK}, 0')
    xn_ready(1)
    for i in range(40):
        ldx(i)
    a(f's_mov_b32 s{sU}, {C.OOB}')
    for _ in range(6):
        a(f'buffer_store_dword v{T1}, off, {WS}, s{sU}')
    a(f's_mov_b32 s{sBLK}, 1')
    top = a.newlabel('wq')
    a.label(top)
    body(False)
    a(f's_add_u32 s{sBLK}, s{sBLK}, 1')
    a(f's_cmp_lt_u32 s{sBLK}, 16')
    a(f's_cbranch_scc1 {top}')
    sig()


def att_loc():
    loc = {}
    i = 0
    for n in range(10):
        for m, t in (('k', 0), ('v', 0), ('k', 1), ('v', 1)):
            loc[(m, t, n)] = ('a', 8 * i) if i < 32 else ('v', 192 + 8 * (i - 32))
            i += 1
    return loc


def att_phase(a):
    WS = f's[{C.S_WS}:{C.S_WS + 3}]'
    loc = att_loc()
    C.chain_consts(a)
    C.chain_load_weights(a, loc, (1, 2))
    L16, VW, GM = C.L16, C.VW, C.GM
    X, LNn = 40, 41
    KA, KMA, VMA, TOK, VA = 3, 4, 5, 6, 7
    a(f'v_lshrrev_b32 v{LNn}, 4, v{L16}')
    a(f'v_lshrrev_b32 v{X}, 5, v{LNn}')
    a(f'v_and_b32 v42, 31, v{LNn}')
    a(f'v_lshlrev_b32 v{KA}, 10, v{X}')
    a(f'v_lshl_add_u32 v{KA}, v42, 4, v{KA}')
    a(f'v_and_b32 v43, 7, v{LNn}')
    a(f'v_lshlrev_b32 v{KMA}, 8, v{X}')
    a(f'v_lshl_add_u32 v{KMA}, v43, 4, v{KMA}')
    a(f'v_lshrrev_b32 v43, 1, v42')
    a(f'v_lshlrev_b32 v{VMA}, 8, v{X}')
    a(f'v_lshl_add_u32 v{VMA}, v43, 4, v{VMA}')
    a(f'v_and_b32 v44, 1, v{LNn}')
    a(f'v_lshl_add_u32 v{VMA}, v44, 3, v{VMA}')
    a(f's_lshl_b32 s{C.sTMP}, s{C.sWV}, 10')
    a(f'v_add_u32 v{VMA}, s{C.sTMP}, v{VMA}')
    a(f'v_add_u32 v46, s{C.sTMP}, v{L16}')
    a(f'v_lshlrev_b32 v{VA}, 9, v{X}')
    a(f'v_lshl_add_u32 v{VA}, v43, 4, v{VA}')
    a(f'v_lshl_add_u32 v{VA}, v44, 8, v{VA}')
    a(f's_lshl_b32 s{C.sTMP}, s{C.sWV}, 11')
    a(f'v_add_u32 v{VA}, s{C.sTMP}, v{VA}')
    a(f'v_and_b32 v{TOK}, 3, v{LNn}')
    a(f'v_bfe_u32 v43, v{LNn}, 3, 2')
    a(f'v_lshl_add_u32 v{TOK}, v43, 2, v{TOK}')
    a(f'v_bfe_u32 v43, v{LNn}, 2, 1')
    a(f'v_lshl_add_u32 v{TOK}, v43, 4, v{TOK}')
    a(f'v_lshlrev_b32 v43, 4, v{X}')
    a(f'v_sub_u32 v{TOK}, v{TOK}, v43')
    SEL = 8
    SEL = 44
    a(f'v_and_b32 v43, 0x1f0, v{L16}')
    a(f'ds_read_b64 {vr(SEL, 2)}, v43 offset:{C.LSEL}')
    import mega
    mega.init_wait(a, 40, 41, C.sTMP, C.sTMP2, C.sSPIN)
    for layer in range(2):
        att_layer(a, LAYER0 + layer * LSTRIDE, WS_FLAGS + layer * FSTRIDE, loc)


def att_layer(a, lb, fb, loc):
    WS = f's[{C.S_WS}:{C.S_WS + 3}]'
    L16, VW, GM = C.L16, C.VW, C.GM
    KA, KMA, VMA, TOK, VA = 3, 4, 5, 6, 7
    SEL = 44
    sKB, sOO, sFO, sA, sB = C.sKB, C.sVB, C.sKMQ, C.sPST, C.sPST1
    a(f's_lshl_b32 s{sKB}, s{C.sH}, 13')
    a(f's_lshl_b32 s{sOO}, s{C.sH}, 13')
    a(f's_lshl_b32 s{C.sTMP}, s{C.sWV}, 11')
    a(f's_add_u32 s{sOO}, s{sOO}, s{C.sTMP}')
    a(f's_add_u32 s{sOO}, s{sOO}, {lb + L_O}')
    a(f's_mov_b32 s{sFO}, {fb + FL_O}')
    a(f's_lshl_b32 s{C.sFLB}, s{C.sH}, 6')
    a(f's_add_u32 s{C.sFLB}, s{C.sFLB}, {fb + FL_KV}')
    a(f's_add_u32 s{C.sPOLL}, s{C.sTMP}, {lb + L_MC}')
    a(f's_add_u32 s{C.sPOLL8}, s{C.sB8}, {lb + L_MC + 8192 - C.LB8}')
    a(f's_mov_b32 s{C.sSTEP}, s3')
    a(f's_mul_i32 s{C.sTMP}, s3, {32 * 8192}')
    a(f's_add_u32 s{sKB}, s{sKB}, s{C.sTMP}')
    a(f's_add_u32 s{sOO}, s{sOO}, s{C.sTMP}')
    a(f's_lshl_b32 s{C.sTMP}, s3, 7')
    a(f's_add_u32 s{sFO}, s{sFO}, s{C.sTMP}')
    a(f's_mul_i32 s{C.sTMP}, s3, {MSLOT}')
    a(f's_add_u32 s{C.sPOLL}, s{C.sPOLL}, s{C.sTMP}')
    a(f's_add_u32 s{C.sPOLL8}, s{C.sPOLL8}, s{C.sTMP}')
    a(f's_mov_b32 s{C.sRDY}, 0')
    K0, V0, K1, V1 = 24, 28, 32, 36
    QF, KF, VF, SS, SM_, OA, TMP, VMF = 48, 80, 112, 120, 136, 152, 168, 184
    T0, T1, T2 = C.T0, C.T1, C.T2
    MX, MY, NI = TMP, TMP + 1, TMP + 2
    cvt = lambda d, x, y: a(f'v_cvt_pk_bf16_f32 v{d}, v{x}, v{y}')
    pka = lambda d, x, y: a(f'v_pk_add_f32 {vr(d, 2)}, {vr(x, 2)}, {vr(y, 2)}')

    def ld_kq(tr):
        for half in range(2):
            a(f's_add_u32 s{sA}, s{sKB}, {lb + L_KB + half * 4096}')
            a(f's_add_u32 s{sB}, s{sKB}, {lb + L_Q + half * 4096}')
            for k in range(4):
                ks = 4 * half + k
                tr.vmem(f'buffer_load_dwordx4 {vr(KF + 4 * ks, 4)}, v{KA}, {WS}, s{sA} offen offset:{(k >> 1) * 2048 + (k & 1) * 512} sc1', ('k', ks))
                tr.vmem(f'buffer_load_dwordx4 {vr(QF + 4 * ks, 4)}, v{L16}, {WS}, s{sB} offen offset:{k * 1024} sc1', ('k', ks))

    def ld_v(tr):
        a(f's_add_u32 s{sA}, s{sKB}, {lb + L_VB}')
        for m in range(2):
            tr.vmem(f'buffer_load_dwordx4 {vr(VF + 4 * m, 4)}, v{VA}, {WS}, s{sA} offen offset:{m * 1024} sc1', 'v')

    tr = Track(a)
    wstamp(a, 1)
    C.kv_ready(a, a.newlabel('akv'), 0)
    wstamp(a, 2)
    a('s_mov_b32 s92, 0')
    ld_kq(tr)
    ld_v(tr)
    a(f's_mov_b32 s{C.sMW}, {C.OOB}')
    for _ in range(2):
        tr.vmem(f'buffer_store_dword v{T0}, off, {WS}, s{C.sMW}', 'o')
    q0 = list(tr.vm)
    top = a.newlabel('att')
    a.label(top)
    st = {}
    C.zero(a, K0, 16)
    C.m_addr(a, 2, st)
    for ks in range(8):
        tr.wait_vm(('k', ks))
        a(f'v_mfma_f32_32x32x16_bf16 {vr(SS, 16)}, {vr(KF + 4 * ks, 4)}, {vr(QF + 4 * ks, 4)}, ' + (vr(SS, 16) if ks else '0'))
    a(f'v_mov_b32 v{NI}, 0xff800000')
    for r in range(0, 16, 2):
        a(f'v_cmp_gt_i32 vcc, {r}, v{TOK}')
        a(f'v_cmp_gt_i32 s[{C.sT64}:{C.sT64 + 1}], {r + 1}, v{TOK}')
        a(f'v_cndmask_b32 v{SS + r}, v{SS + r}, v{NI}, vcc')
        a(f'v_cndmask_b32 v{SS + r + 1}, v{SS + r + 1}, v{NI}, s[{C.sT64}:{C.sT64 + 1}]')
    a(f'v_max3_f32 v{MX}, v{SS}, v{SS + 1}, v{SS + 2}')
    for r in range(3, 15, 2):
        a(f'v_max3_f32 v{MX}, v{MX}, v{SS + r}, v{SS + r + 1}')
    a(f'v_max_f32 v{MX}, v{MX}, v{SS + 15}')
    a('s_waitcnt vmcnt(0)')
    a('s_mov_b64 exec, 1')
    a(f'v_mov_b32 v{T0}, 1')
    a(f'buffer_atomic_add v{T0}, off, {WS}, s{C.sMW}')
    a('s_mov_b64 exec, -1')
    a(f's_cmp_ge_u32 s{C.sSTEP}, 64')
    a(f's_cbranch_scc1 {top}_done')
    pl, go = a.newlabel('apoll'), a.newlabel('ago')
    a.label(pl)
    a(f'buffer_load_dwordx4 {vr(GM[0], 4)}, v{L16}, {WS}, s{C.sPOLL} offen sc1')
    a(f'buffer_load_dwordx4 {vr(GM[1], 4)}, v{L16}, {WS}, s{C.sPOLL} offen offset:1024 sc1')
    a(f'buffer_load_dwordx4 {vr(GM[2], 4)}, v{L16}, {WS}, s{C.sPOLL8} offen sc1')
    a(f's_add_u32 s{C.sSPIN}, s{C.sSPIN}, 1')
    g = GM[0]
    a('s_waitcnt vmcnt(0)')
    a(f'v_max3_u32 v{T0}, v{g}, v{g + 1}, v{g + 2}')
    for r in range(3, 11, 2):
        a(f'v_max3_u32 v{T0}, v{T0}, v{g + r}, v{g + r + 1}')
    a(f'v_max_u32 v{T0}, v{T0}, v{g + 11}')
    a(f'v_cmp_eq_u32 vcc, -1, v{T0}')
    a(f's_cbranch_vccz {go}')
    a('s_sleep 2')
    a(f's_cmp_lt_u32 s{C.sSPIN}, {C.SPINMAX}')
    a(f's_cbranch_scc1 {pl}')
    a.label(go)
    wstamp(a, 5)
    tr.vm = []
    tr.ds(f'ds_write_b128 v{VW}, {vr(GM[0], 4)}', 'mw')
    tr.ds(f'ds_write_b128 v{VW}, {vr(GM[1], 4)} offset:1024', 'mw')
    tr.ds(f'ds_write_b128 v{T2}, {vr(GM[2], 4)}', 'mw')
    order = [('k', 0, K0), ('k', 1, K1), ('v', 0, V0), ('v', 1, V1)]
    for n in range(10):
        buf = GM[n % 3]
        if n >= 3:
            tr.wait_lg(('A', n))
        for p, (m, t, acc) in enumerate(order):
            C.smf(a, acc, buf, (m, t, n), loc)
            if p == 1 and n == 1:
                tr.wait_lg('mw')
                a('s_barrier')
                C.m_read(tr, 3, GM[0], st)
            if p == 2 and n + 3 <= 9:
                C.m_addr(a, n + 3, st)
        if 1 <= n <= 6:
            C.m_read(tr, n + 3, buf, st)
    cvt(K0, K0, K0 + 1)
    cvt(K0 + 1, K0 + 2, K0 + 3)
    cvt(K1, K1, K1 + 1)
    cvt(K1 + 1, K1 + 2, K1 + 3)
    a(f'v_mfma_f32_16x16x16_bf16 {vr(GM[0], 4)}, {vr(K0, 2)}, {vr(SEL, 2)}, 0')
    a(f'v_mfma_f32_16x16x16_bf16 {vr(GM[1], 4)}, {vr(K1, 2)}, {vr(SEL, 2)}, 0')
    cvt(V0, V0, V0 + 1)
    cvt(V0 + 1, V0 + 2, V0 + 3)
    cvt(V0 + 2, V1, V1 + 1)
    cvt(V0 + 3, V1 + 2, V1 + 3)
    tr.ds(f'ds_write_b128 v46, {vr(V0, 4)} offset:20480', 'xw')
    for r in range(4):
        cvt(K0 + r, GM[0] + r, GM[1] + r)
    tr.ds(f'ds_write_b128 v46, {vr(K0, 4)} offset:16384', 'xw')
    a(f's_mov_b32 s{C.sMW}, s{sFO}')
    a(f's_add_u32 s{sKB}, s{sKB}, {64 * 8192}')
    a(f's_add_u32 s{sFO}, s{sFO}, 256')
    a(f's_add_u32 s{C.sPOLL}, s{C.sPOLL}, {2 * MSLOT}')
    a(f's_add_u32 s{C.sPOLL8}, s{C.sPOLL8}, {2 * MSLOT}')
    a(f's_add_u32 s{C.sSTEP}, s{C.sSTEP}, 2')
    tr.drain_lg()
    a('s_barrier')
    for ks in range(8):
        tr.ds(f'ds_read_b128 {vr(KF + 4 * ks, 4)}, v{KMA} offset:{16384 + ks * 512}', ('km', ks))
    for u in range(2):
        tr.ds(f'ds_read_b64 {vr(VMF + 2 * u, 2)}, v{VMA} offset:{20480 + u * 512}', 'vm')
    C.kv_ready(a, a.newlabel('akv'), 0)
    for ks in range(8):
        tr.wait_lg(('km', ks))
        a(f'v_mfma_f32_32x32x16_bf16 {vr(SM_, 16)}, {vr(KF + 4 * ks, 4)}, {vr(QF + 4 * ks, 4)}, ' + (vr(SM_, 16) if ks else '0'))
    ld_kq(tr)
    a(f'v_max3_f32 v{MX}, v{MX}, v{SM_}, v{SM_ + 1}')
    a(f'v_max3_f32 v{MX}, v{MX}, v{SM_ + 2}, v{SM_ + 3}')
    a(f'v_mov_b32 v{MY}, v{MX}')
    a(f'v_permlane32_swap_b32 v{MX}, v{MY}')
    a(f'v_max_f32 v{MX}, v{MX}, v{MY}')
    a(f'v_mul_f32 v{MX}, s{C.sSCALE}, v{MX}')
    vals = [SS + r for r in range(16)] + [SM_ + r for r in range(4)]
    for s in vals:
        a(f'v_fma_f32 v{s}, v{s}, s{C.sSCALE}, -v{MX}')
    for s in vals:
        a(f'v_exp_f32 v{s}, v{s}')
    PB = TMP + 4
    for r in range(8):
        cvt(PB + r, SS + 2 * r, SS + 2 * r + 1)
    cvt(PB + 8, SM_, SM_ + 1)
    cvt(PB + 9, SM_ + 2, SM_ + 3)
    a(f'v_mov_b64 {vr(PB + 10, 2)}, {vr(PB + 8, 2)}')
    tr.wait_lg('vm')
    a(f'v_mfma_f32_32x32x16_bf16 {vr(OA, 16)}, {vr(VF, 4)}, {vr(PB, 4)}, 0')
    a(f'v_mfma_f32_32x32x16_bf16 {vr(OA, 16)}, {vr(VF + 4, 4)}, {vr(PB + 4, 4)}, {vr(OA, 16)}')
    a(f'v_mfma_f32_32x32x16_bf16 {vr(OA, 16)}, {vr(VMF, 4)}, {vr(PB + 8, 4)}, {vr(OA, 16)}')
    ld_v(tr)
    for r in range(0, 16, 4):
        pka(SS + r, SS + r, SS + r + 2)
    pka(SM_, SM_, SM_ + 2)
    pka(SS, SS, SS + 4)
    pka(SS + 8, SS + 8, SS + 12)
    pka(SS, SS, SS + 8)
    pka(SS, SS, SM_)
    a(f'v_add_f32 v{MX}, v{SS}, v{SS + 1}')
    a(f'v_mov_b32 v{MY}, v{MX}')
    a(f'v_permlane32_swap_b32 v{MX}, v{MY}')
    a(f'v_add_f32 v{MX}, v{MX}, v{MY}')
    a(f'v_rcp_f32 v{MX}, v{MX}')
    for r in range(0, 16, 2):
        a(f'v_pk_mul_f32 {vr(OA + r, 2)}, {vr(OA + r, 2)}, {vr(MX, 2)} op_sel_hi:[1,0]')
    for r in range(8):
        cvt(SM_ + r, OA + 2 * r, OA + 2 * r + 1)
    tr.vmem(f'buffer_store_dwordx4 {vr(SM_, 4)}, v{L16}, {WS}, s{sOO} offen sc1', 'o')
    tr.vmem(f'buffer_store_dwordx4 {vr(SM_ + 4, 4)}, v{L16}, {WS}, s{sOO} offen offset:1024 sc1', 'o')
    assert tr.vm == q0
    a(f's_add_u32 s{sOO}, s{sOO}, {512 * 1024}')
    a(f's_branch {top}')
    a.label(f'{top}_done')


def wo_phase(a, lb, fb, layer):
    WS = f's[{S_WS}:{S_WS + 3}]'
    sSET, sDT, sSEG = sBLK, sH, sR
    a(f's_mov_b32 s{sT}, s{sGI}')
    a(f's_mul_i32 s{sSET}, s{sT}, 3277')
    a(f's_lshr_b32 s{sSET}, s{sSET}, 16')
    a(f's_mul_i32 s{sU}, s{sSET}, 20')
    a(f's_sub_u32 s{sDT}, s{sT}, s{sU}')
    srd(a, S_WA, sPTR + 6, 5242880)
    VS, RA, RO = 6, 7, 8
    a(f'v_lshrrev_b32 v{T1}, 2, v{LN}')
    a(f'v_mul_u32_u24 v{T1}, 0x500, v{T1}')
    a(f'v_and_b32 v{T2}, 3, v{LN}')
    a(f'v_lshl_add_u32 v{VS}, v{T2}, 4, v{T1}')
    tr_lane_addr(a, RA, LN, T1, T2, 64, CM_PI, None, hirows=4)
    a(f's_lshl_b32 s{sV}, s{sWV}, 15')
    a(f'v_add_u32 v{RA}, s{sV}, v{RA}')
    a(f's_mul_i32 s{sWO}, s{sWV}, {1024 * 1280}')
    a(f's_lshl_b32 s{sU}, s{sDT}, 6')
    a(f's_add_u32 s{sWO}, s{sWO}, s{sU}')
    for half in range(2):
        for i in range(32):
            a(f's_add_u32 m0, s{sV}, {i * 1024}')
            a(f'buffer_load_dwordx4 v{VS}, s[{S_WA}:{S_WA + 3}], s{sWO} offen lds')
            a(f's_add_u32 s{sWO}, s{sWO}, {16 * 1280}')
        for i in range(32):
            if i % 8 == 0:
                a(f's_waitcnt vmcnt({24 - i})')
            for u in range(2):
                a(f'ds_read_b64_tr_b16 {ar(128 * half + 4 * i + 2 * u, 2)}, v{RA} offset:{i * 1024 + 512 * u}')
            if i % 4 == 3:
                a('s_waitcnt lgkmcnt(0)')
    a('s_barrier')
    a(f'v_and_b32 v{T1}, 3, v{LN}')
    a(f'v_bfe_u32 v{T2}, v{LN}, 3, 2')
    a(f'v_lshl_add_u32 v{T1}, v{T2}, 2, v{T1}')
    a(f'v_bfe_u32 v{T2}, v{LN}, 2, 1')
    a(f'v_lshl_add_u32 v{T1}, v{T2}, 4, v{T1}')
    a(f'v_mul_u32_u24 v{RO}, 0x500, v{T1}')
    a(f'v_lshrrev_b32 v{T1}, 5, v{LN}')
    a(f'v_lshl_add_u32 v{RO}, v{T1}, 5, v{RO}')
    a(f's_lshl_b32 s{sU}, s{sDT}, 6')
    a(f's_lshl_b32 s{sT}, s{sWV}, 3')
    a(f's_add_u32 s{sU}, s{sU}, s{sT}')
    a(f'v_add_u32 v{RO}, s{sU}, v{RO}')
    WB_, RB_ = 9, 10
    a(f'v_add_u32 v{WB_}, s{sLW}, v{L16}')
    a(f's_lshl_b32 s{sU}, s{sWV}, 12')
    a(f'v_add_u32 v{RB_}, s{sU}, v{L16}')
    RI = 11
    if layer == 0:
        srd(a, S_X, sXP, 2048 * 640 * 2)
    else:
        a(f'v_lshrrev_b32 v{T1}, 5, v{LN}')
        a(f'v_lshlrev_b32 v{RI}, 10, v{T1}')
        a(f'v_and_b32 v{T1}, 31, v{LN}')
        a(f'v_lshl_add_u32 v{RI}, v{T1}, 4, v{RI}')
        a(f's_lshl_b32 s{sU}, s{sDT}, 11')
        a(f's_lshr_b32 s{sT}, s{sWV}, 1')
        a(f's_lshl_b32 s{sT}, s{sT}, 9')
        a(f's_add_u32 s{sU}, s{sU}, s{sT}')
        a(f's_and_b32 s{sT}, s{sWV}, 1')
        a(f's_lshl_b32 s{sT}, s{sT}, 3')
        a(f's_add_u32 s{sU}, s{sU}, s{sT}')
        a(f'v_add_u32 v{RI}, s{sU}, v{RI}')
    a(f's_mov_b32 s{sSEG}, s{sSET}')
    wstamp(a, 2)
    a('s_mov_b32 s92, 0')
    top = a.newlabel('wotop')
    a.label(top)
    RES, ACC, OF = 12, 16, 64
    a(f's_mul_i32 s{sXO}, s{sSEG}, 40960')
    if layer == 0:
        a(f'buffer_load_dwordx2 {vr(RES, 2)}, v{RO}, s[{S_X}:{S_X + 3}], s{sXO} offen')
    else:
        a(f's_add_u32 s{sU}, s{sXO}, {lb - LSTRIDE + L_X2}')
        a(f'buffer_load_dwordx2 {vr(RES, 2)}, v{RI}, {WS}, s{sU} offen sc1')
    a(f's_lshl_b32 s{sT}, s{sSEG}, 7')
    a(f's_add_u32 s{sT}, s{sT}, {fb + FL_O}')
    wait_flag(a, sT, 128)
    wstamp(a, 5)
    a(f's_lshl_b32 s{sT}, s{sSEG}, 18')
    a(f's_lshl_b32 s{sU}, s{sWV}, 16')
    a(f's_add_u32 s{sT}, s{sT}, s{sU}')
    a(f's_add_u32 s{sT}, s{sT}, {lb + L_O}')
    tr = Track(a)
    NB = 40

    def ld(i):
        if i % 4 == 0 and i:
            a(f's_add_u32 s{sT}, s{sT}, 4096')
        tr.vmem(f'buffer_load_dwordx4 {vr(OF + 4 * (i % NB), 4)}, v{L16}, {WS}, s{sT} offen offset:{(i % 4) * 1024} sc1', i)
    for i in range(NB):
        ld(i)
    for i in range(64):
        tr.wait_vm(i)
        acc = ACC + 16 * (i & 1)
        a(f'v_mfma_f32_32x32x16_bf16 {vr(acc, 16)}, {ar(4 * i, 4)}, {vr(OF + 4 * (i % NB), 4)}, ' + (vr(acc, 16) if i > 1 else '0'))
        if i + NB < 64:
            ld(i + NB)
    for r in range(0, 16, 2):
        a(f'v_pk_add_f32 {vr(ACC + r, 2)}, {vr(ACC + r, 2)}, {vr(ACC + 16 + r, 2)}')
    for q in range(4):
        a(f'ds_write_b128 v{WB_}, {vr(ACC + 4 * q, 4)} offset:{q * 4096}')
    a('s_waitcnt lgkmcnt(0)')
    a('s_barrier')
    for w in range(4):
        a(f'ds_read_b128 {vr(ACC + 4 * w, 4)}, v{RB_} offset:{w * 1024}')
    a('s_waitcnt lgkmcnt(0)')
    a('s_barrier')
    b = ACC
    for h in (0, 2):
        a(f'v_pk_add_f32 {vr(b + h, 2)}, {vr(b + h, 2)}, {vr(b + 4 + h, 2)}')
        a(f'v_pk_add_f32 {vr(b + 8 + h, 2)}, {vr(b + 8 + h, 2)}, {vr(b + 12 + h, 2)}')
    for h in (0, 2):
        a(f'v_pk_add_f32 {vr(b + h, 2)}, {vr(b + h, 2)}, {vr(b + 8 + h, 2)}')
    a(f'v_cvt_pk_bf16_f32 v{b + 4}, v{b}, v{b + 1}')
    a(f'v_cvt_pk_bf16_f32 v{b + 5}, v{b + 2}, v{b + 3}')
    unpack(a, b, b + 4, 2)
    unpack(a, b + 8, RES, 2)
    for r in range(4):
        a(f'v_add_f32 v{b + r}, v{b + r}, v{b + 8 + r}')
    a(f'v_cvt_pk_bf16_f32 v{b + 4}, v{b}, v{b + 1}')
    a(f'v_cvt_pk_bf16_f32 v{b + 5}, v{b + 2}, v{b + 3}')
    a(f's_add_u32 s{sU}, s{sXO}, {lb + L_X1}')
    a(f'buffer_store_dwordx2 {vr(b + 4, 2)}, v{RO}, {WS}, s{sU} offen sc1')
    a(f's_lshl_b32 s{sT}, s{sSEG}, 6')
    a(f's_add_u32 s{sT}, s{sT}, {fb + FL_X1}')
    signal(a, sT)
    a(f's_add_u32 s{sSEG}, s{sSEG}, {NWO // 20}')
    a(f's_cmp_lt_u32 s{sSEG}, 64')
    a(f's_cbranch_scc1 {top}')
```

```python
import sys
from asmlib import *
from layout import *
from common import *
import chain as C
import bulk as B
import small as S
import mega as M


def mega_kernel(a, kname, force_slow, name):
    tm = C.OPT.get('timing')
    kernel_head(a, kname)
    a(f's_cmp_lt_u32 s2, {NWG}')
    a(f's_cbranch_scc1 {name}_go')
    a('s_endpgm')
    a.label(f'{name}_go')
    if C.OPT.get('dbgt'):
        a('s_memrealtime s[98:99]')
    a(f's_load_dwordx8 s[{C.sPTR}:{C.sPTR + 7}], s[0:1], {KA_WQ}')
    a(f's_load_dwordx4 s[{B.sXP}:{B.sXP + 3}], s[0:1], {KA_X}')
    a(f's_load_dwordx4 s[72:75], s[0:1], {KA_DBG}')
    a(f's_load_dwordx8 s[{M.sBP}:{M.sBP + 7}], s[0:1], {KA_W1}')
    a(f's_load_dwordx2 s[{M.sOUTP}:{M.sOUTP + 1}], s[0:1], {KA_OUT}')
    a('s_getpc_b64 s[96:97]')
    a.label(f'{name}_pc')
    a('s_waitcnt lgkmcnt(0)')
    a('s_mov_b32 s0, 0')
    srd(a, C.S_WS, 74, WS_SIZE)
    srd(a, 76, 72, 64)
    if C.OPT.get('dbgt'):
        a('s_mov_b64 s[100:101], s[72:73]')
    team_select(a, 76, 80, 81, 84, 82, 83, 92, 94, force_slow)
    if not C.OPT.get('nocp'):
        a('s_and_b32 s92, s81, 31')
        a('s_lshl_b32 s92, s92, 13')
        a('v_lshlrev_b32 v1, 4, v0')
        a('v_add_u32 v1, s92, v1')
        a(f's_mov_b32 s92, {name}_codeend-{name}_pc-16')
        a('v_add_u32 v2, 0x1000, v1')
        a('v_min_u32 v1, s92, v1')
        a('v_min_u32 v2, s92, v2')
        a('global_load_dwordx4 v[4:7], v1, s[96:97]')
        a('global_load_dwordx4 v[8:11], v2, s[96:97]')
        a('s_waitcnt vmcnt(0)')
    a('s_cmp_eq_u32 s82, 0')
    a(f's_cbranch_scc1 {name}_worker')
    a(f's_mov_b32 s{C.sH}, s83')
    if tm:
        a('s_memrealtime s[2:3]')
    C.chain_consts(a)
    C.chain_load_weights(a)
    C.chain_init_state(a)
    M.init_wait(a, 12, 13, C.sTMP, C.sTMP2, C.sSPIN)
    a(f's_mov_b32 s{C.sNSTEP}, 63')
    a(f's_mov_b32 s59, s82')
    if tm:
        a('s_memrealtime s[88:89]')
        a('s_waitcnt lgkmcnt(0)')
        a('s_sub_u32 s3, s88, s2')
        if C.OPT.get('wlt'):
            for i, r in enumerate((64, 66, 68, 90, 92, 94, 96, 88)):
                a(f's_sub_u32 s{r}, s{r}, s2')
                a(f'v_mov_b32 v{12 + i}, s{r}')
            a(f's_lshl_b32 s88, s{C.sH}, 5')
            a(f's_add_u32 s88, s88, {0xF30000}')
            a(f'buffer_store_dwordx4 v[12:15], off, s[4:7], s88')
            a(f'buffer_store_dwordx4 v[16:19], off, s[4:7], s88 offset:16')
    if C.OPT.get('dbgt'):
        a('s_memrealtime s[90:91]')
    a.label(f'{name}_layer')
    C.chain_layer_state(a)
    if C.OPT.get('dbgt'):
        a('s_mov_b32 s92, s94')
        a('s_mov_b32 s93, s96')
        a('s_memrealtime s[94:95]')
    if tm:
        a('s_memrealtime s[56:57]')
        for i in range(12):
            a(f's_mov_b32 s{90 + i}, 0')
    a('s_cmp_eq_u32 s59, 2')
    a(f's_cbranch_scc1 {name}_slow')
    C.chain_step(a, '', name + 'cf', tm)
    a(f's_branch {name}_fin')
    a.label(f'{name}_slow')
    C.chain_step(a, ' sc1', name + 'cs', tm)
    a.label(f'{name}_fin')
    if C.OPT.get('dbgt'):
        a('s_memrealtime s[96:97]')
        a('s_waitcnt lgkmcnt(0)')
    if tm:
        a('s_memrealtime s[64:65]')
        a('s_waitcnt lgkmcnt(0)')
        a('s_sub_u32 s64, s64, s2')
        a('s_sub_u32 s56, s56, s2')
        for i in range(12):
            a(f'v_mov_b32 v{12 + i}, s{90 + i}')
        a('s_and_b32 s66, s22, 0x8000')
        a('s_lshr_b32 s66, s66, 2')
        a(f's_lshl_b32 s88, s{C.sH}, 2')
        a(f's_add_u32 s88, s88, s{C.sWV}')
        a('s_lshl_b32 s88, s88, 6')
        a('s_add_u32 s88, s88, s66')
        a(f's_add_u32 s88, s88, {0xF00000}')
        for i in range(3):
            a(f'buffer_store_dwordx4 v[{12 + 4 * i}:{15 + 4 * i}], off, s[{C.S_WS}:{C.S_WS + 3}], s88 offset:{16 * i}')
        a('s_nop 1')
        a('v_mov_b32 v12, s56')
        a('v_mov_b32 v13, s64')
        a('v_mov_b32 v14, s3')
        a('v_mov_b32 v15, s2')
        a(f'buffer_store_dwordx4 v[12:15], off, s[{C.S_WS}:{C.S_WS + 3}], s88 offset:48')
    a(f's_cmp_eq_u32 s{C.sLB}, {LAYER0}')
    a(f's_mov_b32 s{C.sLB}, {LAYER0 + LSTRIDE}')
    a(f's_cbranch_scc0 {name}_tend')
    a(f's_add_u32 s{C.sFLB}, s{C.sFLB}, {FSTRIDE}')
    a(f's_branch {name}_layer')
    a.label(f'{name}_tend')
    if C.OPT.get('dbgt'):
        a(f's_lshl_b32 s88, s{C.sH}, 2')
        a(f's_or_b32 s88, s88, s{C.sWV}')
        a('s_cmp_eq_u32 s88, 0')
        a('s_cselect_b32 s88, 32, 0x1000')
        for i, r in enumerate((90, 92, 93, 94, 96)):
            a(f's_sub_u32 s{r}, s{r}, s98')
            a(f'v_mov_b32 v{12 + i}, s{r}')
        a('v_mov_b32 v17, s98')
        a('buffer_store_dwordx4 v[12:15], off, s[76:79], s88')
        a('buffer_store_dwordx2 v[16:17], off, s[76:79], s88 offset:16')
    a('s_endpgm')
    a.label(f'{name}_worker')
    a(f's_mov_b32 s{B.sWI}, s83')
    B.worker_setup(a)
    a(f's_lshl_b32 s{B.sT}, s{B.sNH}, 1')
    a(f's_cmp_lt_u32 s{B.sLI}, s{B.sT}')
    a(f's_cbranch_scc0 {name}_gw')
    a(f's_and_b32 s3, s{B.sLI}, 1')
    a(f's_lshr_b32 s{B.sLI}, s{B.sLI}, 1')
    a(f's_mul_i32 s{C.sH}, s{B.sLI}, 7')
    a(f's_add_u32 s{C.sH}, s{C.sH}, s{B.sJ}')
    B.att_phase(a)
    a('s_endpgm')
    a.label(f'{name}_gw')
    a(f's_sub_u32 s{B.sLI}, s{B.sLI}, s{B.sT}')
    a(f's_mul_i32 s{B.sGI}, s{B.sJ}, 22')
    a(f's_mul_i32 s{B.sT}, s{B.sJ}, 24')
    a(f's_sub_u32 s{B.sT}, s{B.sT}, 8')
    a(f's_cmp_lt_u32 s{B.sJ}, 4')
    a(f's_cselect_b32 s{B.sGI}, s{B.sGI}, s{B.sT}')
    a(f's_add_u32 s{B.sGI}, s{B.sGI}, s{B.sLI}')
    M.init_stores(a, 80)
    for layer in range(2):
        lb = LAYER0 + layer * LSTRIDE
        fb = WS_FLAGS + layer * FSTRIDE
        B.wstamp(a, 0)
        B.qkv_pre(a, f'{name}_nq{layer}')
        if layer == 0:
            M.init_wait(a, 40, 41, B.sT, B.sU, B.sSPIN)
        B.qkv_phase(a, lb, fb, True,
                    lambda: M.ln1f_phase(a, lb - LSTRIDE, lb, fb - FSTRIDE, fb, 0, layer == 0))
        a(f's_branch {name}_dq{layer}')
        a.label(f'{name}_nq{layer}')
        if layer == 0:
            M.init_wait(a, 40, 41, B.sT, B.sU, B.sSPIN)
        M.ln1f_phase(a, lb - LSTRIDE, lb, fb - FSTRIDE, fb, 1, layer == 0)
        a.label(f'{name}_dq{layer}')
        B.wstamp(a, 1)
        a(f's_cmp_lt_u32 s{B.sGI}, {NWO}')
        a(f's_cbranch_scc0 {name}_nwo{layer}')
        B.wo_phase(a, lb, fb, layer)
        a(f's_branch {name}_g2p{layer}')
        a.label(f'{name}_nwo{layer}')
        a(f's_cmp_lt_u32 s{B.sGI}, {NWO + NLN}')
        a(f's_cbranch_scc0 {name}_nln{layer}')
        M.ln2_role(a, lb, fb)
        a(f's_branch {name}_g2p{layer}')
        a.label(f'{name}_nln{layer}')
        a(f's_cmp_lt_u32 s{B.sGI}, {NWO + NLN + NG1}')
        a(f's_cbranch_scc0 {name}_g2p{layer}')
        if layer == 0:
            M.w2f_prep(a)
        M.g2_pre(a, layer == 0)
        M.g1p_role(a, lb, fb)
        B.wstamp(a, 3)
        a(f's_branch {name}_g2{layer}')
        a.label(f'{name}_g2p{layer}')
        B.wstamp(a, 3)
        M.g2_pre(a, layer == 0)
        a.label(f'{name}_g2{layer}')
        M.g2_phase(a, lb, fb, layer == 1)
        B.wstamp(a, 7)
        B.wstamp(a, 5)
        B.wdump(a, layer)
    if C.OPT.get('dbgt'):
        a('s_waitcnt vmcnt(0)')
        a('s_memrealtime s[96:97]')
        a('s_waitcnt lgkmcnt(0)')
        srd(a, 76, 100, 64)
        a(f's_cmp_eq_u32 s{B.sGI}, 0')
        a('s_cselect_b32 s88, 56, 0x1000')
        a('v_mov_b32 v12, s96')
        a('v_mov_b32 v13, s98')
        a('buffer_store_dwordx2 v[12:13], off, s[76:79], s88')
    a('s_endpgm')
    a.label(f'{name}_codeend')


def build(force_slow=False):
    a = Asm()
    launches = []
    descs = ''
    n = 'interleave_layers__memory_aug_recurrent_mem_tr__mixer_token_mlp__prompt_kernel'
    mega_kernel(a, n, force_slow, 'mk')
    launches.append((n, 256, 256, 163840)); descs += kernel_desc(n)
    a.fix_hazards()
    for e in a.verify_waits():
        print('WAITERR', e)
    hdr = ''.join(f'; @launch kernel={n} grid=({g},1,1) block=({b},1,1) lds={l}\n' for n, g, b, l in launches)
    hdr += '.amdgcn_target "amdgcn-amd-amdhsa--gfx950"\n.text\n'
    return hdr + a.text() + '.section .rodata,"a"\n' + descs, a


if __name__ == '__main__':
    C.OPT['stamps'] = []
    for o in sys.argv[2:]:
        if o.startswith('st='):
            C.OPT['stamps'] = o[3:].split(',')
            C.OPT['timing'] = True
        elif '=' in o:
            k, v = o.split('=')
            C.OPT[k] = ' ' + v.replace('+', ' ')
        else:
            C.OPT[o] = True
    s, a = build('slow' in sys.argv[2:])
    if C.OPT.get('timing'):
        s = s.replace('.amdgcn_target', '; STAMPS ' + ' '.join(map(str, C.OPT['used'])) + '\n.amdgcn_target', 1)
    open(sys.argv[1], 'w').write(s)
    print(len(a.ins), 'instrs', len(s), 'bytes')
```

```python
from asmlib import *
from layout import *
from common import *
from chain import Track, f32
import chain as C
from small import tr_lane_addr, CM_NAT, CM_PI, CM_SIG, unpack

S_WS = 4
S_WA, S_WB = 8, 12
sWI, sWV, sJ, sLI, sNH = 16, 17, 18, 19, 20
sR, sBLK, sH, sT, sU, sV = 21, 22, 23, 24, 25, 26
sXO, sWO, sLW = 27, 28, 29
sSPIN = 0
sE = 32
sSC = 34
sPTR = 56
sXP = 64
S_X = 68
S_WC = 36

sKS = 31
sROT = 30
sRI = 50
sGI = 35

LN, L16, T1, T2, T3 = 1, 2, 3, 4, 5


def wstamp(a, i):
    if C.OPT.get('timing'):
        a(f's_memrealtime s[{84 + 2 * i}:{85 + 2 * i}]')


def wdump(a, layer):
    if not C.OPT.get('timing'):
        return
    a('s_waitcnt lgkmcnt(0)')
    for i in range(8):
        a(f'v_mov_b32 v{20 + i}, s{84 + 2 * i}')
    a(f's_lshl_b32 s88, s83, 5')
    a(f's_add_u32 s88, s88, {0xF10000 + layer * 0x4000}')
    a(f'buffer_store_dwordx4 v[20:23], off, s[4:7], s88')
    a(f'buffer_store_dwordx4 v[24:27], off, s[4:7], s88 offset:16')


def worker_setup(a):
    a(f'v_and_b32 v{LN}, 63, v0')
    a(f'v_lshrrev_b32 v{T1}, 6, v0')
    a(f'v_lshlrev_b32 v{L16}, 4, v{LN}')
    a(f'v_readfirstlane_b32 s{sWV}, v{T1}')
    a(f's_lshr_b32 s{sJ}, s{sWI}, 5')
    a(f's_and_b32 s{sLI}, s{sWI}, 31')
    a(f's_cmp_lt_u32 s{sJ}, 4')
    a(f's_cselect_b32 s{sNH}, 5, 4')
    a(f's_lshl_b32 s{sLW}, s{sWV}, 10')


def unit_decode(a, done):
    a(f's_lshl_b32 s{sT}, s{sNH}, 1')
    a(f's_sub_u32 s{sT}, 32, s{sT}')
    a(f's_mul_i32 s{sT}, s{sR}, s{sT}')
    a(f's_add_u32 s{sT}, s{sT}, s{sLI}')
    a(f's_mul_i32 s{sBLK}, s{sT}, 13108')
    a(f's_lshr_b32 s{sBLK}, s{sBLK}, 16')
    a(f's_lshr_b32 s{sU}, s{sT}, 2')
    a(f's_cmp_eq_u32 s{sNH}, 4')
    a(f's_cselect_b32 s{sBLK}, s{sU}, s{sBLK}')
    a(f's_mul_i32 s{sU}, s{sBLK}, s{sNH}')
    a(f's_sub_u32 s{sU}, s{sT}, s{sU}')
    a(f's_mul_i32 s{sH}, s{sU}, 7')
    a(f's_add_u32 s{sH}, s{sH}, s{sJ}')
    a(f's_cmp_ge_u32 s{sBLK}, 16')
    a(f's_cbranch_scc1 {done}')


def w_swz(a):
    def f(row, t, dst):
        a(f'v_and_b32 v{t}, 3, v{row}')
        a(f'v_lshlrev_b32 v{t}, 6, v{t}')
        a(f'v_xor_b32 v{dst}, v{t}, v{dst}')
    return f


def proj_gemm(a, tag, nmat, lb, VSW, xtiles, wtiles, mf, FR, nring=4):
    tr = Track(a)
    SB = nmat * 8192
    XB = 8192
    WBASE = nring * 8192
    srds = [S_WA, S_WB, S_WC]

    def dma_ops(slot):
        g = []
        for ks in range(2):
            g.append([f's_add_u32 m0, s{sLW2}, {slot * XB + ks * 1024}',
                      f'buffer_load_dwordx4 v{L16}, s[{S_WS}:{S_WS + 3}], s{sXO} offen sc1 lds',
                      f's_add_u32 s{sXO}, s{sXO}, 1024'])
        for m in range(nmat):
            for k in range(2):
                g.append([f's_add_u32 m0, s{sLW}, {WBASE + slot * SB + m * 8192 + k * 4096}',
                          f'buffer_load_dwordx4 v{VSW[k]}, s[{srds[m]}:{srds[m] + 3}], s{sWO} offen lds'])
        g[-1] += [f's_add_u32 s{sWO}, s{sWO}, {32 * 8192}',
                  f's_add_u32 s{sKS}, s{sKS}, 1',
                  f's_cmp_eq_u32 s{sKS}, 20',
                  f's_cselect_b32 s{sU}, 40960, 0',
                  f's_sub_u32 s{sXO}, s{sXO}, s{sU}',
                  f's_lshl_b32 s{sU}, s{sU}, 7',
                  f's_sub_u32 s{sWO}, s{sWO}, s{sU}']
        return g

    per = 2 + 2 * nmat
    sLW2 = sSC
    a(f's_lshl_b32 s{sLW2}, s{sWV}, 11')

    def read_ops(slot, ks, b):
        r = []
        for i, xr in enumerate(xtiles):
            r.append(f'ds_read_b128 {vr(b + 4 * i, 4)}, v{xr} offset:{slot * XB + ks * 1024}')
        for i, (m, wr) in enumerate(wtiles):
            for u in range(2):
                off = WBASE + slot * SB + m * 8192 + (16 * ks + 4 * u) * 256
                r.append(f'ds_read_b64_tr_b16 {vr(b + 4 * len(xtiles) + 4 * i + 2 * u, 2)}, v{wr[off >> 16]} offset:{off & 0xffff}')
        return r

    def mix(mfs, rds, dms):
        n = len(mfs)
        for i, t in enumerate(mfs):
            a(t)
            for _ in range(2):
                if rds:
                    a(rds.pop(0))
            if dms and (i % 3 != 2):
                for x in dms.pop(0):
                    a(x)
        assert not rds and not dms

    for s in range(nring - 1):
        for g in dma_ops(s):
            for x in g:
                a(x)
    a(f's_waitcnt vmcnt({per * (nring - 2)})')
    a('s_barrier')
    for x in read_ops(0, 0, FR[0]):
        a(x)
    a(f's_mov_b32 s{sV}, 0')
    lp = a.newlabel(tag)
    a.label(lp)
    for s in range(nring):
        d = dma_ops((s + nring - 1) % nring)
        a('s_waitcnt lgkmcnt(0)')
        mix(mf(FR[0]), read_ops(s, 1, FR[1]), d[:per // 2])
        a(f's_waitcnt vmcnt({per * (nring - 3) + per // 2}) lgkmcnt(0)')
        a('s_barrier')
        mix(mf(FR[1]), read_ops((s + 1) % nring, 0, FR[0]), d[per // 2:])
    a(f's_add_u32 s{sV}, s{sV}, 1')
    a(f's_cmp_lt_u32 s{sV}, {20 // nring}')
    a(f's_cbranch_scc1 {lp}')
    a('s_waitcnt vmcnt(0) lgkmcnt(0)')
    a('s_barrier')


def w_src(a, VSW):
    a(f'v_lshrrev_b32 v{T1}, 4, v{LN}')
    a(f'v_lshlrev_b32 v{T2}, 2, v{T1}')
    a(f'v_and_b32 v{T3}, 15, v{LN}')
    a(f'v_xor_b32 v{T2}, v{T2}, v{T3}')
    a(f'v_lshlrev_b32 v{T2}, 4, v{T2}')
    a(f'v_lshl_add_u32 v{T2}, v{T1}, 13, v{T2}')
    a(f's_lshl_b32 s{sU}, s{sWV}, 15')
    a(f'v_add_u32 v{VSW[0]}, s{sU}, v{T2}')
    a(f'v_add_u32 v{VSW[1]}, {16 * 8192}, v{VSW[0]}')


def signal(a, off_sgpr):
    L = a.newlabel('sig')
    a('s_waitcnt vmcnt(0)')
    a('s_barrier')
    a('v_cmp_eq_u32 vcc, 0, v0')
    a(f's_and_saveexec_b64 s[{sE}:{sE + 1}], vcc')
    a(f's_cbranch_execz {L}')
    a(f'v_mov_b32 v{T1}, 0')
    a(f'v_mov_b32 v{T2}, 1')
    a(f'buffer_atomic_add v{T2}, v{T1}, s[{S_WS}:{S_WS + 3}], s{off_sgpr} offen')
    a.label(L)
    a(f's_mov_b64 exec, s[{sE}:{sE + 1}]')


def wait_flag(a, off_sgpr, val):
    L = a.newlabel('wf')
    a(f'v_mov_b32 v{T1}, 0')
    a.label(L)
    a(f'buffer_load_dword v{T2}, v{T1}, s[{S_WS}:{S_WS + 3}], s{off_sgpr} offen sc1')
    a('s_waitcnt vmcnt(0)')
    a(f'v_readfirstlane_b32 s{sU}, v{T2}')
    a(f's_add_u32 s{sSPIN}, s{sSPIN}, 1')
    a(f's_cmp_ge_u32 s{sU}, {val}')
    a(f's_cbranch_scc1 {L}_ok')
    a('s_sleep 8')
    a(f's_cmp_lt_u32 s{sSPIN}, {C.SPINMAX}')
    a(f's_cbranch_scc1 {L}')
    a.label(f'{L}_ok')


def unit_addr(a, lb):
    a(f's_lshl_b32 s{sXO}, s{sBLK}, 2')
    a(f's_add_u32 s{sXO}, s{sXO}, s{sWV}')
    a(f's_mul_i32 s{sXO}, s{sXO}, 40960')
    a(f's_add_u32 s{sXO}, s{sXO}, {lb + L_XN}')
    a(f's_lshl_b32 s{sWO}, s{sH}, 8')
    a(f's_mul_i32 s{sKS}, s{sH}, 9363')
    a(f's_lshr_b32 s{sKS}, s{sKS}, 16')
    a(f's_lshl_b32 s{sKS}, s{sKS}, 1')
    a(f's_add_u32 s{sKS}, s{sKS}, s{sBLK}')
    a(f's_mul_i32 s{sU}, s{sKS}, 13108')
    a(f's_lshr_b32 s{sU}, s{sU}, 16')
    a(f's_mul_i32 s{sU}, s{sU}, 5')
    a(f's_sub_u32 s{sKS}, s{sKS}, s{sU}')
    a(f's_lshl_b32 s{sKS}, s{sKS}, 2' if not C.OPT.get('norot') else f's_mov_b32 s{sKS}, 0')
    a(f's_lshl_b32 s{sU}, s{sKS}, 11')
    a(f's_add_u32 s{sXO}, s{sXO}, s{sU}')
    a(f's_lshl_b32 s{sU}, s{sKS}, 18')
    a(f's_add_u32 s{sWO}, s{sWO}, s{sU}')


def vperm_addr(a, d):
    a(f'v_lshrrev_b32 v{T1}, 5, v{LN}')
    a(f'v_lshlrev_b32 v{d}, 9, v{T1}')
    a(f'v_bfe_u32 v{T1}, v{LN}, 1, 4')
    a(f'v_lshl_add_u32 v{d}, v{T1}, 4, v{d}')
    a(f'v_and_b32 v{T1}, 1, v{LN}')
    a(f'v_lshl_add_u32 v{d}, v{T1}, 8, v{d}')


def qkv_ids(a):
    a(f's_lshr_b32 s{sH}, s{sLI}, 2')
    a(f's_mul_i32 s{sH}, s{sH}, 7')
    a(f's_add_u32 s{sH}, s{sH}, s{sJ}')
    a(f's_and_b32 s{sV}, s{sLI}, 3')
    a(f's_mul_i32 s{sROT}, s{sLI}, 13108')
    a(f's_lshr_b32 s{sROT}, s{sROT}, 16')
    a(f's_mul_i32 s{sROT}, s{sROT}, 5')
    a(f's_sub_u32 s{sROT}, s{sLI}, s{sROT}')
    a(f's_lshl_b32 s{sROT}, s{sROT}, 1' if not C.OPT.get('noqrot') else f's_mov_b32 s{sROT}, 0')


def qkv_pre(a, done):
    a(f's_lshl_b32 s{sT}, s{sNH}, 2')
    a(f's_cmp_ge_u32 s{sLI}, s{sT}')
    a(f's_cbranch_scc1 {done}')
    qkv_ids(a)
    sCT = sV
    srd(a, S_WA, sPTR + 2, 5242880)
    srd(a, S_WB, sPTR + 4, 5242880)
    srd(a, S_WC, sPTR, 5242880)
    VS = 6
    a(f'v_lshrrev_b32 v{T1}, 2, v{LN}')
    a(f'v_lshlrev_b32 v{T1}, 13, v{T1}')
    a(f'v_and_b32 v{T2}, 3, v{LN}')
    a(f'v_lshl_add_u32 v{VS}, v{T2}, 4, v{T1}')
    a(f's_lshl_b32 s{sWO}, s{sH}, 8')
    a(f's_lshl_b32 s{sU}, s{sCT}, 6')
    a(f's_add_u32 s{sWO}, s{sWO}, s{sU}')
    a(f's_lshl_b32 s{sU}, s{sWV}, 17')
    a(f's_add_u32 s{sWO}, s{sWO}, s{sU}')
    for i in range(10):
        a(f's_lshl_b32 s{sU}, s{sROT}, 19')
        a(f's_add_u32 s{sU}, s{sU}, s{sWO}')
        for m, sr_ in enumerate((S_WA, S_WB, S_WC)):
            a(f's_add_u32 m0, s{sLW}, {m * 40960 + i * 4096}')
            a(f'buffer_load_dwordx4 v{VS}, s[{sr_}:{sr_ + 3}], s{sU} offen lds')
        a(f's_add_u32 s{sROT}, s{sROT}, 1')
        a(f's_cmp_eq_u32 s{sROT}, 10')
        a(f's_cselect_b32 s{sROT}, 0, s{sROT}')


def qkv_phase(a, lb, fb, wait_xn, mid=None):
    WS = f's[{S_WS}:{S_WS + 3}]'
    qkv_ids(a)
    sCT = sV
    VP = 7
    RW = [[8, 9], [10, 11], [12, 13]]
    def vsetup():
        for m, cm in enumerate((CM_PI, CM_NAT, CM_SIG)):
            tr_lane_addr(a, RW[m][0], LN, T1, T2, 64, cm, None)
            a(f'v_add_u32 v{RW[m][0]}, {m * 40960}, v{RW[m][0]}')
        vperm_addr(a, VP)

    vsetup()
    a(f's_mul_i32 s{sXO}, s{sWV}, 40960')
    a(f's_add_u32 s{sXO}, s{sXO}, {lb + L_XN}')
    sOUT, sFL, sXF = sWO, sKS, sSC
    a(f's_lshl_b32 s{sOUT}, s{sWV}, 5')
    a(f's_add_u32 s{sOUT}, s{sOUT}, s{sH}')
    a(f's_lshl_b32 s{sOUT}, s{sOUT}, 13')
    a(f's_lshl_b32 s{sU}, s{sCT}, 11')
    a(f's_add_u32 s{sOUT}, s{sOUT}, s{sU}')
    a(f's_lshl_b32 s{sFL}, s{sH}, 6')
    a(f's_add_u32 s{sFL}, s{sFL}, {fb + FL_KV}')
    a(f's_mov_b32 s{sXF}, {fb + FL_XN}')
    XV, FRW, E = 96, [16, 28], 40

    sXC = 75

    def ldx(i):
        if i % 4 == 0:
            a(f's_lshl_b32 s{sXC}, s{sROT}, 12')
            a(f's_add_u32 s{sXC}, s{sXC}, s{sXO}')
            a(f's_add_u32 s{sROT}, s{sROT}, 1')
            a(f's_cmp_eq_u32 s{sROT}, 10')
            a(f's_cselect_b32 s{sROT}, 0, s{sROT}')
        a(f'buffer_load_dwordx4 {vr(XV + 4 * i, 4)}, v{L16}, {WS}, s{sXC} offen offset:{(i % 4) * 1024}' + ('' if 'x' in C.OPT.get('aq', '') else ' sc1'))
        if i == 39:
            a(f's_add_u32 s{sXO}, s{sXO}, {4 * 40960}')

    def rdw(i):
        bb = FRW[i & 1]
        for m in range(3):
            for u in range(2):
                a(f'ds_read_b64_tr_b16 {vr(bb + 4 * m + 2 * u, 2)}, v{RW[m][0]} offset:{i * 1024 + 256 * u}')

    SIG = int(C.OPT.get('sig', '38'))
    sXR = 74

    def xn_ready(plus):
        if not wait_xn:
            return
        L = a.newlabel('xr')
        a(f's_add_u32 s{sT}, s{sBLK}, {plus}')
        a(f's_min_u32 s{sT}, s{sT}, 15')
        a(f's_cmp_lt_u32 s{sT}, s{sXR}')
        a(f's_cbranch_scc1 {L}_ok')
        a(f'v_lshlrev_b32 v{T3}, 2, v{LN}')
        a.label(f'{L}_sp')
        a(f'buffer_load_dword v{T1}, v{T3}, {WS}, s{sXF} offen sc1')
        a('s_waitcnt vmcnt(0)')
        a(f'v_cmp_le_u32 vcc, 16, v{T1}')
        a(f's_add_u32 s{sSPIN}, s{sSPIN}, 1')
        a(f's_and_b32 s{sXR}, vcc_lo, 0xffff')
        a(f's_ff0_i32_b32 s{sXR}, s{sXR}')
        if 'x' in C.OPT.get('aq', ''):
            a('buffer_inv sc1')
        a(f's_cmp_lt_u32 s{sT}, s{sXR}')
        a(f's_cbranch_scc1 {L}_ok')
        a('s_sleep 2')
        a(f's_cmp_lt_u32 s{sSPIN}, {C.SPINMAX}')
        a(f's_cbranch_scc1 {L}_sp')
        a.label(f'{L}_ok')

    def body(first):
        if not first:
            xn_ready(1)
            a(f's_cmp_eq_u32 s{sBLK}, 15')
            a(f's_cselect_b32 s{sXO}, {C.OOB - 0x100000}, s{sXO}')
        rdw(0)
        for i in range(40):
            if i + 1 < 40:
                rdw(i + 1)
            n = 39 - i if first else 39 - i + 6 + i
            a(f's_waitcnt vmcnt({n}) lgkmcnt({6 if i + 1 < 40 else 0})')
            bb = FRW[i & 1]
            xf = vr(XV + 4 * i, 4)
            for m in range(3):
                acc = ar(16 * m, 16)
                wf = vr(bb + 4 * m, 4)
                c = acc if i else '0'
                a(f'v_mfma_f32_32x32x16_bf16 {acc}, {xf if m == 1 else wf}, {wf if m == 1 else xf}, {c}')
            if first:
                continue
            ldx(i)
            if i == SIG:
                lab = a.newlabel('wqs')
                a(f's_cmp_eq_u32 s{sBLK}, 2')
                a(f's_cbranch_scc1 {lab}')
                sig(SIG + 1)
                a.label(lab)
        for m in range(3):
            e = E + 0
            for r in range(16):
                a(f'v_accvgpr_read_b32 v{e + r}, a{16 * m + r}')
            pk = E + 16 + 8 * m
            for r in range(8):
                a(f'v_cvt_pk_bf16_f32 v{pk + r}, v{e + 2 * r}, v{e + 2 * r + 1}')
            a(f's_add_u32 s{sU}, s{sOUT}, {lb + (L_KB, L_VB, L_Q)[m]}')
            ad = VP if m == 1 else L16
            if m == 2 and C.OPT.get('qplain'):
                lab = a.newlabel('qp')
                a('s_cmp_eq_u32 s1, 0')
                a(f's_cbranch_scc1 {lab}')
                a(f'buffer_store_dwordx4 {vr(pk, 4)}, v{ad}, {WS}, s{sU} offen')
                a(f'buffer_store_dwordx4 {vr(pk + 4, 4)}, v{ad}, {WS}, s{sU} offen offset:1024')
                a(f's_branch {lab}_e')
                a.label(lab)
            a(f'buffer_store_dwordx4 {vr(pk, 4)}, v{ad}, {WS}, s{sU} offen sc1')
            a(f'buffer_store_dwordx4 {vr(pk + 4, 4)}, v{ad}, {WS}, s{sU} offen offset:1024 sc1')
            if m == 2 and C.OPT.get('qplain'):
                a.label(f'{lab}_e')
        a(f's_add_u32 s{sOUT}, s{sOUT}, {4 * 32 * 8192}')

    def sig(n=0):
        a(f's_waitcnt vmcnt({n})')
        a('s_barrier')
        a(f's_cmp_eq_u32 s{sWV}, 0')
        a(f's_cselect_b32 s{sU}, s{sFL}, {C.OOB}')
        a('s_mov_b64 exec, 1')
        a(f'v_mov_b32 v{T2}, 1')
        a(f'buffer_atomic_add v{T2}, off, {WS}, s{sU}')
        a('s_mov_b64 exec, -1')
        a(f's_add_u32 s{sFL}, s{sFL}, 4')

    a(f's_mov_b32 s{sXR}, 0')
    a(f's_mov_b32 s{sBLK}, 0')
    f0 = a.newlabel('wqf')
    a.label(f0)
    qs = lambda i: a(f's_memrealtime s[{84 + 2 * i}:{85 + 2 * i}]') if C.OPT.get('qst') else None
    qs(0)
    xn_ready(0)
    qs(1)
    for i in range(40):
        ldx(i)
    a('s_waitcnt vmcnt(40)')
    a('s_barrier')
    qs(2)
    body(True)
    qs(3)
    sig()
    qs(4)
    if C.OPT.get('qst'):
        a('s_waitcnt lgkmcnt(0)')
        for i in range(5):
            a(f'v_mov_b32 v{40 + i}, s{84 + 2 * i}')
        a(f's_lshl_b32 s88, s{sGI}, 6')
        a(f's_lshl_b32 s89, s{sBLK}, 5')
        a('s_add_u32 s88, s88, s89')
        a(f's_add_u32 s88, s88, {0xF50000 + (0x4000 if lb != LAYER0 else 0)}')
        a('buffer_store_dwordx4 v[40:43], off, s[4:7], s88')
        a('buffer_store_dword v44, off, s[4:7], s88 offset:16')
    a(f's_add_u32 s{sBLK}, s{sBLK}, 1')
    a(f's_cmp_lt_u32 s{sBLK}, 2')
    a(f's_cbranch_scc1 {f0}')
    if mid:
        for r, sv in ((sXO, 81), (sWO, 82), (sKS, 72), (sSC, 73)):
            a(f's_mov_b32 s{sv}, s{r}')
        mid()
        for r, sv in ((sXO, 81), (sWO, 82), (sKS, 72), (sSC, 73)):
            a(f's_mov_b32 s{r}, s{sv}')
        vsetup()
    a(f's_mov_b32 s{sBLK}, 2')
    xn_ready(0)
    for i in range(40):
        ldx(i)
    a(f's_mov_b32 s{sU}, {C.OOB}')
    for _ in range(6):
        a(f'buffer_store_dword v{T1}, off, {WS}, s{sU}')
    top = a.newlabel('wq')
    a.label(top)
    body(False)
    a(f's_add_u32 s{sBLK}, s{sBLK}, 1')
    a(f's_cmp_lt_u32 s{sBLK}, 16')
    a(f's_cbranch_scc1 {top}')
    sig()


def att_loc():
    loc = {}
    i = 0
    for n in range(10):
        for m, t in (('k', 0), ('v', 0), ('k', 1), ('v', 1)):
            loc[(m, t, n)] = ('a', 8 * i) if i < 32 else ('v', 192 + 8 * (i - 32))
            i += 1
    return loc


def att_phase(a):
    WS = f's[{C.S_WS}:{C.S_WS + 3}]'
    loc = att_loc()
    C.chain_consts(a)
    C.chain_load_weights(a, loc, (1, 2))
    L16, VW, GM = C.L16, C.VW, C.GM
    X, LNn = 40, 41
    KA, KMA, VMA, TOK, VA = 3, 4, 5, 6, 7
    a(f'v_lshrrev_b32 v{LNn}, 4, v{L16}')
    a(f'v_lshrrev_b32 v{X}, 5, v{LNn}')
    a(f'v_and_b32 v42, 31, v{LNn}')
    a(f'v_lshlrev_b32 v{KA}, 10, v{X}')
    a(f'v_lshl_add_u32 v{KA}, v42, 4, v{KA}')
    a(f'v_and_b32 v43, 7, v{LNn}')
    a(f'v_lshlrev_b32 v{KMA}, 8, v{X}')
    a(f'v_lshl_add_u32 v{KMA}, v43, 4, v{KMA}')
    a(f'v_lshrrev_b32 v43, 1, v42')
    a(f'v_lshlrev_b32 v{VMA}, 8, v{X}')
    a(f'v_lshl_add_u32 v{VMA}, v43, 4, v{VMA}')
    a(f'v_and_b32 v44, 1, v{LNn}')
    a(f'v_lshl_add_u32 v{VMA}, v44, 3, v{VMA}')
    a(f's_lshl_b32 s{C.sTMP}, s{C.sWV}, 10')
    a(f'v_add_u32 v{VMA}, s{C.sTMP}, v{VMA}')
    a(f'v_add_u32 v46, s{C.sTMP}, v{L16}')
    a(f'v_lshlrev_b32 v{VA}, 9, v{X}')
    a(f'v_lshl_add_u32 v{VA}, v43, 4, v{VA}')
    a(f'v_lshl_add_u32 v{VA}, v44, 8, v{VA}')
    a(f's_lshl_b32 s{C.sTMP}, s{C.sWV}, 11')
    a(f'v_add_u32 v{VA}, s{C.sTMP}, v{VA}')
    a(f'v_and_b32 v{TOK}, 3, v{LNn}')
    a(f'v_bfe_u32 v43, v{LNn}, 3, 2')
    a(f'v_lshl_add_u32 v{TOK}, v43, 2, v{TOK}')
    a(f'v_bfe_u32 v43, v{LNn}, 2, 1')
    a(f'v_lshl_add_u32 v{TOK}, v43, 4, v{TOK}')
    a(f'v_lshlrev_b32 v43, 4, v{X}')
    a(f'v_sub_u32 v{TOK}, v{TOK}, v43')
    SEL = 8
    SEL = 44
    a(f'v_and_b32 v43, 0x1f0, v{L16}')
    a(f'ds_read_b64 {vr(SEL, 2)}, v43 offset:{C.LSEL}')
    import mega
    mega.init_wait(a, 40, 41, C.sTMP, C.sTMP2, C.sSPIN)
    for layer in range(2):
        att_layer(a, LAYER0 + layer * LSTRIDE, WS_FLAGS + layer * FSTRIDE, loc)


def att_layer(a, lb, fb, loc):
    WS = f's[{C.S_WS}:{C.S_WS + 3}]'
    L16, VW, GM = C.L16, C.VW, C.GM
    KA, KMA, VMA, TOK, VA = 3, 4, 5, 6, 7
    SEL = 44
    sKB, sOO, sFO, sA, sB = C.sKB, C.sVB, C.sKMQ, C.sPST, C.sPST1
    a(f's_lshl_b32 s{sKB}, s{C.sH}, 13')
    a(f's_lshl_b32 s{sOO}, s{C.sH}, 13')
    a(f's_lshl_b32 s{C.sTMP}, s{C.sWV}, 11')
    a(f's_add_u32 s{sOO}, s{sOO}, s{C.sTMP}')
    a(f's_add_u32 s{sOO}, s{sOO}, {lb + L_O}')
    a(f's_mov_b32 s{sFO}, {fb + FL_O}')
    a(f's_lshl_b32 s{C.sFLB}, s{C.sH}, 6')
    a(f's_add_u32 s{C.sFLB}, s{C.sFLB}, {fb + FL_KV}')
    a(f's_add_u32 s{C.sPOLL}, s{C.sTMP}, {lb + L_MC}')
    a(f's_add_u32 s{C.sPOLL8}, s{C.sB8}, {lb + L_MC + 8192 - C.LB8}')
    a(f's_mov_b32 s{C.sSTEP}, s3')
    a(f's_mul_i32 s{C.sTMP}, s3, {32 * 8192}')
    a(f's_add_u32 s{sKB}, s{sKB}, s{C.sTMP}')
    a(f's_add_u32 s{sOO}, s{sOO}, s{C.sTMP}')
    a(f's_lshl_b32 s{C.sTMP}, s3, 7')
    a(f's_add_u32 s{sFO}, s{sFO}, s{C.sTMP}')
    a(f's_mul_i32 s{C.sTMP}, s3, {MSLOT}')
    a(f's_add_u32 s{C.sPOLL}, s{C.sPOLL}, s{C.sTMP}')
    a(f's_add_u32 s{C.sPOLL8}, s{C.sPOLL8}, s{C.sTMP}')
    a(f's_mov_b32 s{C.sRDY}, 0')
    K0, V0, K1, V1 = 24, 28, 32, 36
    QF, KF, VF, SS, SM_, OA, TMP, VMF = 48, 80, 112, 120, 136, 152, 168, 184
    T0, T1, T2 = C.T0, C.T1, C.T2
    MX, MY, NI = TMP, TMP + 1, TMP + 2
    cvt = lambda d, x, y: a(f'v_cvt_pk_bf16_f32 v{d}, v{x}, v{y}')
    pka = lambda d, x, y: a(f'v_pk_add_f32 {vr(d, 2)}, {vr(x, 2)}, {vr(y, 2)}')

    def ld_kq(tr):
        for half in range(2):
            a(f's_add_u32 s{sA}, s{sKB}, {lb + L_KB + half * 4096}')
            a(f's_add_u32 s{sB}, s{sKB}, {lb + L_Q + half * 4096}')
            for k in range(4):
                ks = 4 * half + k
                tr.vmem(f'buffer_load_dwordx4 {vr(KF + 4 * ks, 4)}, v{KA}, {WS}, s{sA} offen offset:{(k >> 1) * 2048 + (k & 1) * 512} sc1', ('k', ks))
                tr.vmem(f'buffer_load_dwordx4 {vr(QF + 4 * ks, 4)}, v{L16}, {WS}, s{sB} offen offset:{k * 1024} sc1', ('k', ks))

    def ld_v(tr):
        a(f's_add_u32 s{sA}, s{sKB}, {lb + L_VB}')
        for m in range(2):
            tr.vmem(f'buffer_load_dwordx4 {vr(VF + 4 * m, 4)}, v{VA}, {WS}, s{sA} offen offset:{m * 1024} sc1', 'v')

    tr = Track(a)
    wstamp(a, 1)
    C.kv_ready(a, a.newlabel('akv'), 0)
    wstamp(a, 2)
    a('s_mov_b32 s92, 0')
    ld_kq(tr)
    ld_v(tr)
    a(f's_mov_b32 s{C.sMW}, {C.OOB}')
    for _ in range(2):
        tr.vmem(f'buffer_store_dword v{T0}, off, {WS}, s{C.sMW}', 'o')
    q0 = list(tr.vm)
    top = a.newlabel('att')
    a.label(top)
    st = {}
    C.zero(a, K0, 16)
    C.m_addr(a, 2, st)
    for ks in range(8):
        tr.wait_vm(('k', ks))
        a(f'v_mfma_f32_32x32x16_bf16 {vr(SS, 16)}, {vr(KF + 4 * ks, 4)}, {vr(QF + 4 * ks, 4)}, ' + (vr(SS, 16) if ks else '0'))
    a(f'v_mov_b32 v{NI}, 0xff800000')
    for r in range(0, 16, 2):
        a(f'v_cmp_gt_i32 vcc, {r}, v{TOK}')
        a(f'v_cmp_gt_i32 s[{C.sT64}:{C.sT64 + 1}], {r + 1}, v{TOK}')
        a(f'v_cndmask_b32 v{SS + r}, v{SS + r}, v{NI}, vcc')
        a(f'v_cndmask_b32 v{SS + r + 1}, v{SS + r + 1}, v{NI}, s[{C.sT64}:{C.sT64 + 1}]')
    a(f'v_max3_f32 v{MX}, v{SS}, v{SS + 1}, v{SS + 2}')
    for r in range(3, 15, 2):
        a(f'v_max3_f32 v{MX}, v{MX}, v{SS + r}, v{SS + r + 1}')
    a(f'v_max_f32 v{MX}, v{MX}, v{SS + 15}')
    a('s_waitcnt vmcnt(0)')
    a('s_mov_b64 exec, 1')
    a(f'v_mov_b32 v{T0}, 1')
    a(f'buffer_atomic_add v{T0}, off, {WS}, s{C.sMW}')
    a('s_mov_b64 exec, -1')
    a(f's_cmp_ge_u32 s{C.sSTEP}, 64')
    a(f's_cbranch_scc1 {top}_done')
    pl, go = a.newlabel('apoll'), a.newlabel('ago')
    a.label(pl)
    a(f'buffer_load_dwordx4 {vr(GM[0], 4)}, v{L16}, {WS}, s{C.sPOLL} offen sc1')
    a(f'buffer_load_dwordx4 {vr(GM[1], 4)}, v{L16}, {WS}, s{C.sPOLL} offen offset:1024 sc1')
    a(f'buffer_load_dwordx4 {vr(GM[2], 4)}, v{L16}, {WS}, s{C.sPOLL8} offen sc1')
    a(f's_add_u32 s{C.sSPIN}, s{C.sSPIN}, 1')
    g = GM[0]
    a('s_waitcnt vmcnt(0)')
    a(f'v_max3_u32 v{T0}, v{g}, v{g + 1}, v{g + 2}')
    for r in range(3, 11, 2):
        a(f'v_max3_u32 v{T0}, v{T0}, v{g + r}, v{g + r + 1}')
    a(f'v_max_u32 v{T0}, v{T0}, v{g + 11}')
    a(f'v_cmp_eq_u32 vcc, -1, v{T0}')
    a(f's_cbranch_vccz {go}')
    a('s_sleep 2')
    a(f's_cmp_lt_u32 s{C.sSPIN}, {C.SPINMAX}')
    a(f's_cbranch_scc1 {pl}')
    a.label(go)
    wstamp(a, 5)
    tr.vm = []
    tr.ds(f'ds_write_b128 v{VW}, {vr(GM[0], 4)}', 'mw')
    tr.ds(f'ds_write_b128 v{VW}, {vr(GM[1], 4)} offset:1024', 'mw')
    tr.ds(f'ds_write_b128 v{T2}, {vr(GM[2], 4)}', 'mw')
    order = [('k', 0, K0), ('k', 1, K1), ('v', 0, V0), ('v', 1, V1)]
    for n in range(10):
        buf = GM[n % 3]
        if n >= 3:
            tr.wait_lg(('A', n))
        for p, (m, t, acc) in enumerate(order):
            C.smf(a, acc, buf, (m, t, n), loc)
            if p == 1 and n == 1:
                tr.wait_lg('mw')
                a('s_barrier')
                C.m_read(tr, 3, GM[0], st)
            if p == 2 and n + 3 <= 9:
                C.m_addr(a, n + 3, st)
        if 1 <= n <= 6:
            C.m_read(tr, n + 3, buf, st)
    cvt(K0, K0, K0 + 1)
    cvt(K0 + 1, K0 + 2, K0 + 3)
    cvt(K1, K1, K1 + 1)
    cvt(K1 + 1, K1 + 2, K1 + 3)
    a(f'v_mfma_f32_16x16x16_bf16 {vr(GM[0], 4)}, {vr(K0, 2)}, {vr(SEL, 2)}, 0')
    a(f'v_mfma_f32_16x16x16_bf16 {vr(GM[1], 4)}, {vr(K1, 2)}, {vr(SEL, 2)}, 0')
    cvt(V0, V0, V0 + 1)
    cvt(V0 + 1, V0 + 2, V0 + 3)
    cvt(V0 + 2, V1, V1 + 1)
    cvt(V0 + 3, V1 + 2, V1 + 3)
    tr.ds(f'ds_write_b128 v46, {vr(V0, 4)} offset:20480', 'xw')
    for r in range(4):
        cvt(K0 + r, GM[0] + r, GM[1] + r)
    tr.ds(f'ds_write_b128 v46, {vr(K0, 4)} offset:16384', 'xw')
    a(f's_mov_b32 s{C.sMW}, s{sFO}')
    a(f's_add_u32 s{sKB}, s{sKB}, {64 * 8192}')
    a(f's_add_u32 s{sFO}, s{sFO}, 256')
    a(f's_add_u32 s{C.sPOLL}, s{C.sPOLL}, {2 * MSLOT}')
    a(f's_add_u32 s{C.sPOLL8}, s{C.sPOLL8}, {2 * MSLOT}')
    a(f's_add_u32 s{C.sSTEP}, s{C.sSTEP}, 2')
    tr.drain_lg()
    a('s_barrier')
    for ks in range(8):
        tr.ds(f'ds_read_b128 {vr(KF + 4 * ks, 4)}, v{KMA} offset:{16384 + ks * 512}', ('km', ks))
    for u in range(2):
        tr.ds(f'ds_read_b64 {vr(VMF + 2 * u, 2)}, v{VMA} offset:{20480 + u * 512}', 'vm')
    C.kv_ready(a, a.newlabel('akv'), 0)
    for ks in range(8):
        tr.wait_lg(('km', ks))
        a(f'v_mfma_f32_32x32x16_bf16 {vr(SM_, 16)}, {vr(KF + 4 * ks, 4)}, {vr(QF + 4 * ks, 4)}, ' + (vr(SM_, 16) if ks else '0'))
    ld_kq(tr)
    a(f'v_max3_f32 v{MX}, v{MX}, v{SM_}, v{SM_ + 1}')
    a(f'v_max3_f32 v{MX}, v{MX}, v{SM_ + 2}, v{SM_ + 3}')
    a(f'v_mov_b32 v{MY}, v{MX}')
    a(f'v_permlane32_swap_b32 v{MX}, v{MY}')
    a(f'v_max_f32 v{MX}, v{MX}, v{MY}')
    a(f'v_mul_f32 v{MX}, s{C.sSCALE}, v{MX}')
    vals = [SS + r for r in range(16)] + [SM_ + r for r in range(4)]
    for s in vals:
        a(f'v_fma_f32 v{s}, v{s}, s{C.sSCALE}, -v{MX}')
    for s in vals:
        a(f'v_exp_f32 v{s}, v{s}')
    PB = TMP + 4
    for r in range(8):
        cvt(PB + r, SS + 2 * r, SS + 2 * r + 1)
    cvt(PB + 8, SM_, SM_ + 1)
    cvt(PB + 9, SM_ + 2, SM_ + 3)
    a(f'v_mov_b64 {vr(PB + 10, 2)}, {vr(PB + 8, 2)}')
    tr.wait_lg('vm')
    a(f'v_mfma_f32_32x32x16_bf16 {vr(OA, 16)}, {vr(VF, 4)}, {vr(PB, 4)}, 0')
    a(f'v_mfma_f32_32x32x16_bf16 {vr(OA, 16)}, {vr(VF + 4, 4)}, {vr(PB + 4, 4)}, {vr(OA, 16)}')
    a(f'v_mfma_f32_32x32x16_bf16 {vr(OA, 16)}, {vr(VMF, 4)}, {vr(PB + 8, 4)}, {vr(OA, 16)}')
    ld_v(tr)
    for r in range(0, 16, 4):
        pka(SS + r, SS + r, SS + r + 2)
    pka(SM_, SM_, SM_ + 2)
    pka(SS, SS, SS + 4)
    pka(SS + 8, SS + 8, SS + 12)
    pka(SS, SS, SS + 8)
    pka(SS, SS, SM_)
    a(f'v_add_f32 v{MX}, v{SS}, v{SS + 1}')
    a(f'v_mov_b32 v{MY}, v{MX}')
    a(f'v_permlane32_swap_b32 v{MX}, v{MY}')
    a(f'v_add_f32 v{MX}, v{MX}, v{MY}')
    a(f'v_rcp_f32 v{MX}, v{MX}')
    for r in range(0, 16, 2):
        a(f'v_pk_mul_f32 {vr(OA + r, 2)}, {vr(OA + r, 2)}, {vr(MX, 2)} op_sel_hi:[1,0]')
    for r in range(8):
        cvt(SM_ + r, OA + 2 * r, OA + 2 * r + 1)
    tr.vmem(f'buffer_store_dwordx4 {vr(SM_, 4)}, v{L16}, {WS}, s{sOO} offen sc1', 'o')
    tr.vmem(f'buffer_store_dwordx4 {vr(SM_ + 4, 4)}, v{L16}, {WS}, s{sOO} offen offset:1024 sc1', 'o')
    assert tr.vm == q0
    a(f's_add_u32 s{sOO}, s{sOO}, {512 * 1024}')
    a(f's_branch {top}')
    a.label(f'{top}_done')


def wo_phase(a, lb, fb, layer):
    WS = f's[{S_WS}:{S_WS + 3}]'
    sSET, sDT, sSEG = sBLK, sH, sR
    a(f's_mov_b32 s{sT}, s{sRI}')
    a(f's_mul_i32 s{sSET}, s{sT}, 3277')
    a(f's_lshr_b32 s{sSET}, s{sSET}, 16')
    a(f's_mul_i32 s{sU}, s{sSET}, 20')
    a(f's_sub_u32 s{sDT}, s{sT}, s{sU}')
    srd(a, S_WA, sPTR + 6, 5242880)
    VS, RA, RO = 6, 7, 8
    a(f'v_lshrrev_b32 v{T1}, 2, v{LN}')
    a(f'v_mul_u32_u24 v{T1}, 0x500, v{T1}')
    a(f'v_and_b32 v{T2}, 3, v{LN}')
    a(f'v_lshl_add_u32 v{VS}, v{T2}, 4, v{T1}')
    tr_lane_addr(a, RA, LN, T1, T2, 64, CM_PI, None, hirows=4)
    a(f's_lshl_b32 s{sV}, s{sWV}, 15')
    a(f'v_add_u32 v{RA}, s{sV}, v{RA}')
    a(f's_mul_i32 s{sWO}, s{sWV}, {1024 * 1280}')
    a(f's_lshl_b32 s{sU}, s{sDT}, 6')
    a(f's_add_u32 s{sWO}, s{sWO}, s{sU}')
    for half in range(2):
        for i in range(32):
            a(f's_add_u32 m0, s{sV}, {i * 1024}')
            a(f'buffer_load_dwordx4 v{VS}, s[{S_WA}:{S_WA + 3}], s{sWO} offen lds')
            a(f's_add_u32 s{sWO}, s{sWO}, {16 * 1280}')
        for i in range(32):
            if i % 8 == 0:
                a(f's_waitcnt vmcnt({24 - i})')
            for u in range(2):
                a(f'ds_read_b64_tr_b16 {ar(128 * half + 4 * i + 2 * u, 2)}, v{RA} offset:{i * 1024 + 512 * u}')
            if i % 4 == 3:
                a('s_waitcnt lgkmcnt(0)')
    a('s_barrier')
    a(f'v_and_b32 v{T1}, 3, v{LN}')
    a(f'v_bfe_u32 v{T2}, v{LN}, 3, 2')
    a(f'v_lshl_add_u32 v{T1}, v{T2}, 2, v{T1}')
    a(f'v_bfe_u32 v{T2}, v{LN}, 2, 1')
    a(f'v_lshl_add_u32 v{T1}, v{T2}, 4, v{T1}')
    a(f'v_mul_u32_u24 v{RO}, 0x500, v{T1}')
    a(f'v_lshrrev_b32 v{T1}, 5, v{LN}')
    a(f'v_lshl_add_u32 v{RO}, v{T1}, 5, v{RO}')
    a(f's_lshl_b32 s{sU}, s{sDT}, 6')
    a(f's_lshl_b32 s{sT}, s{sWV}, 3')
    a(f's_add_u32 s{sU}, s{sU}, s{sT}')
    a(f'v_add_u32 v{RO}, s{sU}, v{RO}')
    WB_, RB_ = 9, 10
    a(f'v_add_u32 v{WB_}, s{sLW}, v{L16}')
    a(f's_lshl_b32 s{sU}, s{sWV}, 12')
    a(f'v_add_u32 v{RB_}, s{sU}, v{L16}')
    RI = 11
    if layer == 0:
        srd(a, S_X, sXP, 2048 * 640 * 2)
    else:
        a(f'v_lshrrev_b32 v{T1}, 5, v{LN}')
        a(f'v_lshlrev_b32 v{RI}, 10, v{T1}')
        a(f'v_and_b32 v{T1}, 31, v{LN}')
        a(f'v_lshl_add_u32 v{RI}, v{T1}, 4, v{RI}')
        a(f's_lshl_b32 s{sU}, s{sDT}, 11')
        a(f's_lshr_b32 s{sT}, s{sWV}, 1')
        a(f's_lshl_b32 s{sT}, s{sT}, 9')
        a(f's_add_u32 s{sU}, s{sU}, s{sT}')
        a(f's_and_b32 s{sT}, s{sWV}, 1')
        a(f's_lshl_b32 s{sT}, s{sT}, 3')
        a(f's_add_u32 s{sU}, s{sU}, s{sT}')
        a(f'v_add_u32 v{RI}, s{sU}, v{RI}')
    a(f's_add_u32 s{sSEG}, s{sSET}, 8')
    a(f's_cmp_eq_u32 s{sSET}, 0')
    a(f's_cselect_b32 s{sSEG}, 0, s{sSEG}')
    a(f's_mov_b32 s{sKS}, 3')
    wstamp(a, 2)
    a('s_mov_b32 s92, 0')
    top = a.newlabel('wotop')
    a.label(top)
    RES, ACC, OF = 12, 16, 64
    a(f's_mul_i32 s{sXO}, s{sSEG}, 40960')
    if layer == 0:
        a(f'buffer_load_dwordx2 {vr(RES, 2)}, v{RO}, s[{S_X}:{S_X + 3}], s{sXO} offen')
    else:
        a(f's_add_u32 s{sU}, s{sXO}, {lb - LSTRIDE + L_X2}')
        a(f'buffer_load_dwordx2 {vr(RES, 2)}, v{RI}, {WS}, s{sU} offen sc1')
    a(f's_lshl_b32 s{sT}, s{sSEG}, 7')
    a(f's_add_u32 s{sT}, s{sT}, {fb + FL_O}')
    wait_flag(a, sT, 128)
    AQ = 'wo' in C.OPT.get('aq', '')
    if AQ:
        a('buffer_inv sc1')
    wstamp(a, 5)
    a(f's_lshl_b32 s{sT}, s{sSEG}, 18')
    a(f's_lshl_b32 s{sU}, s{sWV}, 16')
    a(f's_add_u32 s{sT}, s{sT}, s{sU}')
    a(f's_add_u32 s{sT}, s{sT}, {lb + L_O}')
    tr = Track(a)
    NB = 40

    def ld(i):
        if i % 4 == 0 and i:
            a(f's_add_u32 s{sT}, s{sT}, 4096')
        tr.vmem(f'buffer_load_dwordx4 {vr(OF + 4 * (i % NB), 4)}, v{L16}, {WS}, s{sT} offen offset:{(i % 4) * 1024}' + ('' if AQ else ' sc1'), i)
    for i in range(NB):
        ld(i)
    for i in range(64):
        tr.wait_vm(i)
        acc = ACC + 16 * (i & 1)
        a(f'v_mfma_f32_32x32x16_bf16 {vr(acc, 16)}, {ar(4 * i, 4)}, {vr(OF + 4 * (i % NB), 4)}, ' + (vr(acc, 16) if i > 1 else '0'))
        if i + NB < 64:
            ld(i + NB)
    for r in range(0, 16, 2):
        a(f'v_pk_add_f32 {vr(ACC + r, 2)}, {vr(ACC + r, 2)}, {vr(ACC + 16 + r, 2)}')
    for q in range(4):
        a(f'ds_write_b128 v{WB_}, {vr(ACC + 4 * q, 4)} offset:{q * 4096}')
    a('s_waitcnt lgkmcnt(0)')
    a('s_barrier')
    for w in range(4):
        a(f'ds_read_b128 {vr(ACC + 4 * w, 4)}, v{RB_} offset:{w * 1024}')
    a('s_waitcnt lgkmcnt(0)')
    a('s_barrier')
    b = ACC
    for h in (0, 2):
        a(f'v_pk_add_f32 {vr(b + h, 2)}, {vr(b + h, 2)}, {vr(b + 4 + h, 2)}')
        a(f'v_pk_add_f32 {vr(b + 8 + h, 2)}, {vr(b + 8 + h, 2)}, {vr(b + 12 + h, 2)}')
    for h in (0, 2):
        a(f'v_pk_add_f32 {vr(b + h, 2)}, {vr(b + h, 2)}, {vr(b + 8 + h, 2)}')
    a(f'v_cvt_pk_bf16_f32 v{b + 4}, v{b}, v{b + 1}')
    a(f'v_cvt_pk_bf16_f32 v{b + 5}, v{b + 2}, v{b + 3}')
    unpack(a, b, b + 4, 2)
    unpack(a, b + 8, RES, 2)
    for r in range(4):
        a(f'v_add_f32 v{b + r}, v{b + r}, v{b + 8 + r}')
    a(f'v_cvt_pk_bf16_f32 v{b + 4}, v{b}, v{b + 1}')
    a(f'v_cvt_pk_bf16_f32 v{b + 5}, v{b + 2}, v{b + 3}')
    a(f's_add_u32 s{sU}, s{sXO}, {lb + L_X1}')
    a(f'buffer_store_dwordx2 {vr(b + 4, 2)}, v{RO}, {WS}, s{sU} offen sc1')
    a(f's_lshl_b32 s{sT}, s{sSEG}, 6')
    a(f's_add_u32 s{sT}, s{sT}, {fb + FL_X1}')
    signal(a, sT)
    a(f's_cmp_lt_u32 s{sSEG}, 8')
    a(f's_cselect_b32 s{sT}, 1, 3')
    a(f's_add_u32 s{sSEG}, s{sSEG}, s{sT}')
    a(f's_cmp_lt_u32 s{sSEG}, 64')
    a(f's_cbranch_scc1 {top}')
```

```python
import struct
from asmlib import *
from layout import *


def f32(x):
    return '0x%08x' % struct.unpack('<I', struct.pack('<f', x))[0]


class Track:
    def __init__(self, a):
        self.a = a
        self.vm = []
        self.lg = []

    def vmem(self, text, tag=None):
        self.a(text)
        self.vm.append(tag)

    def ds(self, text, tag=None):
        self.a(text)
        self.lg.append(tag)

    def _wait(self, q, tag, name, maxn):
        idx = [i for i, t in enumerate(q) if t == tag]
        if not idx:
            return None
        last = idx[-1]
        n = len(q) - 1 - last
        del q[:last + 1]
        if n > maxn:
            extra = n - maxn
            del q[:extra]
            n = maxn
        return n

    def wait_vm(self, tag):
        n = self._wait(self.vm, tag, 'vmcnt', 63)
        if n is not None:
            self.a(f's_waitcnt vmcnt({n})')

    def wait_lg(self, tag):
        n = self._wait(self.lg, tag, 'lgkmcnt', 15)
        if n is not None:
            self.a(f's_waitcnt lgkmcnt({n})')

    def drain_vm(self):
        self.a('s_waitcnt vmcnt(0)')
        self.vm = []

    def drain_lg(self):
        self.a('s_waitcnt lgkmcnt(0)')
        self.lg = []


IDX, L16, VW, KT, VT, WB, PQPP, ORDTMR, T3, T2, T0, T1 = range(12)
TB = 8
GM = [12, 16, 20]
Q0, K0, Q1, K1, V0, V1 = 24, 28, 32, 36, 40, 44
KR = 48
VR = 56
P = [64, 72, 80, 88]
RESV = 96

MST = 2048
LB8 = 8192
LS_S = 10240
LS_TM = 14336
LSEL = 15360
LRSEL = 15872
LWT = 16384
NLDS = 18
LWT_W = NLDS * 2048
CHAIN_LDS = LWT + 4 * LWT_W

S_WS = 4
S_W = 8
sH, sWV, sSTEP, sTMP, sTMP2 = 12, 13, 14, 15, 16
sPOLL, sPOLL8, sKB, sVB, sKMQ, sVM = 17, 18, 19, 20, 21, 22
sPST, sPST1, sPST2, sRED, sMW, sMR = 23, 24, 25, 26, 27, 28
sSTR = 30
sMASK = 36
sHASRED, sB8, sSCALE, sX41 = 38, 39, 40, 41
sSPIN = 0
sREDP = 42
sMRP = 44
sPAR = 44
sPERMLO, sPERMHI = 45, 46
sNSTEP = 47
sRS = 48
sT64 = 50
sTIME = 52
sEP = 52
sSW, sTW = 53, 54
sMASK2 = 42
sTOFF = 29
sMCB = 55
sMCO = 60
sMCP = 63
sFLB = 22
sLB = 21
sRDY = 49
FL_KV = 0
FL_MF = 0x1000
sPTR = 56


VSRC = 'R R R L3 R L3 R L2 R L2 R L2 L2 L3 s1 L2 R L3 s0 s1'.split()
SQK = {4: 0, 6: 1, 9: 0}
NVQ = 12
VORD = [0, 1, 2, 4, 5, 6, 9, 7, 8, 3]


LQ = {1: 2, 2: 2, 3: 2, 4: 3, 5: 3, 6: 3, 7: 3, 8: 2, 9: 3}
LQP = {1: 3}


def vk(j):
    return ('v', j & 1, VORD[j >> 1])


def frag_plan():
    loc = {}
    na = 0
    nv = 0
    nl = 0
    ns = 0

    def res():
        nonlocal na, nv
        if na < 32:
            na += 1
            return ('a', 8 * (na - 1))
        nv += 1
        return ('v', RESV + 8 * (nv - 1))

    order = [('q', 0), ('k', 0), ('q', 1), ('k', 1)]
    lq = {1: 4, 3: 3, 4: 4, 5: 4, 6: 3, 7: 4, 8: 3, 9: 4}
    lq = LQ
    for n in range(10):
        for p, (m, t) in enumerate(order):
            if n == 0:
                loc[(m, t, n)] = ('s', ns, P[p]); ns += 1
            elif n in lq and p == LQP.get(n, 1):
                loc[(m, t, n)] = ('l', nl, P[lq[n]]); nl += 1
            elif p == 3 and n in SQK:
                loc[(m, t, n)] = ('s', ns, P[SQK[n]]); ns += 1
            else:
                loc[(m, t, n)] = res()
    for j, s in enumerate(VSRC):
        key = vk(j)
        if s[0] == 'L':
            loc[key] = ('l', nl, P[int(s[1])]); nl += 1
        elif s[0] == 's':
            loc[key] = ('s', ns, P[int(s[1])]); ns += 1
        else:
            loc[key] = res()
    for n in range(4):
        for U in range(5):
            loc[('o', U, n)] = res()
    assert (na, nv, nl, ns) == (32, 20, 18, 10), (na, nv, nl, ns)
    return loc


LOC = frag_plan()


def breg(key, loc=None):
    l = (loc or LOC)[key]
    if l[0] == 'a':
        return ar(l[1], 8)
    if l[0] == 'v':
        return vr(l[1], 8)
    return vr(l[2], 8)


def rowconst(r):
    return 32 * (r >> 2) + 8 * (r & 1) + 2 * ((r >> 1) & 1)


def chain_consts(a):
    G, C, LN, X, Y = 12, 13, 14, 15, 16
    a(f'v_lshrrev_b32 v{X}, 6, v0')
    a(f'v_and_b32 v{LN}, 63, v0')
    a(f'v_readfirstlane_b32 s{sWV}, v{X}')
    a(f'v_lshrrev_b32 v{G}, 4, v{LN}')
    a(f'v_and_b32 v{C}, 15, v{LN}')
    a(f'v_lshlrev_b32 v{L16}, 4, v{LN}')
    a(f'v_mov_b32 v{X}, 0x4444')
    a(f'v_mov_b32 v{Y}, 0xeeee')
    a(f'v_cmp_gt_u32 vcc, 8, v{C}')
    a(f'v_cndmask_b32 v{IDX}, v{Y}, v{X}, vcc')
    a(f's_mov_b32 s{sMASK}, 0x00ff00ff')
    a(f's_mov_b32 s{sMASK + 1}, 0x00ff00ff')
    a(f's_lshl_b32 s{sTMP}, s{sWV}, 11')
    a(f'v_add_u32 v{VW}, s{sTMP}, v{L16}')
    a(f's_mul_i32 s{sTMP}, s{sWV}, {LWT_W}')
    a(f's_add_u32 s{sTMP}, s{sTMP}, {LWT}')
    a(f'v_add_u32 v{WB}, s{sTMP}, v{L16}')
    a(f'v_and_b32 v{X}, 1, v{G}')
    a(f'v_lshlrev_b32 v{X}, 10, v{X}')
    a(f'v_lshrrev_b32 v{Y}, 1, v{G}')
    a(f'v_lshl_add_u32 v{X}, v{Y}, 9, v{X}')
    a(f's_lshl_b32 s{sTMP}, s{sWV}, 11')
    a(f'v_add_u32 v{X}, s{sTMP}, v{X}')
    a(f'v_lshl_add_u32 v{VT}, v{C}, 4, v{X}')
    a(f'v_bfe_u32 v{Y}, v{C}, 2, 1')
    a(f'v_lshl_add_u32 v{X}, v{Y}, 8, v{X}')
    a(f'v_lshrrev_b32 v{Y}, 3, v{C}')
    a(f'v_lshl_add_u32 v{X}, v{Y}, 6, v{X}')
    a(f'v_and_b32 v{Y}, 3, v{C}')
    a(f'v_lshl_add_u32 v{KT}, v{Y}, 4, v{X}')
    a(f'v_lshrrev_b32 v{X}, 3, v{LN}')
    a(f'v_lshlrev_b32 v{X}, 12, v{X}')
    a(f'v_and_b32 v{Y}, 7, v{LN}')
    a(f'v_lshl_add_u32 v{X}, v{Y}, 4, v{X}')
    a(f'v_lshlrev_b32 v{Y}, 12, v{G}')
    a(f'v_lshl_add_u32 v{Y}, v{C}, 3, v{Y}')
    a(f'v_lshl_add_u32 v{PQPP}, v{Y}, 16, v{X}')
    a(f'v_lshlrev_b32 v{X}, 8, v{G}')
    a(f'v_and_b32 v{Y}, 7, v{C}')
    a(f'v_lshl_add_u32 v{X}, v{Y}, 4, v{X}')
    a(f's_lshl_b32 s{sTMP}, s{sWV}, 11')
    a(f'v_add_u32 v{X}, s{sTMP}, v{X}')
    a(f's_lshl_b32 s{sSW}, s{sWV}, 10')
    a(f's_and_b32 s{sTW}, s{sWV}, 1')
    a(f's_lshl_b32 s{sTW}, s{sTW}, 7')
    a(f's_lshr_b32 s{sTMP}, s{sWV}, 1')
    a(f's_lshl_b32 s{sTMP}, s{sTMP}, 9')
    a(f's_add_u32 s{sTW}, s{sTW}, s{sTMP}')
    a(f's_mov_b32 s{sMASK2}, 0')
    a(f's_mov_b32 s{sMASK2 + 1}, 0x00ff00ff')
    a(f'v_lshlrev_b32 v17, 4, v{Y}')
    a(f'v_and_b32 v{Y}, 1, v{G}')
    a(f'v_lshl_add_u32 v17, v{Y}, 8, v17')
    a(f'v_lshrrev_b32 v{Y}, 3, v{C}')
    a(f'v_lshl_add_u32 v17, v{Y}, 3, v17')
    a(f'v_add_u32 v17, {LS_TM}, v17')
    a(f'v_lshl_add_u32 v{ORDTMR}, v17, 16, v{X}')
    lab = a.newlabel('rb')
    a(f's_lshl_b32 s{sTMP}, s{sH}, 1')
    a(f's_add_u32 s{sTMP}, s{sTMP}, s{sWV}')
    a(f's_mov_b32 s{sHASRED}, 1')
    a(f's_cmp_lt_u32 s{sWV}, 2')
    a(f's_cbranch_scc1 {lab}')
    a(f's_add_u32 s{sTMP}, s{sH}, 64')
    a(f's_cmp_lt_u32 s{sH}, 16')
    a(f's_cselect_b32 s{sHASRED}, 1, 0')
    a(f's_cmp_eq_u32 s{sWV}, 2')
    a(f's_cselect_b32 s{sHASRED}, s{sHASRED}, 0')
    a(f's_cmp_eq_u32 s{sHASRED}, 1')
    a(f's_cselect_b32 s{sTMP}, s{sTMP}, 0')
    a.label(lab)
    a(f's_lshl_b32 s{sRED}, s{sTMP}, 12')
    a(f's_add_u32 s{sRED}, s{sRED}, {WS_PRING}')
    a(f's_mul_i32 s{sTMP2}, s{sTMP}, 3277')
    a(f's_lshr_b32 s{sTMP2}, s{sTMP2}, 16')
    a(f's_mul_i32 s{sT64}, s{sTMP2}, 20')
    a(f's_sub_u32 s{sTMP}, s{sTMP}, s{sT64}')
    a(f's_mul_i32 s{sTMP2}, s{sTMP2}, 160')
    a(f's_lshr_b32 s{sT64}, s{sTMP}, 3')
    a(f's_lshl_b32 s{sT64}, s{sT64}, 6')
    a(f's_add_u32 s{sTMP2}, s{sTMP2}, s{sT64}')
    a(f's_lshr_b32 s{sT64 + 1}, s{sTMP}, 1')
    a(f's_and_b32 s{sT64 + 1}, s{sT64 + 1}, 3')
    a(f's_and_b32 s{sT64}, s{sTMP}, 3')
    a(f's_cmp_ge_u32 s{sTMP}, 16')
    a(f's_cselect_b32 s{sRS}, 1, 0')
    a(f's_cselect_b32 s{sT64 + 1}, s{sT64}, s{sT64 + 1}')
    a(f's_and_b32 s{sT64}, s{sT64 + 1}, 2')
    a(f's_lshl_b32 s{sX41}, s{sT64}, 4')
    a(f's_and_b32 s{sTMP}, s{sTMP}, 1')
    a(f's_lshl_b32 s{sTMP}, s{sTMP}, 4')
    a(f's_add_u32 s{sX41}, s{sX41}, s{sTMP}')
    a(f's_lshl_b32 s{sT64}, s{sT64}, 3')
    a(f's_cmp_eq_u32 s{sRS}, 1')
    a(f's_cselect_b32 s{sT64}, s{sT64}, s{sX41}')
    a(f's_add_u32 s{sTMP2}, s{sTMP2}, s{sT64}')
    a(f's_and_b32 s{sT64}, s{sT64 + 1}, 1')
    a(f's_lshl_b32 s{sT64}, s{sT64}, 6')
    a(f'v_lshlrev_b32 v{X}, 1, v{C}')
    a(f'v_add_u32 v{X}, s{sTMP2}, v{X}')
    a(f'v_lshrrev_b32 v{Y}, 3, v{X}')
    a(f'v_lshlrev_b32 v{Y}, 7, v{Y}')
    a(f'v_and_b32 v{X}, 7, v{X}')
    a(f'v_lshl_add_u32 v{Y}, v{X}, 1, v{Y}')
    a(f'v_lshl_add_u32 v{Y}, v{G}, 5, v{Y}')
    a(f'v_add_u32 v{Y}, s{sT64}, v{Y}')
    a(f'v_and_b32 v{X}, 0x28, v{LN}')
    a(f'v_cmp_eq_u32 vcc, 0, v{X}')
    a(f'v_mov_b32 v{X}, 0x8000')
    a(f'v_cndmask_b32 v{Y}, v{X}, v{Y}, vcc')
    a(f'v_lshl_or_b32 v{IDX}, v{Y}, 16, v{IDX}')
    a(f's_and_b32 s{sB8}, s{sWV}, 1')
    a(f's_lshl_b32 s{sB8}, s{sB8}, 10')
    a(f's_add_u32 s{sB8}, s{sB8}, {LB8}')
    a(f's_mov_b32 s{sSCALE}, {f32(128 ** -0.5 * 1.4426950408889634)}')
    a(f's_mov_b32 s{sPERMLO}, 0x05040100')
    a(f's_mov_b32 s{sPERMHI}, 0x07060302')
    a(f's_lshl_b32 s{sTMP}, s{sH}, 2')
    a(f's_add_u32 s{sTMP}, s{sTMP}, s{sWV}')
    a(f's_mul_i32 s{sTMP}, s{sTMP}, {NSTR * 2048}')
    a(f's_add_u32 s{sTMP}, s{sTMP}, {WS_STREAM}')
    for i in range(NSTR // 2):
        a(f's_add_u32 s{sSTR + i}, s{sTMP}, {i * 4096}')
    a(f's_mul_i32 s{sPST}, s{sWV}, {20 * 4096}')
    a(f's_lshl_b32 s{sTMP}, s{sH}, 7')
    a(f's_add_u32 s{sPST}, s{sPST}, s{sTMP}')
    a(f's_add_u32 s{sPST}, s{sPST}, {WS_PRING}')
    a(f's_add_u32 s{sPST1}, s{sPST}, {8 * 4096}')
    a(f's_add_u32 s{sPST2}, s{sPST}, {16 * 4096}')


def slot_kk_salu(a, n, dst):
    if n < 2:
        a(f's_lshl_b32 s{dst}, s{sWV}, 1')
        if n:
            a(f's_add_u32 s{dst}, s{dst}, 1')
    elif n == 2:
        a(f's_and_b32 s{dst}, s{sWV}, 1')
        a(f's_add_u32 s{dst}, s{dst}, 8')
    elif n == 3:
        a(f's_and_b32 s{dst}, s{sWV}, 1')
        a(f's_sub_u32 s{dst}, 9, s{dst}')
    else:
        q = (n - 2) >> 1
        a(f's_xor_b32 s{dst}, s{sWV}, {q}')
        a(f's_lshl_b32 s{dst}, s{dst}, 1')
        if n & 1:
            a(f's_add_u32 s{dst}, s{dst}, 1')


def chain_load_weights(a, LOC=None, mats=(0, 1, 2, 3)):
    LOC = LOC or globals()['LOC']
    tr = Track(a)
    LN, G, C = 14, 12, 13
    VSRC = 17
    VO = [18, 19, 20, 21, 22]
    RA, RB, RC = 23, 24, 25
    X, Y = 26, 27
    RD = 32
    PT = 64
    sSCR = sPOLL
    sHO, sKK, sSO, sSP = sPOLL8, sKB, sVB, sKMQ
    a(f's_mul_i32 s{sSCR}, s{sWV}, 40960')
    a(f's_lshl_b32 s{sSP}, s{sH}, 2')
    a(f's_add_u32 s{sSP}, s{sSP}, s{sWV}')
    a(f's_mul_i32 s{sSP}, s{sSP}, {NLDS * 2048}')
    a(f's_add_u32 s{sSP}, s{sSP}, {WS_SPILL}')
    a(f'v_lshrrev_b32 v{X}, 3, v{LN}')
    a(f'v_lshlrev_b32 v{X}, 13, v{X}')
    a(f'v_and_b32 v{Y}, 7, v{LN}')
    a(f'v_lshl_add_u32 v{X}, v{Y}, 4, v{X}')
    a(f's_lshr_b32 s{sTMP}, s{sWV}, 1')
    a(f's_lshl_b32 s{sTMP}, s{sTMP}, 7')
    a(f'v_add_u32 v{VSRC}, s{sTMP}, v{X}')
    a(f's_mul_i32 s{sTMP}, s{sWV}, 320')
    a(f's_mov_b32 s{sTMP2}, 3277')
    a(f's_movk_i32 s{sT64}, 1280')
    for i in range(5):
        a(f'v_add_u32 v{X}, {64 * i}, v{LN}')
        a(f'v_mul_lo_u32 v{Y}, v{X}, s{sTMP2}')
        a(f'v_lshrrev_b32 v{Y}, 16, v{Y}')
        a(f'v_mul_u32_u24 v{VO[i]}, 20, v{Y}')
        a(f'v_sub_u32 v{X}, v{X}, v{VO[i]}')
        a(f'v_mul_lo_u32 v{Y}, v{Y}, s{sT64}')
        a(f'v_lshl_add_u32 v{Y}, v{X}, 4, v{Y}')
        a(f'v_add_u32 v{VO[i]}, s{sTMP}, v{Y}')
    LP = 28
    a(f'v_lshrrev_b32 v{X}, 1, v{G}')
    a(f'v_lshlrev_b32 v{X}, 4, v{X}')
    a(f'v_and_b32 v{Y}, 1, v{G}')
    a(f'v_lshl_add_u32 v{LP}, v{Y}, 2, v{X}')

    def set_srd(mi):
        a(f's_mov_b32 s{S_W}, s{sPTR + 2 * mi}')
        a(f's_and_b32 s{S_W + 1}, s{sPTR + 2 * mi + 1}, 0xffff')
        a(f's_mov_b32 s{S_W + 2}, 5242880')
        a(f's_mov_b32 s{S_W + 3}, 0x00020000')

    POS = [0, 1, 2, 6, 7]
    PART = [4, 5, 3, 8, 9]
    GRP = [(0, 1), (2,), (3, 4)]

    def dma_pos(mi, p):
        if mi < 3:
            slot_kk_salu(a, POS[p], sKK)
            a(f's_lshl_b32 s{sKK}, s{sKK}, 19')
            a(f's_lshl_b32 s{sSO}, s{sH}, 8')
            a(f's_add_u32 s{sKK}, s{sKK}, s{sSO}')
            for i in range(8):
                a(f's_add_u32 s{sSO}, s{sKK}, {i * 8 * 8192}')
                a(f's_add_u32 m0, s{sSCR}, {p * 8192 + i * 1024}')
                tr.vmem(f'buffer_load_dwordx4 v{VSRC}, s[{S_W}:{S_W + 3}], s{sSO} offen lds', ('dma', mi, p))
        else:
            a(f's_mul_i32 s{sKK}, s{sH}, 163840')
            for i in range(8):
                ii = 8 * p + i
                a(f's_add_u32 s{sSO}, s{sKK}, {(ii // 5) * 16 * 1280}')
                a(f's_add_u32 m0, s{sSCR}, {ii * 1024}')
                tr.vmem(f'buffer_load_dwordx4 v{VO[ii % 5]}, s[{S_W}:{S_W + 3}], s{sSO} offen lds', ('dma', mi, p))

    def dest(key, k):
        l = LOC[key]
        if l[0] == 'v':
            return l[1]
        return PT + 8 * k

    def finish(key, k):
        l = LOC[key]
        base = PT + 8 * k
        if l[0] == 'a':
            for r in range(8):
                a(f'v_accvgpr_write_b32 a{l[1] + r}, v{base + r}')
        elif l[0] in 'ls':
            a(f's_add_u32 s{sSO}, s{sSTR if l[0] == "s" else sSP}, {l[1] * 2048}')
            tr.vmem(f'buffer_store_dwordx4 {vr(base, 4)}, v{L16}, s[{S_WS}:{S_WS + 3}], s{sSO} offen', 'spill')
            tr.vmem(f'buffer_store_dwordx4 {vr(base + 4, 4)}, v{L16}, s[{S_WS}:{S_WS + 3}], s{sSO} offen offset:1024',
                    'spill')

    set_srd(mats[0])
    for p in range(5):
        dma_pos(mats[0], p)
    RCP = 29
    a(f'v_lshlrev_b32 v{X}, 7, v{LP}')
    a(f'v_lshl_add_u32 v{X}, v{C}, 2, v{X}')
    a(f's_and_b32 s{sTMP}, s{sWV}, 1')
    a(f's_lshl_b32 s{sTMP}, s{sTMP}, 6')
    a(f'v_add_u32 v{X}, s{sTMP}, v{X}')
    a(f'v_add_u32 v{RC}, s{sSCR}, v{X}')
    a(f's_xor_b32 s{sTMP}, s{sWV}, 1')
    a(f's_mul_i32 s{sTMP}, s{sTMP}, 40960')
    a(f'v_add_u32 v{RCP}, s{sTMP}, v{X}')
    R4 = [RA, RB, 30, 31]
    pending = None
    for ix, mi in enumerate(mats):
        if mi == 3:
            break
        m = 'qkv'[mi]
        nxt = mats[ix + 1] if ix + 1 < len(mats) else None
        for gi_, grp in enumerate(GRP):
            tr.wait_vm(('dma', mi, grp[-1]))
            a('s_barrier')
            if OPT.get('wlt') and 3 in mats and gi_ == 0:
                a(f's_memrealtime s[{64 + 2 * ix}:{65 + 2 * ix}]')
            if pending is not None:
                pm, pg = pending
                set_srd(pm)
                for p in pg:
                    dma_pos(pm, p)
            pending = (nxt, grp) if nxt is not None else None
            for p in grp:
                for n, base in ((POS[p], RC), (PART[p], RCP)):
                    for k in range(4):
                        a(f'v_add_u32 v{R4[k]}, {p * 8192 + (k >> 1) * 4096 + (k & 1) * 1024}, v{base}')
                    for r in range(8):
                        rc = rowconst(r) & 31
                        o = (rc & 7) * 32
                        tr.ds(f'ds_read2_b32 {vr(RD + 2 * r, 2)}, v{R4[2 * (r >> 2) + (rc >> 3)]} offset0:{o} offset1:{o + 32}')
                    tr.drain_lg()
                    for t in range(2):
                        key = (m, t, n)
                        d = dest(key, t)
                        for r in range(8):
                            a(f'v_perm_b32 v{d + r}, v{RD + 2 * r + 1}, v{RD + 2 * r}, s{sPERMHI if t else sPERMLO}')
                        finish(key, t)
    if pending is not None:
        a('s_barrier')
        set_srd(pending[0])
        for p in pending[1]:
            dma_pos(pending[0], p)
    if OPT.get('wlt') and 3 in mats:
        a('s_memrealtime s[90:91]')
    if 3 in mats:
        a(f's_movk_i32 s{sT64}, {4 * 320}')
        a(f'v_mul_lo_u32 v{X}, v{G}, s{sT64}')
        a(f'v_add_u32 v{X}, s{sSCR}, v{X}')
        a(f'v_lshl_add_u32 v{RC}, v{C}, 2, v{X}')
        a(f'v_lshrrev_b32 v{Y}, 1, v{C}')
        a(f'v_lshl_add_u32 v{Y}, v{Y}, 2, v{X}')
        a(f'v_add_u32 v{Y}, 256, v{Y}')
        SELV = 29
        a(f'v_and_b32 v{X}, 1, v{C}')
        a(f'v_mov_b32 v{SELV}, s{sPERMLO}')
        a(f'v_mov_b32 v30, s{sPERMHI}')
        a(f'v_cmp_eq_u32 vcc, 1, v{X}')
        a(f'v_cndmask_b32 v{SELV}, v{SELV}, v30, vcc')
        tr.wait_vm(('dma', 3, 4))
        if OPT.get('wlt'):
            a('s_memrealtime s[92:93]')
        for n in range(4):
            a(f's_xor_b32 s{sKK}, s{sWV}, {n}')
            a(f's_mul_i32 s{sKK}, s{sKK}, {32 * 320}')
            for grp in range(3):
                for r in range(8):
                    off = (16 * (r >> 2) + 2 * ((r >> 1) & 1)) * 320
                    if grp < 2:
                        off += 128 * grp + 64 * (r & 1)
                    else:
                        off += 32 * (r & 1)
                    a(f's_add_u32 s{sSO}, s{sKK}, {off}')
                    a(f'v_add_u32 v{RA}, s{sSO}, v{RC if grp < 2 else Y}')
                    tr.ds(f'ds_read2_b32 {vr(RD + 2 * r, 2)}, v{RA} offset0:0 offset1:80')
                tr.drain_lg()
                for t in range(2 if grp < 2 else 1):
                    key = ('o', 2 * grp + t, n)
                    d = dest(key, t)
                    for r in range(8):
                        sel = f'v{SELV}' if grp == 2 else f's{sPERMHI if t else sPERMLO}'
                        a(f'v_perm_b32 v{d + r}, v{RD + 2 * r + 1}, v{RD + 2 * r}, {sel}')
                    finish(key, t)
    if OPT.get('wlt') and 3 in mats:
        a('s_memrealtime s[94:95]')
    tr.drain_vm()
    a('s_barrier')
    if OPT.get('wlt') and 3 in mats:
        a('s_memrealtime s[96:97]')
    a(f's_mul_i32 s{sSCR}, s{sWV}, {LWT_W}')
    a(f's_add_u32 s{sSCR}, s{sSCR}, {LWT}')
    for i in range(2 * NLDS if 3 in mats else 0):
        a(f's_add_u32 s{sSO}, s{sSP}, {i * 1024}')
        a(f's_add_u32 m0, s{sSCR}, {i * 1024}')
        tr.vmem(f'buffer_load_dwordx4 v{L16}, s[{S_WS}:{S_WS + 3}], s{sSO} offen lds')
    a(f'v_and_b32 v{X}, 1, v{G}')
    a(f'v_lshlrev_b32 v{X}, 2, v{X}')
    a(f'v_sub_u32 v{X}, v{C}, v{X}')
    a(f'v_mov_b32 v{RA}, 0x3f80')
    a(f'v_mov_b32 v{RB}, 0x3f800000')
    for p, k in enumerate((0, 2, 8, 10)):
        reg = RD + p
        a(f'v_mov_b32 v{reg}, 0')
        a(f'v_cmp_eq_u32 vcc, {k}, v{X}')
        a(f'v_cndmask_b32 v{reg}, v{reg}, v{RA}, vcc')
        a(f'v_cmp_eq_u32 vcc, {k + 1}, v{X}')
        a(f'v_cndmask_b32 v{reg}, v{reg}, v{RB}, vcc')
    a(f'v_and_b32 v{Y}, 0x1f0, v{L16}')
    tr.ds(f'ds_write_b128 v{Y}, {vr(RD, 4)} offset:{LSEL}')
    for var in range(2):
        if var == 0:
            a(f'v_mov_b32 v{X}, v{C}')
        else:
            a(f'v_and_b32 v{X}, 8, v{C}')
            a(f'v_bfe_u32 v{Y}, v{C}, 1, 2')
            a(f'v_add_u32 v{X}, v{X}, v{Y}')
            a(f'v_and_b32 v{Y}, 1, v{C}')
            a(f'v_lshl_add_u32 v{X}, v{Y}, 2, v{X}')
        for p in range(4):
            reg = RD + 4 + p
            a(f'v_mov_b32 v{reg}, 0')
            a(f'v_cmp_eq_u32 vcc, {2 * p}, v{X}')
            a(f'v_cndmask_b32 v{reg}, v{reg}, v{RA}, vcc')
            a(f'v_cmp_eq_u32 vcc, {2 * p + 1}, v{X}')
            a(f'v_cndmask_b32 v{reg}, v{reg}, v{RB}, vcc')
        a(f'v_and_b32 v{Y}, 0xf0, v{L16}')
        tr.ds(f'ds_write_b128 v{Y}, {vr(RD + 4, 4)} offset:{LRSEL + var * 256}')
    tr.drain_vm()
    tr.drain_lg()
    a('s_barrier')


assert CHAIN_LDS <= 163840


OPT = {}
OOB = 0x7ffff000


def fill_ops(keys, tag):
    ops = []
    if OPT.get('nofill'):
        return ops
    for key in keys:
        l = LOC[key]
        assert l[0] == 's'
        idx = l[1]
        for hf in range(2):
            off = (idx & 1) * 2048 + hf * 1024
            ops.append((f'buffer_load_dwordx4 {vr(l[2] + 4 * hf, 4)}, v{L16}, s[{S_WS}:{S_WS + 3}], s{sSTR + (idx >> 1)} offen'
                        + (f' offset:{off}' if off else '') + ('' if str(idx) in OPT.get('l1', ' 99').strip().split(',') else ' sc1'), tag))
    return ops


def lds_stage(tr, key):
    l = LOC[key]
    assert l[0] == 'l'
    for hf in range(2):
        tr.ds(f'ds_read_b128 {vr(l[2] + 4 * hf, 4)}, v{WB} offset:{l[1] * 2048 + hf * 1024}', ('B',) + key)


def m_addr(a, n, state):
    if n < 2:
        return
    if n == 2:
        a(f'v_add_u32 v{T2}, s{sB8}, v{L16}')
        state['t2'] = 'b8'
    elif n == 3:
        assert state['t2'] == 'b8'
        a(f'v_xor_b32 v{T2}, 0x400, v{T2}')
        state['t2'] = 'b9'
    elif (n & 1) == 0:
        q = (n - 2) >> 1
        a(f'v_xor_b32 v{T2}, {q * MST}, v{VW}')
        state['t2'] = ('p', q)


def m_read(tr, n, buf, state):
    tag = ('A', n)
    if n < 2:
        tr.ds(f'ds_read_b128 {vr(buf, 4)}, v{VW} offset:{n * 1024}', tag)
    elif n < 4:
        assert state['t2'] == ('b8' if n == 2 else 'b9')
        tr.ds(f'ds_read_b128 {vr(buf, 4)}, v{T2}', tag)
    else:
        assert state['t2'] == ('p', (n - 2) >> 1)
        tr.ds(f'ds_read_b128 {vr(buf, 4)}, v{T2} offset:{(n & 1) * 1024}', tag)


def smf(a, acc, abuf, key, loc=None):
    a(f'v_smfmac_f32_16x16x64_bf16 {vr(acc, 4)}, {vr(abuf, 4)}, {breg(key, loc)}, v{IDX}')


def zero(a, base, n):
    for i in range(0, n, 2):
        a(f'v_mov_b64 {vr(base + i, 2)}, 0')


H01 = [('q', 0, 0), ('k', 0, 0)]
H23 = [('q', 1, 0), ('k', 1, 0)]
SPINMAX = 0x180000


def kv_ready(a, name, seg_sgpr_plus):
    if OPT.get('noflags'):
        return
    WS = f's[{S_WS}:{S_WS + 3}]'
    a(f's_add_u32 s{sTMP}, s{sSTEP}, {seg_sgpr_plus}')
    a(f's_lshr_b32 s{sTMP}, s{sTMP}, 2')
    a(f's_min_u32 s{sTMP}, s{sTMP}, 15')
    a(f's_cmp_lt_u32 s{sTMP}, s{sRDY}')
    a(f's_cbranch_scc1 {name}_ok')
    a.label(f'{name}_sp')
    a(f'v_lshrrev_b32 v{T1}, 2, v{L16}')
    a(f'buffer_load_dword v{T1}, v{T1}, {WS}, s{sFLB} offen sc1')
    a('s_waitcnt vmcnt(0)')
    a(f'v_cmp_le_u32 vcc, 4, v{T1}')
    a(f's_add_u32 s{sSPIN}, s{sSPIN}, 1')
    a(f's_and_b32 s{sRDY}, vcc_lo, 0xffff')
    a(f's_ff0_i32_b32 s{sRDY}, s{sRDY}')
    a(f's_cmp_lt_u32 s{sTMP}, s{sRDY}')
    a(f's_cbranch_scc1 {name}_ok')
    a(f's_cmp_lt_u32 s{sSPIN}, {SPINMAX}')
    a(f's_cbranch_scc1 {name}_sp')
    a.label(f'{name}_ok')


def mc_init(a):
    for k, n in enumerate((7, 8, 3)):
        slot_kk_salu(a, n, sMCO + k)
        a(f's_lshl_b32 s{sMCO + k}, s{sMCO + k}, 10')
    a(f's_lshl_b32 s{sTOFF}, s{sWV}, 3')
    a(f's_add_u32 s{sTOFF}, s{sTOFF}, s{sH}')


def chain_epilogue(a):
    pass


def chain_init_state(a):
    tr = Track(a)
    for t, tag in fill_ops(H01 + H23, 'h'):
        a(t)
    mc_init(a)
    zero(a, Q0, 24)
    a(f's_mov_b32 s{sMW}, {WS_MRING}')
    a(f's_mov_b32 s{sMR}, {WS_MRING + 3 * MSLOT}')
    a(f's_mov_b32 s{sLB}, {LAYER0}')
    a(f's_lshl_b32 s{sFLB}, s{sH}, 6')
    a(f's_add_u32 s{sFLB}, s{sFLB}, {WS_FLAGS + FL_KV}')


def chain_layer_state(a):
    WS = f's[{S_WS}:{S_WS + 3}]'
    a(f's_lshl_b32 s{sTMP}, s{sH}, 13')
    a(f's_add_u32 s{sTMP}, s{sTMP}, s{sLB}')
    a(f's_add_u32 s{sKB}, s{sTMP}, {L_KB}')
    a(f's_add_u32 s{sVB}, s{sTMP}, {L_VB}')
    a(f's_add_u32 s{sMCB}, s{sLB}, {L_MC - MSLOT}')
    a(f's_lshl_b32 s{sTMP}, s{sWV}, 11')
    a(f's_add_u32 s{sPOLL}, s{sTMP}, {WS_M0}')
    a(f's_add_u32 s{sPOLL8}, s{sB8}, {WS_M0 + 8192 - LB8}')
    a(f's_mov_b32 s{sSTEP}, 0')
    a(f's_mov_b32 s{sRDY}, 0')
    kv_ready(a, a.newlabel('kvr0'), 0)
    for i in range(2):
        a(f'buffer_load_dwordx4 {vr(KR + 4 * i, 4)}, v{KT}, {WS}, s{sKB} offen offset:{128 * i} sc1')
        a(f'buffer_load_dwordx4 {vr(VR + 4 * i, 4)}, v{VT}, {WS}, s{sVB} offen offset:{256 * i} sc1')
    a(f's_mov_b32 s{sSTEP}, -1')


class Rec:
    def __init__(self):
        self.l = []

    def __call__(self, t):
        self.l.append(t)


def chain_step(a, sc, name, timing=False):
    tr = Track(a)
    WS = f's[{S_WS}:{S_WS + 3}]'
    st = {}
    top = f'{name}_top'
    a.label(top)
    mq = []
    KVM = OPT.get('kvmod', ' sc1 nt')

    def M(cnt=1):
        for _ in range(cnt):
            if mq:
                t, tag = mq.pop(0)
                if tag == 'ra':
                    lab = a.newlabel('ras')
                    a(f's_cbranch_scc1 {lab}')
                    a(t)
                    a.label(lab)
                else:
                    tr.vmem(t, tag)

    used = []

    def stamp(i):
        if timing and (str(i) in OPT['stamps'] or i in (0, 7)):
            k = len(used)
            used.append(i)
            a(f's_memtime s[{64 + 2 * k}:{65 + 2 * k}]')
    stamp(0)
    m_addr(a, 2, st)
    pl = f'{name}_mpoll'
    ld = [f'buffer_load_dwordx4 {vr(GM[0], 4)}, v{L16}, {WS}, s{sPOLL} offen sc1',
          f'buffer_load_dwordx4 {vr(GM[1], 4)}, v{L16}, {WS}, s{sPOLL} offen offset:1024 sc1',
          f'buffer_load_dwordx4 {vr(GM[2], 4)}, v{L16}, {WS}, s{sPOLL8} offen sc1']
    wr = [f'ds_write_b128 v{VW}, {vr(GM[0], 4)}', f'ds_write_b128 v{VW}, {vr(GM[1], 4)} offset:1024',
          f'ds_write_b128 v{T2}, {vr(GM[2], 4)}']
    a.label(pl)
    for t in ld:
        a(t)
    a(f's_add_u32 s{sSPIN}, s{sSPIN}, 1')
    a(f's_cmp_lt_u32 s{sSPIN}, {SPINMAX}')
    a(f's_cselect_b64 s[{sT64}:{sT64 + 1}], -1, 0')
    a(f's_waitcnt vmcnt(2)')
    g = GM[0]
    a(f'v_max3_u32 v{T0}, v{g}, v{g + 1}, v{g + 2}')
    a(wr[0])
    a(f'v_max_u32 v{T0}, v{T0}, v{g + 3}')
    a(f'v_cmp_eq_u32 vcc, -1, v{T0}')
    a(f's_and_b64 vcc, vcc, s[{sT64}:{sT64 + 1}]')
    a(f's_cbranch_vccnz {pl}')
    tr.lg += ['mw']
    tr.vm = ['m1', 'm2']
    side = []

    def mcheck(k):
        g = GM[k]
        ok, rt = f'{name}_mok{k}', f'{name}_mrt{k}'
        tr.wait_vm(f'm{k}')
        a(f'v_max3_u32 v{T0}, v{g}, v{g + 1}, v{g + 2}')
        a(f'v_max_u32 v{T0}, v{T0}, v{g + 3}')
        a(f'v_cmp_eq_u32 vcc, -1, v{T0}')
        a(f's_cbranch_vccnz {rt}')
        a.label(ok)
        tr.ds(wr[k], 'mw')
        side.append((k, ok, rt))

    sq = Rec()
    for r in (sKB, sVB):
        sq(f's_add_u32 s{r}, s{r}, {32 * 8192}')
    sq(f's_add_u32 s{sMCB}, s{sMCB}, {MSLOT}')
    sq(f's_add_u32 s{sSTEP}, s{sSTEP}, 1')
    sq(f's_and_b32 s{sEP}, s{sSTEP}, 1')
    sq(f's_mov_b32 s{sMRP}, s{sMR}')
    sq(f's_mov_b32 s{sMR}, s{sMW}')
    sq(f's_add_u32 s{sMW}, s{sMW}, {MSLOT}')
    sq(f's_cmp_ge_u32 s{sMW}, {WS_MRING + 4 * MSLOT}')
    sq(f's_cselect_b32 s{sMW}, {WS_MRING}, s{sMW}')
    sq(f's_lshl_b32 s{sTMP}, s{sWV}, 11')
    sq(f's_add_u32 s{sPOLL}, s{sMW}, s{sTMP}')
    sq(f's_add_u32 s{sPOLL8}, s{sMW}, s{sB8}')
    sq(f's_add_u32 s{sPOLL8}, s{sPOLL8}, {8192 - LB8}')
    sq(f's_add_u32 s{sMCP}, s{sSTEP}, s{sTOFF}')
    sq(f's_and_b32 s{sMCP}, s{sMCP}, 31')

    def SQ(n=1):
        for _ in range(n):
            if sq.l:
                a(sq.l.pop(0))

    stamp(1)
    for n in (4, 6):
        mq += fill_ops([('k', 1, n)], ('s', n))
    order = [('q', 0, Q0), ('k', 0, K0), ('q', 1, Q1), ('k', 1, K1)]
    SELR = TB
    BARP = int(OPT.get('barp', '1'))
    merged = {VORD[q]: q for q in range(NVQ // 2)}
    seq = []
    for n in range(10):
        if n in LQ:
            seq.append(order[LQP.get(n, 1)][:2] + (n,))
        if n in merged:
            seq += [vk(j) for j in (2 * merged[n], 2 * merged[n] + 1) if VSRC[j][0] == 'L']
    seq += [vk(j) for j in range(NVQ, 20) if VSRC[j][0] == 'L']

    def restage(key):
        for k2 in seq[seq.index(key) + 1:]:
            if LOC[k2][2] == LOC[key][2]:
                lds_stage(tr, k2)
                return

    for n in range(10):
        buf = GM[n % 3]
        ops = [((m, t, n), acc) for m, t, acc in order]
        if n in merged:
            ops += [(vk(2 * merged[n]), V0), (vk(2 * merged[n] + 1), V1)]
        for p, (key, acc) in enumerate(ops):
            last = p == len(ops) - 1
            if p == 3 and n in SQK:
                assert not any(tag == ('s', n) for _, tag in mq)
                tr.wait_vm(('s', n))
            smf(a, acc, buf, key)
            nins = len(a.ins)
            post = None
            if LOC[key][0] == 'l':
                restage(key)
            if p == 0 and n >= 1:
                M()
            if p == 0 and n == 0:
                mcheck(1)
            if p == 2 and n == 0:
                lds_stage(tr, seq[0])
                mcheck(2)
            if p == 4 and n == 0:
                M()
                post = 3
            if p == BARP and n == 2:
                tr.wait_lg('mw')
                a('s_barrier')
                m_read(tr, 3, GM[0], st)
                m_addr(a, 4, st)
                m_read(tr, 4, GM[1], st)
            if p == 2 and 3 <= n <= 6:
                post = n + 3
            if p == 4 and n in (4, 6):
                M()
            if p == 3 and n == 0:
                lds_stage(tr, vk(3))
            if p == 3 and n == 4:
                mq += fill_ops([('k', 1, 9)], ('s', 9))
            if p == 3 and n == 6:
                mq += fill_ops([vk(14)], 's14')
            if p == 3 and n == 9:
                mq += fill_ops([vk(18)], 's18')
            if p == 3 and n == 8:
                tr.ds(f'ds_read_b128 {vr(SELR, 4)}, v{T0} offset:{LSEL}', 'sel')
                st['t2'] = None
            if last:
                if 2 <= n <= 6:
                    m_read(tr, n + 3, buf, st)
                if n == 9:
                    M()
                if 2 <= n < 9:
                    tr.wait_lg(('A', n + 1))
            elif LOC[ops[p + 1][0]][0] == 'l':
                tr.wait_lg(('B',) + ops[p + 1][0])
            if n >= 1:
                SQ(max(0, 2 - (len(a.ins) - nins) - (1 if post else 0)))
            if post:
                m_addr(a, post, st)
            if p == 2 and n == 8:
                a(f'v_and_b32 v{T0}, 0x1f0, v{L16}')
            if last:
                stamp(f'n{n}')
    assert len(mq) <= 1 and not sq.l, mq
    vbuf = {9: GM[0], 7: GM[1], 8: GM[2], 3: GM[0]}
    fstate = {'j': NVQ}
    stag = {14: 's14', 18: 's18', 19: 's19'}

    def F(cnt=1):
        for _ in range(cnt):
            j = fstate['j']
            assert j < 20
            fstate['j'] += 1
            q, t = j >> 1, j & 1
            n = VORD[q]
            key = vk(j)
            if j == 18:
                tr.wait_lg(('A', 3))
            if LOC[key][0] == 'l':
                tr.wait_lg(('B',) + key)
            if j in stag:
                assert not any(tag == stag[j] for _, tag in mq)
                tr.wait_vm(stag[j])
            smf(a, V1 if t else V0, vbuf[n], key)
            if LOC[key][0] == 'l':
                restage(key)
            if j == 13:
                m_read(tr, 3, GM[0], st)
            if j == 14:
                mq.extend(fill_ops([vk(19)], 's19'))
            if OPT.get('kearly'):
                if j == 15:
                    kv_ready(a, f'{name}_kvr', 1)
                    mq.append((f'buffer_load_dwordx4 {vr(KR, 4)}, v{KT}, {WS}, s{sKB} offen{KVM}', 'kt'))
                    mq.append((f'buffer_load_dwordx4 {vr(KR + 4, 4)}, v{KT}, {WS}, s{sKB} offen offset:128{KVM}', 'kt'))
                if j in (17, 18, 19):
                    mq.extend(fill_ops([(H01 + H23)[{17: 3, 18: 0, 19: 1}[j]]], 'h'))
                if j == 19:
                    mq.extend(fill_ops([H23[0]], 'h'))
            elif j in (15, 17, 18, 19):
                mq.extend(fill_ops([(H01 + H23)[{15: 2, 17: 3, 18: 0, 19: 1}[j]]], 'h'))

    cvt = lambda d, x, y: a(f'v_cvt_pk_bf16_f32 v{d}, v{x}, v{y}')
    dpp = lambda d, x, bm: a(f'v_mov_b32_dpp v{d}, v{x} row_ror:8 row_mask:0xf bank_mask:{bm}')
    pka = lambda d, x, y: a(f'v_pk_add_f32 {vr(d, 2)}, {vr(x, 2)}, {vr(y, 2)}')
    stamp(2)
    cvt(Q0, Q0, Q0 + 1)
    cvt(Q0 + 1, Q0 + 2, Q0 + 3)
    cvt(Q0 + 2, K0, K0 + 1)
    cvt(Q0 + 3, K0 + 2, K0 + 3)
    cvt(Q1, Q1, Q1 + 1)
    tr.wait_lg('sel')
    a(f'v_mfma_f32_16x16x32_bf16 {vr(K0, 4)}, {vr(Q0, 4)}, {vr(SELR, 4)}, 0')
    cvt(Q1 + 1, Q1 + 2, Q1 + 3)
    cvt(Q1 + 2, K1, K1 + 1)
    cvt(Q1 + 3, K1 + 2, K1 + 3)
    a(f'v_mfma_f32_16x16x32_bf16 {vr(K1, 4)}, {vr(Q1, 4)}, {vr(SELR, 4)}, 0')
    F(1)
    M()
    m_addr(a, 2, st)
    m_addr(a, 3, st)
    for r in range(4):
        cvt(Q0 + r, K0 + r, K1 + r)
    a(f'v_lshrrev_b32 v{T0}, 16, v{ORDTMR}')
    a(f'v_mfma_f32_16x16x32_bf16 {vr(K0, 4)}, {vr(KR, 4)}, {vr(Q0, 4)}, 0')
    a(f'v_add_u32 v{T1}, s{sSW}, v{L16}')
    a(f'v_mfma_f32_16x16x32_bf16 {vr(K1, 4)}, {vr(KR + 4, 4)}, {vr(Q0, 4)}, 0')
    a(f'v_add_u32 v{T3}, s{sTW}, v{L16}')
    a(f'v_mfma_f32_16x16x32_bf16 {vr(Q1, 4)}, {vr(Q0, 4)}, {vr(Q0, 4)}, 0')
    stamp('smf')
    M()
    for r in range(4):
        dpp(K0 + r, K1 + r, '0xc')
    F(1)
    tr.ds(f'ds_write_b128 v{T1}, {vr(K0, 4)} offset:{LS_S}', 'sw')
    F(1)
    a(f's_mov_b64 exec, s[{sMASK2}:{sMASK2 + 1}]')
    tr.ds(f'ds_write_b128 v{T3}, {vr(Q1, 4)} offset:{LS_TM - 512}', 'sw')
    a('s_mov_b64 exec, -1')
    M()
    F(2)
    M()
    if not OPT.get('kearly'):
        kv_ready(a, f'{name}_kvr', 1)
    stamp('b2a')
    tr.wait_lg('sw')
    a('s_barrier')
    stamp(3)
    SR = [K0, K1, Q1, Q0]
    for w in range(4):
        tr.ds(f'ds_read_b128 {vr(SR[w], 4)}, v{L16} offset:{w * 1024 + LS_S}', ('sr', w))
    TM = P[2] if OPT.get('kearly') else KR
    tr.ds(f'ds_read2_b64 {vr(TM, 4)}, v{T0} offset0:0 offset1:16', 'tm')
    tr.ds(f'ds_read2_b64 {vr(TM + 4, 4)}, v{T0} offset0:64 offset1:80', 'tm')
    M()
    F(1)
    M()
    F(1)
    M()
    if OPT.get('vearly'):
        tr.vmem(f'buffer_load_dwordx4 {vr(VR, 4)}, v{VT}, {WS}, s{sVB} offen{KVM}', 'vt')
        tr.vmem(f'buffer_load_dwordx4 {vr(VR + 4, 4)}, v{VT}, {WS}, s{sVB} offen offset:256{KVM}', 'vt')
        tr.vm = [None if x == 'vt' else x for x in tr.vm]
    stamp('sr')
    tr.wait_lg(('sr', 1))
    pka(K0, K0, K1)
    pka(K0 + 2, K0 + 2, K1 + 2)
    tr.wait_lg(('sr', 3))
    pka(Q1, Q1, Q0)
    pka(Q1 + 2, Q1 + 2, Q0 + 2)
    M()
    tr.wait_lg('tm')
    pka(TM, TM, TM + 2)
    pka(TM + 4, TM + 4, TM + 6)
    pka(K0, K0, Q1)
    pka(K0 + 2, K0 + 2, Q1 + 2)
    SMM = Q1
    pka(SMM, TM, TM + 4)
    MX, MY = K1, K1 + 1
    a(f'v_max3_f32 v{MX}, v{K0}, v{K0 + 1}, v{K0 + 2}')
    a(f'v_max3_f32 v{MY}, v{K0 + 3}, v{SMM}, v{SMM + 1}')
    a(f'v_max_f32 v{MX}, v{MX}, v{MY}')
    F(1)
    M()
    cvt(V0, V0, V0 + 1)
    a(f'v_max_f32_dpp v{MX}, v{MX}, v{MX} row_ror:8 row_mask:0xf bank_mask:0xf')
    a(f'v_mov_b32 v{MY}, v{MX}')
    cvt(V0 + 1, V0 + 2, V0 + 3)
    M()
    a(f'v_permlane16_swap_b32 v{MX}, v{MY}')
    a(f'v_max_f32 v{MX}, v{MX}, v{MY}')
    a(f'v_mov_b32 v{MY}, v{MX}')
    cvt(V0 + 2, V1, V1 + 1)
    cvt(V0 + 3, V1 + 2, V1 + 3)
    a(f'v_permlane32_swap_b32 v{MX}, v{MY}')
    a(f'v_max_f32 v{MX}, v{MX}, v{MY}')
    a(f'v_mul_f32 v{MX}, s{sSCALE}, v{MX}')
    stamp('mx')
    S = [K0, K0 + 1, K0 + 2, K0 + 3, SMM, SMM + 1]
    for i, s in enumerate(S):
        a(f'v_fma_f32 v{s}, v{s}, s{sSCALE}, -v{MX}')
        if i in (0, 3):
            M()
    hq = list(mq)
    del mq[:]
    kvq = []
    if not OPT.get('nokv'):
        kvq = [] if OPT.get('kearly') else \
              [(f'buffer_load_dwordx4 {vr(KR, 4)}, v{KT}, {WS}, s{sKB} offen{KVM}', 'kt'),
               (f'buffer_load_dwordx4 {vr(KR + 4, 4)}, v{KT}, {WS}, s{sKB} offen offset:128{KVM}', 'kt')]
        kvq += [
               (f'buffer_load_dwordx4 {vr(VR, 4)}, v{VT}, {WS}, s{sVB} offen{KVM}', 'vt'),
               (f'buffer_load_dwordx4 {vr(VR + 4, 4)}, v{VT}, {WS}, s{sVB} offen offset:256{KVM}', 'vt')]

    kvq = hq + kvq

    def KVq(v=False):
        if kvq and (v or kvq[0][1] != 'vt'):
            tr.vmem(*kvq.pop(0))

    if not OPT.get('nopub'):
        a(f's_cmp_lt_u32 s{sMCP}, 6')
        a(f's_cbranch_scc1 {name}_pub')
        a.label(f'{name}_mokpub')
    for i, s in enumerate(S):
        a(f'v_exp_f32 v{s}, v{s}')
        if i == 1:
            KVq()
        if i == 5:
            KVq()
            if OPT.get('klat'):
                stamp('k0')
                a('s_waitcnt vmcnt(0)')
                stamp('k1')
    PB = GM[2]
    BM = Q1 + 2
    cvt(PB, K0, K0 + 1)
    cvt(PB + 1, K0 + 2, K0 + 3)
    cvt(PB + 2, K0, K0 + 1)
    cvt(PB + 3, K0 + 2, K0 + 3)
    cvt(BM, SMM, SMM + 1)
    KVq()
    dpp(PB + 2, PB, '0x3')
    dpp(PB + 3, PB + 1, '0x3')
    dpp(PB, PB, '0xc')
    dpp(PB + 1, PB + 1, '0xc')
    cvt(BM + 1, SMM, SMM + 1)
    stamp(4)
    O0, O1 = TB, GM[0]
    SM, SY = K1 + 2, K1 + 3
    pka(K0, K0, K0 + 2)
    a(f'v_mfma_f32_16x16x32_bf16 {vr(O0, 4)}, {vr(VR, 4)}, {vr(PB, 4)}, 0')
    M()
    dpp(BM + 1, BM, '0x3')
    dpp(BM, BM, '0xc')
    a(f'v_mfma_f32_16x16x32_bf16 {vr(O1, 4)}, {vr(VR + 4, 4)}, {vr(PB, 4)}, 0')
    a(f'v_add_f32 v{SY}, v{SMM}, v{SMM + 1}')
    a(f'v_add_f32 v{SM}, v{K0}, v{K0 + 1}')
    a(f'v_mfma_f32_16x16x16_bf16 {vr(O0, 4)}, {vr(V0, 2)}, {vr(BM, 2)}, {vr(O0, 4)}')
    KVq(True)
    a(f'v_fma_f32 v{SM}, v{SY}, 0.5, v{SM}')
    a(f'v_mfma_f32_16x16x16_bf16 {vr(O1, 4)}, {vr(V0 + 2, 2)}, {vr(BM, 2)}, {vr(O1, 4)}')
    ACC2 = [Q0, K0, Q1, K1, V1]
    zero(a, Q0, 2)
    a(f'v_add_f32_dpp v{SM}, v{SM}, v{SM} row_ror:8 row_mask:0xf bank_mask:0xf')
    a(f'v_mov_b32 v{SY}, v{SM}')
    M()
    zero(a, Q0 + 2, 4)
    a(f'v_permlane16_swap_b32 v{SM}, v{SY}')
    a(f'v_add_f32 v{SM}, v{SM}, v{SY}')
    a(f'v_mov_b32 v{SY}, v{SM}')
    KVq(True)
    if OPT.get('kvlat'):
        stamp('kv0')
        a('s_waitcnt vmcnt(0)')
        stamp('kv1')
    zero(a, K0 + 2, 4)
    a(f'v_permlane32_swap_b32 v{SM}, v{SY}')
    a(f'v_add_f32 v{SM}, v{SM}, v{SY}')
    a(f'v_rcp_f32 v{SM}, v{SM}')
    M()
    for o in (O0, O0 + 2, O1, O1 + 2):
        a(f'v_pk_mul_f32 {vr(o, 2)}, {vr(o, 2)}, {vr(SM, 2)} op_sel_hi:[1,0]')
    OP = V0
    for r in range(4):
        cvt(OP + r, O0 + r, O1 + r)
    a(f's_mov_b64 exec, s[{sMASK}:{sMASK + 1}]')
    tr.ds(f'ds_write_b128 v{VW}, {vr(OP, 4)}', 'ow')
    a('s_mov_b64 exec, -1')
    KVq(True)
    stamp('b3a')
    OA = [OP, GM[1], GM[2], GM[0]]
    PQr, PPr = T1, T2

    def pack2(x):
        b = ACC2[2 * x]
        for r in (0, 2, 1, 3):
            cvt(b + r, b + r, b + 4 + r)
        for r in (0, 2):
            a(f'v_and_or_b32 v{b + r}, v{b + r}, -2, s{sEP}')
        tr.vmem(f'buffer_store_dwordx4 {vr(b, 4)}, v{PQr}, {WS}, s{sPST1 if x else sPST} offen{sc}', 'ps')

    a(f'v_and_b32 v{T0}, 0xffff, v{ORDTMR}')
    seq2 = [(U, 0) for U in range(5)] + [(U, n) for U in range(5) for n in (1, 2, 3)]
    RS, RDD = GM[2], GM[1]
    for i, (U, n) in enumerate(seq2):
        if U == 0 and n > 0:
            tr.wait_lg(('oa', n))
        smf(a, ACC2[U], OA[n], ('o', U, n))
        if i == 0:
            M()
            zero(a, Q1 + 2, 2)
            zero(a, K1, 2)
            a(f'v_xor_b32 v{T1}, {MST}, v{T0}')
        if i == 1:
            zero(a, K1 + 2, 2)
            zero(a, V1, 2)
            a(f'v_xor_b32 v{T2}, {2 * MST}, v{T0}')
        if i == 2:
            zero(a, V1 + 2, 2)
            a(f'v_xor_b32 v{T0}, {3 * MST}, v{T0}')
            tr.wait_lg('ow')
            a('s_barrier')
            stamp(5)
            for k, ad in ((1, T1), (2, T2), (3, T0)):
                tr.ds(f'ds_read_b128 {vr(OA[k], 4)}, v{ad}', ('oa', k))
        if i == 3:
            assert not mq and not kvq, (mq, kvq)
            a(f'v_and_b32 v{PQr}, 0xffff, v{PQPP}')
        if i == 4:
            a(f'v_lshrrev_b32 v{PPr}, 16, v{PQPP}')
        if i in (5, 8, 11, 15):
            M()
        if i == 6:
            a(f'v_and_b32 v{T0}, 0xf0, v{L16}')
        if i == 7:
            a(f'v_ashrrev_i32 v{T3}, 16, v{IDX}')
        if i == 9:
            a(f'v_lshl_add_u32 v{T0}, s{sRS}, 8, v{T0}')
        if i == 19:
            a(f'ds_read_b128 {vr(RS, 4)}, v{T0} offset:{LRSEL}')
        if i == 12:
            pack2(0)
        if i == 18:
            pack2(1)
    assert not mq
    RA_ = [Q0, K0, Q1, K1]
    b = ACC2[4]
    cvt(b, b, b + 1)
    cvt(b + 1, b + 2, b + 3)
    a(f'v_and_or_b32 v{b}, v{b}, -2, s{sEP}')
    tr.vmem(f'buffer_store_dwordx2 {vr(b, 2)}, v{PPr}, {WS}, s{sPST2} offen{sc}', 'ps')
    stamp(6)
    skip = f'{name}_nored'
    a(f's_cmp_eq_u32 s{sHASRED}, 0')
    a(f's_cbranch_scc1 {skip}')
    rl = f'{name}_rpoll'
    rg = f'{name}_rgo'

    def rloads(regs):
        for j in range(4):
            a(f'buffer_load_dwordx4 {vr(regs[j], 4)}, v{L16}, {WS}, s{sRED} offen' + (f' offset:{1024 * j}' if j else '') + ' sc1')

    def rcheck(regs, ep):
        op = (lambda d, x, y, z: f'v_bitop3_b32 v{d}, v{x}, v{y}, v{z} bitop3:0x80') if ep else \
             (lambda d, x, y, z: f'v_or3_b32 v{d}, v{x}, v{y}, v{z}')
        for j in range(4):
            r = regs[j]
            a(f's_waitcnt vmcnt({3 - j})' + (' lgkmcnt(0)' if j == 0 else ''))
            a(f'v_mfma_f32_16x16x32_bf16 {vr(RDD, 4)}, {vr(RS, 4)}, {vr(r, 4)}, ' + (vr(RDD, 4) if j else '0'))
            a(op(T0, r, r + 2, r if j == 0 else T0))
        a(f'v_and_b32 v{T0}, 1, v{T0}')
        a(f'v_cmp_ne_u32 vcc, {ep}, v{T0}')
        a(f's_cbranch_vccz {rg}')

    if not OPT.get('noack'):
        a('s_waitcnt vmcnt(0)')
    for _ in range(int(OPT.get('rdelay', '0'))):
        a('s_nop 15')
    a(f's_cmp_eq_u32 s{sEP}, 0')
    a(f's_cbranch_scc1 {rl}0')
    for ep in (1, 0):
        a.label(f'{rl}{ep}')
        rloads(RA_)
        a(f's_add_u32 s{sSPIN}, s{sSPIN}, 1')
        rcheck(RA_, ep)
        a(f's_cmp_lt_u32 s{sSPIN}, {SPINMAX}')
        a(f's_cbranch_scc1 {rl}{ep}')
        if ep == 1:
            a(f's_branch {rg}')
    a.label(rg)
    stamp('rg')
    a('s_nop 4')
    for r in range(4):
        a(f'v_add_f32_dpp v{RDD + r}, v{RDD + r}, v{RDD + r} row_ror:8 row_mask:0xf bank_mask:0xf')
    cvt(RDD, RDD, RDD + 1)
    cvt(RDD + 1, RDD + 2, RDD + 3)
    a(f'buffer_store_dword v{RDD}, v{T3}, {WS}, s{sMW} offen{sc}')
    a(f'buffer_store_dword v{RDD + 1}, v{T3}, {WS}, s{sMW} offen offset:16{sc}')
    a.label(skip)
    if timing:
        stamp(7)
        a('s_waitcnt lgkmcnt(0)')
        assert len(used) <= 13
        OPT['used'] = used
        for i in range(len(used) - 1):
            a(f's_sub_u32 s{sTMP}, s{66 + 2 * i}, s{64 + 2 * i}')
            a(f's_add_u32 s{90 + i}, s{90 + i}, s{sTMP}')
        if OPT.get('perstep'):
            a(f's_sub_u32 s{sTMP}, s{64 + 2 * (len(used) - 1)}, s64')
            a(f'v_mov_b32 v{T0}, s{sTMP}')
            a(f's_lshl_b32 s{sTMP}, s{sSTEP}, 2')
            a(f's_and_b32 s{sTMP2}, s{sFLB}, 0x8000')
            a(f's_lshr_b32 s{sTMP2}, s{sTMP2}, 7')
            a(f's_add_u32 s{sTMP}, s{sTMP}, s{sTMP2}')
            a(f's_add_u32 s{sTMP}, s{sTMP}, 0xF40000')
            a(f's_lshl_b32 s{sTMP2}, s{sH}, 2')
            a(f's_or_b32 s{sTMP2}, s{sTMP2}, s{sWV}')
            a(f's_cmp_eq_u32 s{sTMP2}, 0')
            a(f's_cselect_b32 s{sTMP}, s{sTMP}, {OOB}')
            a(f'buffer_store_dword v{T0}, off, {WS}, s{sTMP}')
    zero(a, Q0, 24)
    if not OPT.get('nomack'):
        a('s_waitcnt vmcnt(0)')
    a('s_barrier')
    a(f's_cmp_lt_u32 s{sSTEP}, s{sNSTEP}')
    a(f's_cbranch_scc1 {top}')
    a(f's_branch {name}_exit')
    for k, ok, rt in side:
        g = GM[k]
        a.label(rt)
        a(ld[k])
        a(f's_add_u32 s{sSPIN}, s{sSPIN}, 1')
        a(f's_cmp_lt_u32 s{sSPIN}, {SPINMAX}')
        a('s_waitcnt vmcnt(0)')
        a(f's_cbranch_scc0 {ok}')
        a(f'v_max3_u32 v{T0}, v{g}, v{g + 1}, v{g + 2}')
        a(f'v_max_u32 v{T0}, v{T0}, v{g + 3}')
        a(f'v_cmp_eq_u32 vcc, -1, v{T0}')
        a(f's_cbranch_vccnz {rt}')
        a(f's_branch {ok}')
    if not OPT.get('nopub'):
        a.label(f'{name}_pub')
        for d in range(6):
            k = d >> 1
            buf = (GM[1], GM[2], GM[0])[k]
            if d < 5:
                a(f's_cmp_eq_u32 s{sMCP}, {d}')
                a(f's_cbranch_scc0 {name}_pub{d + 1}')
            if d & 1:
                a(f'v_mov_b64 {vr(V1, 2)}, -1')
                a(f'v_mov_b64 {vr(V1 + 2, 2)}, -1')
                a(f's_add_u32 s{sTMP}, s{sMCO + k}, s{sMRP}')
                a(f'buffer_store_dwordx4 {vr(V1, 4)}, v{L16}, {WS}, s{sTMP} offen{sc}')
            else:
                a(f's_add_u32 s{sTMP}, s{sMCO + k}, s{sMCB}')
                a(f'buffer_store_dwordx4 {vr(buf, 4)}, v{L16}, {WS}, s{sTMP} offen sc1')
            a(f's_branch {name}_mokpub')
            if d < 5:
                a.label(f'{name}_pub{d + 1}')
    a.label(f'{name}_exit')
```

```python
from asmlib import *
from layout import *

NWG = 256

def kernel_head(a, name):
    a.ins.append(Ins('.globl ' + name))
    a.ins.append(Ins('.p2align 8'))
    a.ins.append(Ins(f'.type {name},@function'))
    a.label(name)


def srd(a, d, ptr, size):
    a(f's_mov_b32 s{d}, s{ptr}')
    a(f's_and_b32 s{d + 1}, s{ptr + 1}, 0xffff')
    a(f's_mov_b32 s{d + 2}, {size}')
    a(f's_mov_b32 s{d + 3}, 0x00020000')


def team_select(a, sDBG, sX, sTK, sC, sROLE, sIDX, sA, sB, force_slow=False):
    L = a.newlabel('ts')
    a(f's_getreg_b32 s{sX}, hwreg(HW_REG_XCC_ID)')
    a(f's_and_b32 s{sX}, s{sX}, 7')
    a(f'v_cmp_eq_u32 vcc, 0, v0')
    a(f's_and_saveexec_b64 s[{sA}:{sA + 1}], vcc')
    a(f's_cbranch_execz {L}_na')
    a(f's_lshl_b32 s{sB}, s{sX}, 2')
    a(f'v_mov_b32 v1, s{sB}')
    a(f'v_mov_b32 v2, 1')
    a(f'buffer_atomic_add v2, v1, s[{sDBG}:{sDBG + 3}], 0 offen sc0')
    a(f'v_mov_b32 v3, 0')
    a('s_waitcnt vmcnt(0)')
    a('ds_write_b32 v3, v2')
    a('s_waitcnt lgkmcnt(0)')
    a.label(f'{L}_na')
    a(f's_mov_b64 exec, s[{sA}:{sA + 1}]')
    a('s_barrier')
    a('v_mov_b32 v3, 0')
    a('ds_read_b32 v2, v3')
    a('v_and_b32 v1, 63, v0')
    a('v_lshlrev_b32 v1, 2, v1')
    a('s_waitcnt lgkmcnt(0)')
    a(f'v_readfirstlane_b32 s{sTK}, v2')
    a(f's_mov_b32 s{sB}, 0')
    a.label(f'{L}_poll')
    a(f'buffer_load_dword v2, v1, s[{sDBG}:{sDBG + 3}], 0 offen sc1')
    a('s_waitcnt vmcnt(0)')
    for i in range(8):
        a(f'v_readlane_b32 s{sC + i}, v2, {i}')
    a(f's_add_u32 s{sA}, s{sC}, s{sC + 1}')
    for i in range(2, 8):
        a(f's_add_u32 s{sA}, s{sA}, s{sC + i}')
    a(f's_add_u32 s{sB}, s{sB}, 1')
    a(f's_cmp_gt_u32 s{sB}, 0x100000')
    a(f's_cbranch_scc1 {L}_go')
    a(f's_cmp_lt_u32 s{sA}, {NWG}')
    a(f's_cbranch_scc1 {L}_poll')
    a.label(f'{L}_go')
    a('s_barrier')
    a('s_mov_b32 s1, 1' if not force_slow else 's_mov_b32 s1, 0')
    for i in range(8):
        a(f's_cmp_eq_u32 s{sC + i}, 32')
        a('s_cselect_b32 s1, s1, 0')
    a(f's_mov_b32 s{sA}, 8')
    if not force_slow:
        for i in range(7, -1, -1):
            a(f's_cmp_ge_u32 s{sC + i}, 32')
            a(f's_cselect_b32 s{sA}, {i}, s{sA}')
    a(f's_mov_b32 s{sIDX}, s{sTK}')
    for i in range(7):
        a(f's_cmp_gt_u32 s{sX}, {i}')
        a(f's_cselect_b32 s{sB}, s{sC + i}, 0')
        a(f's_add_u32 s{sIDX}, s{sIDX}, s{sB}')
    if force_slow:
        a(f's_mov_b32 s{sIDX}, s2')
    a(f's_cmp_eq_u32 s{sA}, 8')
    a(f's_cbranch_scc1 {L}_slow')
    a(f's_mov_b32 s{sROLE}, 0')
    a(f's_cmp_ge_u32 s{sX}, s{sA}')
    a(f's_cselect_b32 s{sB}, 32, 0')
    a(f's_sub_u32 s{sIDX}, s{sIDX}, s{sB}')
    a(f's_cmp_lg_u32 s{sX}, s{sA}')
    a(f's_cbranch_scc1 {L}_done')
    a(f's_cmp_ge_u32 s{sTK}, 32')
    a(f's_cbranch_scc1 {L}_done')
    a(f's_mov_b32 s{sROLE}, 1')
    a(f's_mov_b32 s{sIDX}, s{sTK}')
    a(f's_branch {L}_done')
    a.label(f'{L}_slow')
    a(f's_mov_b32 s{sROLE}, 2')
    a(f's_cmp_lt_u32 s{sIDX}, 32')
    a(f's_cbranch_scc1 {L}_done')
    a(f's_mov_b32 s{sROLE}, 0')
    a(f's_sub_u32 s{sIDX}, s{sIDX}, 32')
    a.label(f'{L}_done')
```

```python
from asmlib import *
from layout import *
from common import *
from chain import Track, f32
import chain as C
from small import tr_lane_addr, CM_NAT, CM_PI, CM_SIG, unpack, ln_pass, rbf
from bulk import *

WS = f's[{S_WS}:{S_WS + 3}]'
sBP = 40
sOUTP = 48
S_B = 52


def wait_all(a, off, ndw, tb=100):
    L = a.newlabel('wa')
    a(f's_mov_b32 s{sT}, {off}')
    a(f'v_lshlrev_b32 v{T3}, 2, v{LN}')
    a.label(L)
    a(f'buffer_load_dwordx4 {vr(tb, 4)}, v{L16}, {WS}, s{sT} offen sc1')
    a('s_waitcnt vmcnt(0)')
    if ndw % 4:
        for k in range(4):
            a(f'v_cmp_le_u32 vcc, {ndw - k}, v{T3}' if ndw - k <= 64 else f'v_cmp_le_u32 vcc, 0x{ndw - k:x}, v{T3}')
            a(f'v_cndmask_b32 v{tb + k}, v{tb + k}, 1, vcc' if False else f'v_cndmask_b32_e64 v{tb + k}, v{tb + k}, 1, vcc')
    a(f'v_min3_u32 v{tb}, v{tb}, v{tb + 1}, v{tb + 2}')
    a(f'v_min_u32 v{tb}, v{tb}, v{tb + 3}')
    a(f'v_cmp_eq_u32 vcc, 0, v{tb}')
    if ndw < 256 and ndw % 4 == 0:
        a(f's_and_b64 vcc, vcc, {(1 << (ndw // 4)) - 1}')
    a(f's_add_u32 s{sSPIN}, s{sSPIN}, 1')
    a(f's_cbranch_vccz {L}_ok')
    a('s_sleep 4')
    a(f's_cmp_lt_u32 s{sSPIN}, {C.SPINMAX}')
    a(f's_cbranch_scc1 {L}')
    a.label(f'{L}_ok')


def set_flag(a, off_sgpr):
    a('s_waitcnt vmcnt(0)')
    a('s_barrier')
    L = a.newlabel('sf')
    a(f's_cmp_eq_u32 s{sWV}, 0')
    a(f's_cbranch_scc0 {L}')
    a(f'v_mov_b32 v{T2}, 1')
    a(f'buffer_store_dword v{T2}, off, {WS}, s{off_sgpr} sc1')
    a.label(L)


def ln2_role(a, lb, fb):
    sK, sSEG = sBLK, sR
    a(f's_sub_u32 s{sK}, s{sRI}, {NWO}')
    a(f's_lshr_b32 s{sSEG}, s{sK}, 2')
    a(f's_and_b32 s{sK}, s{sK}, 3')
    AD = 6
    a('v_lshrrev_b32 v7, 5, v0')
    a(f's_lshl_b32 s{sT}, s{sK}, 3')
    a(f'v_add_u32 v7, s{sT}, v7')
    a(f'v_mul_u32_u24 v{AD}, 0x500, v7')
    a('v_and_b32 v7, 31, v0')
    a(f'v_lshl_add_u32 v{AD}, v7, 3, v{AD}')
    top = a.newlabel('ln2')
    a.label(top)
    a(f's_lshl_b32 s{sT}, s{sSEG}, 6')
    a(f's_add_u32 s{sT}, s{sT}, {fb + FL_X1}')
    wait_flag(a, sT, 20)
    P, X, S, T, U = 10, 20, 7, 8, 9
    a(f's_mul_i32 s{sXO}, s{sSEG}, 40960')
    a(f's_add_u32 s{sU}, s{sXO}, {lb + L_X1}')
    for j in range(5):
        a(f'buffer_load_dwordx2 {vr(P + 2 * j, 2)}, v{AD}, {WS}, s{sU} offen offset:{256 * j} sc1')
    a('s_waitcnt vmcnt(0)')
    for _ in range(2):
        unpack(a, X, P, 10)
        ln_pass(a, X, P, S, T, U)
    a(f's_add_u32 s{sU}, s{sXO}, {lb + L_HT}')
    for j in range(5):
        a(f'buffer_store_dwordx2 {vr(P + 2 * j, 2)}, v{AD}, {WS}, s{sU} offen offset:{256 * j} sc1')
    a(f's_lshl_b32 s{sT}, s{sSEG}, 4')
    a(f's_lshl_b32 s{sU}, s{sK}, 2')
    a(f's_add_u32 s{sT}, s{sT}, s{sU}')
    a(f's_add_u32 s{sT}, s{sT}, {fb + FL_HH}')
    set_flag(a, sT)
    a(f's_add_u32 s{sSEG}, s{sSEG}, {NLN // 4}')
    a(f's_cmp_lt_u32 s{sSEG}, 64')
    a(f's_cbranch_scc1 {top}')


def gelu(a, b, n, u, v, c1, c2):
    for r in range(n):
        a(f'v_mul_f32 v{u + r}, v{b + r}, v{b + r}')
    for r in range(n):
        a(f'v_mov_b32 v{v + r}, s{c1}')
        a(f'v_fmac_f32 v{v + r}, s{c2}, v{u + r}')
    for r in range(n):
        a(f'v_mul_f32 v{u + r}, v{v + r}, v{b + r}')
    for r in range(n):
        a(f'v_exp_f32 v{u + r}, v{u + r}')
    for r in range(n):
        a(f'v_add_f32 v{u + r}, 1.0, v{u + r}')
    for r in range(n):
        a(f'v_rcp_f32 v{u + r}, v{u + r}')
    for r in range(n):
        a(f'v_mul_f32 v{b + r}, v{b + r}, v{u + r}')


def w2f_prep(a):
    done = a.newlabel('w2d')
    sK = sBLK
    a(f's_sub_u32 s{sK}, s{sRI}, {NWO + NLN}')
    a(f's_cmp_ge_u32 s{sK}, 64')
    a(f's_cbranch_scc1 {done}')
    srd(a, S_WA, sBP + 4, 2048 * 1728 * 2)
    VS, RA = 6, 7
    a(f'v_lshrrev_b32 v{T1}, 2, v{LN}')
    a(f'v_lshlrev_b32 v{T1}, 12, v{T1}')
    a(f'v_and_b32 v{T2}, 3, v{LN}')
    a(f'v_lshl_add_u32 v{VS}, v{T2}, 4, v{T1}')
    tr_lane_addr(a, RA, LN, T1, T2, 64, CM_PI, None)
    a(f's_lshl_b32 s{sV}, s{sWV}, 15')
    a(f'v_add_u32 v{RA}, s{sV}, v{RA}')
    a(f's_mul_i32 s{sWO}, s{sWV}, {27 * 16 * 4096}')
    a(f's_lshl_b32 s{sU}, s{sK}, 6')
    a(f's_add_u32 s{sWO}, s{sWO}, s{sU}')
    a('s_barrier')
    for i in range(27):
        a(f's_add_u32 m0, s{sV}, {i * 1024}')
        a(f'buffer_load_dwordx4 v{VS}, s[{S_WA}:{S_WA + 3}], s{sWO} offen lds')
        a(f's_add_u32 s{sWO}, s{sWO}, {16 * 4096}')
    a(f's_mul_i32 s{sXO}, s{sK}, {108 * 1024}')
    a(f's_mul_i32 s{sU}, s{sWV}, {27 * 1024}')
    a(f's_add_u32 s{sXO}, s{sXO}, s{sU}')
    a(f's_add_u32 s{sXO}, s{sXO}, {WS_W2F}')
    a('s_waitcnt vmcnt(0)')
    for i in range(27):
        for u in range(2):
            a(f'ds_read_b64_tr_b16 {vr(16 + 4 * i + 2 * u, 2)}, v{RA} offset:{i * 1024 + 256 * u}')
        if i % 7 == 6:
            a('s_waitcnt lgkmcnt(0)')
    a('s_waitcnt lgkmcnt(0)')
    for i in range(27):
        if i % 4 == 0 and i:
            a(f's_add_u32 s{sXO}, s{sXO}, 4096')
        a(f'buffer_store_dwordx4 {vr(16 + 4 * i, 4)}, v{L16}, {WS}, s{sXO} offen offset:{(i % 4) * 1024} sc1')
    a(f's_lshl_b32 s{sT}, s{sK}, 2')
    a(f's_add_u32 s{sT}, s{sT}, {WS_FLAGS + FL_W2}')
    set_flag(a, sT)
    a.label(done)


def wait_words(a, off_sgpr, n, tmp):
    L = a.newlabel('ww')
    a.label(L)
    a(f'buffer_load_dword v{tmp}, v{T3}, {WS}, s{off_sgpr} offen sc1')
    a('s_waitcnt vmcnt(0)')
    a(f'v_cmp_eq_u32 vcc, 0, v{tmp}')
    a(f's_add_u32 s{sSPIN}, s{sSPIN}, 1')
    if n < 32:
        a(f's_and_b32 s{sU}, vcc_lo, {(1 << n) - 1}')
        a(f's_cbranch_scc0 {L}_ok')
    else:
        assert n == 64
        a(f's_cbranch_vccz {L}_ok')
    a('s_sleep 2')
    a(f's_cmp_lt_u32 s{sSPIN}, {C.SPINMAX}')
    a(f's_cbranch_scc1 {L}')
    a.label(f'{L}_ok')


def g1p_role(a, lb, fb):
    sXT, sYT, sSEG, sFL = sBLK, sH, sR, sKS
    a(f's_sub_u32 s{sT}, s{sRI}, {NWO + NLN}')
    a(f's_mul_i32 s{sXT}, s{sT}, 13108')
    a(f's_lshr_b32 s{sXT}, s{sXT}, 16')
    a(f's_mul_i32 s{sU}, s{sXT}, 5')
    a(f's_sub_u32 s{sYT}, s{sT}, s{sU}')
    srd(a, S_WA, sBP, 2048 * 1728 * 2)
    srd(a, S_B, sBP + 2, 1728 * 2)
    VX, VY, RX, RY = [6, 7], [8, 9], 10, 11
    a(f's_mov_b32 s{sV}, 5462')
    a(f's_movk_i32 s{sU}, 3456')
    a(f's_mul_i32 s{sT}, s{sXT}, 192')
    for k in range(2):
        a(f'v_add_u32 v{T1}, {256 * k}, v0')
        a(f'v_mul_lo_u32 v{T2}, v{T1}, s{sV}')
        a(f'v_lshrrev_b32 v{T2}, 16, v{T2}')
        a(f'v_mul_u32_u24 v{T3}, 12, v{T2}')
        a(f'v_sub_u32 v{T1}, v{T1}, v{T3}')
        a(f'v_mul_lo_u32 v{T2}, v{T2}, s{sU}')
        a(f'v_lshl_add_u32 v{T2}, v{T1}, 4, v{T2}')
        a(f'v_add_u32 v{VX[k]}, s{sT}, v{T2}')
    a(f's_lshl_b32 s{sT}, s{sYT}, 8')
    for k in range(2):
        a(f'v_add_u32 v{T1}, {256 * k}, v0')
        a(f'v_lshrrev_b32 v{T2}, 4, v{T1}')
        a(f'v_and_b32 v{T1}, 15, v{T1}')
        a(f'v_and_b32 v{T3}, 3, v{T2}')
        a(f'v_lshlrev_b32 v{T3}, 2, v{T3}')
        a(f'v_xor_b32 v{T1}, v{T1}, v{T3}')
        a(f'v_mul_u32_u24 v{T2}, 0x500, v{T2}')
        a(f'v_lshl_add_u32 v{T2}, v{T1}, 4, v{T2}')
        a(f'v_add_u32 v{VY[k]}, s{sT}, v{T2}')
    tr_lane_addr(a, RX, LN, T1, T2, 192, CM_SIG)
    tr_lane_addr(a, RY, LN, T1, T2, 256, CM_PI, w_swz(a))
    a(f's_lshl_b32 s{sT}, s{sWV}, 6')
    a(f'v_xor_b32 v{RY}, s{sT}, v{RY}')
    a(f'v_lshlrev_b32 v{T3}, 2, v{LN}')
    BI = 40
    a(f'v_lshrrev_b32 v{T1}, 5, v{LN}')
    a(f'v_lshlrev_b32 v{T1}, 4, v{T1}')
    a(f's_mul_i32 s{sT}, s{sXT}, 192')
    for i in range(6):
        a(f'buffer_load_dwordx4 {vr(BI + 4 * i, 4)}, v{T1}, s[{S_B}:{S_B + 3}], s{sT} offen offset:{32 * i}')
    for r in range(48):
        a(f'v_accvgpr_write_b32 a{r}, 0')
    XL = [0, 8192]
    YL = 16384
    a(f's_mov_b32 s{sXO}, 0')
    a(f's_mov_b32 s{sWO}, {lb + L_HT}')
    a(f's_mov_b32 s{sFL}, {fb + FL_HH}')
    a(f's_mov_b32 s{sSEG}, 0')

    def dx(par):
        for k in range(2):
            a(f's_add_u32 m0, s{sLW}, {XL[par] + 4096 * k}')
            a(f'buffer_load_dwordx4 v{VX[k]}, s[{S_WA}:{S_WA + 3}], s{sXO} offen lds')
        a(f's_add_u32 s{sXO}, s{sXO}, {32 * 3456}')

    a('s_barrier')
    dx(0)
    top = a.newlabel('g1p')
    a.label(top)
    FRG = 16
    for par in range(2):
        wait_words(a, sFL, 4, 12)
        for k in range(2):
            a(f's_add_u32 m0, s{sLW}, {YL + 4096 * k}')
            a(f'buffer_load_dwordx4 v{VY[k]}, {WS}, s{sWO} offen sc1 lds')
        dx(1 - par)
        a(f's_add_u32 s{sWO}, s{sWO}, 40960')
        a(f's_add_u32 s{sFL}, s{sFL}, 16')
        a('s_waitcnt vmcnt(2)')
        a('s_barrier')
        for ks in range(2):
            b = FRG if ks == 0 else 12 + 0
            b = FRG + 0 if ks == 0 else 64
            for u in range(2):
                a(f'ds_read_b64_tr_b16 {vr(b + 12 + 2 * u, 2)}, v{RY} offset:{YL + (16 * ks + 4 * u) * 256}')
            for x in range(3):
                for u in range(2):
                    a(f'ds_read_b64_tr_b16 {vr(b + 4 * x + 2 * u, 2)}, v{RX} offset:{XL[par] + (16 * ks + 4 * u) * 192 + 64 * x}')
        for ks in range(2):
            b = FRG if ks == 0 else 64
            a(f's_waitcnt lgkmcnt({8 if ks == 0 else 0})')
            for x in range(3):
                acc = ar(16 * x, 16)
                a(f'v_mfma_f32_32x32x16_bf16 {acc}, {vr(b + 4 * x, 4)}, {vr(b + 12, 4)}, {acc}')
        a('s_barrier')
    a(f's_add_u32 s{sSEG}, s{sSEG}, 2')
    a(f's_cmp_lt_u32 s{sSEG}, 64')
    a(f's_cbranch_scc1 {top}')
    a(f's_lshl_b32 s{sT}, s{sYT}, 2')
    a(f's_add_u32 s{sT}, s{sT}, s{sWV}')
    a(f's_mul_i32 s{sV}, s{sT}, {108 * 1024}')
    a(f's_mul_i32 s{sT}, s{sXT}, 6144')
    a(f's_add_u32 s{sV}, s{sV}, s{sT}')
    a(f's_add_u32 s{sV}, s{sV}, {lb + L_U}')
    a(f's_mov_b32 s{sT}, {f32(-2.0 * 1.4426950408889634 * 0.7978845608028654)}')
    a(f's_mov_b32 s{sXO}, {f32(-2.0 * 1.4426950408889634 * 0.7978845608028654 * 0.044715)}')
    b, u, v, PK = 64, 80, 96, 16
    for x in range(3):
        pk = PK + 8 * x
        for r in range(16):
            a(f'v_accvgpr_read_b32 v{b + r}, a{16 * x + r}')

        def pack():
            for r in range(8):
                a(f'v_cvt_pk_bf16_f32 v{pk + r}, v{b + 2 * r}, v{b + 2 * r + 1}')
        pack()
        unpack(a, b, pk, 8)
        unpack(a, u, BI + 8 * x, 8)
        for r in range(0, 16, 2):
            a(f'v_pk_add_f32 {vr(b + r, 2)}, {vr(b + r, 2)}, {vr(u + r, 2)}')
        pack()
        unpack(a, b, pk, 8)
        gelu(a, b, 8, u, BI + 8 * x, sT, sXO)
        gelu(a, b + 8, 8, u + 8, BI + 8 * x, sT, sXO)
        pack()
        if x == 2:
            a(f's_add_u32 s{sV}, s{sV}, 4096')
        for m in range(2):
            a(f'buffer_store_dwordx4 {vr(pk + 4 * m, 4)}, v{L16}, {WS}, s{sV} offen offset:{((2 * x + m) % 4) * 1024} sc1')
    a(f's_lshl_b32 s{sT}, s{sRI}, 2')
    a(f's_add_u32 s{sT}, s{sT}, {fb + FL_U - 4 * (NWO + NLN)}')
    set_flag(a, sT)


UV0, STG = 56, 24
WLDS = 24576
sW = [72, 73, 74, 75]
sUu = [76, 77]
sOW, sOU = 78, 79


def adv27(a, r):
    a(f's_add_u32 s{r}, s{r}, 4096')
    a(f's_cmp_eq_u32 s{r}, {27 * 4096}')
    a(f's_cselect_b32 s{r}, 0, s{r}')


def wreg(i, x):
    if i < 8 or 16 <= i < 24:
        return ar(128 + 16 * (i % 8) + 4 * x, 4)
    if i < 16:
        return vr(STG + 16 * (i & 1) + 4 * x, 4)
    return vr(UV0 + 16 + 16 * (i - 24) + 4 * x, 4)


def g2_tile(a):
    a(f's_mul_i32 s{sBLK}, s{sGI}, 6554')
    a(f's_lshr_b32 s{sBLK}, s{sBLK}, 16')
    a(f's_mul_i32 s{sT}, s{sBLK}, 10')
    a(f's_sub_u32 s{sH}, s{sGI}, s{sT}')


def g2_pre(a, first):
    g2_tile(a)
    a(f'v_lshlrev_b32 v{T3}, 2, v{LN}')
    if first:
        a(f's_lshl_b32 s{sT}, s{sBLK}, 4')
        a(f's_add_u32 s{sT}, s{sT}, {WS_FLAGS + FL_W2}')
        wait_words(a, sT, 4, 12)
    a(f's_mul_i32 s{sT}, s{sBLK}, {4 * 108 * 1024}')
    a(f's_add_u32 s{sT}, s{sT}, s{sLW}')
    for x in range(4):
        a(f's_add_u32 s{sW[x]}, s{sT}, {WS_W2F + x * 108 * 1024}')
    a(f's_mul_i32 s{sOW}, s{sBLK}, 21846')
    a(f's_lshr_b32 s{sOW}, s{sOW}, 16')
    a(f's_mul_i32 s{sOW}, s{sOW}, 3')
    a(f's_sub_u32 s{sOW}, s{sBLK}, s{sOW}')
    a(f's_mul_i32 s{sOW}, s{sOW}, {9 * 4096 if not C.OPT.get("norot") else 0}')
    a(f's_mov_b32 s{sOU}, s{sOW}')
    a(f's_lshl_b32 s{sU}, s{sWV}, 15')
    for i in range(16):
        if i == 12:
            a('s_waitcnt vmcnt(32)')
        for x in range(4):
            a(f's_add_u32 s{sT}, s{sW[x]}, s{sOW}')
            if i < 8:
                a(f'buffer_load_dwordx4 {wreg(i, x)}, v{L16}, {WS}, s{sT} offen sc1')
            else:
                a(f's_add_u32 m0, s{sU}, {WLDS + (i - 8) * 4096 + x * 1024}')
                a(f'buffer_load_dwordx4 v{L16}, {WS}, s{sT} offen sc1 lds')
        adv27(a, sOW)
    if not C.OPT.get('nowarm'):
        a(f's_mov_b32 s{sV}, s{sOW}')
        for i in range(11):
            lab = a.newlabel('wm')
            a(f's_cmp_eq_u32 s{sH}, {i % 10}')
            a(f's_cbranch_scc0 {lab}')
            for x in range(4):
                a(f's_add_u32 s{sT}, s{sW[x]}, s{sV}')
                a(f'buffer_load_dwordx4 v[12:15], v{L16}, {WS}, s{sT} offen sc1')
            a.label(lab)
            adv27(a, sV)
        a('s_waitcnt vmcnt(0)')


def g2_phase(a, lb, fb, final):
    sXT, sYT = sBLK, sH
    g2_tile(a)
    srd(a, S_B, sBP + 6, 2048 * 2)
    a(f's_mul_i32 s{sT}, s{sYT}, {2 * 108 * 1024}')
    a(f's_add_u32 s{sT}, s{sT}, s{sLW}')
    for y in range(2):
        a(f's_add_u32 s{sUu[y]}, s{sT}, {lb + L_U + y * 108 * 1024}')
    tr = Track(a)

    def ureg(i, y):
        return vr(UV0 + 8 * (i % 25) + 4 * y, 4)

    def ldw(i):
        for x in range(4):
            a(f's_add_u32 s{sT}, s{sW[x]}, s{sOW}')
            tr.vmem(f'buffer_load_dwordx4 {wreg(i, x)}, v{L16}, {WS}, s{sT} offen' + ('' if AQ else ' sc1'), ('w', i))
        adv27(a, sOW)

    def ldu(i):
        for y in range(2):
            a(f's_add_u32 s{sT}, s{sUu[y]}, s{sOU}')
            tr.vmem(f'buffer_load_dwordx4 {ureg(i, y)}, v{L16}, {WS}, s{sT} offen' + ('' if AQ else ' sc1'), ('u', i))
        adv27(a, sOU)

    CO, DO, BI, XA, RES = 6, 7, 8, 9, 24
    a(f'v_and_b32 v{T1}, 31, v{LN}')
    a(f'v_lshrrev_b32 v{T2}, 5, v{LN}')
    a(f'v_and_b32 v{CO}, 3, v{LN}')
    a(f'v_bfe_u32 v10, v{LN}, 3, 2')
    a(f'v_lshl_add_u32 v{CO}, v10, 2, v{CO}')
    a(f'v_bfe_u32 v10, v{LN}, 2, 1')
    a(f'v_lshl_add_u32 v{CO}, v10, 4, v{CO}')
    a(f's_lshl_b32 s{sT}, s{sXT}, 2')
    a(f's_add_u32 s{sT}, s{sT}, s{sWV}')
    a(f's_lshl_b32 s{sU}, s{sT}, 5')
    a(f'v_add_u32 v{CO}, s{sU}, v{CO}')
    a(f's_movk_i32 s{sU}, 1280')
    a(f'v_mul_lo_u32 v{DO}, v{CO}, s{sU}')
    a(f'v_lshl_add_u32 v{DO}, v{T2}, 5, v{DO}')
    a(f's_lshl_b32 s{sU}, s{sYT}, 7')
    a(f'v_add_u32 v{DO}, s{sU}, v{DO}')
    a(f'v_lshlrev_b32 v{XA}, 10, v{T2}')
    a(f'v_lshl_add_u32 v{XA}, v{T1}, 4, v{XA}')
    a(f's_mul_i32 s{sV}, s{sT}, 40960')
    a(f's_lshl_b32 s{sU}, s{sYT}, 12')
    a(f's_add_u32 s{sV}, s{sV}, s{sU}')
    a(f's_add_u32 s{sV}, s{sV}, {lb + L_X2}')
    a(f'v_lshlrev_b32 v{T1}, 1, v{CO}')
    for r in range(128):
        a(f'v_accvgpr_write_b32 a{r}, 0')
    tr.vmem(f'buffer_load_ushort v{BI}, v{T1}, s[{S_B}:{S_B + 3}], 0 offen', 'bias')
    wait_all(a, fb + FL_U, NG1, 12)
    AQ = 'u' in C.OPT.get('aq', '')
    if AQ:
        a('buffer_inv sc1')
    wstamp(a, 6)
    tr.vm = []
    late = []
    for i in range(25):
        ldu(i)
    a(f's_lshl_b32 s{sU}, s{sWV}, 15')
    a(f's_add_u32 s{sU}, s{sU}, {WLDS}')
    a(f'v_add_u32 v10, s{sU}, v{L16}')

    def stage(i):
        for x in range(4):
            tr.ds(f'ds_read_b128 {wreg(i, x)}, v10 offset:{(i - 8) * 4096 + x * 1024}', ('w', i))
    stage(8)
    stage(9)
    for i in range(27):
        tr.wait_vm(('w', i))
        tr.wait_vm(('u', i))
        tr.wait_lg(('w', i))
        for x in range(4):
            for y in range(2):
                acc = ar(16 * (2 * x + y), 16)
                a(f'v_mfma_f32_32x32x16_bf16 {acc}, {ureg(i, y)}, {wreg(i, x)}, {acc}')
        if i < 8:
            ldw(i + 16)
        if i < 2:
            pass
        if i in (3, 5, 7):
            late.append(24 + (i - 3) // 2)
        if i == 8:
            for j in late:
                ldw(j)
            ldu(25)
            ldu(26)
        if 8 <= i < 14:
            stage(i + 2)
        if i == 16:
            a(f's_mov_b32 s{sU}, {lb + L_X1}')
            for y in range(2):
                for q in range(2):
                    tr.vmem(f'buffer_load_dwordx4 {vr(RES + 8 * y + 4 * q, 4)}, v{DO}, {WS}, s{sU} offen offset:{64 * y + 16 * q} sc1', 'res')
    tr.drain_vm()
    wstamp(a, 4)
    a('s_barrier')
    WA = [12, 13]
    a(f's_lshl_b32 s{sT}, s{sWV}, 12')
    a(f'v_add_u32 v{WA[0]}, s{sT}, v{L16}')
    a(f'v_add_u32 v{WA[1]}, 0x10000, v{WA[0]}')
    a(f's_lshl_b32 s{sT}, s{sWV}, 15')
    a(f'v_add_u32 v14, s{sT}, v{L16}')
    a('s_nop 7')
    for x in range(4):
        for y in range(2):
            for q in range(4):
                off = x * 32768 + y * 16384 + q * 1024
                tr.ds(f'ds_write_b128 v{WA[off >> 16]}, {ar(16 * (2 * x + y) + 4 * q, 4)} offset:{off & 0xffff}')
    tr.drain_lg()
    a('s_barrier')
    RB = 100
    for j in range(2):
        for w in range(4):
            for q in range(4):
                tr.ds(f'ds_read_b128 {vr(RB + 64 * j + 16 * w + 4 * q, 4)}, v14 offset:{j * 16384 + w * 4096 + q * 1024}', ('rr', j, w))
    a(f'v_lshlrev_b32 v{BI}, 16, v{BI}')
    if final:
        srd(a, S_WA, sOUTP, 2048 * 640 * 2)
    for j in range(2):
        b = RB + 64 * j
        tr.wait_lg(('rr', j, 1))
        for h in range(0, 16, 2):
            a(f'v_pk_add_f32 {vr(b + h, 2)}, {vr(b + h, 2)}, {vr(b + 16 + h, 2)}')
        tr.wait_lg(('rr', j, 3))
        for h in range(0, 16, 2):
            a(f'v_pk_add_f32 {vr(b + 32 + h, 2)}, {vr(b + 32 + h, 2)}, {vr(b + 48 + h, 2)}')
        for h in range(0, 16, 2):
            a(f'v_pk_add_f32 {vr(b + h, 2)}, {vr(b + h, 2)}, {vr(b + 32 + h, 2)}')
        PK = b + 16

        def pack():
            for r in range(8):
                a(f'v_cvt_pk_bf16_f32 v{PK + r}, v{b + 2 * r}, v{b + 2 * r + 1}')
        pack()
        unpack(a, b, PK, 8)
        for r in range(16):
            a(f'v_add_f32 v{b + r}, v{b + r}, v{BI}')
        pack()
        unpack(a, b, PK, 8)
        unpack(a, b + 32, RES + 8 * j, 8)
        for r in range(0, 16, 2):
            a(f'v_pk_add_f32 {vr(b + r, 2)}, {vr(b + r, 2)}, {vr(b + 32 + r, 2)}')
        pack()
        if j == 0 and not final and not C.OPT.get('nog2prio'):
            lab = a.newlabel('g2p')
            a(f's_cmp_eq_u32 s{sXT}, 0')
            a(f's_cbranch_scc1 {lab}')
            a(f's_mov_b32 s{sT}, {fb + FL_X2}')
            wait_flag(a, sT, 10)
            a.label(lab)
        for q in range(2):
            if final:
                a(f'buffer_store_dwordx4 {vr(PK + 4 * q, 4)}, v{DO}, s[{S_WA}:{S_WA + 3}], 0 offen offset:{64 * j + 16 * q}')
            else:
                a(f'buffer_store_dwordx4 {vr(PK + 4 * q, 4)}, v{XA}, {WS}, s{sV} offen offset:{2048 * j + 512 * q} sc1')
    if not final:
        a(f's_lshl_b32 s{sT}, s{sXT}, 2')
        a(f's_add_u32 s{sT}, s{sT}, {fb + FL_X2}')
        signal(a, sT)


def red8(a, x, t):
    a(f'v_add_f32_dpp v{x}, v{x}, v{x} row_ror:8 row_mask:0xf bank_mask:0xf')
    a(f'v_mov_b32 v{t}, v{x}')
    a(f'v_permlane16_swap_b32 v{x}, v{t}')
    a(f'v_add_f32 v{x}, v{x}, v{t}')
    a(f'v_mov_b32 v{t}, v{x}')
    a(f'v_permlane32_swap_b32 v{x}, v{t}')
    a(f'v_add_f32 v{x}, v{x}, v{t}')


def ln1f_phase(a, lb_src, lb_dst, fb_src, fb_dst, rnd, from_x=False):
    sUN, sF = sR, sSC
    AD, LW, LR = 6, 7, 8
    P, X, S, T, U = 12, 24, 9, 10, 11
    a(f'v_lshrrev_b32 v{T1}, 3, v0')
    a(f'v_lshlrev_b32 v{AD}, 9, v{T1}')
    a(f'v_and_b32 v{T1}, 7, v0')
    a(f'v_lshl_add_u32 v{AD}, v{T1}, 4, v{AD}')
    a(f'v_lshlrev_b32 v{LR}, 4, v{T1}')
    a(f'v_add_u32 v{LR}, {122880}, v{LR}')
    a(f's_lshl_b32 s{sT}, s{sWV}, 2')
    a(f'v_add_u32 v{LW}, s{sT}, v{LR}')
    a(f's_cmp_lt_u32 s{sWV}, 2')
    a(f's_cselect_b32 s{sF}, 1.0, 0')
    a(f's_cselect_b32 s{sV}, {2 * 16384}, 0x60000000' if False else f's_mov_b32 s{sV}, 0x60000000')
    a(f's_cselect_b32 s{sV}, {2 * 16384}, s{sV}')
    top = a.newlabel('lnf')
    a(f's_add_u32 s{sUN}, s51, {32 if rnd == 0 else 0}')
    a.label(top)
    a(f's_lshr_b32 s{sT}, s{sUN}, 4')
    a(f's_lshl_b32 s{sBLK}, s{sT}, 2')
    if not from_x:
        a(f's_add_u32 s{sT}, s{sBLK}, {fb_src + FL_X2}')
        wait_flag(a, sT, 10)
    a(f's_lshr_b32 s{sXO}, s{sUN}, 2')
    a(f's_mul_i32 s{sXO}, s{sXO}, 40960')
    a(f's_and_b32 s{sT}, s{sUN}, 3')
    a(f's_lshl_b32 s{sT}, s{sT}, 7')
    a(f's_add_u32 s{sXO}, s{sXO}, s{sT}')
    if from_x:
        srd(a, S_X, sXP, 2048 * 640 * 2)
        a(f's_lshr_b32 s{sU}, s{sUN}, 2')
        a(f's_lshl_b32 s{sU}, s{sU}, 5')
        a(f's_and_b32 s{sT}, s{sUN}, 3')
        a(f's_lshl_b32 s{sT}, s{sT}, 2')
        a(f's_add_u32 s{sU}, s{sU}, s{sT}')
        a(f's_mul_i32 s{sU}, s{sU}, 1280')
        a(f'v_bfe_u32 v{T1}, v0, 2, 1')
        a(f'v_lshlrev_b32 v{T1}, 4, v{T1}')
        a(f'v_and_b32 v{T2}, 3, v0')
        a(f'v_add_u32 v{T1}, v{T1}, v{T2}')
        a(f'v_mul_u32_u24 v{T1}, 0x500, v{T1}')
        a(f'v_lshrrev_b32 v{T2}, 3, v0')
        a(f'v_lshl_add_u32 v{T1}, v{T2}, 4, v{T1}')
        a(f's_add_u32 s{sT}, s{sU}, s{sV}')
        a(f's_cmp_lt_u32 s{sWV}, 2')
        a(f's_cselect_b32 s{sT}, s{sU}, s{sT}')
        for i in range(3):
            a(f'buffer_load_dwordx4 {vr(P + 4 * i, 4)}, v{T1}, s[{S_X}:{S_X + 3}], s{sU if i < 2 else sT} offen offset:{512 * i}')
    for i in range(3 if not from_x else 0):
        if i < 2:
            a(f's_add_u32 s{sU}, s{sXO}, {lb_src + L_X2 + i * 16384}')
        else:
            a(f's_add_u32 s{sU}, s{sXO}, s{sV}')
            a(f's_add_u32 s{sU}, s{sU}, {lb_src + L_X2}')
        a(f'buffer_load_dwordx4 {vr(P + 4 * i, 4)}, v{AD}, {WS}, s{sU} offen sc1')
    a('s_waitcnt vmcnt(0)')
    unpack(a, X, P, 12)
    a(f'v_add_f32 v{S}, v{X}, v{X + 1}')
    a(f'v_add_f32 v{T}, v{X + 2}, v{X + 3}')
    for i in range(4, 24, 2):
        a(f'v_add_f32 v{S}, v{S}, v{X + i}')
        a(f'v_add_f32 v{T}, v{T}, v{X + i + 1}')
    a(f'v_add_f32 v{S}, v{S}, v{T}')
    red8(a, S, T)

    def xwave(x, off):
        a(f'ds_write_b32 v{LW}, v{x} offset:{off}')
        a('s_waitcnt lgkmcnt(0)')
        a('s_barrier')
        a(f'ds_read_b128 v[48:51], v{LR} offset:{off}')
        a('s_waitcnt lgkmcnt(0)')
        a('v_add_f32 v48, v48, v49')
        a('v_add_f32 v50, v50, v51')
        a(f'v_add_f32 v{x}, v48, v50')
    xwave(S, 0)
    a(f'v_mul_f32 v{S}, {f32(1.0 / 640)}, v{S}')
    a(f'v_mov_b32 v{U}, 0')
    a(f'v_mov_b32 v52, 0')
    for i in range(24):
        a(f'v_sub_f32 v{T}, v{X + i}, v{S}')
        a(f'v_fmac_f32 v{U if i < 16 else 52}, v{T}, v{T}')
    a(f'v_fmac_f32 v{U}, s{sF}, v52')
    red8(a, U, T)
    xwave(U, 128)
    a(f'v_mul_f32 v{U}, {f32(1.0 / 640)}, v{U}')
    rbf(a, S)
    rbf(a, U)
    a(f'v_add_f32 v{U}, {f32(1e-5)}, v{U}')
    rbf(a, U)
    a(f'v_sqrt_f32 v{U}, v{U}')
    rbf(a, U)
    a(f'v_rcp_f32 v{U}, v{U}')
    for i in range(12):
        a(f'v_sub_f32 v{X + 2 * i}, v{X + 2 * i}, v{S}')
        a(f'v_sub_f32 v{X + 2 * i + 1}, v{X + 2 * i + 1}, v{S}')
        a(f'v_cvt_pk_bf16_f32 v{P + i}, v{X + 2 * i}, v{X + 2 * i + 1}')
    for i in range(12):
        a(f'v_lshlrev_b32 v{X + 2 * i}, 16, v{P + i}')
        a(f'v_and_b32 v{X + 2 * i + 1}, 0xffff0000, v{P + i}')
        a(f'v_mul_f32 v{X + 2 * i}, v{X + 2 * i}, v{U}')
        a(f'v_mul_f32 v{X + 2 * i + 1}, v{X + 2 * i + 1}, v{U}')
        a(f'v_cvt_pk_bf16_f32 v{P + i}, v{X + 2 * i}, v{X + 2 * i + 1}')
    for i in range(3):
        if i < 2:
            a(f's_add_u32 s{sU}, s{sXO}, {lb_dst + L_XN + i * 16384}')
        else:
            a(f's_add_u32 s{sU}, s{sXO}, s{sV}')
            a(f's_add_u32 s{sU}, s{sU}, {lb_dst + L_XN}')
        a(f'buffer_store_dwordx4 {vr(P + 4 * i, 4)}, v{AD}, {WS}, s{sU} offen sc1')
    a(f's_add_u32 s{sT}, s{sBLK}, {fb_dst + FL_XN}')
    signal(a, sT)
    if rnd:
        a(f's_cmp_lt_u32 s{sUN}, 32')
        a(f's_cselect_b32 s{sT}, 160, 32')
        a(f's_add_u32 s{sUN}, s{sUN}, s{sT}')
        a(f's_cmp_lt_u32 s{sUN}, 256')
        a(f's_cbranch_scc1 {top}')


S_DBG = 76


def init_stores(a, sX):
    a(f's_lshl_b32 s{sT}, s{sGI}, 12')
    a(f'v_lshlrev_b32 v40, 4, v0')
    a(f'v_add_u32 v40, s{sT}, v40')
    for r in range(4):
        a(f'v_mov_b32 v{44 + r}, -1')
        a(f'v_mov_b32 v{48 + r}, 0')
    a('v_mov_b32 v41, 0x80000000')
    for base in (LAYER0 + L_MC, LAYER0 + LSTRIDE + L_MC):
        a(f's_mov_b32 s{sU}, {base}')
        a(f'buffer_store_dwordx4 v[44:47], v40, {WS}, s{sU} offen sc1')
    a(f'v_cmp_gt_u32 vcc, 0x{WS_STREAM - WS_MRING:x}, v40')
    a('v_cndmask_b32 v42, v41, v40, vcc')
    a(f's_mov_b32 s{sU}, {WS_MRING}')
    a(f'buffer_store_dwordx4 v[44:47], v42, {WS}, s{sU} offen sc1')
    a(f'v_cmp_gt_u32 vcc, 0x{WS_M0 - WS_FLAGS:x}, v40')
    a('v_cndmask_b32 v42, v41, v40, vcc')
    a(f'buffer_store_dwordx4 v[48:51], v42, {WS}, 0 offen sc1')
    srd(a, S_B, 66, 10240)
    a('v_lshrrev_b32 v43, 4, v40')
    a('v_and_b32 v52, 7, v43')
    a('v_mul_u32_u24 v52, 0x500, v52')
    a('v_lshrrev_b32 v53, 3, v43')
    a('v_lshl_add_u32 v52, v53, 4, v52')
    a('v_cmp_gt_u32 vcc, 640, v43')
    a('v_cndmask_b32 v52, v41, v52, vcc')
    a('v_cndmask_b32 v53, v41, v40, vcc')
    a(f'buffer_load_dwordx4 v[56:59], v52, s[{S_B}:{S_B + 3}], 0 offen')
    a(f's_mov_b32 s{sU}, {WS_M0}')
    a('s_waitcnt vmcnt(0)')
    a(f'buffer_store_dwordx4 v[56:59], v53, {WS}, s{sU} offen sc1')
    a('s_waitcnt vmcnt(0)')
    a('s_barrier')
    a(f's_lshl_b32 s{sT}, s{sX}, 2')
    a(f's_add_u32 s{sT}, s{sT}, 32')
    a(f's_cmp_eq_u32 s{sWV}, 0')
    a(f's_cselect_b32 s{sT}, s{sT}, 0x1000')
    a('s_mov_b64 exec, 1')
    a('v_mov_b32 v40, 1')
    a(f'buffer_atomic_add v40, off, s[{S_DBG}:{S_DBG + 3}], s{sT}')
    a('s_mov_b64 exec, -1')


def init_wait(a, vl4, vt, s0, s1, s2):
    L = a.newlabel('iw')
    a(f'v_mbcnt_lo_u32_b32 v{vl4}, -1, 0')
    a(f'v_mbcnt_hi_u32_b32 v{vl4}, -1, v{vl4}')
    a(f'v_lshlrev_b32 v{vl4}, 2, v{vl4}')
    a.label(L)
    a(f'buffer_load_dword v{vt}, v{vl4}, s[{S_DBG}:{S_DBG + 3}], 0 offen offset:32 sc1')
    a('s_waitcnt vmcnt(0)')
    a(f'v_readlane_b32 s{s0}, v{vt}, 0')
    for i in range(1, 8):
        a(f'v_readlane_b32 s{s1}, v{vt}, {i}')
        a(f's_add_u32 s{s0}, s{s0}, s{s1}')
    a(f's_add_u32 s{s2}, s{s2}, 1')
    a(f's_cmp_ge_u32 s{s0}, 160')
    a(f's_cbranch_scc1 {L}_ok')
    a(f's_cmp_lt_u32 s{s2}, {C.SPINMAX}')
    a(f's_cbranch_scc1 {L}')
    a.label(f'{L}_ok')


def role_index(a):
    L = a.newlabel('ri')
    a(f's_lshl_b32 s{sT}, s{sNH}, 2')
    a(f's_cmp_ge_u32 s{sLI}, s{sT}')
    a(f's_cbranch_scc1 {L}_sp')
    a(f's_mul_i32 s51, s{sJ}, 20')
    a(f's_lshl_b32 s{sT}, s{sJ}, 4')
    a(f's_add_u32 s{sT}, s{sT}, 16')
    a(f's_cmp_lt_u32 s{sJ}, 4')
    a(f's_cselect_b32 s51, s51, s{sT}')
    a(f's_add_u32 s51, s51, s{sLI}')
    a(f's_cmp_lt_u32 s51, 40')
    a(f's_cselect_b32 s{sT}, 20, 28')
    a(f's_add_u32 s{sRI}, s51, s{sT}')
    a(f's_branch {L}')
    a.label(f'{L}_sp')
    a(f's_lshl_b32 s51, s{sJ}, 1')
    a(f's_sub_u32 s51, s51, 20')
    a(f's_lshl_b32 s{sT}, s{sJ}, 3')
    a(f's_sub_u32 s{sT}, s{sT}, 40')
    a(f's_cmp_lt_u32 s{sJ}, 4')
    a(f's_cselect_b32 s51, s51, s{sT}')
    a(f's_add_u32 s51, s51, s{sLI}')
    a(f's_cmp_lt_u32 s51, 28')
    a(f's_cselect_b32 s{sT}, 40, 128')
    a(f's_cmp_lt_u32 s51, 20')
    a(f's_cselect_b32 s{sT}, 0, s{sT}')
    a(f's_add_u32 s{sRI}, s51, s{sT}')
    a.label(L)
```

```python
import sys
from asmlib import *
from layout import *
from common import *
import chain as C
import bulk as B
import small as S
import mega as M


def mega_kernel(a, kname, force_slow, name):
    tm = C.OPT.get('timing')
    kernel_head(a, kname)
    a(f's_cmp_lt_u32 s2, {NWG}')
    a(f's_cbranch_scc1 {name}_go')
    a('s_endpgm')
    a.label(f'{name}_go')
    if C.OPT.get('dbgt'):
        a('s_memrealtime s[98:99]')
    a(f's_load_dwordx8 s[{C.sPTR}:{C.sPTR + 7}], s[0:1], {KA_WQ}')
    a(f's_load_dwordx4 s[{B.sXP}:{B.sXP + 3}], s[0:1], {KA_X}')
    a(f's_load_dwordx4 s[72:75], s[0:1], {KA_DBG}')
    a(f's_load_dwordx8 s[{M.sBP}:{M.sBP + 7}], s[0:1], {KA_W1}')
    a(f's_load_dwordx2 s[{M.sOUTP}:{M.sOUTP + 1}], s[0:1], {KA_OUT}')
    a('s_getpc_b64 s[96:97]')
    a.label(f'{name}_pc')
    a('s_waitcnt lgkmcnt(0)')
    a('s_mov_b32 s0, 0')
    srd(a, C.S_WS, 74, WS_SIZE)
    srd(a, 76, 72, 64)
    if C.OPT.get('dbgt'):
        a('s_mov_b64 s[100:101], s[72:73]')
    team_select(a, 76, 80, 81, 84, 82, 83, 92, 94, force_slow)
    if not C.OPT.get('nocp'):
        a('s_and_b32 s92, s81, 31')
        a('s_lshl_b32 s92, s92, 13')
        a('v_lshlrev_b32 v1, 4, v0')
        a('v_add_u32 v1, s92, v1')
        a(f's_mov_b32 s92, {name}_codeend-{name}_pc-16')
        a('v_add_u32 v2, 0x1000, v1')
        a('v_min_u32 v1, s92, v1')
        a('v_min_u32 v2, s92, v2')
        a('global_load_dwordx4 v[4:7], v1, s[96:97]')
        a('global_load_dwordx4 v[8:11], v2, s[96:97]')
        a('s_waitcnt vmcnt(0)')
    a('s_cmp_eq_u32 s82, 0')
    a(f's_cbranch_scc1 {name}_worker')
    a(f's_mov_b32 s{C.sH}, s83')
    if tm:
        a('s_memrealtime s[2:3]')
    C.chain_consts(a)
    C.chain_load_weights(a)
    C.chain_init_state(a)
    M.init_wait(a, 12, 13, C.sTMP, C.sTMP2, C.sSPIN)
    a(f's_mov_b32 s{C.sNSTEP}, 63')
    a(f's_mov_b32 s59, s82')
    if tm:
        a('s_memrealtime s[88:89]')
        a('s_waitcnt lgkmcnt(0)')
        a('s_sub_u32 s3, s88, s2')
        if C.OPT.get('wlt'):
            for i, r in enumerate((64, 66, 68, 90, 92, 94, 96, 88)):
                a(f's_sub_u32 s{r}, s{r}, s2')
                a(f'v_mov_b32 v{12 + i}, s{r}')
            a(f's_lshl_b32 s88, s{C.sH}, 5')
            a(f's_add_u32 s88, s88, {0xF30000}')
            a(f'buffer_store_dwordx4 v[12:15], off, s[4:7], s88')
            a(f'buffer_store_dwordx4 v[16:19], off, s[4:7], s88 offset:16')
    if C.OPT.get('dbgt'):
        a('s_memrealtime s[90:91]')
    a.label(f'{name}_layer')
    C.chain_layer_state(a)
    if C.OPT.get('dbgt'):
        a('s_mov_b32 s92, s94')
        a('s_mov_b32 s93, s96')
        a('s_memrealtime s[94:95]')
    if tm:
        a('s_memrealtime s[56:57]')
        for i in range(12):
            a(f's_mov_b32 s{90 + i}, 0')
    a('s_cmp_eq_u32 s59, 2')
    a(f's_cbranch_scc1 {name}_slow')
    C.chain_step(a, '', name + 'cf', tm)
    a(f's_branch {name}_fin')
    a.label(f'{name}_slow')
    C.chain_step(a, ' sc1', name + 'cs', tm)
    a.label(f'{name}_fin')
    if C.OPT.get('dbgt'):
        a('s_memrealtime s[96:97]')
        a('s_waitcnt lgkmcnt(0)')
    if tm:
        a('s_memrealtime s[64:65]')
        a('s_waitcnt lgkmcnt(0)')
        a('s_sub_u32 s64, s64, s2')
        a('s_sub_u32 s56, s56, s2')
        for i in range(12):
            a(f'v_mov_b32 v{12 + i}, s{90 + i}')
        a('s_and_b32 s66, s22, 0x8000')
        a('s_lshr_b32 s66, s66, 2')
        a(f's_lshl_b32 s88, s{C.sH}, 2')
        a(f's_add_u32 s88, s88, s{C.sWV}')
        a('s_lshl_b32 s88, s88, 6')
        a('s_add_u32 s88, s88, s66')
        a(f's_add_u32 s88, s88, {0xF00000}')
        for i in range(3):
            a(f'buffer_store_dwordx4 v[{12 + 4 * i}:{15 + 4 * i}], off, s[{C.S_WS}:{C.S_WS + 3}], s88 offset:{16 * i}')
        a('s_nop 1')
        a('v_mov_b32 v12, s56')
        a('v_mov_b32 v13, s64')
        a('v_mov_b32 v14, s3')
        a('v_mov_b32 v15, s2')
        a(f'buffer_store_dwordx4 v[12:15], off, s[{C.S_WS}:{C.S_WS + 3}], s88 offset:48')
    a(f's_cmp_eq_u32 s{C.sLB}, {LAYER0}')
    a(f's_mov_b32 s{C.sLB}, {LAYER0 + LSTRIDE}')
    a(f's_cbranch_scc0 {name}_tend')
    a(f's_add_u32 s{C.sFLB}, s{C.sFLB}, {FSTRIDE}')
    a(f's_branch {name}_layer')
    a.label(f'{name}_tend')
    if C.OPT.get('dbgt'):
        a(f's_lshl_b32 s88, s{C.sH}, 2')
        a(f's_or_b32 s88, s88, s{C.sWV}')
        a('s_cmp_eq_u32 s88, 0')
        a('s_cselect_b32 s88, 32, 0x1000')
        for i, r in enumerate((90, 92, 93, 94, 96)):
            a(f's_sub_u32 s{r}, s{r}, s98')
            a(f'v_mov_b32 v{12 + i}, s{r}')
        a('v_mov_b32 v17, s98')
        a('buffer_store_dwordx4 v[12:15], off, s[76:79], s88')
        a('buffer_store_dwordx2 v[16:17], off, s[76:79], s88 offset:16')
    a('s_endpgm')
    a.label(f'{name}_worker')
    a(f's_mov_b32 s{B.sWI}, s83')
    B.worker_setup(a)
    a(f's_lshl_b32 s{B.sT}, s{B.sNH}, 1')
    a(f's_cmp_lt_u32 s{B.sLI}, s{B.sT}')
    a(f's_cbranch_scc0 {name}_gw')
    a(f's_and_b32 s3, s{B.sLI}, 1')
    a(f's_lshr_b32 s{B.sLI}, s{B.sLI}, 1')
    a(f's_mul_i32 s{C.sH}, s{B.sLI}, 7')
    a(f's_add_u32 s{C.sH}, s{C.sH}, s{B.sJ}')
    B.att_phase(a)
    a('s_endpgm')
    a.label(f'{name}_gw')
    a(f's_sub_u32 s{B.sLI}, s{B.sLI}, s{B.sT}')
    a(f's_mul_i32 s{B.sGI}, s{B.sJ}, 22')
    a(f's_mul_i32 s{B.sT}, s{B.sJ}, 24')
    a(f's_sub_u32 s{B.sT}, s{B.sT}, 8')
    a(f's_cmp_lt_u32 s{B.sJ}, 4')
    a(f's_cselect_b32 s{B.sGI}, s{B.sGI}, s{B.sT}')
    a(f's_add_u32 s{B.sGI}, s{B.sGI}, s{B.sLI}')
    M.role_index(a)
    M.init_stores(a, 80)
    for layer in range(2):
        lb = LAYER0 + layer * LSTRIDE
        fb = WS_FLAGS + layer * FSTRIDE
        B.wstamp(a, 0)
        B.qkv_pre(a, f'{name}_nq{layer}')
        if layer == 0:
            M.init_wait(a, 40, 41, B.sT, B.sU, B.sSPIN)
        B.qkv_phase(a, lb, fb, True,
                    lambda: M.ln1f_phase(a, lb - LSTRIDE, lb, fb - FSTRIDE, fb, 0, layer == 0))
        a(f's_branch {name}_dq{layer}')
        a.label(f'{name}_nq{layer}')
        if layer == 0:
            M.init_wait(a, 40, 41, B.sT, B.sU, B.sSPIN)
        M.ln1f_phase(a, lb - LSTRIDE, lb, fb - FSTRIDE, fb, 1, layer == 0)
        a.label(f'{name}_dq{layer}')
        B.wstamp(a, 1)
        a(f's_cmp_lt_u32 s{B.sRI}, {NWO}')
        a(f's_cbranch_scc0 {name}_nwo{layer}')
        B.wo_phase(a, lb, fb, layer)
        a(f's_branch {name}_g2p{layer}')
        a.label(f'{name}_nwo{layer}')
        a(f's_cmp_lt_u32 s{B.sRI}, {NWO + NLN}')
        a(f's_cbranch_scc0 {name}_nln{layer}')
        M.ln2_role(a, lb, fb)
        a(f's_branch {name}_g2p{layer}')
        a.label(f'{name}_nln{layer}')
        a(f's_cmp_lt_u32 s{B.sRI}, {NWO + NLN + NG1}')
        a(f's_cbranch_scc0 {name}_g2p{layer}')
        if layer == 0:
            M.w2f_prep(a)
        M.g2_pre(a, layer == 0)
        M.g1p_role(a, lb, fb)
        B.wstamp(a, 3)
        a(f's_branch {name}_g2{layer}')
        a.label(f'{name}_g2p{layer}')
        B.wstamp(a, 3)
        M.g2_pre(a, layer == 0)
        a.label(f'{name}_g2{layer}')
        M.g2_phase(a, lb, fb, layer == 1)
        B.wstamp(a, 7)
        B.wstamp(a, 5)
        B.wdump(a, layer)
    if C.OPT.get('dbgt'):
        a('s_waitcnt vmcnt(0)')
        a('s_memrealtime s[96:97]')
        a('s_waitcnt lgkmcnt(0)')
        srd(a, 76, 100, 64)
        a(f's_cmp_eq_u32 s{B.sGI}, 0')
        a('s_cselect_b32 s88, 56, 0x1000')
        a('v_mov_b32 v12, s96')
        a('v_mov_b32 v13, s98')
        a('buffer_store_dwordx2 v[12:13], off, s[76:79], s88')
    a('s_endpgm')
    a.label(f'{name}_codeend')


def build(force_slow=False):
    a = Asm()
    launches = []
    descs = ''
    n = 'interleave_layers__memory_aug_recurrent_mem_tr__mixer_token_mlp__prompt_kernel'
    mega_kernel(a, n, force_slow, 'mk')
    launches.append((n, 256, 256, 163840)); descs += kernel_desc(n)
    a.fix_hazards()
    for e in a.verify_waits():
        print('WAITERR', e)
    hdr = ''.join(f'; @launch kernel={n} grid=({g},1,1) block=({b},1,1) lds={l}\n' for n, g, b, l in launches)
    hdr += '.amdgcn_target "amdgcn-amd-amdhsa--gfx950"\n.text\n'
    return hdr + a.text() + '.section .rodata,"a"\n' + descs, a


if __name__ == '__main__':
    C.OPT['stamps'] = []
    for o in sys.argv[2:]:
        if o.startswith('st='):
            C.OPT['stamps'] = o[3:].split(',')
            C.OPT['timing'] = True
        elif '=' in o:
            k, v = o.split('=')
            C.OPT[k] = ' ' + v.replace('+', ' ')
        else:
            C.OPT[o] = True
    s, a = build('slow' in sys.argv[2:])
    if C.OPT.get('timing'):
        s = s.replace('.amdgcn_target', '; STAMPS ' + ' '.join(map(str, C.OPT['used'])) + '\n.amdgcn_target', 1)
    open(sys.argv[1], 'w').write(s)
    print(len(a.ins), 'instrs', len(s), 'bytes')
```

```python
from asmlib import *
from layout import *
from common import *
from chain import Track, f32
import chain as C
from small import tr_lane_addr, CM_NAT, CM_PI, CM_SIG, unpack

S_WS = 4
S_WA, S_WB = 8, 12
sWI, sWV, sJ, sLI, sNH = 16, 17, 18, 19, 20
sR, sBLK, sH, sT, sU, sV = 21, 22, 23, 24, 25, 26
sXO, sWO, sLW = 27, 28, 29
sSPIN = 0
sE = 32
sSC = 34
sPTR = 56
sXP = 64
S_X = 68
S_WC = 36

sKS = 31
sROT = 30
sRI = 50
sGI = 35

LN, L16, T1, T2, T3 = 1, 2, 3, 4, 5


def wstamp(a, i):
    if C.OPT.get('timing'):
        a(f's_memrealtime s[{84 + 2 * i}:{85 + 2 * i}]')


def wdump(a, layer):
    if not C.OPT.get('timing'):
        return
    a('s_waitcnt lgkmcnt(0)')
    for i in range(8):
        a(f'v_mov_b32 v{20 + i}, s{84 + 2 * i}')
    a(f's_lshl_b32 s88, s83, 5')
    a(f's_add_u32 s88, s88, {0xF10000 + layer * 0x4000}')
    a(f'buffer_store_dwordx4 v[20:23], off, s[4:7], s88')
    a(f'buffer_store_dwordx4 v[24:27], off, s[4:7], s88 offset:16')


def worker_setup(a):
    a(f'v_and_b32 v{LN}, 63, v0')
    a(f'v_lshrrev_b32 v{T1}, 6, v0')
    a(f'v_lshlrev_b32 v{L16}, 4, v{LN}')
    a(f'v_readfirstlane_b32 s{sWV}, v{T1}')
    a(f's_lshr_b32 s{sJ}, s{sWI}, 5')
    a(f's_and_b32 s{sLI}, s{sWI}, 31')
    a(f's_cmp_lt_u32 s{sJ}, 4')
    a(f's_cselect_b32 s{sNH}, 5, 4')
    a(f's_lshl_b32 s{sLW}, s{sWV}, 10')


def unit_decode(a, done):
    a(f's_lshl_b32 s{sT}, s{sNH}, 1')
    a(f's_sub_u32 s{sT}, 32, s{sT}')
    a(f's_mul_i32 s{sT}, s{sR}, s{sT}')
    a(f's_add_u32 s{sT}, s{sT}, s{sLI}')
    a(f's_mul_i32 s{sBLK}, s{sT}, 13108')
    a(f's_lshr_b32 s{sBLK}, s{sBLK}, 16')
    a(f's_lshr_b32 s{sU}, s{sT}, 2')
    a(f's_cmp_eq_u32 s{sNH}, 4')
    a(f's_cselect_b32 s{sBLK}, s{sU}, s{sBLK}')
    a(f's_mul_i32 s{sU}, s{sBLK}, s{sNH}')
    a(f's_sub_u32 s{sU}, s{sT}, s{sU}')
    a(f's_mul_i32 s{sH}, s{sU}, 7')
    a(f's_add_u32 s{sH}, s{sH}, s{sJ}')
    a(f's_cmp_ge_u32 s{sBLK}, 16')
    a(f's_cbranch_scc1 {done}')


def w_swz(a):
    def f(row, t, dst):
        a(f'v_and_b32 v{t}, 3, v{row}')
        a(f'v_lshlrev_b32 v{t}, 6, v{t}')
        a(f'v_xor_b32 v{dst}, v{t}, v{dst}')
    return f


def proj_gemm(a, tag, nmat, lb, VSW, xtiles, wtiles, mf, FR, nring=4):
    tr = Track(a)
    SB = nmat * 8192
    XB = 8192
    WBASE = nring * 8192
    srds = [S_WA, S_WB, S_WC]

    def dma_ops(slot):
        g = []
        for ks in range(2):
            g.append([f's_add_u32 m0, s{sLW2}, {slot * XB + ks * 1024}',
                      f'buffer_load_dwordx4 v{L16}, s[{S_WS}:{S_WS + 3}], s{sXO} offen sc1 lds',
                      f's_add_u32 s{sXO}, s{sXO}, 1024'])
        for m in range(nmat):
            for k in range(2):
                g.append([f's_add_u32 m0, s{sLW}, {WBASE + slot * SB + m * 8192 + k * 4096}',
                          f'buffer_load_dwordx4 v{VSW[k]}, s[{srds[m]}:{srds[m] + 3}], s{sWO} offen lds'])
        g[-1] += [f's_add_u32 s{sWO}, s{sWO}, {32 * 8192}',
                  f's_add_u32 s{sKS}, s{sKS}, 1',
                  f's_cmp_eq_u32 s{sKS}, 20',
                  f's_cselect_b32 s{sU}, 40960, 0',
                  f's_sub_u32 s{sXO}, s{sXO}, s{sU}',
                  f's_lshl_b32 s{sU}, s{sU}, 7',
                  f's_sub_u32 s{sWO}, s{sWO}, s{sU}']
        return g

    per = 2 + 2 * nmat
    sLW2 = sSC
    a(f's_lshl_b32 s{sLW2}, s{sWV}, 11')

    def read_ops(slot, ks, b):
        r = []
        for i, xr in enumerate(xtiles):
            r.append(f'ds_read_b128 {vr(b + 4 * i, 4)}, v{xr} offset:{slot * XB + ks * 1024}')
        for i, (m, wr) in enumerate(wtiles):
            for u in range(2):
                off = WBASE + slot * SB + m * 8192 + (16 * ks + 4 * u) * 256
                r.append(f'ds_read_b64_tr_b16 {vr(b + 4 * len(xtiles) + 4 * i + 2 * u, 2)}, v{wr[off >> 16]} offset:{off & 0xffff}')
        return r

    def mix(mfs, rds, dms):
        n = len(mfs)
        for i, t in enumerate(mfs):
            a(t)
            for _ in range(2):
                if rds:
                    a(rds.pop(0))
            if dms and (i % 3 != 2):
                for x in dms.pop(0):
                    a(x)
        assert not rds and not dms

    for s in range(nring - 1):
        for g in dma_ops(s):
            for x in g:
                a(x)
    a(f's_waitcnt vmcnt({per * (nring - 2)})')
    a('s_barrier')
    for x in read_ops(0, 0, FR[0]):
        a(x)
    a(f's_mov_b32 s{sV}, 0')
    lp = a.newlabel(tag)
    a.label(lp)
    for s in range(nring):
        d = dma_ops((s + nring - 1) % nring)
        a('s_waitcnt lgkmcnt(0)')
        mix(mf(FR[0]), read_ops(s, 1, FR[1]), d[:per // 2])
        a(f's_waitcnt vmcnt({per * (nring - 3) + per // 2}) lgkmcnt(0)')
        a('s_barrier')
        mix(mf(FR[1]), read_ops((s + 1) % nring, 0, FR[0]), d[per // 2:])
    a(f's_add_u32 s{sV}, s{sV}, 1')
    a(f's_cmp_lt_u32 s{sV}, {20 // nring}')
    a(f's_cbranch_scc1 {lp}')
    a('s_waitcnt vmcnt(0) lgkmcnt(0)')
    a('s_barrier')


def w_src(a, VSW):
    a(f'v_lshrrev_b32 v{T1}, 4, v{LN}')
    a(f'v_lshlrev_b32 v{T2}, 2, v{T1}')
    a(f'v_and_b32 v{T3}, 15, v{LN}')
    a(f'v_xor_b32 v{T2}, v{T2}, v{T3}')
    a(f'v_lshlrev_b32 v{T2}, 4, v{T2}')
    a(f'v_lshl_add_u32 v{T2}, v{T1}, 13, v{T2}')
    a(f's_lshl_b32 s{sU}, s{sWV}, 15')
    a(f'v_add_u32 v{VSW[0]}, s{sU}, v{T2}')
    a(f'v_add_u32 v{VSW[1]}, {16 * 8192}, v{VSW[0]}')


def signal(a, off_sgpr):
    L = a.newlabel('sig')
    a('s_waitcnt vmcnt(0)')
    a('s_barrier')
    a('v_cmp_eq_u32 vcc, 0, v0')
    a(f's_and_saveexec_b64 s[{sE}:{sE + 1}], vcc')
    a(f's_cbranch_execz {L}')
    a(f'v_mov_b32 v{T1}, 0')
    a(f'v_mov_b32 v{T2}, 1')
    a(f'buffer_atomic_add v{T2}, v{T1}, s[{S_WS}:{S_WS + 3}], s{off_sgpr} offen')
    a.label(L)
    a(f's_mov_b64 exec, s[{sE}:{sE + 1}]')


def wait_flag(a, off_sgpr, val, lead=False, sleep=4):
    L = a.newlabel('wf')
    if lead:
        a(f's_cmp_lg_u32 s{sWV}, 0')
        a(f's_cbranch_scc1 {L}_ok')
    a(f'v_mov_b32 v{T1}, 0')
    a.label(L)
    a(f'buffer_load_dword v{T2}, v{T1}, s[{S_WS}:{S_WS + 3}], s{off_sgpr} offen sc1')
    a('s_waitcnt vmcnt(0)')
    a(f'v_readfirstlane_b32 s{sU}, v{T2}')
    a(f's_add_u32 s{sSPIN}, s{sSPIN}, 1')
    a(f's_cmp_ge_u32 s{sU}, {val}')
    a(f's_cbranch_scc1 {L}_ok')
    a(f's_sleep {sleep}')
    a(f's_cmp_lt_u32 s{sSPIN}, {C.SPINMAX}')
    a(f's_cbranch_scc1 {L}')
    a.label(f'{L}_ok')
    if lead:
        a('s_barrier')


def unit_addr(a, lb):
    a(f's_lshl_b32 s{sXO}, s{sBLK}, 2')
    a(f's_add_u32 s{sXO}, s{sXO}, s{sWV}')
    a(f's_mul_i32 s{sXO}, s{sXO}, 40960')
    a(f's_add_u32 s{sXO}, s{sXO}, {lb + L_XN}')
    a(f's_lshl_b32 s{sWO}, s{sH}, 8')
    a(f's_mul_i32 s{sKS}, s{sH}, 9363')
    a(f's_lshr_b32 s{sKS}, s{sKS}, 16')
    a(f's_lshl_b32 s{sKS}, s{sKS}, 1')
    a(f's_add_u32 s{sKS}, s{sKS}, s{sBLK}')
    a(f's_mul_i32 s{sU}, s{sKS}, 13108')
    a(f's_lshr_b32 s{sU}, s{sU}, 16')
    a(f's_mul_i32 s{sU}, s{sU}, 5')
    a(f's_sub_u32 s{sKS}, s{sKS}, s{sU}')
    a(f's_lshl_b32 s{sKS}, s{sKS}, 2' if not C.OPT.get('norot') else f's_mov_b32 s{sKS}, 0')
    a(f's_lshl_b32 s{sU}, s{sKS}, 11')
    a(f's_add_u32 s{sXO}, s{sXO}, s{sU}')
    a(f's_lshl_b32 s{sU}, s{sKS}, 18')
    a(f's_add_u32 s{sWO}, s{sWO}, s{sU}')


def vperm_addr(a, d):
    a(f'v_lshrrev_b32 v{T1}, 5, v{LN}')
    a(f'v_lshlrev_b32 v{d}, 9, v{T1}')
    a(f'v_bfe_u32 v{T1}, v{LN}, 1, 4')
    a(f'v_lshl_add_u32 v{d}, v{T1}, 4, v{d}')
    a(f'v_and_b32 v{T1}, 1, v{LN}')
    a(f'v_lshl_add_u32 v{d}, v{T1}, 8, v{d}')


def qkv_ids(a):
    a(f's_lshr_b32 s{sH}, s{sLI}, 2')
    a(f's_mul_i32 s{sH}, s{sH}, 7')
    a(f's_add_u32 s{sH}, s{sH}, s{sJ}')
    a(f's_and_b32 s{sV}, s{sLI}, 3')
    a(f's_mul_i32 s{sROT}, s{sLI}, 13108')
    a(f's_lshr_b32 s{sROT}, s{sROT}, 16')
    a(f's_mul_i32 s{sROT}, s{sROT}, 5')
    a(f's_sub_u32 s{sROT}, s{sLI}, s{sROT}')
    a(f's_lshl_b32 s{sROT}, s{sROT}, 1' if not C.OPT.get('noqrot') else f's_mov_b32 s{sROT}, 0')


def qkv_pre(a, done):
    a(f's_lshl_b32 s{sT}, s{sNH}, 2')
    a(f's_cmp_ge_u32 s{sLI}, s{sT}')
    a(f's_cbranch_scc1 {done}')
    qkv_ids(a)
    sCT = sV
    srd(a, S_WA, sPTR + 2, 5242880)
    srd(a, S_WB, sPTR + 4, 5242880)
    srd(a, S_WC, sPTR, 5242880)
    VS = 6
    a(f'v_lshrrev_b32 v{T1}, 2, v{LN}')
    a(f'v_lshlrev_b32 v{T1}, 13, v{T1}')
    a(f'v_and_b32 v{T2}, 3, v{LN}')
    a(f'v_lshl_add_u32 v{VS}, v{T2}, 4, v{T1}')
    a(f's_lshl_b32 s{sWO}, s{sH}, 8')
    a(f's_lshl_b32 s{sU}, s{sCT}, 6')
    a(f's_add_u32 s{sWO}, s{sWO}, s{sU}')
    a(f's_lshl_b32 s{sU}, s{sWV}, 17')
    a(f's_add_u32 s{sWO}, s{sWO}, s{sU}')
    for i in range(10):
        a(f's_lshl_b32 s{sU}, s{sROT}, 19')
        a(f's_add_u32 s{sU}, s{sU}, s{sWO}')
        for m, sr_ in enumerate((S_WA, S_WB, S_WC)):
            a(f's_add_u32 m0, s{sLW}, {m * 40960 + i * 4096}')
            a(f'buffer_load_dwordx4 v{VS}, s[{sr_}:{sr_ + 3}], s{sU} offen lds')
        a(f's_add_u32 s{sROT}, s{sROT}, 1')
        a(f's_cmp_eq_u32 s{sROT}, 10')
        a(f's_cselect_b32 s{sROT}, 0, s{sROT}')


def qkv_phase(a, lb, fb, wait_xn, mid=None):
    WS = f's[{S_WS}:{S_WS + 3}]'
    qkv_ids(a)
    sCT = sV
    VP = 7
    RW = [[8, 9], [10, 11], [12, 13]]
    def vsetup():
        for m, cm in enumerate((CM_PI, CM_NAT, CM_SIG)):
            tr_lane_addr(a, RW[m][0], LN, T1, T2, 64, cm, None)
            a(f'v_add_u32 v{RW[m][0]}, {m * 40960}, v{RW[m][0]}')
        vperm_addr(a, VP)

    vsetup()
    a(f's_mul_i32 s{sXO}, s{sWV}, 40960')
    a(f's_add_u32 s{sXO}, s{sXO}, {lb + L_XN}')
    sOUT, sFL, sXF = sWO, sKS, sSC
    a(f's_lshl_b32 s{sOUT}, s{sWV}, 5')
    a(f's_add_u32 s{sOUT}, s{sOUT}, s{sH}')
    a(f's_lshl_b32 s{sOUT}, s{sOUT}, 13')
    a(f's_lshl_b32 s{sU}, s{sCT}, 11')
    a(f's_add_u32 s{sOUT}, s{sOUT}, s{sU}')
    a(f's_lshl_b32 s{sFL}, s{sH}, 7')
    a(f's_add_u32 s{sFL}, s{sFL}, {fb + FL_KV}')
    a(f's_mov_b32 s{sXF}, {fb + FL_XN}')
    XV, FRW, E = 96, [16, 28], 40

    sXC = 75

    def ldx(i):
        if i % 4 == 0:
            a(f's_lshl_b32 s{sXC}, s{sROT}, 12')
            a(f's_add_u32 s{sXC}, s{sXC}, s{sXO}')
            a(f's_add_u32 s{sROT}, s{sROT}, 1')
            a(f's_cmp_eq_u32 s{sROT}, 10')
            a(f's_cselect_b32 s{sROT}, 0, s{sROT}')
        a(f'buffer_load_dwordx4 {vr(XV + 4 * i, 4)}, v{L16}, {WS}, s{sXC} offen offset:{(i % 4) * 1024}' + ('' if 'x' in C.OPT.get('aq', '') else ' sc1'))
        if i == 39:
            a(f's_add_u32 s{sXO}, s{sXO}, {4 * 40960}')

    def rdw(i):
        bb = FRW[i & 1]
        for m in range(3):
            for u in range(2):
                a(f'ds_read_b64_tr_b16 {vr(bb + 4 * m + 2 * u, 2)}, v{RW[m][0]} offset:{i * 1024 + 256 * u}')

    SIG = int(C.OPT.get('sig', '38'))
    sXR = 74

    def xn_ready(plus):
        if not wait_xn:
            return
        L = a.newlabel('xr')
        a(f's_add_u32 s{sT}, s{sBLK}, {plus}')
        a(f's_min_u32 s{sT}, s{sT}, 15')
        a(f's_cmp_lt_u32 s{sT}, s{sXR}')
        a(f's_cbranch_scc1 {L}_ok')
        a(f's_cmp_lg_u32 s{sWV}, 0')
        a(f's_cbranch_scc1 {L}_w')
        a(f'v_lshlrev_b32 v{T3}, 7, v{LN}')
        a.label(f'{L}_sp')
        a(f'buffer_load_dword v{T1}, v{T3}, {WS}, s{sXF} offen sc1')
        a('s_waitcnt vmcnt(0)')
        a(f'v_cmp_le_u32 vcc, 16, v{T1}')
        a(f's_add_u32 s{sSPIN}, s{sSPIN}, 1')
        a(f's_and_b32 s{sXR}, vcc_lo, 0xffff')
        a(f's_ff0_i32_b32 s{sXR}, s{sXR}')
        a(f's_cmp_lt_u32 s{sT}, s{sXR}')
        a(f's_cbranch_scc1 {L}_got')
        a('s_sleep 2')
        a(f's_cmp_lt_u32 s{sSPIN}, {C.SPINMAX}')
        a(f's_cbranch_scc1 {L}_sp')
        a.label(f'{L}_got')
        a(f'v_mov_b32 v{T1}, s{sXR}')
        a(f'v_mov_b32 v{T3}, {122880 + 512}')
        a(f'ds_write_b32 v{T3}, v{T1}')
        a('s_waitcnt lgkmcnt(0)')
        a.label(f'{L}_w')
        a('s_barrier')
        a(f'v_mov_b32 v{T3}, {122880 + 512}')
        a(f'ds_read_b32 v{T1}, v{T3}')
        a('s_waitcnt lgkmcnt(0)')
        a(f'v_readfirstlane_b32 s{sXR}, v{T1}')
        a('s_barrier')
        a.label(f'{L}_ok')

    def body(first):
        if not first:
            xn_ready(1)
            a(f's_cmp_eq_u32 s{sBLK}, 15')
            a(f's_cselect_b32 s{sXO}, {C.OOB - 0x100000}, s{sXO}')
        rdw(0)
        for i in range(40):
            if i + 1 < 40:
                rdw(i + 1)
            n = 39 - i if first else 39 - i + 6 + i
            a(f's_waitcnt vmcnt({n}) lgkmcnt({6 if i + 1 < 40 else 0})')
            bb = FRW[i & 1]
            xf = vr(XV + 4 * i, 4)
            for m in range(3):
                acc = ar(16 * m, 16)
                wf = vr(bb + 4 * m, 4)
                c = acc if i else '0'
                a(f'v_mfma_f32_32x32x16_bf16 {acc}, {xf if m == 1 else wf}, {wf if m == 1 else xf}, {c}')
            if first:
                continue
            ldx(i)
            if i == SIG:
                lab = a.newlabel('wqs')
                a(f's_cmp_eq_u32 s{sBLK}, 2')
                a(f's_cbranch_scc1 {lab}')
                sig(SIG + 1)
                a.label(lab)
        for m in range(3):
            e = E + 0
            for r in range(16):
                a(f'v_accvgpr_read_b32 v{e + r}, a{16 * m + r}')
            pk = E + 16 + 8 * m
            for r in range(8):
                a(f'v_cvt_pk_bf16_f32 v{pk + r}, v{e + 2 * r}, v{e + 2 * r + 1}')
            a(f's_add_u32 s{sU}, s{sOUT}, {lb + (L_KB, L_VB, L_Q)[m]}')
            ad = VP if m == 1 else L16
            if m == 2 and C.OPT.get('qplain'):
                lab = a.newlabel('qp')
                a('s_cmp_eq_u32 s1, 0')
                a(f's_cbranch_scc1 {lab}')
                a(f'buffer_store_dwordx4 {vr(pk, 4)}, v{ad}, {WS}, s{sU} offen')
                a(f'buffer_store_dwordx4 {vr(pk + 4, 4)}, v{ad}, {WS}, s{sU} offen offset:1024')
                a(f's_branch {lab}_e')
                a.label(lab)
            a(f'buffer_store_dwordx4 {vr(pk, 4)}, v{ad}, {WS}, s{sU} offen sc1')
            a(f'buffer_store_dwordx4 {vr(pk + 4, 4)}, v{ad}, {WS}, s{sU} offen offset:1024 sc1')
            if m == 2 and C.OPT.get('qplain'):
                a.label(f'{lab}_e')
        a(f's_add_u32 s{sOUT}, s{sOUT}, {4 * 32 * 8192}')

    def sig(n=0):
        a(f's_waitcnt vmcnt({n})')
        a('s_barrier')
        a(f's_cmp_eq_u32 s{sWV}, 0')
        a(f's_cselect_b32 s{sU}, s{sFL}, {C.OOB}')
        a('s_mov_b64 exec, 1')
        a(f'v_mov_b32 v{T2}, 1')
        a(f'buffer_atomic_add v{T2}, off, {WS}, s{sU}')
        a('s_mov_b64 exec, -1')
        a(f's_add_u32 s{sFL}, s{sFL}, 4')

    a(f's_mov_b32 s{sXR}, 0')
    a(f's_mov_b32 s{sBLK}, 0')
    f0 = a.newlabel('wqf')
    a.label(f0)
    qs = lambda i: a(f's_memrealtime s[{84 + 2 * i}:{85 + 2 * i}]') if C.OPT.get('qst') else None
    qs(0)
    xn_ready(0)
    qs(1)
    for i in range(40):
        ldx(i)
    a('s_waitcnt vmcnt(40)')
    a('s_barrier')
    qs(2)
    body(True)
    qs(3)
    sig()
    qs(4)
    if C.OPT.get('qst'):
        a('s_waitcnt lgkmcnt(0)')
        for i in range(5):
            a(f'v_mov_b32 v{40 + i}, s{84 + 2 * i}')
        a(f's_lshl_b32 s88, s{sGI}, 6')
        a(f's_lshl_b32 s89, s{sBLK}, 5')
        a('s_add_u32 s88, s88, s89')
        a(f's_add_u32 s88, s88, {0xF50000 + (0x4000 if lb != LAYER0 else 0)}')
        a('buffer_store_dwordx4 v[40:43], off, s[4:7], s88')
        a('buffer_store_dword v44, off, s[4:7], s88 offset:16')
    a(f's_add_u32 s{sBLK}, s{sBLK}, 1')
    a(f's_cmp_lt_u32 s{sBLK}, 2')
    a(f's_cbranch_scc1 {f0}')
    if mid:
        for r, sv in ((sXO, 81), (sWO, 82), (sKS, 72), (sSC, 73)):
            a(f's_mov_b32 s{sv}, s{r}')
        mid()
        for r, sv in ((sXO, 81), (sWO, 82), (sKS, 72), (sSC, 73)):
            a(f's_mov_b32 s{r}, s{sv}')
        vsetup()
    a(f's_mov_b32 s{sBLK}, 2')
    xn_ready(0)
    for i in range(40):
        ldx(i)
    a(f's_mov_b32 s{sU}, {C.OOB}')
    for _ in range(6):
        a(f'buffer_store_dword v{T1}, off, {WS}, s{sU}')
    top = a.newlabel('wq')
    a.label(top)
    body(False)
    a(f's_add_u32 s{sBLK}, s{sBLK}, 1')
    a(f's_cmp_lt_u32 s{sBLK}, 16')
    a(f's_cbranch_scc1 {top}')
    sig()


def att_loc():
    loc = {}
    i = 0
    for n in range(10):
        for m, t in (('k', 0), ('v', 0), ('k', 1), ('v', 1)):
            loc[(m, t, n)] = ('a', 8 * i) if i < 32 else ('v', 192 + 8 * (i - 32))
            i += 1
    return loc


def att_phase(a):
    WS = f's[{C.S_WS}:{C.S_WS + 3}]'
    loc = att_loc()
    C.chain_consts(a)
    C.chain_load_weights(a, loc, (1, 2))
    L16, VW, GM = C.L16, C.VW, C.GM
    X, LNn = 40, 41
    KA, KMA, VMA, TOK, VA = 3, 4, 5, 6, 7
    a(f'v_lshrrev_b32 v{LNn}, 4, v{L16}')
    a(f'v_lshrrev_b32 v{X}, 5, v{LNn}')
    a(f'v_and_b32 v42, 31, v{LNn}')
    a(f'v_lshlrev_b32 v{KA}, 10, v{X}')
    a(f'v_lshl_add_u32 v{KA}, v42, 4, v{KA}')
    a(f'v_and_b32 v43, 7, v{LNn}')
    a(f'v_lshlrev_b32 v{KMA}, 8, v{X}')
    a(f'v_lshl_add_u32 v{KMA}, v43, 4, v{KMA}')
    a(f'v_lshrrev_b32 v43, 1, v42')
    a(f'v_lshlrev_b32 v{VMA}, 8, v{X}')
    a(f'v_lshl_add_u32 v{VMA}, v43, 4, v{VMA}')
    a(f'v_and_b32 v44, 1, v{LNn}')
    a(f'v_lshl_add_u32 v{VMA}, v44, 3, v{VMA}')
    a(f's_lshl_b32 s{C.sTMP}, s{C.sWV}, 10')
    a(f'v_add_u32 v{VMA}, s{C.sTMP}, v{VMA}')
    a(f'v_add_u32 v46, s{C.sTMP}, v{L16}')
    a(f'v_lshlrev_b32 v{VA}, 9, v{X}')
    a(f'v_lshl_add_u32 v{VA}, v43, 4, v{VA}')
    a(f'v_lshl_add_u32 v{VA}, v44, 8, v{VA}')
    a(f's_lshl_b32 s{C.sTMP}, s{C.sWV}, 11')
    a(f'v_add_u32 v{VA}, s{C.sTMP}, v{VA}')
    a(f'v_and_b32 v{TOK}, 3, v{LNn}')
    a(f'v_bfe_u32 v43, v{LNn}, 3, 2')
    a(f'v_lshl_add_u32 v{TOK}, v43, 2, v{TOK}')
    a(f'v_bfe_u32 v43, v{LNn}, 2, 1')
    a(f'v_lshl_add_u32 v{TOK}, v43, 4, v{TOK}')
    a(f'v_lshlrev_b32 v43, 4, v{X}')
    a(f'v_sub_u32 v{TOK}, v{TOK}, v43')
    SEL = 8
    SEL = 44
    a(f'v_and_b32 v43, 0x1f0, v{L16}')
    a(f'ds_read_b64 {vr(SEL, 2)}, v43 offset:{C.LSEL}')
    import mega
    mega.init_wait(a, 40, 41, C.sTMP, C.sTMP2, C.sSPIN)
    for layer in range(2):
        att_layer(a, LAYER0 + layer * LSTRIDE, WS_FLAGS + layer * FSTRIDE, loc)


def att_layer(a, lb, fb, loc):
    WS = f's[{C.S_WS}:{C.S_WS + 3}]'
    L16, VW, GM = C.L16, C.VW, C.GM
    KA, KMA, VMA, TOK, VA = 3, 4, 5, 6, 7
    SEL = 44
    sKB, sOO, sFO, sA, sB = C.sKB, C.sVB, C.sKMQ, C.sPST, C.sPST1
    a(f's_lshl_b32 s{sKB}, s{C.sH}, 13')
    a(f's_lshl_b32 s{sOO}, s{C.sH}, 13')
    a(f's_lshl_b32 s{C.sTMP}, s{C.sWV}, 11')
    a(f's_add_u32 s{sOO}, s{sOO}, s{C.sTMP}')
    a(f's_add_u32 s{sOO}, s{sOO}, {lb + L_O}')
    a(f's_lshr_b32 s{sFO}, s{C.sH}, 3')
    a(f's_lshl_b32 s{sFO}, s{sFO}, 7')
    a(f's_add_u32 s{sFO}, s{sFO}, {fb + FL_O}')
    a(f's_lshl_b32 s{C.sFLB}, s{C.sH}, 7')
    a(f's_add_u32 s{C.sFLB}, s{C.sFLB}, {fb + FL_KV}')
    a(f's_add_u32 s{C.sPOLL}, s{C.sTMP}, {lb + L_MC}')
    a(f's_add_u32 s{C.sPOLL8}, s{C.sB8}, {lb + L_MC + 8192 - C.LB8}')
    a(f's_mov_b32 s{C.sSTEP}, s3')
    a(f's_mul_i32 s{C.sTMP}, s3, {32 * 8192}')
    a(f's_add_u32 s{sKB}, s{sKB}, s{C.sTMP}')
    a(f's_add_u32 s{sOO}, s{sOO}, s{C.sTMP}')
    a(f's_lshl_b32 s{C.sTMP}, s3, 9')
    a(f's_add_u32 s{sFO}, s{sFO}, s{C.sTMP}')
    a(f's_mul_i32 s{C.sTMP}, s3, {MSLOT}')
    a(f's_add_u32 s{C.sPOLL}, s{C.sPOLL}, s{C.sTMP}')
    a(f's_add_u32 s{C.sPOLL8}, s{C.sPOLL8}, s{C.sTMP}')
    a(f's_mov_b32 s{C.sRDY}, 0')
    K0, V0, K1, V1 = 24, 28, 32, 36
    QF, KF, VF, SS, SM_, OA, TMP, VMF = 48, 80, 112, 120, 136, 152, 168, 184
    T0, T1, T2 = C.T0, C.T1, C.T2
    MX, MY, NI = TMP, TMP + 1, TMP + 2
    cvt = lambda d, x, y: a(f'v_cvt_pk_bf16_f32 v{d}, v{x}, v{y}')
    pka = lambda d, x, y: a(f'v_pk_add_f32 {vr(d, 2)}, {vr(x, 2)}, {vr(y, 2)}')

    def ld_kq(tr):
        for half in range(2):
            a(f's_add_u32 s{sA}, s{sKB}, {lb + L_KB + half * 4096}')
            a(f's_add_u32 s{sB}, s{sKB}, {lb + L_Q + half * 4096}')
            for k in range(4):
                ks = 4 * half + k
                tr.vmem(f'buffer_load_dwordx4 {vr(KF + 4 * ks, 4)}, v{KA}, {WS}, s{sA} offen offset:{(k >> 1) * 2048 + (k & 1) * 512} sc1', ('k', ks))
                tr.vmem(f'buffer_load_dwordx4 {vr(QF + 4 * ks, 4)}, v{L16}, {WS}, s{sB} offen offset:{k * 1024} sc1', ('k', ks))

    def ld_v(tr):
        a(f's_add_u32 s{sA}, s{sKB}, {lb + L_VB}')
        for m in range(2):
            tr.vmem(f'buffer_load_dwordx4 {vr(VF + 4 * m, 4)}, v{VA}, {WS}, s{sA} offen offset:{m * 1024} sc1', 'v')

    tr = Track(a)
    wstamp(a, 1)
    C.kv_ready(a, a.newlabel('akv'), 0)
    wstamp(a, 2)
    a('s_mov_b32 s92, 0')
    ld_kq(tr)
    ld_v(tr)
    a(f's_mov_b32 s{C.sMW}, {C.OOB}')
    for _ in range(2):
        tr.vmem(f'buffer_store_dword v{T0}, off, {WS}, s{C.sMW}', 'o')
    q0 = list(tr.vm)
    top = a.newlabel('att')
    a.label(top)
    st = {}
    C.zero(a, K0, 16)
    C.m_addr(a, 2, st)
    for ks in range(8):
        tr.wait_vm(('k', ks))
        a(f'v_mfma_f32_32x32x16_bf16 {vr(SS, 16)}, {vr(KF + 4 * ks, 4)}, {vr(QF + 4 * ks, 4)}, ' + (vr(SS, 16) if ks else '0'))
    a(f'v_mov_b32 v{NI}, 0xff800000')
    for r in range(0, 16, 2):
        a(f'v_cmp_gt_i32 vcc, {r}, v{TOK}')
        a(f'v_cmp_gt_i32 s[{C.sT64}:{C.sT64 + 1}], {r + 1}, v{TOK}')
        a(f'v_cndmask_b32 v{SS + r}, v{SS + r}, v{NI}, vcc')
        a(f'v_cndmask_b32 v{SS + r + 1}, v{SS + r + 1}, v{NI}, s[{C.sT64}:{C.sT64 + 1}]')
    a(f'v_max3_f32 v{MX}, v{SS}, v{SS + 1}, v{SS + 2}')
    for r in range(3, 15, 2):
        a(f'v_max3_f32 v{MX}, v{MX}, v{SS + r}, v{SS + r + 1}')
    a(f'v_max_f32 v{MX}, v{MX}, v{SS + 15}')
    a('s_waitcnt vmcnt(0)')
    a('s_mov_b64 exec, 1')
    a(f'v_mov_b32 v{T0}, 1')
    a(f'buffer_atomic_add v{T0}, off, {WS}, s{C.sMW}')
    a('s_mov_b64 exec, -1')
    a(f's_cmp_ge_u32 s{C.sSTEP}, 64')
    a(f's_cbranch_scc1 {top}_done')
    pl, go = a.newlabel('apoll'), a.newlabel('ago')
    a.label(pl)
    a(f'buffer_load_dwordx4 {vr(GM[0], 4)}, v{L16}, {WS}, s{C.sPOLL} offen sc1')
    a(f'buffer_load_dwordx4 {vr(GM[1], 4)}, v{L16}, {WS}, s{C.sPOLL} offen offset:1024 sc1')
    a(f'buffer_load_dwordx4 {vr(GM[2], 4)}, v{L16}, {WS}, s{C.sPOLL8} offen sc1')
    a(f's_add_u32 s{C.sSPIN}, s{C.sSPIN}, 1')
    g = GM[0]
    a('s_waitcnt vmcnt(0)')
    a(f'v_max3_u32 v{T0}, v{g}, v{g + 1}, v{g + 2}')
    for r in range(3, 11, 2):
        a(f'v_max3_u32 v{T0}, v{T0}, v{g + r}, v{g + r + 1}')
    a(f'v_max_u32 v{T0}, v{T0}, v{g + 11}')
    a(f'v_cmp_eq_u32 vcc, -1, v{T0}')
    a(f's_cbranch_vccz {go}')
    a(f's_sleep {int(C.OPT.get("asl", "2"))}')
    a(f's_cmp_lt_u32 s{C.sSPIN}, {C.SPINMAX}')
    a(f's_cbranch_scc1 {pl}')
    a.label(go)
    wstamp(a, 5)
    tr.vm = []
    tr.ds(f'ds_write_b128 v{VW}, {vr(GM[0], 4)}', 'mw')
    tr.ds(f'ds_write_b128 v{VW}, {vr(GM[1], 4)} offset:1024', 'mw')
    tr.ds(f'ds_write_b128 v{T2}, {vr(GM[2], 4)}', 'mw')
    order = [('k', 0, K0), ('k', 1, K1), ('v', 0, V0), ('v', 1, V1)]
    for n in range(10):
        buf = GM[n % 3]
        if n >= 3:
            tr.wait_lg(('A', n))
        for p, (m, t, acc) in enumerate(order):
            C.smf(a, acc, buf, (m, t, n), loc)
            if p == 1 and n == 1:
                tr.wait_lg('mw')
                a('s_barrier')
                C.m_read(tr, 3, GM[0], st)
            if p == 2 and n + 3 <= 9:
                C.m_addr(a, n + 3, st)
        if 1 <= n <= 6:
            C.m_read(tr, n + 3, buf, st)
    cvt(K0, K0, K0 + 1)
    cvt(K0 + 1, K0 + 2, K0 + 3)
    cvt(K1, K1, K1 + 1)
    cvt(K1 + 1, K1 + 2, K1 + 3)
    a(f'v_mfma_f32_16x16x16_bf16 {vr(GM[0], 4)}, {vr(K0, 2)}, {vr(SEL, 2)}, 0')
    a(f'v_mfma_f32_16x16x16_bf16 {vr(GM[1], 4)}, {vr(K1, 2)}, {vr(SEL, 2)}, 0')
    cvt(V0, V0, V0 + 1)
    cvt(V0 + 1, V0 + 2, V0 + 3)
    cvt(V0 + 2, V1, V1 + 1)
    cvt(V0 + 3, V1 + 2, V1 + 3)
    tr.ds(f'ds_write_b128 v46, {vr(V0, 4)} offset:20480', 'xw')
    for r in range(4):
        cvt(K0 + r, GM[0] + r, GM[1] + r)
    tr.ds(f'ds_write_b128 v46, {vr(K0, 4)} offset:16384', 'xw')
    a(f's_mov_b32 s{C.sMW}, s{sFO}')
    a(f's_add_u32 s{sKB}, s{sKB}, {64 * 8192}')
    a(f's_add_u32 s{sFO}, s{sFO}, 1024')
    a(f's_add_u32 s{C.sPOLL}, s{C.sPOLL}, {2 * MSLOT}')
    a(f's_add_u32 s{C.sPOLL8}, s{C.sPOLL8}, {2 * MSLOT}')
    a(f's_add_u32 s{C.sSTEP}, s{C.sSTEP}, 2')
    tr.drain_lg()
    a('s_barrier')
    for ks in range(8):
        tr.ds(f'ds_read_b128 {vr(KF + 4 * ks, 4)}, v{KMA} offset:{16384 + ks * 512}', ('km', ks))
    for u in range(2):
        tr.ds(f'ds_read_b64 {vr(VMF + 2 * u, 2)}, v{VMA} offset:{20480 + u * 512}', 'vm')
    C.kv_ready(a, a.newlabel('akv'), 0)
    for ks in range(8):
        tr.wait_lg(('km', ks))
        a(f'v_mfma_f32_32x32x16_bf16 {vr(SM_, 16)}, {vr(KF + 4 * ks, 4)}, {vr(QF + 4 * ks, 4)}, ' + (vr(SM_, 16) if ks else '0'))
    ld_kq(tr)
    a(f'v_max3_f32 v{MX}, v{MX}, v{SM_}, v{SM_ + 1}')
    a(f'v_max3_f32 v{MX}, v{MX}, v{SM_ + 2}, v{SM_ + 3}')
    a(f'v_mov_b32 v{MY}, v{MX}')
    a(f'v_permlane32_swap_b32 v{MX}, v{MY}')
    a(f'v_max_f32 v{MX}, v{MX}, v{MY}')
    a(f'v_mul_f32 v{MX}, s{C.sSCALE}, v{MX}')
    vals = [SS + r for r in range(16)] + [SM_ + r for r in range(4)]
    for s in vals:
        a(f'v_fma_f32 v{s}, v{s}, s{C.sSCALE}, -v{MX}')
    for s in vals:
        a(f'v_exp_f32 v{s}, v{s}')
    PB = TMP + 4
    for r in range(8):
        cvt(PB + r, SS + 2 * r, SS + 2 * r + 1)
    cvt(PB + 8, SM_, SM_ + 1)
    cvt(PB + 9, SM_ + 2, SM_ + 3)
    a(f'v_mov_b64 {vr(PB + 10, 2)}, {vr(PB + 8, 2)}')
    tr.wait_lg('vm')
    a(f'v_mfma_f32_32x32x16_bf16 {vr(OA, 16)}, {vr(VF, 4)}, {vr(PB, 4)}, 0')
    a(f'v_mfma_f32_32x32x16_bf16 {vr(OA, 16)}, {vr(VF + 4, 4)}, {vr(PB + 4, 4)}, {vr(OA, 16)}')
    a(f'v_mfma_f32_32x32x16_bf16 {vr(OA, 16)}, {vr(VMF, 4)}, {vr(PB + 8, 4)}, {vr(OA, 16)}')
    ld_v(tr)
    for r in range(0, 16, 4):
        pka(SS + r, SS + r, SS + r + 2)
    pka(SM_, SM_, SM_ + 2)
    pka(SS, SS, SS + 4)
    pka(SS + 8, SS + 8, SS + 12)
    pka(SS, SS, SS + 8)
    pka(SS, SS, SM_)
    a(f'v_add_f32 v{MX}, v{SS}, v{SS + 1}')
    a(f'v_mov_b32 v{MY}, v{MX}')
    a(f'v_permlane32_swap_b32 v{MX}, v{MY}')
    a(f'v_add_f32 v{MX}, v{MX}, v{MY}')
    a(f'v_rcp_f32 v{MX}, v{MX}')
    for r in range(0, 16, 2):
        a(f'v_pk_mul_f32 {vr(OA + r, 2)}, {vr(OA + r, 2)}, {vr(MX, 2)} op_sel_hi:[1,0]')
    for r in range(8):
        cvt(SM_ + r, OA + 2 * r, OA + 2 * r + 1)
    tr.vmem(f'buffer_store_dwordx4 {vr(SM_, 4)}, v{L16}, {WS}, s{sOO} offen sc1', 'o')
    tr.vmem(f'buffer_store_dwordx4 {vr(SM_ + 4, 4)}, v{L16}, {WS}, s{sOO} offen offset:1024 sc1', 'o')
    assert tr.vm == q0
    a(f's_add_u32 s{sOO}, s{sOO}, {512 * 1024}')
    a(f's_branch {top}')
    a.label(f'{top}_done')


def wo_phase(a, lb, fb, layer):
    WS = f's[{S_WS}:{S_WS + 3}]'
    sSET, sDT, sSEG = sBLK, sH, sR
    a(f's_mov_b32 s{sT}, s{sRI}')
    a(f's_mul_i32 s{sSET}, s{sT}, 3277')
    a(f's_lshr_b32 s{sSET}, s{sSET}, 16')
    a(f's_mul_i32 s{sU}, s{sSET}, 20')
    a(f's_sub_u32 s{sDT}, s{sT}, s{sU}')
    srd(a, S_WA, sPTR + 6, 5242880)
    VS, RA, RO = 6, 7, 8
    a(f'v_lshrrev_b32 v{T1}, 2, v{LN}')
    a(f'v_mul_u32_u24 v{T1}, 0x500, v{T1}')
    a(f'v_and_b32 v{T2}, 3, v{LN}')
    a(f'v_lshl_add_u32 v{VS}, v{T2}, 4, v{T1}')
    tr_lane_addr(a, RA, LN, T1, T2, 64, CM_PI, None, hirows=4)
    a(f's_lshl_b32 s{sV}, s{sWV}, 15')
    a(f'v_add_u32 v{RA}, s{sV}, v{RA}')
    a(f's_mul_i32 s{sWO}, s{sWV}, {1024 * 1280}')
    a(f's_lshl_b32 s{sU}, s{sDT}, 6')
    a(f's_add_u32 s{sWO}, s{sWO}, s{sU}')
    for half in range(2):
        for i in range(32):
            a(f's_add_u32 m0, s{sV}, {i * 1024}')
            a(f'buffer_load_dwordx4 v{VS}, s[{S_WA}:{S_WA + 3}], s{sWO} offen lds')
            a(f's_add_u32 s{sWO}, s{sWO}, {16 * 1280}')
        for i in range(32):
            if i % 8 == 0:
                a(f's_waitcnt vmcnt({24 - i})')
            for u in range(2):
                a(f'ds_read_b64_tr_b16 {ar(128 * half + 4 * i + 2 * u, 2)}, v{RA} offset:{i * 1024 + 512 * u}')
            if i % 4 == 3:
                a('s_waitcnt lgkmcnt(0)')
    a('s_barrier')
    a(f'v_and_b32 v{T1}, 3, v{LN}')
    a(f'v_bfe_u32 v{T2}, v{LN}, 3, 2')
    a(f'v_lshl_add_u32 v{T1}, v{T2}, 2, v{T1}')
    a(f'v_bfe_u32 v{T2}, v{LN}, 2, 1')
    a(f'v_lshl_add_u32 v{T1}, v{T2}, 4, v{T1}')
    a(f'v_mul_u32_u24 v{RO}, 0x500, v{T1}')
    a(f'v_lshrrev_b32 v{T1}, 5, v{LN}')
    a(f'v_lshl_add_u32 v{RO}, v{T1}, 5, v{RO}')
    a(f's_lshl_b32 s{sU}, s{sDT}, 6')
    a(f's_lshl_b32 s{sT}, s{sWV}, 3')
    a(f's_add_u32 s{sU}, s{sU}, s{sT}')
    a(f'v_add_u32 v{RO}, s{sU}, v{RO}')
    WB_, RB_ = 9, 10
    a(f'v_add_u32 v{WB_}, s{sLW}, v{L16}')
    a(f's_lshl_b32 s{sU}, s{sWV}, 12')
    a(f'v_add_u32 v{RB_}, s{sU}, v{L16}')
    RI = 11
    if layer == 0:
        srd(a, S_X, sXP, 2048 * 640 * 2)
    else:
        a(f'v_lshrrev_b32 v{T1}, 5, v{LN}')
        a(f'v_lshlrev_b32 v{RI}, 10, v{T1}')
        a(f'v_and_b32 v{T1}, 31, v{LN}')
        a(f'v_lshl_add_u32 v{RI}, v{T1}, 4, v{RI}')
        a(f's_lshl_b32 s{sU}, s{sDT}, 11')
        a(f's_lshr_b32 s{sT}, s{sWV}, 1')
        a(f's_lshl_b32 s{sT}, s{sT}, 9')
        a(f's_add_u32 s{sU}, s{sU}, s{sT}')
        a(f's_and_b32 s{sT}, s{sWV}, 1')
        a(f's_lshl_b32 s{sT}, s{sT}, 3')
        a(f's_add_u32 s{sU}, s{sU}, s{sT}')
        a(f'v_add_u32 v{RI}, s{sU}, v{RI}')
    a(f's_add_u32 s{sSEG}, s{sSET}, 8')
    a(f's_cmp_eq_u32 s{sSET}, 0')
    a(f's_cselect_b32 s{sSEG}, 0, s{sSEG}')
    a(f's_mov_b32 s{sKS}, 3')
    wstamp(a, 2)
    a('s_mov_b32 s92, 0')
    top = a.newlabel('wotop')
    a.label(top)
    RES, ACC, OF = 12, 16, 64
    a(f's_mul_i32 s{sXO}, s{sSEG}, 40960')
    if layer == 0:
        a(f'buffer_load_dwordx2 {vr(RES, 2)}, v{RO}, s[{S_X}:{S_X + 3}], s{sXO} offen')
    else:
        a(f's_add_u32 s{sU}, s{sXO}, {lb - LSTRIDE + L_X2}')
        a(f'buffer_load_dwordx2 {vr(RES, 2)}, v{RI}, {WS}, s{sU} offen sc1')
    a(f's_lshl_b32 s{sT}, s{sSEG}, 2')
    a(f's_add_u32 s{sT}, s{sT}, s{sWV}')
    a(f's_lshl_b32 s{sT}, s{sT}, 7')
    a(f's_add_u32 s{sT}, s{sT}, {fb + FL_O}')
    wait_flag(a, sT, 32)
    AQ = 'wo' in C.OPT.get('aq', '')
    if AQ:
        a('buffer_inv sc1')
    wstamp(a, 5)
    a(f's_lshl_b32 s{sT}, s{sSEG}, 18')
    a(f's_lshl_b32 s{sU}, s{sWV}, 16')
    a(f's_add_u32 s{sT}, s{sT}, s{sU}')
    a(f's_add_u32 s{sT}, s{sT}, {lb + L_O}')
    tr = Track(a)
    NB = 40

    def ld(i):
        if i % 4 == 0 and i:
            a(f's_add_u32 s{sT}, s{sT}, 4096')
        tr.vmem(f'buffer_load_dwordx4 {vr(OF + 4 * (i % NB), 4)}, v{L16}, {WS}, s{sT} offen offset:{(i % 4) * 1024}' + ('' if AQ else ' sc1'), i)
    for i in range(NB):
        ld(i)
    for i in range(64):
        tr.wait_vm(i)
        acc = ACC + 16 * (i & 1)
        a(f'v_mfma_f32_32x32x16_bf16 {vr(acc, 16)}, {ar(4 * i, 4)}, {vr(OF + 4 * (i % NB), 4)}, ' + (vr(acc, 16) if i > 1 else '0'))
        if i + NB < 64:
            ld(i + NB)
    for r in range(0, 16, 2):
        a(f'v_pk_add_f32 {vr(ACC + r, 2)}, {vr(ACC + r, 2)}, {vr(ACC + 16 + r, 2)}')
    for q in range(4):
        a(f'ds_write_b128 v{WB_}, {vr(ACC + 4 * q, 4)} offset:{q * 4096}')
    a('s_waitcnt lgkmcnt(0)')
    a('s_barrier')
    for w in range(4):
        a(f'ds_read_b128 {vr(ACC + 4 * w, 4)}, v{RB_} offset:{w * 1024}')
    a('s_waitcnt lgkmcnt(0)')
    a('s_barrier')
    b = ACC
    for h in (0, 2):
        a(f'v_pk_add_f32 {vr(b + h, 2)}, {vr(b + h, 2)}, {vr(b + 4 + h, 2)}')
        a(f'v_pk_add_f32 {vr(b + 8 + h, 2)}, {vr(b + 8 + h, 2)}, {vr(b + 12 + h, 2)}')
    for h in (0, 2):
        a(f'v_pk_add_f32 {vr(b + h, 2)}, {vr(b + h, 2)}, {vr(b + 8 + h, 2)}')
    a(f'v_cvt_pk_bf16_f32 v{b + 4}, v{b}, v{b + 1}')
    a(f'v_cvt_pk_bf16_f32 v{b + 5}, v{b + 2}, v{b + 3}')
    unpack(a, b, b + 4, 2)
    unpack(a, b + 8, RES, 2)
    for r in range(4):
        a(f'v_add_f32 v{b + r}, v{b + r}, v{b + 8 + r}')
    a(f'v_cvt_pk_bf16_f32 v{b + 4}, v{b}, v{b + 1}')
    a(f'v_cvt_pk_bf16_f32 v{b + 5}, v{b + 2}, v{b + 3}')
    a(f's_add_u32 s{sU}, s{sXO}, {lb + L_X1}')
    a(f'buffer_store_dwordx2 {vr(b + 4, 2)}, v{RO}, {WS}, s{sU} offen sc1')
    a(f's_lshl_b32 s{sT}, s{sSEG}, 7')
    a(f's_add_u32 s{sT}, s{sT}, {fb + FL_X1}')
    signal(a, sT)
    a(f's_cmp_lt_u32 s{sSEG}, 8')
    a(f's_cselect_b32 s{sT}, 1, 3')
    a(f's_add_u32 s{sSEG}, s{sSEG}, s{sT}')
    a(f's_cmp_lt_u32 s{sSEG}, 64')
    a(f's_cbranch_scc1 {top}')
```

```python
import struct
from asmlib import *
from layout import *


def f32(x):
    return '0x%08x' % struct.unpack('<I', struct.pack('<f', x))[0]


class Track:
    def __init__(self, a):
        self.a = a
        self.vm = []
        self.lg = []

    def vmem(self, text, tag=None):
        self.a(text)
        self.vm.append(tag)

    def ds(self, text, tag=None):
        self.a(text)
        self.lg.append(tag)

    def _wait(self, q, tag, name, maxn):
        idx = [i for i, t in enumerate(q) if t == tag]
        if not idx:
            return None
        last = idx[-1]
        n = len(q) - 1 - last
        del q[:last + 1]
        if n > maxn:
            extra = n - maxn
            del q[:extra]
            n = maxn
        return n

    def wait_vm(self, tag):
        n = self._wait(self.vm, tag, 'vmcnt', 63)
        if n is not None:
            self.a(f's_waitcnt vmcnt({n})')

    def wait_lg(self, tag):
        n = self._wait(self.lg, tag, 'lgkmcnt', 15)
        if n is not None:
            self.a(f's_waitcnt lgkmcnt({n})')

    def drain_vm(self):
        self.a('s_waitcnt vmcnt(0)')
        self.vm = []

    def drain_lg(self):
        self.a('s_waitcnt lgkmcnt(0)')
        self.lg = []


IDX, L16, VW, KT, VT, WB, PQPP, ORDTMR, T3, T2, T0, T1 = range(12)
TB = 8
GM = [12, 16, 20]
Q0, K0, Q1, K1, V0, V1 = 24, 28, 32, 36, 40, 44
KR = 48
VR = 56
P = [64, 72, 80, 88]
RESV = 96

MST = 2048
LB8 = 8192
LS_S = 10240
LS_TM = 14336
LSEL = 15360
LRSEL = 15872
LWT = 16384
NLDS = 18
LWT_W = NLDS * 2048
CHAIN_LDS = LWT + 4 * LWT_W

S_WS = 4
S_W = 8
sH, sWV, sSTEP, sTMP, sTMP2 = 12, 13, 14, 15, 16
sPOLL, sPOLL8, sKB, sVB, sKMQ, sVM = 17, 18, 19, 20, 21, 22
sPST, sPST1, sPST2, sRED, sMW, sMR = 23, 24, 25, 26, 27, 28
sSTR = 30
sMASK = 36
sHASRED, sB8, sSCALE, sX41 = 38, 39, 40, 41
sSPIN = 0
sREDP = 42
sMRP = 44
sPAR = 44
sPERMLO, sPERMHI = 45, 46
sNSTEP = 47
sRS = 48
sT64 = 50
sTIME = 52
sEP = 52
sSW, sTW = 53, 54
sMASK2 = 42
sTOFF = 29
sMCB = 55
sMCO = 60
sMCP = 63
sFLB = 22
sLB = 21
sRDY = 49
sPTR = 56


VSRC = 'R R R L3 R L3 R L2 R L2 R L2 L2 L3 s1 L2 R L3 s0 s1'.split()
SQK = {4: 0, 6: 1, 9: 0}
NVQ = 12
VORD = [0, 1, 2, 4, 5, 6, 9, 7, 8, 3]


LQ = {1: 2, 2: 2, 3: 2, 4: 3, 5: 3, 6: 3, 7: 3, 8: 2, 9: 3}
LQP = {1: 3}


def vk(j):
    return ('v', j & 1, VORD[j >> 1])


def frag_plan():
    loc = {}
    na = 0
    nv = 0
    nl = 0
    ns = 0

    def res():
        nonlocal na, nv
        if na < 32:
            na += 1
            return ('a', 8 * (na - 1))
        nv += 1
        return ('v', RESV + 8 * (nv - 1))

    order = [('q', 0), ('k', 0), ('q', 1), ('k', 1)]
    lq = {1: 4, 3: 3, 4: 4, 5: 4, 6: 3, 7: 4, 8: 3, 9: 4}
    lq = LQ
    for n in range(10):
        for p, (m, t) in enumerate(order):
            if n == 0:
                loc[(m, t, n)] = ('s', ns, P[p]); ns += 1
            elif n in lq and p == LQP.get(n, 1):
                loc[(m, t, n)] = ('l', nl, P[lq[n]]); nl += 1
            elif p == 3 and n in SQK:
                loc[(m, t, n)] = ('s', ns, P[SQK[n]]); ns += 1
            else:
                loc[(m, t, n)] = res()
    for j, s in enumerate(VSRC):
        key = vk(j)
        if s[0] == 'L':
            loc[key] = ('l', nl, P[int(s[1])]); nl += 1
        elif s[0] == 's':
            loc[key] = ('s', ns, P[int(s[1])]); ns += 1
        else:
            loc[key] = res()
    for n in range(4):
        for U in range(5):
            loc[('o', U, n)] = res()
    assert (na, nv, nl, ns) == (32, 20, 18, 10), (na, nv, nl, ns)
    return loc


LOC = frag_plan()


def breg(key, loc=None):
    l = (loc or LOC)[key]
    if l[0] == 'a':
        return ar(l[1], 8)
    if l[0] == 'v':
        return vr(l[1], 8)
    return vr(l[2], 8)


def rowconst(r):
    return 32 * (r >> 2) + 8 * (r & 1) + 2 * ((r >> 1) & 1)


def chain_consts(a):
    G, C, LN, X, Y = 12, 13, 14, 15, 16
    a(f'v_lshrrev_b32 v{X}, 6, v0')
    a(f'v_and_b32 v{LN}, 63, v0')
    a(f'v_readfirstlane_b32 s{sWV}, v{X}')
    a(f'v_lshrrev_b32 v{G}, 4, v{LN}')
    a(f'v_and_b32 v{C}, 15, v{LN}')
    a(f'v_lshlrev_b32 v{L16}, 4, v{LN}')
    a(f'v_mov_b32 v{X}, 0x4444')
    a(f'v_mov_b32 v{Y}, 0xeeee')
    a(f'v_cmp_gt_u32 vcc, 8, v{C}')
    a(f'v_cndmask_b32 v{IDX}, v{Y}, v{X}, vcc')
    a(f's_mov_b32 s{sMASK}, 0x00ff00ff')
    a(f's_mov_b32 s{sMASK + 1}, 0x00ff00ff')
    a(f's_lshl_b32 s{sTMP}, s{sWV}, 11')
    a(f'v_add_u32 v{VW}, s{sTMP}, v{L16}')
    a(f's_mul_i32 s{sTMP}, s{sWV}, {LWT_W}')
    a(f's_add_u32 s{sTMP}, s{sTMP}, {LWT}')
    a(f'v_add_u32 v{WB}, s{sTMP}, v{L16}')
    a(f'v_and_b32 v{X}, 1, v{G}')
    a(f'v_lshlrev_b32 v{X}, 10, v{X}')
    a(f'v_lshrrev_b32 v{Y}, 1, v{G}')
    a(f'v_lshl_add_u32 v{X}, v{Y}, 9, v{X}')
    a(f's_lshl_b32 s{sTMP}, s{sWV}, 11')
    a(f'v_add_u32 v{X}, s{sTMP}, v{X}')
    a(f'v_lshl_add_u32 v{VT}, v{C}, 4, v{X}')
    a(f'v_bfe_u32 v{Y}, v{C}, 2, 1')
    a(f'v_lshl_add_u32 v{X}, v{Y}, 8, v{X}')
    a(f'v_lshrrev_b32 v{Y}, 3, v{C}')
    a(f'v_lshl_add_u32 v{X}, v{Y}, 6, v{X}')
    a(f'v_and_b32 v{Y}, 3, v{C}')
    a(f'v_lshl_add_u32 v{KT}, v{Y}, 4, v{X}')
    a(f'v_lshrrev_b32 v{X}, 3, v{LN}')
    a(f'v_lshlrev_b32 v{X}, 12, v{X}')
    a(f'v_and_b32 v{Y}, 7, v{LN}')
    a(f'v_lshl_add_u32 v{X}, v{Y}, 4, v{X}')
    a(f'v_lshlrev_b32 v{Y}, 12, v{G}')
    a(f'v_lshl_add_u32 v{Y}, v{C}, 3, v{Y}')
    a(f'v_lshl_add_u32 v{PQPP}, v{Y}, 16, v{X}')
    a(f'v_lshlrev_b32 v{X}, 8, v{G}')
    a(f'v_and_b32 v{Y}, 7, v{C}')
    a(f'v_lshl_add_u32 v{X}, v{Y}, 4, v{X}')
    a(f's_lshl_b32 s{sTMP}, s{sWV}, 11')
    a(f'v_add_u32 v{X}, s{sTMP}, v{X}')
    a(f's_lshl_b32 s{sSW}, s{sWV}, 10')
    a(f's_and_b32 s{sTW}, s{sWV}, 1')
    a(f's_lshl_b32 s{sTW}, s{sTW}, 7')
    a(f's_lshr_b32 s{sTMP}, s{sWV}, 1')
    a(f's_lshl_b32 s{sTMP}, s{sTMP}, 9')
    a(f's_add_u32 s{sTW}, s{sTW}, s{sTMP}')
    a(f's_mov_b32 s{sMASK2}, 0')
    a(f's_mov_b32 s{sMASK2 + 1}, 0x00ff00ff')
    a(f'v_lshlrev_b32 v17, 4, v{Y}')
    a(f'v_and_b32 v{Y}, 1, v{G}')
    a(f'v_lshl_add_u32 v17, v{Y}, 8, v17')
    a(f'v_lshrrev_b32 v{Y}, 3, v{C}')
    a(f'v_lshl_add_u32 v17, v{Y}, 3, v17')
    a(f'v_add_u32 v17, {LS_TM}, v17')
    a(f'v_lshl_add_u32 v{ORDTMR}, v17, 16, v{X}')
    lab = a.newlabel('rb')
    a(f's_lshl_b32 s{sTMP}, s{sH}, 1')
    a(f's_add_u32 s{sTMP}, s{sTMP}, s{sWV}')
    a(f's_mov_b32 s{sHASRED}, 1')
    a(f's_cmp_lt_u32 s{sWV}, 2')
    a(f's_cbranch_scc1 {lab}')
    a(f's_add_u32 s{sTMP}, s{sH}, 64')
    a(f's_cmp_lt_u32 s{sH}, 16')
    a(f's_cselect_b32 s{sHASRED}, 1, 0')
    a(f's_cmp_eq_u32 s{sWV}, 2')
    a(f's_cselect_b32 s{sHASRED}, s{sHASRED}, 0')
    a(f's_cmp_eq_u32 s{sHASRED}, 1')
    a(f's_cselect_b32 s{sTMP}, s{sTMP}, 0')
    a.label(lab)
    a(f's_lshl_b32 s{sRED}, s{sTMP}, 12')
    a(f's_add_u32 s{sRED}, s{sRED}, {WS_PRING}')
    a(f's_mul_i32 s{sTMP2}, s{sTMP}, 3277')
    a(f's_lshr_b32 s{sTMP2}, s{sTMP2}, 16')
    a(f's_mul_i32 s{sT64}, s{sTMP2}, 20')
    a(f's_sub_u32 s{sTMP}, s{sTMP}, s{sT64}')
    a(f's_mul_i32 s{sTMP2}, s{sTMP2}, 160')
    a(f's_lshr_b32 s{sT64}, s{sTMP}, 3')
    a(f's_lshl_b32 s{sT64}, s{sT64}, 6')
    a(f's_add_u32 s{sTMP2}, s{sTMP2}, s{sT64}')
    a(f's_lshr_b32 s{sT64 + 1}, s{sTMP}, 1')
    a(f's_and_b32 s{sT64 + 1}, s{sT64 + 1}, 3')
    a(f's_and_b32 s{sT64}, s{sTMP}, 3')
    a(f's_cmp_ge_u32 s{sTMP}, 16')
    a(f's_cselect_b32 s{sRS}, 1, 0')
    a(f's_cselect_b32 s{sT64 + 1}, s{sT64}, s{sT64 + 1}')
    a(f's_and_b32 s{sT64}, s{sT64 + 1}, 2')
    a(f's_lshl_b32 s{sX41}, s{sT64}, 4')
    a(f's_and_b32 s{sTMP}, s{sTMP}, 1')
    a(f's_lshl_b32 s{sTMP}, s{sTMP}, 4')
    a(f's_add_u32 s{sX41}, s{sX41}, s{sTMP}')
    a(f's_lshl_b32 s{sT64}, s{sT64}, 3')
    a(f's_cmp_eq_u32 s{sRS}, 1')
    a(f's_cselect_b32 s{sT64}, s{sT64}, s{sX41}')
    a(f's_add_u32 s{sTMP2}, s{sTMP2}, s{sT64}')
    a(f's_and_b32 s{sT64}, s{sT64 + 1}, 1')
    a(f's_lshl_b32 s{sT64}, s{sT64}, 6')
    a(f'v_lshlrev_b32 v{X}, 1, v{C}')
    a(f'v_add_u32 v{X}, s{sTMP2}, v{X}')
    a(f'v_lshrrev_b32 v{Y}, 3, v{X}')
    a(f'v_lshlrev_b32 v{Y}, 7, v{Y}')
    a(f'v_and_b32 v{X}, 7, v{X}')
    a(f'v_lshl_add_u32 v{Y}, v{X}, 1, v{Y}')
    a(f'v_lshl_add_u32 v{Y}, v{G}, 5, v{Y}')
    a(f'v_add_u32 v{Y}, s{sT64}, v{Y}')
    a(f'v_and_b32 v{X}, 0x28, v{LN}')
    a(f'v_cmp_eq_u32 vcc, 0, v{X}')
    a(f'v_mov_b32 v{X}, 0x8000')
    a(f'v_cndmask_b32 v{Y}, v{X}, v{Y}, vcc')
    a(f'v_lshl_or_b32 v{IDX}, v{Y}, 16, v{IDX}')
    a(f's_and_b32 s{sB8}, s{sWV}, 1')
    a(f's_lshl_b32 s{sB8}, s{sB8}, 10')
    a(f's_add_u32 s{sB8}, s{sB8}, {LB8}')
    a(f's_mov_b32 s{sSCALE}, {f32(128 ** -0.5 * 1.4426950408889634)}')
    a(f's_mov_b32 s{sPERMLO}, 0x05040100')
    a(f's_mov_b32 s{sPERMHI}, 0x07060302')
    a(f's_lshl_b32 s{sTMP}, s{sH}, 2')
    a(f's_add_u32 s{sTMP}, s{sTMP}, s{sWV}')
    a(f's_mul_i32 s{sTMP}, s{sTMP}, {NSTR * 2048}')
    a(f's_add_u32 s{sTMP}, s{sTMP}, {WS_STREAM}')
    for i in range(NSTR // 2):
        a(f's_add_u32 s{sSTR + i}, s{sTMP}, {i * 4096}')
    a(f's_mul_i32 s{sPST}, s{sWV}, {20 * 4096}')
    a(f's_lshl_b32 s{sTMP}, s{sH}, 7')
    a(f's_add_u32 s{sPST}, s{sPST}, s{sTMP}')
    a(f's_add_u32 s{sPST}, s{sPST}, {WS_PRING}')
    a(f's_add_u32 s{sPST1}, s{sPST}, {8 * 4096}')
    a(f's_add_u32 s{sPST2}, s{sPST}, {16 * 4096}')


def slot_kk_salu(a, n, dst):
    if n < 2:
        a(f's_lshl_b32 s{dst}, s{sWV}, 1')
        if n:
            a(f's_add_u32 s{dst}, s{dst}, 1')
    elif n == 2:
        a(f's_and_b32 s{dst}, s{sWV}, 1')
        a(f's_add_u32 s{dst}, s{dst}, 8')
    elif n == 3:
        a(f's_and_b32 s{dst}, s{sWV}, 1')
        a(f's_sub_u32 s{dst}, 9, s{dst}')
    else:
        q = (n - 2) >> 1
        a(f's_xor_b32 s{dst}, s{sWV}, {q}')
        a(f's_lshl_b32 s{dst}, s{dst}, 1')
        if n & 1:
            a(f's_add_u32 s{dst}, s{dst}, 1')


def chain_load_weights(a, LOC=None, mats=(0, 1, 2, 3)):
    LOC = LOC or globals()['LOC']
    tr = Track(a)
    LN, G, C = 14, 12, 13
    VSRC = 17
    VO = [18, 19, 20, 21, 22]
    RA, RB, RC = 23, 24, 25
    X, Y = 26, 27
    RD = 32
    PT = 64
    sSCR = sPOLL
    sHO, sKK, sSO, sSP = sPOLL8, sKB, sVB, sKMQ
    a(f's_mul_i32 s{sSCR}, s{sWV}, 40960')
    a(f's_lshl_b32 s{sSP}, s{sH}, 2')
    a(f's_add_u32 s{sSP}, s{sSP}, s{sWV}')
    a(f's_mul_i32 s{sSP}, s{sSP}, {NLDS * 2048}')
    a(f's_add_u32 s{sSP}, s{sSP}, {WS_SPILL}')
    a(f'v_lshrrev_b32 v{X}, 3, v{LN}')
    a(f'v_lshlrev_b32 v{X}, 13, v{X}')
    a(f'v_and_b32 v{Y}, 7, v{LN}')
    a(f'v_lshl_add_u32 v{X}, v{Y}, 4, v{X}')
    a(f's_lshr_b32 s{sTMP}, s{sWV}, 1')
    a(f's_lshl_b32 s{sTMP}, s{sTMP}, 7')
    a(f'v_add_u32 v{VSRC}, s{sTMP}, v{X}')
    a(f's_mul_i32 s{sTMP}, s{sWV}, 320')
    a(f's_mov_b32 s{sTMP2}, 3277')
    a(f's_movk_i32 s{sT64}, 1280')
    for i in range(5):
        a(f'v_add_u32 v{X}, {64 * i}, v{LN}')
        a(f'v_mul_lo_u32 v{Y}, v{X}, s{sTMP2}')
        a(f'v_lshrrev_b32 v{Y}, 16, v{Y}')
        a(f'v_mul_u32_u24 v{VO[i]}, 20, v{Y}')
        a(f'v_sub_u32 v{X}, v{X}, v{VO[i]}')
        a(f'v_mul_lo_u32 v{Y}, v{Y}, s{sT64}')
        a(f'v_lshl_add_u32 v{Y}, v{X}, 4, v{Y}')
        a(f'v_add_u32 v{VO[i]}, s{sTMP}, v{Y}')
    LP = 28
    a(f'v_lshrrev_b32 v{X}, 1, v{G}')
    a(f'v_lshlrev_b32 v{X}, 4, v{X}')
    a(f'v_and_b32 v{Y}, 1, v{G}')
    a(f'v_lshl_add_u32 v{LP}, v{Y}, 2, v{X}')

    def set_srd(mi):
        a(f's_mov_b32 s{S_W}, s{sPTR + 2 * mi}')
        a(f's_and_b32 s{S_W + 1}, s{sPTR + 2 * mi + 1}, 0xffff')
        a(f's_mov_b32 s{S_W + 2}, 5242880')
        a(f's_mov_b32 s{S_W + 3}, 0x00020000')

    POS = [0, 1, 2, 6, 7]
    PART = [4, 5, 3, 8, 9]
    GRP = [(0, 1), (2,), (3, 4)]

    def dma_pos(mi, p):
        if mi < 3:
            slot_kk_salu(a, POS[p], sKK)
            a(f's_lshl_b32 s{sKK}, s{sKK}, 19')
            a(f's_lshl_b32 s{sSO}, s{sH}, 8')
            a(f's_add_u32 s{sKK}, s{sKK}, s{sSO}')
            for i in range(8):
                a(f's_add_u32 s{sSO}, s{sKK}, {i * 8 * 8192}')
                a(f's_add_u32 m0, s{sSCR}, {p * 8192 + i * 1024}')
                tr.vmem(f'buffer_load_dwordx4 v{VSRC}, s[{S_W}:{S_W + 3}], s{sSO} offen lds', ('dma', mi, p))
        else:
            a(f's_mul_i32 s{sKK}, s{sH}, 163840')
            for i in range(8):
                ii = 8 * p + i
                a(f's_add_u32 s{sSO}, s{sKK}, {(ii // 5) * 16 * 1280}')
                a(f's_add_u32 m0, s{sSCR}, {ii * 1024}')
                tr.vmem(f'buffer_load_dwordx4 v{VO[ii % 5]}, s[{S_W}:{S_W + 3}], s{sSO} offen lds', ('dma', mi, p))

    def dest(key, k):
        l = LOC[key]
        if l[0] == 'v':
            return l[1]
        return PT + 8 * k

    def finish(key, k):
        l = LOC[key]
        base = PT + 8 * k
        if l[0] == 'a':
            for r in range(8):
                a(f'v_accvgpr_write_b32 a{l[1] + r}, v{base + r}')
        elif l[0] in 'ls':
            a(f's_add_u32 s{sSO}, s{sSTR if l[0] == "s" else sSP}, {l[1] * 2048}')
            tr.vmem(f'buffer_store_dwordx4 {vr(base, 4)}, v{L16}, s[{S_WS}:{S_WS + 3}], s{sSO} offen', 'spill')
            tr.vmem(f'buffer_store_dwordx4 {vr(base + 4, 4)}, v{L16}, s[{S_WS}:{S_WS + 3}], s{sSO} offen offset:1024',
                    'spill')

    set_srd(mats[0])
    for p in range(5):
        dma_pos(mats[0], p)
    RCP = 29
    a(f'v_lshlrev_b32 v{X}, 7, v{LP}')
    a(f'v_lshl_add_u32 v{X}, v{C}, 2, v{X}')
    a(f's_and_b32 s{sTMP}, s{sWV}, 1')
    a(f's_lshl_b32 s{sTMP}, s{sTMP}, 6')
    a(f'v_add_u32 v{X}, s{sTMP}, v{X}')
    a(f'v_add_u32 v{RC}, s{sSCR}, v{X}')
    a(f's_xor_b32 s{sTMP}, s{sWV}, 1')
    a(f's_mul_i32 s{sTMP}, s{sTMP}, 40960')
    a(f'v_add_u32 v{RCP}, s{sTMP}, v{X}')
    R4 = [RA, RB, 30, 31]
    pending = None
    for ix, mi in enumerate(mats):
        if mi == 3:
            break
        m = 'qkv'[mi]
        nxt = mats[ix + 1] if ix + 1 < len(mats) else None
        for gi_, grp in enumerate(GRP):
            tr.wait_vm(('dma', mi, grp[-1]))
            a('s_barrier')
            if OPT.get('wlt') and 3 in mats and gi_ == 0:
                a(f's_memrealtime s[{64 + 2 * ix}:{65 + 2 * ix}]')
            if pending is not None:
                pm, pg = pending
                set_srd(pm)
                for p in pg:
                    dma_pos(pm, p)
            pending = (nxt, grp) if nxt is not None else None
            for p in grp:
                for n, base in ((POS[p], RC), (PART[p], RCP)):
                    for k in range(4):
                        a(f'v_add_u32 v{R4[k]}, {p * 8192 + (k >> 1) * 4096 + (k & 1) * 1024}, v{base}')
                    for r in range(8):
                        rc = rowconst(r) & 31
                        o = (rc & 7) * 32
                        tr.ds(f'ds_read2_b32 {vr(RD + 2 * r, 2)}, v{R4[2 * (r >> 2) + (rc >> 3)]} offset0:{o} offset1:{o + 32}')
                    tr.drain_lg()
                    for t in range(2):
                        key = (m, t, n)
                        d = dest(key, t)
                        for r in range(8):
                            a(f'v_perm_b32 v{d + r}, v{RD + 2 * r + 1}, v{RD + 2 * r}, s{sPERMHI if t else sPERMLO}')
                        finish(key, t)
    if pending is not None:
        a('s_barrier')
        set_srd(pending[0])
        for p in pending[1]:
            dma_pos(pending[0], p)
    if OPT.get('wlt') and 3 in mats:
        a('s_memrealtime s[90:91]')
    if 3 in mats:
        a(f's_movk_i32 s{sT64}, {4 * 320}')
        a(f'v_mul_lo_u32 v{X}, v{G}, s{sT64}')
        a(f'v_add_u32 v{X}, s{sSCR}, v{X}')
        a(f'v_lshl_add_u32 v{RC}, v{C}, 2, v{X}')
        a(f'v_lshrrev_b32 v{Y}, 1, v{C}')
        a(f'v_lshl_add_u32 v{Y}, v{Y}, 2, v{X}')
        a(f'v_add_u32 v{Y}, 256, v{Y}')
        SELV = 29
        a(f'v_and_b32 v{X}, 1, v{C}')
        a(f'v_mov_b32 v{SELV}, s{sPERMLO}')
        a(f'v_mov_b32 v30, s{sPERMHI}')
        a(f'v_cmp_eq_u32 vcc, 1, v{X}')
        a(f'v_cndmask_b32 v{SELV}, v{SELV}, v30, vcc')
        tr.wait_vm(('dma', 3, 4))
        if OPT.get('wlt'):
            a('s_memrealtime s[92:93]')
        for n in range(4):
            a(f's_xor_b32 s{sKK}, s{sWV}, {n}')
            a(f's_mul_i32 s{sKK}, s{sKK}, {32 * 320}')
            for grp in range(3):
                for r in range(8):
                    off = (16 * (r >> 2) + 2 * ((r >> 1) & 1)) * 320
                    if grp < 2:
                        off += 128 * grp + 64 * (r & 1)
                    else:
                        off += 32 * (r & 1)
                    a(f's_add_u32 s{sSO}, s{sKK}, {off}')
                    a(f'v_add_u32 v{RA}, s{sSO}, v{RC if grp < 2 else Y}')
                    tr.ds(f'ds_read2_b32 {vr(RD + 2 * r, 2)}, v{RA} offset0:0 offset1:80')
                tr.drain_lg()
                for t in range(2 if grp < 2 else 1):
                    key = ('o', 2 * grp + t, n)
                    d = dest(key, t)
                    for r in range(8):
                        sel = f'v{SELV}' if grp == 2 else f's{sPERMHI if t else sPERMLO}'
                        a(f'v_perm_b32 v{d + r}, v{RD + 2 * r + 1}, v{RD + 2 * r}, {sel}')
                    finish(key, t)
    if OPT.get('wlt') and 3 in mats:
        a('s_memrealtime s[94:95]')
    tr.drain_vm()
    a('s_barrier')
    if OPT.get('wlt') and 3 in mats:
        a('s_memrealtime s[96:97]')
    a(f's_mul_i32 s{sSCR}, s{sWV}, {LWT_W}')
    a(f's_add_u32 s{sSCR}, s{sSCR}, {LWT}')
    for i in range(2 * NLDS if 3 in mats else 0):
        a(f's_add_u32 s{sSO}, s{sSP}, {i * 1024}')
        a(f's_add_u32 m0, s{sSCR}, {i * 1024}')
        tr.vmem(f'buffer_load_dwordx4 v{L16}, s[{S_WS}:{S_WS + 3}], s{sSO} offen lds')
    a(f'v_and_b32 v{X}, 1, v{G}')
    a(f'v_lshlrev_b32 v{X}, 2, v{X}')
    a(f'v_sub_u32 v{X}, v{C}, v{X}')
    a(f'v_mov_b32 v{RA}, 0x3f80')
    a(f'v_mov_b32 v{RB}, 0x3f800000')
    for p, k in enumerate((0, 2, 8, 10)):
        reg = RD + p
        a(f'v_mov_b32 v{reg}, 0')
        a(f'v_cmp_eq_u32 vcc, {k}, v{X}')
        a(f'v_cndmask_b32 v{reg}, v{reg}, v{RA}, vcc')
        a(f'v_cmp_eq_u32 vcc, {k + 1}, v{X}')
        a(f'v_cndmask_b32 v{reg}, v{reg}, v{RB}, vcc')
    a(f'v_and_b32 v{Y}, 0x1f0, v{L16}')
    tr.ds(f'ds_write_b128 v{Y}, {vr(RD, 4)} offset:{LSEL}')
    for var in range(2):
        if var == 0:
            a(f'v_mov_b32 v{X}, v{C}')
        else:
            a(f'v_and_b32 v{X}, 8, v{C}')
            a(f'v_bfe_u32 v{Y}, v{C}, 1, 2')
            a(f'v_add_u32 v{X}, v{X}, v{Y}')
            a(f'v_and_b32 v{Y}, 1, v{C}')
            a(f'v_lshl_add_u32 v{X}, v{Y}, 2, v{X}')
        for p in range(4):
            reg = RD + 4 + p
            a(f'v_mov_b32 v{reg}, 0')
            a(f'v_cmp_eq_u32 vcc, {2 * p}, v{X}')
            a(f'v_cndmask_b32 v{reg}, v{reg}, v{RA}, vcc')
            a(f'v_cmp_eq_u32 vcc, {2 * p + 1}, v{X}')
            a(f'v_cndmask_b32 v{reg}, v{reg}, v{RB}, vcc')
        a(f'v_and_b32 v{Y}, 0xf0, v{L16}')
        tr.ds(f'ds_write_b128 v{Y}, {vr(RD + 4, 4)} offset:{LRSEL + var * 256}')
    tr.drain_vm()
    tr.drain_lg()
    a('s_barrier')


assert CHAIN_LDS <= 163840


OPT = {}
OOB = 0x7ffff000


def fill_ops(keys, tag):
    ops = []
    if OPT.get('nofill'):
        return ops
    for key in keys:
        l = LOC[key]
        assert l[0] == 's'
        idx = l[1]
        for hf in range(2):
            off = (idx & 1) * 2048 + hf * 1024
            ops.append((f'buffer_load_dwordx4 {vr(l[2] + 4 * hf, 4)}, v{L16}, s[{S_WS}:{S_WS + 3}], s{sSTR + (idx >> 1)} offen'
                        + (f' offset:{off}' if off else '') + ('' if str(idx) in OPT.get('l1', ' 99').strip().split(',') else ' sc1'), tag))
    return ops


def lds_stage(tr, key):
    l = LOC[key]
    assert l[0] == 'l'
    for hf in range(2):
        tr.ds(f'ds_read_b128 {vr(l[2] + 4 * hf, 4)}, v{WB} offset:{l[1] * 2048 + hf * 1024}', ('B',) + key)


def m_addr(a, n, state):
    if n < 2:
        return
    if n == 2:
        a(f'v_add_u32 v{T2}, s{sB8}, v{L16}')
        state['t2'] = 'b8'
    elif n == 3:
        assert state['t2'] == 'b8'
        a(f'v_xor_b32 v{T2}, 0x400, v{T2}')
        state['t2'] = 'b9'
    elif (n & 1) == 0:
        q = (n - 2) >> 1
        a(f'v_xor_b32 v{T2}, {q * MST}, v{VW}')
        state['t2'] = ('p', q)


def m_read(tr, n, buf, state):
    tag = ('A', n)
    if n < 2:
        tr.ds(f'ds_read_b128 {vr(buf, 4)}, v{VW} offset:{n * 1024}', tag)
    elif n < 4:
        assert state['t2'] == ('b8' if n == 2 else 'b9')
        tr.ds(f'ds_read_b128 {vr(buf, 4)}, v{T2}', tag)
    else:
        assert state['t2'] == ('p', (n - 2) >> 1)
        tr.ds(f'ds_read_b128 {vr(buf, 4)}, v{T2} offset:{(n & 1) * 1024}', tag)


def smf(a, acc, abuf, key, loc=None):
    a(f'v_smfmac_f32_16x16x64_bf16 {vr(acc, 4)}, {vr(abuf, 4)}, {breg(key, loc)}, v{IDX}')


def zero(a, base, n):
    for i in range(0, n, 2):
        a(f'v_mov_b64 {vr(base + i, 2)}, 0')


H01 = [('q', 0, 0), ('k', 0, 0)]
H23 = [('q', 1, 0), ('k', 1, 0)]
SPINMAX = 0x180000


def kv_ready(a, name, seg_sgpr_plus):
    if OPT.get('noflags'):
        return
    WS = f's[{S_WS}:{S_WS + 3}]'
    a(f's_add_u32 s{sTMP}, s{sSTEP}, {seg_sgpr_plus}')
    a(f's_lshr_b32 s{sTMP}, s{sTMP}, 2')
    a(f's_min_u32 s{sTMP}, s{sTMP}, 15')
    a(f's_cmp_lt_u32 s{sTMP}, s{sRDY}')
    a(f's_cbranch_scc1 {name}_ok')
    a.label(f'{name}_sp')
    a(f'v_lshrrev_b32 v{T1}, 2, v{L16}')
    a(f'buffer_load_dword v{T1}, v{T1}, {WS}, s{sFLB} offen sc1')
    a('s_waitcnt vmcnt(0)')
    a(f'v_cmp_le_u32 vcc, 4, v{T1}')
    a(f's_add_u32 s{sSPIN}, s{sSPIN}, 1')
    a(f's_and_b32 s{sRDY}, vcc_lo, 0xffff')
    a(f's_ff0_i32_b32 s{sRDY}, s{sRDY}')
    a(f's_cmp_lt_u32 s{sTMP}, s{sRDY}')
    a(f's_cbranch_scc1 {name}_ok')
    a(f's_cmp_lt_u32 s{sSPIN}, {SPINMAX}')
    a(f's_cbranch_scc1 {name}_sp')
    a.label(f'{name}_ok')


def mc_init(a):
    for k, n in enumerate((7, 8, 3)):
        slot_kk_salu(a, n, sMCO + k)
        a(f's_lshl_b32 s{sMCO + k}, s{sMCO + k}, 10')
    a(f's_lshl_b32 s{sTOFF}, s{sWV}, 3')
    a(f's_add_u32 s{sTOFF}, s{sTOFF}, s{sH}')


def chain_epilogue(a):
    pass


def chain_init_state(a):
    tr = Track(a)
    for t, tag in fill_ops(H01 + H23, 'h'):
        a(t)
    mc_init(a)
    zero(a, Q0, 24)
    a(f's_mov_b32 s{sMW}, {WS_MRING}')
    a(f's_mov_b32 s{sMR}, {WS_MRING + 3 * MSLOT}')
    a(f's_mov_b32 s{sLB}, {LAYER0}')
    a(f's_lshl_b32 s{sFLB}, s{sH}, 7')
    a(f's_add_u32 s{sFLB}, s{sFLB}, {WS_FLAGS + FL_KV}')


def chain_layer_state(a):
    WS = f's[{S_WS}:{S_WS + 3}]'
    a(f's_lshl_b32 s{sTMP}, s{sH}, 13')
    a(f's_add_u32 s{sTMP}, s{sTMP}, s{sLB}')
    a(f's_add_u32 s{sKB}, s{sTMP}, {L_KB}')
    a(f's_add_u32 s{sVB}, s{sTMP}, {L_VB}')
    a(f's_add_u32 s{sMCB}, s{sLB}, {L_MC - MSLOT}')
    a(f's_lshl_b32 s{sTMP}, s{sWV}, 11')
    a(f's_add_u32 s{sPOLL}, s{sTMP}, {WS_M0}')
    a(f's_add_u32 s{sPOLL8}, s{sB8}, {WS_M0 + 8192 - LB8}')
    a(f's_mov_b32 s{sSTEP}, 0')
    a(f's_mov_b32 s{sRDY}, 0')
    kv_ready(a, a.newlabel('kvr0'), 0)
    for i in range(2):
        a(f'buffer_load_dwordx4 {vr(KR + 4 * i, 4)}, v{KT}, {WS}, s{sKB} offen offset:{128 * i} sc1')
        a(f'buffer_load_dwordx4 {vr(VR + 4 * i, 4)}, v{VT}, {WS}, s{sVB} offen offset:{256 * i} sc1')
    a(f's_mov_b32 s{sSTEP}, -1')


class Rec:
    def __init__(self):
        self.l = []

    def __call__(self, t):
        self.l.append(t)


def chain_step(a, sc, name, timing=False):
    tr = Track(a)
    WS = f's[{S_WS}:{S_WS + 3}]'
    st = {}
    top = f'{name}_top'
    a.label(top)
    mq = []
    KVM = OPT.get('kvmod', ' sc1 nt')

    def M(cnt=1):
        for _ in range(cnt):
            if mq:
                t, tag = mq.pop(0)
                if tag == 'ra':
                    lab = a.newlabel('ras')
                    a(f's_cbranch_scc1 {lab}')
                    a(t)
                    a.label(lab)
                else:
                    tr.vmem(t, tag)

    used = []

    def stamp(i):
        if timing and (str(i) in OPT['stamps'] or i in (0, 7)):
            k = len(used)
            used.append(i)
            a(f's_memtime s[{64 + 2 * k}:{65 + 2 * k}]')
    stamp(0)
    m_addr(a, 2, st)
    pl = f'{name}_mpoll'
    ld = [f'buffer_load_dwordx4 {vr(GM[0], 4)}, v{L16}, {WS}, s{sPOLL} offen sc1',
          f'buffer_load_dwordx4 {vr(GM[1], 4)}, v{L16}, {WS}, s{sPOLL} offen offset:1024 sc1',
          f'buffer_load_dwordx4 {vr(GM[2], 4)}, v{L16}, {WS}, s{sPOLL8} offen sc1']
    wr = [f'ds_write_b128 v{VW}, {vr(GM[0], 4)}', f'ds_write_b128 v{VW}, {vr(GM[1], 4)} offset:1024',
          f'ds_write_b128 v{T2}, {vr(GM[2], 4)}']
    a.label(pl)
    for t in ld:
        a(t)
    a(f's_add_u32 s{sSPIN}, s{sSPIN}, 1')
    a(f's_cmp_lt_u32 s{sSPIN}, {SPINMAX}')
    a(f's_cselect_b64 s[{sT64}:{sT64 + 1}], -1, 0')
    a(f's_waitcnt vmcnt(2)')
    g = GM[0]
    a(f'v_max3_u32 v{T0}, v{g}, v{g + 1}, v{g + 2}')
    a(wr[0])
    a(f'v_max_u32 v{T0}, v{T0}, v{g + 3}')
    a(f'v_cmp_eq_u32 vcc, -1, v{T0}')
    a(f's_and_b64 vcc, vcc, s[{sT64}:{sT64 + 1}]')
    a(f's_cbranch_vccnz {pl}')
    tr.lg += ['mw']
    tr.vm = ['m1', 'm2']
    side = []

    def mcheck(k):
        g = GM[k]
        ok, rt = f'{name}_mok{k}', f'{name}_mrt{k}'
        tr.wait_vm(f'm{k}')
        a(f'v_max3_u32 v{T0}, v{g}, v{g + 1}, v{g + 2}')
        a(f'v_max_u32 v{T0}, v{T0}, v{g + 3}')
        a(f'v_cmp_eq_u32 vcc, -1, v{T0}')
        a(f's_cbranch_vccnz {rt}')
        a.label(ok)
        tr.ds(wr[k], 'mw')
        side.append((k, ok, rt))

    sq = Rec()
    for r in (sKB, sVB):
        sq(f's_add_u32 s{r}, s{r}, {32 * 8192}')
    sq(f's_add_u32 s{sMCB}, s{sMCB}, {MSLOT}')
    sq(f's_add_u32 s{sSTEP}, s{sSTEP}, 1')
    sq(f's_and_b32 s{sEP}, s{sSTEP}, 1')
    sq(f's_mov_b32 s{sMRP}, s{sMR}')
    sq(f's_mov_b32 s{sMR}, s{sMW}')
    sq(f's_add_u32 s{sMW}, s{sMW}, {MSLOT}')
    sq(f's_cmp_ge_u32 s{sMW}, {WS_MRING + 4 * MSLOT}')
    sq(f's_cselect_b32 s{sMW}, {WS_MRING}, s{sMW}')
    sq(f's_lshl_b32 s{sTMP}, s{sWV}, 11')
    sq(f's_add_u32 s{sPOLL}, s{sMW}, s{sTMP}')
    sq(f's_add_u32 s{sPOLL8}, s{sMW}, s{sB8}')
    sq(f's_add_u32 s{sPOLL8}, s{sPOLL8}, {8192 - LB8}')
    sq(f's_add_u32 s{sMCP}, s{sSTEP}, s{sTOFF}')
    sq(f's_and_b32 s{sMCP}, s{sMCP}, 31')

    def SQ(n=1):
        for _ in range(n):
            if sq.l:
                a(sq.l.pop(0))

    stamp(1)
    for n in (4, 6):
        mq += fill_ops([('k', 1, n)], ('s', n))
    order = [('q', 0, Q0), ('k', 0, K0), ('q', 1, Q1), ('k', 1, K1)]
    SELR = TB
    BARP = int(OPT.get('barp', '1'))
    merged = {VORD[q]: q for q in range(NVQ // 2)}
    seq = []
    for n in range(10):
        if n in LQ:
            seq.append(order[LQP.get(n, 1)][:2] + (n,))
        if n in merged:
            seq += [vk(j) for j in (2 * merged[n], 2 * merged[n] + 1) if VSRC[j][0] == 'L']
    seq += [vk(j) for j in range(NVQ, 20) if VSRC[j][0] == 'L']

    def restage(key):
        for k2 in seq[seq.index(key) + 1:]:
            if LOC[k2][2] == LOC[key][2]:
                lds_stage(tr, k2)
                return

    for n in range(10):
        buf = GM[n % 3]
        ops = [((m, t, n), acc) for m, t, acc in order]
        if n in merged:
            ops += [(vk(2 * merged[n]), V0), (vk(2 * merged[n] + 1), V1)]
        for p, (key, acc) in enumerate(ops):
            last = p == len(ops) - 1
            if p == 3 and n in SQK:
                assert not any(tag == ('s', n) for _, tag in mq)
                tr.wait_vm(('s', n))
            smf(a, acc, buf, key)
            nins = len(a.ins)
            post = None
            if LOC[key][0] == 'l':
                restage(key)
            if p == 0 and n >= 1:
                M()
            if p == 0 and n == 0:
                mcheck(1)
            if p == 2 and n == 0:
                lds_stage(tr, seq[0])
                mcheck(2)
            if p == 4 and n == 0:
                M()
                post = 3
            if p == BARP and n == 2:
                tr.wait_lg('mw')
                a('s_barrier')
                m_read(tr, 3, GM[0], st)
                m_addr(a, 4, st)
                m_read(tr, 4, GM[1], st)
            if p == 2 and 3 <= n <= 6:
                post = n + 3
            if p == 4 and n in (4, 6):
                M()
            if p == 3 and n == 0:
                lds_stage(tr, vk(3))
            if p == 3 and n == 4:
                mq += fill_ops([('k', 1, 9)], ('s', 9))
            if p == 3 and n == 6:
                mq += fill_ops([vk(14)], 's14')
            if p == 3 and n == 9:
                mq += fill_ops([vk(18)], 's18')
            if p == 3 and n == 8:
                tr.ds(f'ds_read_b128 {vr(SELR, 4)}, v{T0} offset:{LSEL}', 'sel')
                st['t2'] = None
            if last:
                if 2 <= n <= 6:
                    m_read(tr, n + 3, buf, st)
                if n == 9:
                    M()
                if 2 <= n < 9:
                    tr.wait_lg(('A', n + 1))
            elif LOC[ops[p + 1][0]][0] == 'l':
                tr.wait_lg(('B',) + ops[p + 1][0])
            if n >= 1:
                SQ(max(0, 2 - (len(a.ins) - nins) - (1 if post else 0)))
            if post:
                m_addr(a, post, st)
            if p == 2 and n == 8:
                a(f'v_and_b32 v{T0}, 0x1f0, v{L16}')
            if last:
                stamp(f'n{n}')
    assert len(mq) <= 1 and not sq.l, mq
    vbuf = {9: GM[0], 7: GM[1], 8: GM[2], 3: GM[0]}
    fstate = {'j': NVQ}
    stag = {14: 's14', 18: 's18', 19: 's19'}

    def F(cnt=1):
        for _ in range(cnt):
            j = fstate['j']
            assert j < 20
            fstate['j'] += 1
            q, t = j >> 1, j & 1
            n = VORD[q]
            key = vk(j)
            if j == 18:
                tr.wait_lg(('A', 3))
            if LOC[key][0] == 'l':
                tr.wait_lg(('B',) + key)
            if j in stag:
                assert not any(tag == stag[j] for _, tag in mq)
                tr.wait_vm(stag[j])
            smf(a, V1 if t else V0, vbuf[n], key)
            if LOC[key][0] == 'l':
                restage(key)
            if j == 13:
                m_read(tr, 3, GM[0], st)
            if j == 14:
                mq.extend(fill_ops([vk(19)], 's19'))
            if OPT.get('kearly'):
                if j == 15:
                    kv_ready(a, f'{name}_kvr', 1)
                    mq.append((f'buffer_load_dwordx4 {vr(KR, 4)}, v{KT}, {WS}, s{sKB} offen{KVM}', 'kt'))
                    mq.append((f'buffer_load_dwordx4 {vr(KR + 4, 4)}, v{KT}, {WS}, s{sKB} offen offset:128{KVM}', 'kt'))
                if j in (17, 18, 19):
                    mq.extend(fill_ops([(H01 + H23)[{17: 3, 18: 0, 19: 1}[j]]], 'h'))
                if j == 19:
                    mq.extend(fill_ops([H23[0]], 'h'))
            elif j in (15, 17, 18, 19):
                mq.extend(fill_ops([(H01 + H23)[{15: 2, 17: 3, 18: 0, 19: 1}[j]]], 'h'))

    cvt = lambda d, x, y: a(f'v_cvt_pk_bf16_f32 v{d}, v{x}, v{y}')
    dpp = lambda d, x, bm: a(f'v_mov_b32_dpp v{d}, v{x} row_ror:8 row_mask:0xf bank_mask:{bm}')
    pka = lambda d, x, y: a(f'v_pk_add_f32 {vr(d, 2)}, {vr(x, 2)}, {vr(y, 2)}')
    stamp(2)
    cvt(Q0, Q0, Q0 + 1)
    cvt(Q0 + 1, Q0 + 2, Q0 + 3)
    cvt(Q0 + 2, K0, K0 + 1)
    cvt(Q0 + 3, K0 + 2, K0 + 3)
    cvt(Q1, Q1, Q1 + 1)
    tr.wait_lg('sel')
    a(f'v_mfma_f32_16x16x32_bf16 {vr(K0, 4)}, {vr(Q0, 4)}, {vr(SELR, 4)}, 0')
    cvt(Q1 + 1, Q1 + 2, Q1 + 3)
    cvt(Q1 + 2, K1, K1 + 1)
    cvt(Q1 + 3, K1 + 2, K1 + 3)
    a(f'v_mfma_f32_16x16x32_bf16 {vr(K1, 4)}, {vr(Q1, 4)}, {vr(SELR, 4)}, 0')
    F(1)
    M()
    m_addr(a, 2, st)
    m_addr(a, 3, st)
    for r in range(4):
        cvt(Q0 + r, K0 + r, K1 + r)
    a(f'v_lshrrev_b32 v{T0}, 16, v{ORDTMR}')
    a(f'v_mfma_f32_16x16x32_bf16 {vr(K0, 4)}, {vr(KR, 4)}, {vr(Q0, 4)}, 0')
    a(f'v_add_u32 v{T1}, s{sSW}, v{L16}')
    a(f'v_mfma_f32_16x16x32_bf16 {vr(K1, 4)}, {vr(KR + 4, 4)}, {vr(Q0, 4)}, 0')
    a(f'v_add_u32 v{T3}, s{sTW}, v{L16}')
    a(f'v_mfma_f32_16x16x32_bf16 {vr(Q1, 4)}, {vr(Q0, 4)}, {vr(Q0, 4)}, 0')
    stamp('smf')
    M()
    for r in range(4):
        dpp(K0 + r, K1 + r, '0xc')
    F(1)
    tr.ds(f'ds_write_b128 v{T1}, {vr(K0, 4)} offset:{LS_S}', 'sw')
    F(1)
    a(f's_mov_b64 exec, s[{sMASK2}:{sMASK2 + 1}]')
    tr.ds(f'ds_write_b128 v{T3}, {vr(Q1, 4)} offset:{LS_TM - 512}', 'sw')
    a('s_mov_b64 exec, -1')
    M()
    F(2)
    M()
    if not OPT.get('kearly'):
        kv_ready(a, f'{name}_kvr', 1)
    stamp('b2a')
    tr.wait_lg('sw')
    a('s_barrier')
    stamp(3)
    SR = [K0, K1, Q1, Q0]
    for w in range(4):
        tr.ds(f'ds_read_b128 {vr(SR[w], 4)}, v{L16} offset:{w * 1024 + LS_S}', ('sr', w))
    TM = P[2] if OPT.get('kearly') else KR
    tr.ds(f'ds_read2_b64 {vr(TM, 4)}, v{T0} offset0:0 offset1:16', 'tm')
    tr.ds(f'ds_read2_b64 {vr(TM + 4, 4)}, v{T0} offset0:64 offset1:80', 'tm')
    M()
    F(1)
    M()
    F(1)
    M()
    if OPT.get('vearly'):
        tr.vmem(f'buffer_load_dwordx4 {vr(VR, 4)}, v{VT}, {WS}, s{sVB} offen{KVM}', 'vt')
        tr.vmem(f'buffer_load_dwordx4 {vr(VR + 4, 4)}, v{VT}, {WS}, s{sVB} offen offset:256{KVM}', 'vt')
        tr.vm = [None if x == 'vt' else x for x in tr.vm]
    stamp('sr')
    tr.wait_lg(('sr', 1))
    pka(K0, K0, K1)
    pka(K0 + 2, K0 + 2, K1 + 2)
    tr.wait_lg(('sr', 3))
    pka(Q1, Q1, Q0)
    pka(Q1 + 2, Q1 + 2, Q0 + 2)
    M()
    tr.wait_lg('tm')
    pka(TM, TM, TM + 2)
    pka(TM + 4, TM + 4, TM + 6)
    pka(K0, K0, Q1)
    pka(K0 + 2, K0 + 2, Q1 + 2)
    SMM = Q1
    pka(SMM, TM, TM + 4)
    MX, MY = K1, K1 + 1
    a(f'v_max3_f32 v{MX}, v{K0}, v{K0 + 1}, v{K0 + 2}')
    a(f'v_max3_f32 v{MY}, v{K0 + 3}, v{SMM}, v{SMM + 1}')
    a(f'v_max_f32 v{MX}, v{MX}, v{MY}')
    F(1)
    M()
    cvt(V0, V0, V0 + 1)
    a(f'v_max_f32_dpp v{MX}, v{MX}, v{MX} row_ror:8 row_mask:0xf bank_mask:0xf')
    a(f'v_mov_b32 v{MY}, v{MX}')
    cvt(V0 + 1, V0 + 2, V0 + 3)
    M()
    a(f'v_permlane16_swap_b32 v{MX}, v{MY}')
    a(f'v_max_f32 v{MX}, v{MX}, v{MY}')
    a(f'v_mov_b32 v{MY}, v{MX}')
    cvt(V0 + 2, V1, V1 + 1)
    cvt(V0 + 3, V1 + 2, V1 + 3)
    a(f'v_permlane32_swap_b32 v{MX}, v{MY}')
    a(f'v_max_f32 v{MX}, v{MX}, v{MY}')
    a(f'v_mul_f32 v{MX}, s{sSCALE}, v{MX}')
    stamp('mx')
    S = [K0, K0 + 1, K0 + 2, K0 + 3, SMM, SMM + 1]
    for i, s in enumerate(S):
        a(f'v_fma_f32 v{s}, v{s}, s{sSCALE}, -v{MX}')
        if i in (0, 3):
            M()
    hq = list(mq)
    del mq[:]
    kvq = []
    if not OPT.get('nokv'):
        kvq = [] if OPT.get('kearly') else \
              [(f'buffer_load_dwordx4 {vr(KR, 4)}, v{KT}, {WS}, s{sKB} offen{KVM}', 'kt'),
               (f'buffer_load_dwordx4 {vr(KR + 4, 4)}, v{KT}, {WS}, s{sKB} offen offset:128{KVM}', 'kt')]
        kvq += [
               (f'buffer_load_dwordx4 {vr(VR, 4)}, v{VT}, {WS}, s{sVB} offen{KVM}', 'vt'),
               (f'buffer_load_dwordx4 {vr(VR + 4, 4)}, v{VT}, {WS}, s{sVB} offen offset:256{KVM}', 'vt')]

    kvq = hq + kvq

    def KVq(v=False):
        if kvq and (v or kvq[0][1] != 'vt'):
            tr.vmem(*kvq.pop(0))

    if not OPT.get('nopub'):
        a(f's_cmp_lt_u32 s{sMCP}, 6')
        a(f's_cbranch_scc1 {name}_pub')
        a.label(f'{name}_mokpub')
    for i, s in enumerate(S):
        a(f'v_exp_f32 v{s}, v{s}')
        if i == 1:
            KVq()
        if i == 5:
            KVq()
            if OPT.get('klat'):
                stamp('k0')
                a('s_waitcnt vmcnt(0)')
                stamp('k1')
    PB = GM[2]
    BM = Q1 + 2
    cvt(PB, K0, K0 + 1)
    cvt(PB + 1, K0 + 2, K0 + 3)
    cvt(PB + 2, K0, K0 + 1)
    cvt(PB + 3, K0 + 2, K0 + 3)
    cvt(BM, SMM, SMM + 1)
    KVq()
    dpp(PB + 2, PB, '0x3')
    dpp(PB + 3, PB + 1, '0x3')
    dpp(PB, PB, '0xc')
    dpp(PB + 1, PB + 1, '0xc')
    cvt(BM + 1, SMM, SMM + 1)
    stamp(4)
    O0, O1 = TB, GM[0]
    SM, SY = K1 + 2, K1 + 3
    pka(K0, K0, K0 + 2)
    a(f'v_mfma_f32_16x16x32_bf16 {vr(O0, 4)}, {vr(VR, 4)}, {vr(PB, 4)}, 0')
    M()
    dpp(BM + 1, BM, '0x3')
    dpp(BM, BM, '0xc')
    a(f'v_mfma_f32_16x16x32_bf16 {vr(O1, 4)}, {vr(VR + 4, 4)}, {vr(PB, 4)}, 0')
    a(f'v_add_f32 v{SY}, v{SMM}, v{SMM + 1}')
    a(f'v_add_f32 v{SM}, v{K0}, v{K0 + 1}')
    a(f'v_mfma_f32_16x16x16_bf16 {vr(O0, 4)}, {vr(V0, 2)}, {vr(BM, 2)}, {vr(O0, 4)}')
    KVq(True)
    a(f'v_fma_f32 v{SM}, v{SY}, 0.5, v{SM}')
    a(f'v_mfma_f32_16x16x16_bf16 {vr(O1, 4)}, {vr(V0 + 2, 2)}, {vr(BM, 2)}, {vr(O1, 4)}')
    ACC2 = [Q0, K0, Q1, K1, V1]
    zero(a, Q0, 2)
    a(f'v_add_f32_dpp v{SM}, v{SM}, v{SM} row_ror:8 row_mask:0xf bank_mask:0xf')
    a(f'v_mov_b32 v{SY}, v{SM}')
    M()
    zero(a, Q0 + 2, 4)
    a(f'v_permlane16_swap_b32 v{SM}, v{SY}')
    a(f'v_add_f32 v{SM}, v{SM}, v{SY}')
    a(f'v_mov_b32 v{SY}, v{SM}')
    KVq(True)
    if OPT.get('kvlat'):
        stamp('kv0')
        a('s_waitcnt vmcnt(0)')
        stamp('kv1')
    zero(a, K0 + 2, 4)
    a(f'v_permlane32_swap_b32 v{SM}, v{SY}')
    a(f'v_add_f32 v{SM}, v{SM}, v{SY}')
    a(f'v_rcp_f32 v{SM}, v{SM}')
    M()
    for o in (O0, O0 + 2, O1, O1 + 2):
        a(f'v_pk_mul_f32 {vr(o, 2)}, {vr(o, 2)}, {vr(SM, 2)} op_sel_hi:[1,0]')
    OP = V0
    for r in range(4):
        cvt(OP + r, O0 + r, O1 + r)
    a(f's_mov_b64 exec, s[{sMASK}:{sMASK + 1}]')
    tr.ds(f'ds_write_b128 v{VW}, {vr(OP, 4)}', 'ow')
    a('s_mov_b64 exec, -1')
    KVq(True)
    stamp('b3a')
    OA = [OP, GM[1], GM[2], GM[0]]
    PQr, PPr = T1, T2

    def pack2(x):
        b = ACC2[2 * x]
        for r in (0, 2, 1, 3):
            cvt(b + r, b + r, b + 4 + r)
        for r in (0, 2):
            a(f'v_and_or_b32 v{b + r}, v{b + r}, -2, s{sEP}')
        tr.vmem(f'buffer_store_dwordx4 {vr(b, 4)}, v{PQr}, {WS}, s{sPST1 if x else sPST} offen{sc}', 'ps')

    a(f'v_and_b32 v{T0}, 0xffff, v{ORDTMR}')
    seq2 = [(U, 0) for U in range(5)] + [(U, n) for U in range(5) for n in (1, 2, 3)]
    RS, RDD = GM[2], GM[1]
    for i, (U, n) in enumerate(seq2):
        if U == 0 and n > 0:
            tr.wait_lg(('oa', n))
        smf(a, ACC2[U], OA[n], ('o', U, n))
        if i == 0:
            M()
            zero(a, Q1 + 2, 2)
            zero(a, K1, 2)
            a(f'v_xor_b32 v{T1}, {MST}, v{T0}')
        if i == 1:
            zero(a, K1 + 2, 2)
            zero(a, V1, 2)
            a(f'v_xor_b32 v{T2}, {2 * MST}, v{T0}')
        if i == 2:
            zero(a, V1 + 2, 2)
            a(f'v_xor_b32 v{T0}, {3 * MST}, v{T0}')
            tr.wait_lg('ow')
            a('s_barrier')
            stamp(5)
            for k, ad in ((1, T1), (2, T2), (3, T0)):
                tr.ds(f'ds_read_b128 {vr(OA[k], 4)}, v{ad}', ('oa', k))
        if i == 3:
            assert not mq and not kvq, (mq, kvq)
            a(f'v_and_b32 v{PQr}, 0xffff, v{PQPP}')
        if i == 4:
            a(f'v_lshrrev_b32 v{PPr}, 16, v{PQPP}')
        if i in (5, 8, 11, 15):
            M()
        if i == 6:
            a(f'v_and_b32 v{T0}, 0xf0, v{L16}')
        if i == 7:
            a(f'v_ashrrev_i32 v{T3}, 16, v{IDX}')
        if i == 9:
            a(f'v_lshl_add_u32 v{T0}, s{sRS}, 8, v{T0}')
        if i == 19:
            a(f'ds_read_b128 {vr(RS, 4)}, v{T0} offset:{LRSEL}')
        if i == 12:
            pack2(0)
        if i == 18:
            pack2(1)
    assert not mq
    RA_ = [Q0, K0, Q1, K1]
    b = ACC2[4]
    cvt(b, b, b + 1)
    cvt(b + 1, b + 2, b + 3)
    a(f'v_and_or_b32 v{b}, v{b}, -2, s{sEP}')
    tr.vmem(f'buffer_store_dwordx2 {vr(b, 2)}, v{PPr}, {WS}, s{sPST2} offen{sc}', 'ps')
    stamp(6)
    skip = f'{name}_nored'
    a(f's_cmp_eq_u32 s{sHASRED}, 0')
    a(f's_cbranch_scc1 {skip}')
    rl = f'{name}_rpoll'
    rg = f'{name}_rgo'

    def rloads(regs):
        for j in range(4):
            a(f'buffer_load_dwordx4 {vr(regs[j], 4)}, v{L16}, {WS}, s{sRED} offen' + (f' offset:{1024 * j}' if j else '') + ' sc1')

    def rcheck(regs, ep):
        op = (lambda d, x, y, z: f'v_bitop3_b32 v{d}, v{x}, v{y}, v{z} bitop3:0x80') if ep else \
             (lambda d, x, y, z: f'v_or3_b32 v{d}, v{x}, v{y}, v{z}')
        for j in range(4):
            r = regs[j]
            a(f's_waitcnt vmcnt({3 - j})' + (' lgkmcnt(0)' if j == 0 else ''))
            a(f'v_mfma_f32_16x16x32_bf16 {vr(RDD, 4)}, {vr(RS, 4)}, {vr(r, 4)}, ' + (vr(RDD, 4) if j else '0'))
            a(op(T0, r, r + 2, r if j == 0 else T0))
        a(f'v_and_b32 v{T0}, 1, v{T0}')
        a(f'v_cmp_ne_u32 vcc, {ep}, v{T0}')
        a(f's_cbranch_vccz {rg}')

    if not OPT.get('noack'):
        a('s_waitcnt vmcnt(0)')
    for _ in range(int(OPT.get('rdelay', '0'))):
        a('s_nop 15')
    a(f's_cmp_eq_u32 s{sEP}, 0')
    a(f's_cbranch_scc1 {rl}0')
    for ep in (1, 0):
        a.label(f'{rl}{ep}')
        rloads(RA_)
        a(f's_add_u32 s{sSPIN}, s{sSPIN}, 1')
        rcheck(RA_, ep)
        a(f's_cmp_lt_u32 s{sSPIN}, {SPINMAX}')
        a(f's_cbranch_scc1 {rl}{ep}')
        if ep == 1:
            a(f's_branch {rg}')
    a.label(rg)
    stamp('rg')
    a('s_nop 4')
    for r in range(4):
        a(f'v_add_f32_dpp v{RDD + r}, v{RDD + r}, v{RDD + r} row_ror:8 row_mask:0xf bank_mask:0xf')
    cvt(RDD, RDD, RDD + 1)
    cvt(RDD + 1, RDD + 2, RDD + 3)
    a(f'buffer_store_dword v{RDD}, v{T3}, {WS}, s{sMW} offen{sc}')
    a(f'buffer_store_dword v{RDD + 1}, v{T3}, {WS}, s{sMW} offen offset:16{sc}')
    a.label(skip)
    if timing:
        stamp(7)
        a('s_waitcnt lgkmcnt(0)')
        assert len(used) <= 13
        OPT['used'] = used
        for i in range(len(used) - 1):
            a(f's_sub_u32 s{sTMP}, s{66 + 2 * i}, s{64 + 2 * i}')
            a(f's_add_u32 s{90 + i}, s{90 + i}, s{sTMP}')
        if OPT.get('perstep'):
            a(f's_sub_u32 s{sTMP}, s{64 + 2 * (len(used) - 1)}, s64')
            a(f'v_mov_b32 v{T0}, s{sTMP}')
            a(f's_lshl_b32 s{sTMP}, s{sSTEP}, 2')
            a(f's_and_b32 s{sTMP2}, s{sFLB}, 0x20000')
            a(f's_lshr_b32 s{sTMP2}, s{sTMP2}, 9')
            a(f's_add_u32 s{sTMP}, s{sTMP}, s{sTMP2}')
            a(f's_add_u32 s{sTMP}, s{sTMP}, 0xF40000')
            a(f's_lshl_b32 s{sTMP2}, s{sH}, 2')
            a(f's_or_b32 s{sTMP2}, s{sTMP2}, s{sWV}')
            a(f's_cmp_eq_u32 s{sTMP2}, 0')
            a(f's_cselect_b32 s{sTMP}, s{sTMP}, {OOB}')
            a(f'buffer_store_dword v{T0}, off, {WS}, s{sTMP}')
    zero(a, Q0, 24)
    if not OPT.get('nomack'):
        a('s_waitcnt vmcnt(0)')
    a('s_barrier')
    a(f's_cmp_lt_u32 s{sSTEP}, s{sNSTEP}')
    a(f's_cbranch_scc1 {top}')
    a(f's_branch {name}_exit')
    for k, ok, rt in side:
        g = GM[k]
        a.label(rt)
        a(ld[k])
        a(f's_add_u32 s{sSPIN}, s{sSPIN}, 1')
        a(f's_cmp_lt_u32 s{sSPIN}, {SPINMAX}')
        a('s_waitcnt vmcnt(0)')
        a(f's_cbranch_scc0 {ok}')
        a(f'v_max3_u32 v{T0}, v{g}, v{g + 1}, v{g + 2}')
        a(f'v_max_u32 v{T0}, v{T0}, v{g + 3}')
        a(f'v_cmp_eq_u32 vcc, -1, v{T0}')
        a(f's_cbranch_vccnz {rt}')
        a(f's_branch {ok}')
    if not OPT.get('nopub'):
        a.label(f'{name}_pub')
        for d in range(6):
            k = d >> 1
            buf = (GM[1], GM[2], GM[0])[k]
            if d < 5:
                a(f's_cmp_eq_u32 s{sMCP}, {d}')
                a(f's_cbranch_scc0 {name}_pub{d + 1}')
            if d & 1:
                a(f'v_mov_b64 {vr(V1, 2)}, -1')
                a(f'v_mov_b64 {vr(V1 + 2, 2)}, -1')
                a(f's_add_u32 s{sTMP}, s{sMCO + k}, s{sMRP}')
                a(f'buffer_store_dwordx4 {vr(V1, 4)}, v{L16}, {WS}, s{sTMP} offen{sc}')
            else:
                a(f's_add_u32 s{sTMP}, s{sMCO + k}, s{sMCB}')
                a(f'buffer_store_dwordx4 {vr(buf, 4)}, v{L16}, {WS}, s{sTMP} offen sc1')
            a(f's_branch {name}_mokpub')
            if d < 5:
                a.label(f'{name}_pub{d + 1}')
    a.label(f'{name}_exit')
```

```python
KA_X, KA_MEM0, KA_WQ, KA_WK, KA_WV, KA_WO, KA_SEG, KA_BX, KA_W1, KA_B1, KA_W2, KA_B2, KA_OUT, KA_DBG, KA_WS = \
    [8 * i for i in range(15)]

WS_SIZE = 268435456
WS_FLAGS = 0x380000
WS_M0 = 0x10000
WS_MRING = 0x14000
MSLOT = 0x2800
WS_PRING = 0x20000
PSLOT = 327680
WS_SPILL = 0x400000
NSTR = 10
WS_STREAM = 0x70000
LAYER0 = 0x1000000
LSTRIDE = 0x6000000
L_XN = 0
L_KB = 0x0300000
L_VB = 0x1300000
L_Q = 0x2300000
L_MC = 0x3300000
L_O = 0x3B00000
L_X1 = 0x4B00000
L_HT = 0x4E00000
L_U = 0x5100000
L_X2 = 0x5400000

FSTRIDE = 0x20000
FL_KV = 0
FL_XN = 0x1000
FL_X2 = 0x1800
FL_HH = 0x2000
FL_X1 = 0x4000
FL_U = 0x6000
FL_O = 0x10000
WS_W2F = 0x800000
FL_W2 = 0x9000
NWO, NLN, NG1 = 60, 8, 90
```

```python
from asmlib import *
from layout import *
from common import *
from chain import Track, f32
import chain as C
from small import tr_lane_addr, CM_NAT, CM_PI, CM_SIG, unpack, ln_pass, rbf
from bulk import *

WS = f's[{S_WS}:{S_WS + 3}]'
sBP = 40
sOUTP = 48
S_B = 52


def wait_all(a, off, ndw, tb=100):
    L = a.newlabel('wa')
    a(f's_mov_b32 s{sT}, {off}')
    a(f'v_lshlrev_b32 v{T3}, 2, v{LN}')
    a.label(L)
    a(f'buffer_load_dwordx4 {vr(tb, 4)}, v{L16}, {WS}, s{sT} offen sc1')
    a('s_waitcnt vmcnt(0)')
    if ndw % 4:
        for k in range(4):
            a(f'v_cmp_le_u32 vcc, {ndw - k}, v{T3}' if ndw - k <= 64 else f'v_cmp_le_u32 vcc, 0x{ndw - k:x}, v{T3}')
            a(f'v_cndmask_b32 v{tb + k}, v{tb + k}, 1, vcc' if False else f'v_cndmask_b32_e64 v{tb + k}, v{tb + k}, 1, vcc')
    a(f'v_min3_u32 v{tb}, v{tb}, v{tb + 1}, v{tb + 2}')
    a(f'v_min_u32 v{tb}, v{tb}, v{tb + 3}')
    a(f'v_cmp_eq_u32 vcc, 0, v{tb}')
    if ndw < 256 and ndw % 4 == 0:
        a(f's_and_b64 vcc, vcc, {(1 << (ndw // 4)) - 1}')
    a(f's_add_u32 s{sSPIN}, s{sSPIN}, 1')
    a(f's_cbranch_vccz {L}_ok')
    a('s_sleep 4')
    a(f's_cmp_lt_u32 s{sSPIN}, {C.SPINMAX}')
    a(f's_cbranch_scc1 {L}')
    a.label(f'{L}_ok')
    a('s_barrier')


def set_flag(a, off_sgpr):
    a('s_waitcnt vmcnt(0)')
    a('s_barrier')
    L = a.newlabel('sf')
    a(f's_cmp_eq_u32 s{sWV}, 0')
    a(f's_cbranch_scc0 {L}')
    a(f'v_mov_b32 v{T2}, 1')
    a(f'buffer_store_dword v{T2}, off, {WS}, s{off_sgpr} sc1')
    a.label(L)


def ln2_role(a, lb, fb):
    sK, sSEG = sBLK, sR
    a(f's_sub_u32 s{sK}, s{sRI}, {NWO}')
    a(f's_lshr_b32 s{sSEG}, s{sK}, 2')
    a(f's_and_b32 s{sK}, s{sK}, 3')
    AD = 6
    a('v_lshrrev_b32 v7, 5, v0')
    a(f's_lshl_b32 s{sT}, s{sK}, 3')
    a(f'v_add_u32 v7, s{sT}, v7')
    a(f'v_mul_u32_u24 v{AD}, 0x500, v7')
    a('v_and_b32 v7, 31, v0')
    a(f'v_lshl_add_u32 v{AD}, v7, 3, v{AD}')
    top = a.newlabel('ln2')
    a.label(top)
    a(f's_lshl_b32 s{sT}, s{sSEG}, 7')
    a(f's_add_u32 s{sT}, s{sT}, {fb + FL_X1}')
    wait_flag(a, sT, 20, True, 2)
    P, X, S, T, U = 10, 20, 7, 8, 9
    a(f's_mul_i32 s{sXO}, s{sSEG}, 40960')
    a(f's_add_u32 s{sU}, s{sXO}, {lb + L_X1}')
    for j in range(5):
        a(f'buffer_load_dwordx2 {vr(P + 2 * j, 2)}, v{AD}, {WS}, s{sU} offen offset:{256 * j} sc1')
    a('s_waitcnt vmcnt(0)')
    for _ in range(2):
        unpack(a, X, P, 10)
        ln_pass(a, X, P, S, T, U)
    a(f's_add_u32 s{sU}, s{sXO}, {lb + L_HT}')
    for j in range(5):
        a(f'buffer_store_dwordx2 {vr(P + 2 * j, 2)}, v{AD}, {WS}, s{sU} offen offset:{256 * j} sc1')
    a(f's_lshl_b32 s{sT}, s{sSEG}, 7')
    a(f's_lshl_b32 s{sU}, s{sK}, 2')
    a(f's_add_u32 s{sT}, s{sT}, s{sU}')
    a(f's_add_u32 s{sT}, s{sT}, {fb + FL_HH}')
    set_flag(a, sT)
    a(f's_add_u32 s{sSEG}, s{sSEG}, {NLN // 4}')
    a(f's_cmp_lt_u32 s{sSEG}, 64')
    a(f's_cbranch_scc1 {top}')


def gelu(a, b, n, u, v, c1, c2):
    for r in range(n):
        a(f'v_mul_f32 v{u + r}, v{b + r}, v{b + r}')
    for r in range(n):
        a(f'v_mov_b32 v{v + r}, s{c1}')
        a(f'v_fmac_f32 v{v + r}, s{c2}, v{u + r}')
    for r in range(n):
        a(f'v_mul_f32 v{u + r}, v{v + r}, v{b + r}')
    for r in range(n):
        a(f'v_exp_f32 v{u + r}, v{u + r}')
    for r in range(n):
        a(f'v_add_f32 v{u + r}, 1.0, v{u + r}')
    for r in range(n):
        a(f'v_rcp_f32 v{u + r}, v{u + r}')
    for r in range(n):
        a(f'v_mul_f32 v{b + r}, v{b + r}, v{u + r}')


def w2f_prep(a):
    done = a.newlabel('w2d')
    sK = sBLK
    a(f's_sub_u32 s{sK}, s{sRI}, {NWO + NLN}')
    a(f's_cmp_ge_u32 s{sK}, 64')
    a(f's_cbranch_scc1 {done}')
    srd(a, S_WA, sBP + 4, 2048 * 1728 * 2)
    VS, RA = 6, 7
    a(f'v_lshrrev_b32 v{T1}, 2, v{LN}')
    a(f'v_lshlrev_b32 v{T1}, 12, v{T1}')
    a(f'v_and_b32 v{T2}, 3, v{LN}')
    a(f'v_lshl_add_u32 v{VS}, v{T2}, 4, v{T1}')
    tr_lane_addr(a, RA, LN, T1, T2, 64, CM_PI, None)
    a(f's_lshl_b32 s{sV}, s{sWV}, 15')
    a(f'v_add_u32 v{RA}, s{sV}, v{RA}')
    a(f's_mul_i32 s{sWO}, s{sWV}, {27 * 16 * 4096}')
    a(f's_lshl_b32 s{sU}, s{sK}, 6')
    a(f's_add_u32 s{sWO}, s{sWO}, s{sU}')
    a('s_barrier')
    for i in range(27):
        a(f's_add_u32 m0, s{sV}, {i * 1024}')
        a(f'buffer_load_dwordx4 v{VS}, s[{S_WA}:{S_WA + 3}], s{sWO} offen lds')
        a(f's_add_u32 s{sWO}, s{sWO}, {16 * 4096}')
    a(f's_mul_i32 s{sXO}, s{sK}, {108 * 1024}')
    a(f's_mul_i32 s{sU}, s{sWV}, {27 * 1024}')
    a(f's_add_u32 s{sXO}, s{sXO}, s{sU}')
    a(f's_add_u32 s{sXO}, s{sXO}, {WS_W2F}')
    a('s_waitcnt vmcnt(0)')
    for i in range(27):
        for u in range(2):
            a(f'ds_read_b64_tr_b16 {vr(16 + 4 * i + 2 * u, 2)}, v{RA} offset:{i * 1024 + 256 * u}')
        if i % 7 == 6:
            a('s_waitcnt lgkmcnt(0)')
    a('s_waitcnt lgkmcnt(0)')
    for i in range(27):
        if i % 4 == 0 and i:
            a(f's_add_u32 s{sXO}, s{sXO}, 4096')
        a(f'buffer_store_dwordx4 {vr(16 + 4 * i, 4)}, v{L16}, {WS}, s{sXO} offen offset:{(i % 4) * 1024} sc1')
    a(f's_lshr_b32 s{sT}, s{sK}, 2')
    a(f's_lshl_b32 s{sT}, s{sT}, 7')
    a(f's_and_b32 s{sU}, s{sK}, 3')
    a(f's_lshl_b32 s{sU}, s{sU}, 2')
    a(f's_add_u32 s{sT}, s{sT}, s{sU}')
    a(f's_add_u32 s{sT}, s{sT}, {WS_FLAGS + FL_W2}')
    set_flag(a, sT)
    a.label(done)


def wait_words(a, off_sgpr, n, tmp):
    L = a.newlabel('ww')
    a(f's_cmp_lg_u32 s{sWV}, 0')
    a(f's_cbranch_scc1 {L}_ok')
    a.label(L)
    a(f'buffer_load_dword v{tmp}, v{T3}, {WS}, s{off_sgpr} offen sc1')
    a('s_waitcnt vmcnt(0)')
    a(f'v_cmp_eq_u32 vcc, 0, v{tmp}')
    a(f's_add_u32 s{sSPIN}, s{sSPIN}, 1')
    if n < 32:
        a(f's_and_b32 s{sU}, vcc_lo, {(1 << n) - 1}')
        a(f's_cbranch_scc0 {L}_ok')
    else:
        assert n == 64
        a(f's_cbranch_vccz {L}_ok')
    a('s_sleep 2')
    a(f's_cmp_lt_u32 s{sSPIN}, {C.SPINMAX}')
    a(f's_cbranch_scc1 {L}')
    a.label(f'{L}_ok')
    a('s_barrier')


def g1p_role(a, lb, fb):
    sXT, sYT, sSEG, sFL = sBLK, sH, sR, sKS
    a(f's_sub_u32 s{sT}, s{sRI}, {NWO + NLN}')
    a(f's_mul_i32 s{sXT}, s{sT}, 13108')
    a(f's_lshr_b32 s{sXT}, s{sXT}, 16')
    a(f's_mul_i32 s{sU}, s{sXT}, 5')
    a(f's_sub_u32 s{sYT}, s{sT}, s{sU}')
    srd(a, S_WA, sBP, 2048 * 1728 * 2)
    srd(a, S_B, sBP + 2, 1728 * 2)
    VX, VY, RX, RY = [6, 7], [8, 9], 10, 11
    a(f's_mov_b32 s{sV}, 5462')
    a(f's_movk_i32 s{sU}, 3456')
    a(f's_mul_i32 s{sT}, s{sXT}, 192')
    for k in range(2):
        a(f'v_add_u32 v{T1}, {256 * k}, v0')
        a(f'v_mul_lo_u32 v{T2}, v{T1}, s{sV}')
        a(f'v_lshrrev_b32 v{T2}, 16, v{T2}')
        a(f'v_mul_u32_u24 v{T3}, 12, v{T2}')
        a(f'v_sub_u32 v{T1}, v{T1}, v{T3}')
        a(f'v_mul_lo_u32 v{T2}, v{T2}, s{sU}')
        a(f'v_lshl_add_u32 v{T2}, v{T1}, 4, v{T2}')
        a(f'v_add_u32 v{VX[k]}, s{sT}, v{T2}')
    a(f's_lshl_b32 s{sT}, s{sYT}, 8')
    for k in range(2):
        a(f'v_add_u32 v{T1}, {256 * k}, v0')
        a(f'v_lshrrev_b32 v{T2}, 4, v{T1}')
        a(f'v_and_b32 v{T1}, 15, v{T1}')
        a(f'v_and_b32 v{T3}, 3, v{T2}')
        a(f'v_lshlrev_b32 v{T3}, 2, v{T3}')
        a(f'v_xor_b32 v{T1}, v{T1}, v{T3}')
        a(f'v_mul_u32_u24 v{T2}, 0x500, v{T2}')
        a(f'v_lshl_add_u32 v{T2}, v{T1}, 4, v{T2}')
        a(f'v_add_u32 v{VY[k]}, s{sT}, v{T2}')
    tr_lane_addr(a, RX, LN, T1, T2, 192, CM_SIG)
    tr_lane_addr(a, RY, LN, T1, T2, 256, CM_PI, w_swz(a))
    a(f's_lshl_b32 s{sT}, s{sWV}, 6')
    a(f'v_xor_b32 v{RY}, s{sT}, v{RY}')
    a(f'v_lshlrev_b32 v{T3}, 2, v{LN}')
    BI = 40
    a(f'v_lshrrev_b32 v{T1}, 5, v{LN}')
    a(f'v_lshlrev_b32 v{T1}, 4, v{T1}')
    a(f's_mul_i32 s{sT}, s{sXT}, 192')
    for i in range(6):
        a(f'buffer_load_dwordx4 {vr(BI + 4 * i, 4)}, v{T1}, s[{S_B}:{S_B + 3}], s{sT} offen offset:{32 * i}')
    for r in range(48):
        a(f'v_accvgpr_write_b32 a{r}, 0')
    XL = [0, 8192]
    YL = 16384
    a(f's_mov_b32 s{sXO}, 0')
    a(f's_mov_b32 s{sWO}, {lb + L_HT}')
    a(f's_mov_b32 s{sFL}, {fb + FL_HH}')
    a(f's_mov_b32 s{sSEG}, 0')

    def dx(par):
        for k in range(2):
            a(f's_add_u32 m0, s{sLW}, {XL[par] + 4096 * k}')
            a(f'buffer_load_dwordx4 v{VX[k]}, s[{S_WA}:{S_WA + 3}], s{sXO} offen lds')
        a(f's_add_u32 s{sXO}, s{sXO}, {32 * 3456}')

    a('s_barrier')
    dx(0)
    top = a.newlabel('g1p')
    a.label(top)
    FRG = 16
    for par in range(2):
        wait_words(a, sFL, 4, 12)
        for k in range(2):
            a(f's_add_u32 m0, s{sLW}, {YL + 4096 * k}')
            a(f'buffer_load_dwordx4 v{VY[k]}, {WS}, s{sWO} offen sc1 lds')
        dx(1 - par)
        a(f's_add_u32 s{sWO}, s{sWO}, 40960')
        a(f's_add_u32 s{sFL}, s{sFL}, 128')
        a('s_waitcnt vmcnt(2)')
        a('s_barrier')
        for ks in range(2):
            b = FRG if ks == 0 else 12 + 0
            b = FRG + 0 if ks == 0 else 64
            for u in range(2):
                a(f'ds_read_b64_tr_b16 {vr(b + 12 + 2 * u, 2)}, v{RY} offset:{YL + (16 * ks + 4 * u) * 256}')
            for x in range(3):
                for u in range(2):
                    a(f'ds_read_b64_tr_b16 {vr(b + 4 * x + 2 * u, 2)}, v{RX} offset:{XL[par] + (16 * ks + 4 * u) * 192 + 64 * x}')
        for ks in range(2):
            b = FRG if ks == 0 else 64
            a(f's_waitcnt lgkmcnt({8 if ks == 0 else 0})')
            for x in range(3):
                acc = ar(16 * x, 16)
                a(f'v_mfma_f32_32x32x16_bf16 {acc}, {vr(b + 4 * x, 4)}, {vr(b + 12, 4)}, {acc}')
        a('s_barrier')
    a(f's_add_u32 s{sSEG}, s{sSEG}, 2')
    a(f's_cmp_lt_u32 s{sSEG}, 64')
    a(f's_cbranch_scc1 {top}')
    a(f's_lshl_b32 s{sT}, s{sYT}, 2')
    a(f's_add_u32 s{sT}, s{sT}, s{sWV}')
    a(f's_mul_i32 s{sV}, s{sT}, {108 * 1024}')
    a(f's_mul_i32 s{sT}, s{sXT}, 6144')
    a(f's_add_u32 s{sV}, s{sV}, s{sT}')
    a(f's_add_u32 s{sV}, s{sV}, {lb + L_U}')
    a(f's_mov_b32 s{sT}, {f32(-2.0 * 1.4426950408889634 * 0.7978845608028654)}')
    a(f's_mov_b32 s{sXO}, {f32(-2.0 * 1.4426950408889634 * 0.7978845608028654 * 0.044715)}')
    b, u, v, PK = 64, 80, 96, 16
    for x in range(3):
        pk = PK + 8 * x
        for r in range(16):
            a(f'v_accvgpr_read_b32 v{b + r}, a{16 * x + r}')

        def pack():
            for r in range(8):
                a(f'v_cvt_pk_bf16_f32 v{pk + r}, v{b + 2 * r}, v{b + 2 * r + 1}')
        pack()
        unpack(a, b, pk, 8)
        unpack(a, u, BI + 8 * x, 8)
        for r in range(0, 16, 2):
            a(f'v_pk_add_f32 {vr(b + r, 2)}, {vr(b + r, 2)}, {vr(u + r, 2)}')
        pack()
        unpack(a, b, pk, 8)
        gelu(a, b, 8, u, BI + 8 * x, sT, sXO)
        gelu(a, b + 8, 8, u + 8, BI + 8 * x, sT, sXO)
        pack()
        if x == 2:
            a(f's_add_u32 s{sV}, s{sV}, 4096')
        for m in range(2):
            a(f'buffer_store_dwordx4 {vr(pk + 4 * m, 4)}, v{L16}, {WS}, s{sV} offen offset:{((2 * x + m) % 4) * 1024} sc1')
    a(f's_mul_i32 s{sT}, s{sYT}, 18')
    a(f's_add_u32 s{sT}, s{sT}, s{sXT}')
    a(f's_lshl_b32 s{sT}, s{sT}, 7')
    a(f's_add_u32 s{sT}, s{sT}, {fb + FL_U}')
    set_flag(a, sT)


UV0, STG = 56, 24
WLDS = 24576
sW = [72, 73, 74, 75]
sUu = [76, 77]
sOW, sOU = 78, 79


def adv27(a, r):
    a(f's_add_u32 s{r}, s{r}, 4096')
    a(f's_cmp_eq_u32 s{r}, {27 * 4096}')
    a(f's_cselect_b32 s{r}, 0, s{r}')


def wreg(i, x):
    if i < 8 or 16 <= i < 24:
        return ar(128 + 16 * (i % 8) + 4 * x, 4)
    if i < 16:
        return vr(STG + 16 * (i & 1) + 4 * x, 4)
    return vr(UV0 + 16 + 16 * (i - 24) + 4 * x, 4)


def g2_tile(a):
    a(f's_mul_i32 s{sBLK}, s{sGI}, 6554')
    a(f's_lshr_b32 s{sBLK}, s{sBLK}, 16')
    a(f's_mul_i32 s{sT}, s{sBLK}, 10')
    a(f's_sub_u32 s{sH}, s{sGI}, s{sT}')


def g2_pre(a, first):
    g2_tile(a)
    a(f'v_lshlrev_b32 v{T3}, 2, v{LN}')
    if first:
        a(f's_lshl_b32 s{sT}, s{sBLK}, 7')
        a(f's_add_u32 s{sT}, s{sT}, {WS_FLAGS + FL_W2}')
        wait_words(a, sT, 4, 12)
    a(f's_mul_i32 s{sT}, s{sBLK}, {4 * 108 * 1024}')
    a(f's_add_u32 s{sT}, s{sT}, s{sLW}')
    for x in range(4):
        a(f's_add_u32 s{sW[x]}, s{sT}, {WS_W2F + x * 108 * 1024}')
    a(f's_mul_i32 s{sOW}, s{sBLK}, 21846')
    a(f's_lshr_b32 s{sOW}, s{sOW}, 16')
    a(f's_mul_i32 s{sOW}, s{sOW}, 3')
    a(f's_sub_u32 s{sOW}, s{sBLK}, s{sOW}')
    a(f's_mul_i32 s{sOW}, s{sOW}, {9 * 4096 if not C.OPT.get("norot") else 0}')
    a(f's_mov_b32 s{sOU}, s{sOW}')
    a(f's_lshl_b32 s{sU}, s{sWV}, 15')
    for i in range(16):
        if i == 12:
            a('s_waitcnt vmcnt(32)')
        for x in range(4):
            a(f's_add_u32 s{sT}, s{sW[x]}, s{sOW}')
            if i < 8:
                a(f'buffer_load_dwordx4 {wreg(i, x)}, v{L16}, {WS}, s{sT} offen sc1')
            else:
                a(f's_add_u32 m0, s{sU}, {WLDS + (i - 8) * 4096 + x * 1024}')
                a(f'buffer_load_dwordx4 v{L16}, {WS}, s{sT} offen sc1 lds')
        adv27(a, sOW)
    if not C.OPT.get('nowarm'):
        a(f's_mov_b32 s{sV}, s{sOW}')
        for i in range(11):
            lab = a.newlabel('wm')
            a(f's_cmp_eq_u32 s{sH}, {i % 10}')
            a(f's_cbranch_scc0 {lab}')
            for x in range(4):
                a(f's_add_u32 s{sT}, s{sW[x]}, s{sV}')
                a(f'buffer_load_dwordx4 v[12:15], v{L16}, {WS}, s{sT} offen sc1')
            a.label(lab)
            adv27(a, sV)
        a('s_waitcnt vmcnt(0)')


def g2_phase(a, lb, fb, final):
    sXT, sYT = sBLK, sH
    g2_tile(a)
    srd(a, S_B, sBP + 6, 2048 * 2)
    a(f's_mul_i32 s{sT}, s{sYT}, {2 * 108 * 1024}')
    a(f's_add_u32 s{sT}, s{sT}, s{sLW}')
    for y in range(2):
        a(f's_add_u32 s{sUu[y]}, s{sT}, {lb + L_U + y * 108 * 1024}')
    tr = Track(a)

    def ureg(i, y):
        return vr(UV0 + 8 * (i % 25) + 4 * y, 4)

    def ldw(i):
        for x in range(4):
            a(f's_add_u32 s{sT}, s{sW[x]}, s{sOW}')
            tr.vmem(f'buffer_load_dwordx4 {wreg(i, x)}, v{L16}, {WS}, s{sT} offen' + ('' if AQ else ' sc1'), ('w', i))
        adv27(a, sOW)

    def ldu(i):
        for y in range(2):
            a(f's_add_u32 s{sT}, s{sUu[y]}, s{sOU}')
            tr.vmem(f'buffer_load_dwordx4 {ureg(i, y)}, v{L16}, {WS}, s{sT} offen' + ('' if AQ else ' sc1'), ('u', i))
        adv27(a, sOU)

    CO, DO, BI, XA, RES = 6, 7, 8, 9, 24
    a(f'v_and_b32 v{T1}, 31, v{LN}')
    a(f'v_lshrrev_b32 v{T2}, 5, v{LN}')
    a(f'v_and_b32 v{CO}, 3, v{LN}')
    a(f'v_bfe_u32 v10, v{LN}, 3, 2')
    a(f'v_lshl_add_u32 v{CO}, v10, 2, v{CO}')
    a(f'v_bfe_u32 v10, v{LN}, 2, 1')
    a(f'v_lshl_add_u32 v{CO}, v10, 4, v{CO}')
    a(f's_lshl_b32 s{sT}, s{sXT}, 2')
    a(f's_add_u32 s{sT}, s{sT}, s{sWV}')
    a(f's_lshl_b32 s{sU}, s{sT}, 5')
    a(f'v_add_u32 v{CO}, s{sU}, v{CO}')
    a(f's_movk_i32 s{sU}, 1280')
    a(f'v_mul_lo_u32 v{DO}, v{CO}, s{sU}')
    a(f'v_lshl_add_u32 v{DO}, v{T2}, 5, v{DO}')
    a(f's_lshl_b32 s{sU}, s{sYT}, 7')
    a(f'v_add_u32 v{DO}, s{sU}, v{DO}')
    a(f'v_lshlrev_b32 v{XA}, 10, v{T2}')
    a(f'v_lshl_add_u32 v{XA}, v{T1}, 4, v{XA}')
    a(f's_mul_i32 s{sV}, s{sT}, 40960')
    a(f's_lshl_b32 s{sU}, s{sYT}, 12')
    a(f's_add_u32 s{sV}, s{sV}, s{sU}')
    a(f's_add_u32 s{sV}, s{sV}, {lb + L_X2}')
    a(f'v_lshlrev_b32 v{T1}, 1, v{CO}')
    for r in range(128):
        a(f'v_accvgpr_write_b32 a{r}, 0')
    tr.vmem(f'buffer_load_ushort v{BI}, v{T1}, s[{S_B}:{S_B + 3}], 0 offen', 'bias')
    a(f's_lshr_b32 s{sKS}, s{sYT}, 1')
    a(f's_mul_i32 s{sKS}, s{sKS}, {18 * 128}')
    a(f's_add_u32 s{sKS}, s{sKS}, {fb + FL_U}')
    a(f'v_lshlrev_b32 v{T3}, 7, v{LN}')
    wait_words(a, sKS, 18, 12)
    AQ = 'u' in C.OPT.get('aq', '')
    if AQ:
        a('buffer_inv sc1')
    wstamp(a, 6)
    tr.vm = []
    late = []
    for i in range(25):
        ldu(i)
    a(f's_lshl_b32 s{sU}, s{sWV}, 15')
    a(f's_add_u32 s{sU}, s{sU}, {WLDS}')
    a(f'v_add_u32 v10, s{sU}, v{L16}')

    def stage(i):
        for x in range(4):
            tr.ds(f'ds_read_b128 {wreg(i, x)}, v10 offset:{(i - 8) * 4096 + x * 1024}', ('w', i))
    stage(8)
    stage(9)
    for i in range(27):
        tr.wait_vm(('w', i))
        tr.wait_vm(('u', i))
        tr.wait_lg(('w', i))
        for x in range(4):
            for y in range(2):
                acc = ar(16 * (2 * x + y), 16)
                a(f'v_mfma_f32_32x32x16_bf16 {acc}, {ureg(i, y)}, {wreg(i, x)}, {acc}')
        if i < 8:
            ldw(i + 16)
        if i < 2:
            pass
        if i in (3, 5, 7):
            late.append(24 + (i - 3) // 2)
        if i == 8:
            for j in late:
                ldw(j)
            ldu(25)
            ldu(26)
        if 8 <= i < 14:
            stage(i + 2)
        if i == 16:
            a(f's_mov_b32 s{sU}, {lb + L_X1}')
            for y in range(2):
                for q in range(2):
                    tr.vmem(f'buffer_load_dwordx4 {vr(RES + 8 * y + 4 * q, 4)}, v{DO}, {WS}, s{sU} offen offset:{64 * y + 16 * q} sc1', 'res')
    tr.drain_vm()
    wstamp(a, 4)
    a('s_barrier')
    WA = [12, 13]
    a(f's_lshl_b32 s{sT}, s{sWV}, 12')
    a(f'v_add_u32 v{WA[0]}, s{sT}, v{L16}')
    a(f'v_add_u32 v{WA[1]}, 0x10000, v{WA[0]}')
    a(f's_lshl_b32 s{sT}, s{sWV}, 15')
    a(f'v_add_u32 v14, s{sT}, v{L16}')
    a('s_nop 7')
    for x in range(4):
        for y in range(2):
            for q in range(4):
                off = x * 32768 + y * 16384 + q * 1024
                tr.ds(f'ds_write_b128 v{WA[off >> 16]}, {ar(16 * (2 * x + y) + 4 * q, 4)} offset:{off & 0xffff}')
    tr.drain_lg()
    a('s_barrier')
    RB = 100
    for j in range(2):
        for w in range(4):
            for q in range(4):
                tr.ds(f'ds_read_b128 {vr(RB + 64 * j + 16 * w + 4 * q, 4)}, v14 offset:{j * 16384 + w * 4096 + q * 1024}', ('rr', j, w))
    a(f'v_lshlrev_b32 v{BI}, 16, v{BI}')
    if final:
        srd(a, S_WA, sOUTP, 2048 * 640 * 2)
    for j in range(2):
        b = RB + 64 * j
        tr.wait_lg(('rr', j, 1))
        for h in range(0, 16, 2):
            a(f'v_pk_add_f32 {vr(b + h, 2)}, {vr(b + h, 2)}, {vr(b + 16 + h, 2)}')
        tr.wait_lg(('rr', j, 3))
        for h in range(0, 16, 2):
            a(f'v_pk_add_f32 {vr(b + 32 + h, 2)}, {vr(b + 32 + h, 2)}, {vr(b + 48 + h, 2)}')
        for h in range(0, 16, 2):
            a(f'v_pk_add_f32 {vr(b + h, 2)}, {vr(b + h, 2)}, {vr(b + 32 + h, 2)}')
        PK = b + 16

        def pack():
            for r in range(8):
                a(f'v_cvt_pk_bf16_f32 v{PK + r}, v{b + 2 * r}, v{b + 2 * r + 1}')
        pack()
        unpack(a, b, PK, 8)
        for r in range(16):
            a(f'v_add_f32 v{b + r}, v{b + r}, v{BI}')
        pack()
        unpack(a, b, PK, 8)
        unpack(a, b + 32, RES + 8 * j, 8)
        for r in range(0, 16, 2):
            a(f'v_pk_add_f32 {vr(b + r, 2)}, {vr(b + r, 2)}, {vr(b + 32 + r, 2)}')
        pack()
        if j == 0 and not final and not C.OPT.get('nog2prio'):
            lab = a.newlabel('g2p')
            a(f's_cmp_eq_u32 s{sXT}, 0')
            a(f's_cbranch_scc1 {lab}')
            a(f's_mov_b32 s{sT}, {fb + FL_X2}')
            wait_flag(a, sT, 10, True, 16)
            a.label(lab)
        for q in range(2):
            if final:
                a(f'buffer_store_dwordx4 {vr(PK + 4 * q, 4)}, v{DO}, s[{S_WA}:{S_WA + 3}], 0 offen offset:{64 * j + 16 * q}')
            else:
                a(f'buffer_store_dwordx4 {vr(PK + 4 * q, 4)}, v{XA}, {WS}, s{sV} offen offset:{2048 * j + 512 * q} sc1')
    if not final:
        a(f's_lshl_b32 s{sT}, s{sXT}, 7')
        a(f's_add_u32 s{sT}, s{sT}, {fb + FL_X2}')
        signal(a, sT)


def red8(a, x, t):
    a(f'v_add_f32_dpp v{x}, v{x}, v{x} row_ror:8 row_mask:0xf bank_mask:0xf')
    a(f'v_mov_b32 v{t}, v{x}')
    a(f'v_permlane16_swap_b32 v{x}, v{t}')
    a(f'v_add_f32 v{x}, v{x}, v{t}')
    a(f'v_mov_b32 v{t}, v{x}')
    a(f'v_permlane32_swap_b32 v{x}, v{t}')
    a(f'v_add_f32 v{x}, v{x}, v{t}')


def ln1f_phase(a, lb_src, lb_dst, fb_src, fb_dst, rnd, from_x=False):
    sUN, sF = sR, sSC
    AD, LW, LR = 6, 7, 8
    P, X, S, T, U = 12, 24, 9, 10, 11
    a(f'v_lshrrev_b32 v{T1}, 3, v0')
    a(f'v_lshlrev_b32 v{AD}, 9, v{T1}')
    a(f'v_and_b32 v{T1}, 7, v0')
    a(f'v_lshl_add_u32 v{AD}, v{T1}, 4, v{AD}')
    a(f'v_lshlrev_b32 v{LR}, 4, v{T1}')
    a(f'v_add_u32 v{LR}, {122880}, v{LR}')
    a(f's_lshl_b32 s{sT}, s{sWV}, 2')
    a(f'v_add_u32 v{LW}, s{sT}, v{LR}')
    a(f's_cmp_lt_u32 s{sWV}, 2')
    a(f's_cselect_b32 s{sF}, 1.0, 0')
    a(f's_cselect_b32 s{sV}, {2 * 16384}, 0x60000000' if False else f's_mov_b32 s{sV}, 0x60000000')
    a(f's_cselect_b32 s{sV}, {2 * 16384}, s{sV}')
    top = a.newlabel('lnf')
    a(f's_add_u32 s{sUN}, s51, {32 if rnd == 0 else 0}')
    a.label(top)
    a(f's_lshr_b32 s{sT}, s{sUN}, 4')
    a(f's_lshl_b32 s{sBLK}, s{sT}, 7')
    if not from_x:
        a(f's_add_u32 s{sT}, s{sBLK}, {fb_src + FL_X2}')
        wait_flag(a, sT, 10, True, 2)
    a(f's_lshr_b32 s{sXO}, s{sUN}, 2')
    a(f's_mul_i32 s{sXO}, s{sXO}, 40960')
    a(f's_and_b32 s{sT}, s{sUN}, 3')
    a(f's_lshl_b32 s{sT}, s{sT}, 7')
    a(f's_add_u32 s{sXO}, s{sXO}, s{sT}')
    if from_x:
        srd(a, S_X, sXP, 2048 * 640 * 2)
        a(f's_lshr_b32 s{sU}, s{sUN}, 2')
        a(f's_lshl_b32 s{sU}, s{sU}, 5')
        a(f's_and_b32 s{sT}, s{sUN}, 3')
        a(f's_lshl_b32 s{sT}, s{sT}, 2')
        a(f's_add_u32 s{sU}, s{sU}, s{sT}')
        a(f's_mul_i32 s{sU}, s{sU}, 1280')
        a(f'v_bfe_u32 v{T1}, v0, 2, 1')
        a(f'v_lshlrev_b32 v{T1}, 4, v{T1}')
        a(f'v_and_b32 v{T2}, 3, v0')
        a(f'v_add_u32 v{T1}, v{T1}, v{T2}')
        a(f'v_mul_u32_u24 v{T1}, 0x500, v{T1}')
        a(f'v_lshrrev_b32 v{T2}, 3, v0')
        a(f'v_lshl_add_u32 v{T1}, v{T2}, 4, v{T1}')
        a(f's_add_u32 s{sT}, s{sU}, s{sV}')
        a(f's_cmp_lt_u32 s{sWV}, 2')
        a(f's_cselect_b32 s{sT}, s{sU}, s{sT}')
        for i in range(3):
            a(f'buffer_load_dwordx4 {vr(P + 4 * i, 4)}, v{T1}, s[{S_X}:{S_X + 3}], s{sU if i < 2 else sT} offen offset:{512 * i}')
    for i in range(3 if not from_x else 0):
        if i < 2:
            a(f's_add_u32 s{sU}, s{sXO}, {lb_src + L_X2 + i * 16384}')
        else:
            a(f's_add_u32 s{sU}, s{sXO}, s{sV}')
            a(f's_add_u32 s{sU}, s{sU}, {lb_src + L_X2}')
        a(f'buffer_load_dwordx4 {vr(P + 4 * i, 4)}, v{AD}, {WS}, s{sU} offen sc1')
    a('s_waitcnt vmcnt(0)')
    unpack(a, X, P, 12)
    a(f'v_add_f32 v{S}, v{X}, v{X + 1}')
    a(f'v_add_f32 v{T}, v{X + 2}, v{X + 3}')
    for i in range(4, 24, 2):
        a(f'v_add_f32 v{S}, v{S}, v{X + i}')
        a(f'v_add_f32 v{T}, v{T}, v{X + i + 1}')
    a(f'v_add_f32 v{S}, v{S}, v{T}')
    red8(a, S, T)

    def xwave(x, off):
        a(f'ds_write_b32 v{LW}, v{x} offset:{off}')
        a('s_waitcnt lgkmcnt(0)')
        a('s_barrier')
        a(f'ds_read_b128 v[48:51], v{LR} offset:{off}')
        a('s_waitcnt lgkmcnt(0)')
        a('v_add_f32 v48, v48, v49')
        a('v_add_f32 v50, v50, v51')
        a(f'v_add_f32 v{x}, v48, v50')
    xwave(S, 0)
    a(f'v_mul_f32 v{S}, {f32(1.0 / 640)}, v{S}')
    a(f'v_mov_b32 v{U}, 0')
    a(f'v_mov_b32 v52, 0')
    for i in range(24):
        a(f'v_sub_f32 v{T}, v{X + i}, v{S}')
        a(f'v_fmac_f32 v{U if i < 16 else 52}, v{T}, v{T}')
    a(f'v_fmac_f32 v{U}, s{sF}, v52')
    red8(a, U, T)
    xwave(U, 128)
    a(f'v_mul_f32 v{U}, {f32(1.0 / 640)}, v{U}')
    rbf(a, S)
    rbf(a, U)
    a(f'v_add_f32 v{U}, {f32(1e-5)}, v{U}')
    rbf(a, U)
    a(f'v_sqrt_f32 v{U}, v{U}')
    rbf(a, U)
    a(f'v_rcp_f32 v{U}, v{U}')
    for i in range(12):
        a(f'v_sub_f32 v{X + 2 * i}, v{X + 2 * i}, v{S}')
        a(f'v_sub_f32 v{X + 2 * i + 1}, v{X + 2 * i + 1}, v{S}')
        a(f'v_cvt_pk_bf16_f32 v{P + i}, v{X + 2 * i}, v{X + 2 * i + 1}')
    for i in range(12):
        a(f'v_lshlrev_b32 v{X + 2 * i}, 16, v{P + i}')
        a(f'v_and_b32 v{X + 2 * i + 1}, 0xffff0000, v{P + i}')
        a(f'v_mul_f32 v{X + 2 * i}, v{X + 2 * i}, v{U}')
        a(f'v_mul_f32 v{X + 2 * i + 1}, v{X + 2 * i + 1}, v{U}')
        a(f'v_cvt_pk_bf16_f32 v{P + i}, v{X + 2 * i}, v{X + 2 * i + 1}')
    for i in range(3):
        if i < 2:
            a(f's_add_u32 s{sU}, s{sXO}, {lb_dst + L_XN + i * 16384}')
        else:
            a(f's_add_u32 s{sU}, s{sXO}, s{sV}')
            a(f's_add_u32 s{sU}, s{sU}, {lb_dst + L_XN}')
        a(f'buffer_store_dwordx4 {vr(P + 4 * i, 4)}, v{AD}, {WS}, s{sU} offen sc1')
    a(f's_add_u32 s{sT}, s{sBLK}, {fb_dst + FL_XN}')
    signal(a, sT)
    if rnd:
        a(f's_cmp_lt_u32 s{sUN}, 32')
        a(f's_cselect_b32 s{sT}, 160, 32')
        a(f's_add_u32 s{sUN}, s{sUN}, s{sT}')
        a(f's_cmp_lt_u32 s{sUN}, 256')
        a(f's_cbranch_scc1 {top}')


S_DBG = 76


def init_stores(a, sX):
    a(f's_lshl_b32 s{sT}, s{sGI}, 12')
    a(f'v_lshlrev_b32 v40, 4, v0')
    a(f'v_add_u32 v40, s{sT}, v40')
    for r in range(4):
        a(f'v_mov_b32 v{44 + r}, -1')
        a(f'v_mov_b32 v{48 + r}, 0')
    a('v_mov_b32 v41, 0x80000000')
    for base in (LAYER0 + L_MC, LAYER0 + LSTRIDE + L_MC):
        a(f's_mov_b32 s{sU}, {base}')
        a(f'buffer_store_dwordx4 v[44:47], v40, {WS}, s{sU} offen sc1')
    a(f'v_cmp_gt_u32 vcc, 0x{WS_STREAM - WS_MRING:x}, v40')
    a('v_cndmask_b32 v42, v41, v40, vcc')
    a(f's_mov_b32 s{sU}, {WS_MRING}')
    a(f'buffer_store_dwordx4 v[44:47], v42, {WS}, s{sU} offen sc1')
    a(f'v_cmp_gt_u32 vcc, 0x{2 * FSTRIDE:x}, v40')
    a('v_cndmask_b32 v42, v41, v40, vcc')
    a(f's_mov_b32 s{sU}, {WS_FLAGS}')
    a(f'buffer_store_dwordx4 v[48:51], v42, {WS}, s{sU} offen sc1')
    srd(a, S_B, 66, 10240)
    a('v_lshrrev_b32 v43, 4, v40')
    a('v_and_b32 v52, 7, v43')
    a('v_mul_u32_u24 v52, 0x500, v52')
    a('v_lshrrev_b32 v53, 3, v43')
    a('v_lshl_add_u32 v52, v53, 4, v52')
    a('v_cmp_gt_u32 vcc, 640, v43')
    a('v_cndmask_b32 v52, v41, v52, vcc')
    a('v_cndmask_b32 v53, v41, v40, vcc')
    a(f'buffer_load_dwordx4 v[56:59], v52, s[{S_B}:{S_B + 3}], 0 offen')
    a(f's_mov_b32 s{sU}, {WS_M0}')
    a('s_waitcnt vmcnt(0)')
    a(f'buffer_store_dwordx4 v[56:59], v53, {WS}, s{sU} offen sc1')
    a('s_waitcnt vmcnt(0)')
    a('s_barrier')
    a(f's_lshl_b32 s{sT}, s{sX}, 2')
    a(f's_add_u32 s{sT}, s{sT}, 32')
    a(f's_cmp_eq_u32 s{sWV}, 0')
    a(f's_cselect_b32 s{sT}, s{sT}, 0x1000')
    a('s_mov_b64 exec, 1')
    a('v_mov_b32 v40, 1')
    a(f'buffer_atomic_add v40, off, s[{S_DBG}:{S_DBG + 3}], s{sT}')
    a('s_mov_b64 exec, -1')


def init_wait(a, vl4, vt, s0, s1, s2):
    L = a.newlabel('iw')
    a(f'v_mbcnt_lo_u32_b32 v{vl4}, -1, 0')
    a(f'v_mbcnt_hi_u32_b32 v{vl4}, -1, v{vl4}')
    a(f'v_lshlrev_b32 v{vl4}, 2, v{vl4}')
    a.label(L)
    a(f'buffer_load_dword v{vt}, v{vl4}, s[{S_DBG}:{S_DBG + 3}], 0 offen offset:32 sc1')
    a('s_waitcnt vmcnt(0)')
    a(f'v_readlane_b32 s{s0}, v{vt}, 0')
    for i in range(1, 8):
        a(f'v_readlane_b32 s{s1}, v{vt}, {i}')
        a(f's_add_u32 s{s0}, s{s0}, s{s1}')
    a(f's_add_u32 s{s2}, s{s2}, 1')
    a(f's_cmp_ge_u32 s{s0}, 160')
    a(f's_cbranch_scc1 {L}_ok')
    a(f's_cmp_lt_u32 s{s2}, {C.SPINMAX}')
    a(f's_cbranch_scc1 {L}')
    a.label(f'{L}_ok')
    a('s_barrier')


def role_index(a):
    L = a.newlabel('ri')
    a(f's_lshl_b32 s{sT}, s{sNH}, 2')
    a(f's_cmp_ge_u32 s{sLI}, s{sT}')
    a(f's_cbranch_scc1 {L}_sp')
    a(f's_mul_i32 s51, s{sJ}, 20')
    a(f's_lshl_b32 s{sT}, s{sJ}, 4')
    a(f's_add_u32 s{sT}, s{sT}, 16')
    a(f's_cmp_lt_u32 s{sJ}, 4')
    a(f's_cselect_b32 s51, s51, s{sT}')
    a(f's_add_u32 s51, s51, s{sLI}')
    a(f's_cmp_lt_u32 s51, 40')
    a(f's_cselect_b32 s{sT}, 20, 28')
    a(f's_add_u32 s{sRI}, s51, s{sT}')
    a(f's_branch {L}')
    a.label(f'{L}_sp')
    a(f's_lshl_b32 s51, s{sJ}, 1')
    a(f's_sub_u32 s51, s51, 20')
    a(f's_lshl_b32 s{sT}, s{sJ}, 3')
    a(f's_sub_u32 s{sT}, s{sT}, 40')
    a(f's_cmp_lt_u32 s{sJ}, 4')
    a(f's_cselect_b32 s51, s51, s{sT}')
    a(f's_add_u32 s51, s51, s{sLI}')
    a(f's_cmp_lt_u32 s51, 28')
    a(f's_cselect_b32 s{sT}, 40, 128')
    a(f's_cmp_lt_u32 s51, 20')
    a(f's_cselect_b32 s{sT}, 0, s{sT}')
    a(f's_add_u32 s{sRI}, s51, s{sT}')
    a.label(L)
```

```python
import sys
from asmlib import *
from layout import *
from common import *
import chain as C
import bulk as B
import small as S
import mega as M


def mega_kernel(a, kname, force_slow, name):
    tm = C.OPT.get('timing')
    kernel_head(a, kname)
    a(f's_cmp_lt_u32 s2, {NWG}')
    a(f's_cbranch_scc1 {name}_go')
    a('s_endpgm')
    a.label(f'{name}_go')
    if C.OPT.get('dbgt'):
        a('s_memrealtime s[98:99]')
    a(f's_load_dwordx8 s[{C.sPTR}:{C.sPTR + 7}], s[0:1], {KA_WQ}')
    a(f's_load_dwordx4 s[{B.sXP}:{B.sXP + 3}], s[0:1], {KA_X}')
    a(f's_load_dwordx4 s[72:75], s[0:1], {KA_DBG}')
    a(f's_load_dwordx8 s[{M.sBP}:{M.sBP + 7}], s[0:1], {KA_W1}')
    a(f's_load_dwordx2 s[{M.sOUTP}:{M.sOUTP + 1}], s[0:1], {KA_OUT}')
    a('s_getpc_b64 s[96:97]')
    a.label(f'{name}_pc')
    a('s_waitcnt lgkmcnt(0)')
    a('s_mov_b32 s0, 0')
    srd(a, C.S_WS, 74, WS_SIZE)
    srd(a, 76, 72, 64)
    if C.OPT.get('dbgt'):
        a('s_mov_b64 s[100:101], s[72:73]')
    team_select(a, 76, 80, 81, 84, 82, 83, 92, 94, force_slow)
    if not C.OPT.get('nocp'):
        a('s_and_b32 s92, s81, 31')
        a('s_lshl_b32 s92, s92, 13')
        a('v_lshlrev_b32 v1, 4, v0')
        a('v_add_u32 v1, s92, v1')
        a(f's_mov_b32 s92, {name}_codeend-{name}_pc-16')
        a('v_add_u32 v2, 0x1000, v1')
        a('v_min_u32 v1, s92, v1')
        a('v_min_u32 v2, s92, v2')
        a('global_load_dwordx4 v[4:7], v1, s[96:97]')
        a('global_load_dwordx4 v[8:11], v2, s[96:97]')
        a('s_waitcnt vmcnt(0)')
    a('s_cmp_eq_u32 s82, 0')
    a(f's_cbranch_scc1 {name}_worker')
    a(f's_mov_b32 s{C.sH}, s83')
    if tm:
        a('s_memrealtime s[2:3]')
    C.chain_consts(a)
    C.chain_load_weights(a)
    C.chain_init_state(a)
    M.init_wait(a, 12, 13, C.sTMP, C.sTMP2, C.sSPIN)
    a(f's_mov_b32 s{C.sNSTEP}, 63')
    a(f's_mov_b32 s59, s82')
    if tm:
        a('s_memrealtime s[88:89]')
        a('s_waitcnt lgkmcnt(0)')
        a('s_sub_u32 s3, s88, s2')
        if C.OPT.get('wlt'):
            for i, r in enumerate((64, 66, 68, 90, 92, 94, 96, 88)):
                a(f's_sub_u32 s{r}, s{r}, s2')
                a(f'v_mov_b32 v{12 + i}, s{r}')
            a(f's_lshl_b32 s88, s{C.sH}, 5')
            a(f's_add_u32 s88, s88, {0xF30000}')
            a(f'buffer_store_dwordx4 v[12:15], off, s[4:7], s88')
            a(f'buffer_store_dwordx4 v[16:19], off, s[4:7], s88 offset:16')
    if C.OPT.get('dbgt'):
        a('s_memrealtime s[90:91]')
    a.label(f'{name}_layer')
    C.chain_layer_state(a)
    if C.OPT.get('dbgt'):
        a('s_mov_b32 s92, s94')
        a('s_mov_b32 s93, s96')
        a('s_memrealtime s[94:95]')
    if tm:
        a('s_memrealtime s[56:57]')
        a('s_memtime s[88:89]')
        a('s_waitcnt lgkmcnt(0)')
        a('s_mov_b32 s58, s88')
        for i in range(12):
            a(f's_mov_b32 s{90 + i}, 0')
    a('s_cmp_eq_u32 s59, 2')
    a(f's_cbranch_scc1 {name}_slow')
    C.chain_step(a, '', name + 'cf', tm)
    a(f's_branch {name}_fin')
    a.label(f'{name}_slow')
    C.chain_step(a, ' sc1', name + 'cs', tm)
    a.label(f'{name}_fin')
    if C.OPT.get('dbgt'):
        a('s_memrealtime s[96:97]')
        a('s_waitcnt lgkmcnt(0)')
    if tm:
        a('s_memrealtime s[64:65]')
        a('s_memtime s[88:89]')
        a('s_waitcnt lgkmcnt(0)')
        a('s_sub_u32 s101, s88, s58')
        a('s_sub_u32 s64, s64, s2')
        a('s_sub_u32 s56, s56, s2')
        for i in range(12):
            a(f'v_mov_b32 v{12 + i}, s{90 + i}')
        a('s_and_b32 s66, s22, 0x20000')
        a('s_lshr_b32 s66, s66, 4')
        a(f's_lshl_b32 s88, s{C.sH}, 2')
        a(f's_add_u32 s88, s88, s{C.sWV}')
        a('s_lshl_b32 s88, s88, 6')
        a('s_add_u32 s88, s88, s66')
        a(f's_add_u32 s88, s88, {0xF00000}')
        for i in range(3):
            a(f'buffer_store_dwordx4 v[{12 + 4 * i}:{15 + 4 * i}], off, s[{C.S_WS}:{C.S_WS + 3}], s88 offset:{16 * i}')
        a('s_nop 1')
        a('v_mov_b32 v12, s56')
        a('v_mov_b32 v13, s64')
        a('v_mov_b32 v14, s3')
        a('v_mov_b32 v15, s2')
        a(f'buffer_store_dwordx4 v[12:15], off, s[{C.S_WS}:{C.S_WS + 3}], s88 offset:48')
    a(f's_cmp_eq_u32 s{C.sLB}, {LAYER0}')
    a(f's_mov_b32 s{C.sLB}, {LAYER0 + LSTRIDE}')
    a(f's_cbranch_scc0 {name}_tend')
    a(f's_add_u32 s{C.sFLB}, s{C.sFLB}, {FSTRIDE}')
    a(f's_branch {name}_layer')
    a.label(f'{name}_tend')
    if C.OPT.get('dbgt'):
        a(f's_lshl_b32 s88, s{C.sH}, 2')
        a(f's_or_b32 s88, s88, s{C.sWV}')
        a('s_cmp_eq_u32 s88, 0')
        a('s_cselect_b32 s88, 32, 0x1000')
        for i, r in enumerate((90, 92, 93, 94, 96)):
            a(f's_sub_u32 s{r}, s{r}, s98')
            a(f'v_mov_b32 v{12 + i}, s{r}')
        a('v_mov_b32 v17, s98')
        a('buffer_store_dwordx4 v[12:15], off, s[76:79], s88')
        a('buffer_store_dwordx2 v[16:17], off, s[76:79], s88 offset:16')
    a('s_endpgm')
    a.label(f'{name}_worker')
    a(f's_mov_b32 s{B.sWI}, s83')
    B.worker_setup(a)
    a(f's_lshl_b32 s{B.sT}, s{B.sNH}, 1')
    a(f's_cmp_lt_u32 s{B.sLI}, s{B.sT}')
    a(f's_cbranch_scc0 {name}_gw')
    a(f's_and_b32 s3, s{B.sLI}, 1')
    a(f's_lshr_b32 s{B.sLI}, s{B.sLI}, 1')
    a(f's_mul_i32 s{C.sH}, s{B.sLI}, 7')
    a(f's_add_u32 s{C.sH}, s{C.sH}, s{B.sJ}')
    B.att_phase(a)
    a('s_endpgm')
    a.label(f'{name}_gw')
    a(f's_sub_u32 s{B.sLI}, s{B.sLI}, s{B.sT}')
    a(f's_mul_i32 s{B.sGI}, s{B.sJ}, 22')
    a(f's_mul_i32 s{B.sT}, s{B.sJ}, 24')
    a(f's_sub_u32 s{B.sT}, s{B.sT}, 8')
    a(f's_cmp_lt_u32 s{B.sJ}, 4')
    a(f's_cselect_b32 s{B.sGI}, s{B.sGI}, s{B.sT}')
    a(f's_add_u32 s{B.sGI}, s{B.sGI}, s{B.sLI}')
    M.role_index(a)
    M.init_stores(a, 80)
    for layer in range(2):
        lb = LAYER0 + layer * LSTRIDE
        fb = WS_FLAGS + layer * FSTRIDE
        B.wstamp(a, 0)
        B.qkv_pre(a, f'{name}_nq{layer}')
        if layer == 0:
            M.init_wait(a, 40, 41, B.sT, B.sU, B.sSPIN)
        B.qkv_phase(a, lb, fb, True,
                    lambda: M.ln1f_phase(a, lb - LSTRIDE, lb, fb - FSTRIDE, fb, 0, layer == 0))
        a(f's_branch {name}_dq{layer}')
        a.label(f'{name}_nq{layer}')
        if layer == 0:
            M.init_wait(a, 40, 41, B.sT, B.sU, B.sSPIN)
        M.ln1f_phase(a, lb - LSTRIDE, lb, fb - FSTRIDE, fb, 1, layer == 0)
        a.label(f'{name}_dq{layer}')
        B.wstamp(a, 1)
        a(f's_cmp_lt_u32 s{B.sRI}, {NWO}')
        a(f's_cbranch_scc0 {name}_nwo{layer}')
        B.wo_phase(a, lb, fb, layer)
        a(f's_branch {name}_g2p{layer}')
        a.label(f'{name}_nwo{layer}')
        a(f's_cmp_lt_u32 s{B.sRI}, {NWO + NLN}')
        a(f's_cbranch_scc0 {name}_nln{layer}')
        M.ln2_role(a, lb, fb)
        a(f's_branch {name}_g2p{layer}')
        a.label(f'{name}_nln{layer}')
        a(f's_cmp_lt_u32 s{B.sRI}, {NWO + NLN + NG1}')
        a(f's_cbranch_scc0 {name}_g2p{layer}')
        if layer == 0:
            M.w2f_prep(a)
        M.g2_pre(a, layer == 0)
        M.g1p_role(a, lb, fb)
        B.wstamp(a, 3)
        a(f's_branch {name}_g2{layer}')
        a.label(f'{name}_g2p{layer}')
        B.wstamp(a, 3)
        M.g2_pre(a, layer == 0)
        a.label(f'{name}_g2{layer}')
        M.g2_phase(a, lb, fb, layer == 1)
        B.wstamp(a, 7)
        B.wstamp(a, 5)
        B.wdump(a, layer)
    if C.OPT.get('dbgt'):
        a('s_waitcnt vmcnt(0)')
        a('s_memrealtime s[96:97]')
        a('s_waitcnt lgkmcnt(0)')
        srd(a, 76, 100, 64)
        a(f's_cmp_eq_u32 s{B.sGI}, 0')
        a('s_cselect_b32 s88, 56, 0x1000')
        a('v_mov_b32 v12, s96')
        a('v_mov_b32 v13, s98')
        a('buffer_store_dwordx2 v[12:13], off, s[76:79], s88')
    a('s_endpgm')
    a.label(f'{name}_codeend')


def build(force_slow=False):
    a = Asm()
    launches = []
    descs = ''
    n = 'interleave_layers__memory_aug_recurrent_mem_tr__mixer_token_mlp__prompt_kernel'
    mega_kernel(a, n, force_slow, 'mk')
    launches.append((n, 256, 256, 163840)); descs += kernel_desc(n)
    a.fix_hazards()
    for e in a.verify_waits():
        print('WAITERR', e)
    hdr = ''.join(f'; @launch kernel={n} grid=({g},1,1) block=({b},1,1) lds={l}\n' for n, g, b, l in launches)
    hdr += '.amdgcn_target "amdgcn-amd-amdhsa--gfx950"\n.text\n'
    return hdr + a.text() + '.section .rodata,"a"\n' + descs, a


if __name__ == '__main__':
    C.OPT['stamps'] = []
    for o in sys.argv[2:]:
        if o.startswith('st='):
            C.OPT['stamps'] = o[3:].split(',')
            C.OPT['timing'] = True
        elif '=' in o:
            k, v = o.split('=')
            C.OPT[k] = ' ' + v.replace('+', ' ')
        else:
            C.OPT[o] = True
    s, a = build('slow' in sys.argv[2:])
    if C.OPT.get('timing'):
        s = s.replace('.amdgcn_target', '; STAMPS ' + ' '.join(map(str, C.OPT['used'])) + '\n.amdgcn_target', 1)
    open(sys.argv[1], 'w').write(s)
    print(len(a.ins), 'instrs', len(s), 'bytes')
```
